```python
import torch

def _softmax(x, axis=-1):
    return torch.softmax(x, dim=axis)

def _gelu(x):
    return torch.nn.functional.gelu(x, approximate='tanh')

def _silu(x):
    return torch.nn.functional.silu(x)

def _sigmoid(x):
    return torch.sigmoid(x)

def _layernorm(x, axis=-1, eps=1e-05):
    m = x.mean(dim=axis, keepdim=True)
    v = x.var(dim=axis, keepdim=True, unbiased=False)
    return (x - m) / torch.sqrt(v + eps)

def _scatter_add(tgt, idx, src, axis=0):
    return tgt.clone().index_add_(axis, idx, src)

def _segment_sum(src, seg, n):
    out = torch.zeros((n,) + src.shape[1:], dtype=src.dtype)
    return out.index_add_(0, seg, src)

def _pad(x, pw):
    flat = tuple((v for pair in reversed(pw) for v in pair))
    return torch.nn.functional.pad(x, flat)
kernel_name = 'parallel_sum__memory_aug_recurrent_mem_tr__moe_arch_mod__prompt'

def setup_inputs():

    _w = lambda a: (lambda t: t.to(torch.bfloat16) if t.is_floating_point() else t)(torch.as_tensor(a))

    def _A_setup():
        B, S, Dm = (1, 2048, 448)
        H, Dh = (16, 256)
        M, seg = (8, 32)
        seg = min(seg, S)
        S = S // seg * seg
        return {'x': _w((lambda *s: torch.randn(*s, dtype=torch.bfloat16) * 0.05)(B, S, Dm)), 'mem0': _w((lambda *s: torch.randn(*s, dtype=torch.bfloat16) * 1.6)(B, M, Dm)), 'Wq': _w((lambda *s: torch.randn(*s, dtype=torch.bfloat16) * 0.8)(Dm, H, Dh) * Dm ** (-0.5)), 'Wk': _w((lambda *s: torch.randn(*s, dtype=torch.bfloat16) * 0.8)(Dm, H, Dh) * Dm ** (-0.5)), 'Wv': _w((lambda *s: torch.randn(*s, dtype=torch.bfloat16) * 1.6)(Dm, H, Dh) * Dm ** (-0.5)), 'Wo': _w((lambda *s: torch.randn(*s, dtype=torch.bfloat16) * 1.6)(H, Dh, Dm) * (H * Dh) ** (-0.5)), 'seg_len': seg}
    _A_in = _A_setup()

    def _B_setup():
        B, S, D, F, C = (1, 2048, 448, 1792, 8)
        return {'x': _w((lambda *s: torch.randn(*s, dtype=torch.bfloat16) * 0.05)(B, S, D)), 'w_r': _w((lambda *s: torch.randn(*s, dtype=torch.bfloat16) * 0.05)(D)), 'w_gate': _w((lambda *s: torch.randn(*s, dtype=torch.bfloat16) * 0.05)(D, F)), 'w_up': _w((lambda *s: torch.randn(*s, dtype=torch.bfloat16) * 0.05)(D, F)), 'w_down': _w((lambda *s: torch.randn(*s, dtype=torch.bfloat16) * 0.05)(F, D))}
    _B_in = _B_setup()
    return {'A_x': _A_in['x'], 'A_mem0': _A_in['mem0'], 'A_Wq': _A_in['Wq'], 'A_Wk': _A_in['Wk'], 'A_Wv': _A_in['Wv'], 'A_Wo': _A_in['Wo'], 'A_seg_len': _A_in['seg_len'], 'B_x': _B_in['x'], 'B_w_r': _B_in['w_r'], 'B_w_gate': _B_in['w_gate'], 'B_w_up': _B_in['w_up'], 'B_w_down': _B_in['w_down']}

def reference(A_x, A_mem0, A_Wq, A_Wk, A_Wv, A_Wo, A_seg_len, B_x, B_w_r, B_w_gate, B_w_up, B_w_down):

    def _A_ref(x, mem0, Wq, Wk, Wv, Wo, seg_len):
        B, S, Dm = x.shape
        H, Dh = (Wq.shape[1], Wq.shape[2])
        M = mem0.shape[1]
        scale = Dh ** (-0.5)
        n_seg = S // seg_len
        L = M + seg_len
        idx = torch.arange(L)
        mask = (idx[:, None] < M) | (idx[:, None] >= idx[None, :])
        mem = mem0
        outs = []
        for s in range(n_seg):
            xs = x[:, s * seg_len:(s + 1) * seg_len, :].clone()
            h = torch.concatenate([mem, xs], axis=1)
            q = torch.einsum('btd,dhe->bhte', h, Wq)
            k = torch.einsum('btd,dhe->bhte', h, Wk)
            v = torch.einsum('btd,dhe->bhte', h, Wv)
            scores = torch.einsum('bhqe,bhke->bhqk', q, k) * scale
            scores = torch.where(mask[None, None], scores, -1000000000.0)
            p = _softmax(scores, axis=-1)
            o = torch.einsum('bhqk,bhke->bhqe', p, v)
            o = torch.einsum('bhte,hed->btd', o, Wo)
            mem = o[:, :M, :].clone()
            outs.append(o[:, M:, :])
        return torch.concatenate(outs, axis=1)

    def _B_ref(x, w_r, w_gate, w_up, w_down):
        B, S, D = x.shape
        C = 8
        r = x @ w_r
        idx = torch.argsort(-r, axis=-1)[:, :C]
        idx_e = (lambda x, n, axis: torch.repeat_interleave(x, n, dim=axis))(idx.reshape(B, C, 1), D, axis=2)
        x_sel = (lambda x, i, axis: torch.take_along_dim(x, i, dim=axis))(x, idx_e, axis=1)
        g = _silu(x_sel @ w_gate)
        u = x_sel @ w_up
        y = g * u @ w_down
        r_sel = _sigmoid((lambda x, i, axis: torch.take_along_dim(x, i, dim=axis))(r, idx, axis=1))
        y = y * r_sel.reshape(B, C, 1)
        b_off = (torch.arange(B) * S).reshape(B, 1)
        flat_idx = (idx + b_off).reshape(B * C)
        zero = (x * 0.0).reshape(B * S, D)
        upd = _scatter_add(zero, flat_idx, y.reshape(B * C, D), axis=0)
        return x + upd.reshape(B, S, D)
    x = A_x
    xn = _layernorm(x, axis=-1)
    return x + _A_ref(xn, A_mem0, A_Wq, A_Wk, A_Wv, A_Wo, A_seg_len) + _B_ref(xn, B_w_r, B_w_gate, B_w_up, B_w_down)
```

```python
import re

REG_RE = re.compile(r'^(-|abs\()?([vas])(\d+|\[(\d+):(\d+)\])\)?$')

def regs_of(op):
    op = op.strip()
    if op in ('vcc',): return {('s', 'vcc_lo'), ('s', 'vcc_hi')}
    if op in ('vcc_lo', 'vcc_hi'): return {('s', op)}
    if op == 'exec': return {('s', 'exec')}
    if op == 'm0': return {('s', 'm0')}
    m = REG_RE.match(op)
    if not m: return set()
    k = m.group(2)
    if m.group(4) is not None:
        return {(k, i) for i in range(int(m.group(4)), int(m.group(5)) + 1)}
    return {(k, int(m.group(3)))}

TRANS = ('v_exp_f32', 'v_log_f32', 'v_rcp_f32', 'v_rsq_f32', 'v_sqrt_f32', 'v_sin_f32', 'v_cos_f32', 'v_rcp_iflag_f32')

def split_ops(rest):
    rest = rest.split(';')[0].strip()
    ops, depth, cur = [], 0, ''
    for ch in rest:
        if ch in '[(': depth += 1
        if ch in '])': depth -= 1
        if ch == ',' and depth == 0:
            ops.append(cur.strip()); cur = ''
        else:
            cur += ch
    if cur.strip(): ops.append(cur.strip())
    mods = ''
    if ops:
        parts = ops[-1].split(None, 1)
        ops[-1] = parts[0]
        if len(parts) > 1: mods = parts[1]
    return ops, mods

class Asm:
    def __init__(self):
        self.lines = []
        self.pos = 0
        self.reset_state()
        self.nops_added = 0
    def reset_state(self):
        self.valu_w = {}
        self.trans_w = {}
        self.mfma_w = {}
        self.mfma_c = {}
        self.store_r = {}
        self.salu_m0 = -100
        self.dot_w = {}
        self.valu_exec = -100
    def raw(self, text):
        self.lines.append(text)
    def label(self, name):
        self.lines.append(name + ':')
    def comment(self, t):
        self.lines.append('    ; ' + t)
    def nop(self, states):
        while states > 0:
            n = min(states, 16)
            self.lines.append(f'    s_nop {n-1}')
            self.pos += n; states -= n
    def flush(self, n=None):
        need = 0
        for r, p in self.valu_w.items(): need = max(need, (5 if r[0] == 's' else 2) - (self.pos - p))
        for r, (p, ps, _) in self.mfma_w.items(): need = max(need, {4: 8, 8: 12}[ps] - (self.pos - p))
        for r, p in self.dot_w.items(): need = max(need, 3 - (self.pos - p))
        for r, p in self.store_r.items(): need = max(need, 2 - (self.pos - p))
        need = max(need, 1 - (self.pos - self.salu_m0))
        if need > 0: self.nop(need)
    def __call__(self, text):
        for line in text.split('\n'):
            line = line.strip()
            if not line: continue
            if line.startswith(';'):
                self.lines.append('    ' + line); continue
            if line.endswith(':') and ' ' not in line:
                self.lines.append(line); continue
            self.inst(line)
    def inst(self, line):
        parts = line.split(None, 1)
        mn = parts[0]
        ops, mods = split_ops(parts[1]) if len(parts) > 1 else ([], '')
        R = [regs_of(o) for o in ops]
        need = 0
        def req(p, n):
            nonlocal need
            need = max(need, n - (self.pos - p))
        is_mfma = mn.startswith('v_mfma') or mn.startswith('v_smfmac')
        is_valu = mn.startswith('v_') and not is_mfma
        is_ds = mn.startswith('ds_')
        is_vmem = mn.startswith('buffer_') or mn.startswith('global_')
        dst, src = set(), set()
        srcC = set()
        if is_mfma:
            passes = 8 if '32x32' in mn else 4
            dst = R[0]
            if mn.startswith('v_smfmac'):
                srcC = R[0]; ab = R[1] | R[2] | R[3]
            else:
                srcC = R[3]; ab = R[1] | R[2]
            dkey = ops[0]
            for r in ab | srcC:
                if r in self.valu_w and r[0] != 's': req(self.valu_w[r], 2)
                if r in self.dot_w: req(self.dot_w[r], 3)
            for r in ab:
                if r in self.mfma_w:
                    p, ps, _ = self.mfma_w[r]; req(p, {4: 8, 8: 12}[ps])
            for r in srcC:
                if r in self.mfma_w:
                    p, ps, k = self.mfma_w[r]
                    same = (k == (ops[0] if mn.startswith('v_smfmac') else ops[3])) and ps == passes
                    if not same: req(p, {4: 6, 8: 10}[ps])
            for r in dst - srcC:
                if r in self.mfma_w:
                    p, ps, k = self.mfma_w[r]; req(p, {4: 6, 8: 10}[ps])
            req(self.valu_exec, 4)
        elif is_valu:
            base = mn.replace('_e32', '').replace('_e64', '').replace('_dpp', '').replace('_sdwa', '')
            if base.startswith('v_cmp'):
                dst = R[0]; src = set().union(*R[1:])
                if base.startswith('v_cmpx'): dst = dst | {('s', 'exec')}
            elif base in ('v_permlane32_swap_b32', 'v_permlane16_swap_b32', 'v_swap_b32'):
                dst = R[0] | R[1]; src = R[0] | R[1]
            elif base in ('v_add_co_u32', 'v_sub_co_u32', 'v_addc_co_u32', 'v_subb_co_u32'):
                dst = R[0] | R[1]; src = set().union(*R[2:])
            else:
                dst = R[0]; src = set().union(*R[1:]) if len(R) > 1 else set()
                if base.startswith('v_fmac') or base.startswith('v_dot2c') or base.startswith('v_pk_fmac') or base == 'v_writelane_b32' or 'dpp' in mn or 'row_' in mods or 'quad_perm' in mods:
                    src = src | R[0]
                if base.startswith('v_cndmask') and len(ops) == 3: src |= regs_of('vcc')
            isdpp = ('dpp' in mn) or ('row_' in mods) or ('quad_perm' in mods)
            isperm = base.startswith('v_permlane')
            isrl = base in ('v_readlane_b32', 'v_readfirstlane_b32')
            isdot = base.startswith('v_dot')
            for r in src:
                if r[0] == 's':
                    if r in self.valu_w:
                        req(self.valu_w[r], 4 if base in ('v_readlane_b32', 'v_writelane_b32') else 2)
                else:
                    if r in self.valu_w:
                        if isdpp or isperm: req(self.valu_w[r], 2)
                        if isrl: req(self.valu_w[r], 1)
                    if r in self.trans_w and base not in TRANS: req(self.trans_w[r], 1)
                    if r in self.dot_w:
                        if not (isdot and r in R[-1] and r not in (set().union(*R[1:-1]))): req(self.dot_w[r], 3)
            for r in (src | dst):
                if r in self.mfma_w:
                    p, ps, _ = self.mfma_w[r]; req(p, {4: 8, 8: 12}[ps])
            for r in dst:
                if r in self.mfma_c:
                    p, ps = self.mfma_c[r]; req(p, {4: 3, 8: 7}[ps])
                if r in self.store_r: req(self.store_r[r], 2)
                if r in self.dot_w and not isdot: req(self.dot_w[r], 3)
            if isdpp: req(self.valu_exec, 5)
            if isrl or isperm: req(self.valu_exec, 4)
        elif is_ds or is_vmem:
            allr = set().union(*R) if R else set()
            lds_dma = is_vmem and (mods.split() and 'lds' in mods.split() or 'load_lds' in mn)
            is_load = ('load' in mn or 'read' in mn or 'bpermute' in mn or 'swizzle' in mn or 'permute' in mn) and not lds_dma
            if 'atomic' in mn and 'sc0' in mods.split(): is_load = True
            if is_load: dst = R[0]; src = set().union(*R[1:]) if len(R) > 1 else set()
            else: src = allr
            if 'atomic' in mn: src = allr
            if 'd16' in mn and is_load: src = src | dst
            for r in src:
                if r[0] == 's' and r in self.valu_w and is_vmem: req(self.valu_w[r], 5)
                if r in self.dot_w: req(self.dot_w[r], 3)
            for r in (src | dst):
                if r in self.mfma_w:
                    p, ps, _ = self.mfma_w[r]; req(p, {4: 8, 8: 12}[ps])
            for r in dst:
                if r in self.store_r: req(self.store_r[r], 1)
                if r in self.mfma_c:
                    p, ps = self.mfma_c[r]; req(p, {4: 3, 8: 7}[ps])
            if lds_dma: req(self.salu_m0, 1)
        else:
            if mn == 's_nop':
                self.lines.append('    ' + line); self.pos += int(ops[0], 0) + 1; return
            if mn.startswith('s_cbranch_vcc') or mn.startswith('s_cbranch_exec'):
                pass
        if need > 0:
            self.nops_added += 1
            self.nop(need)
        self.lines.append('    ' + line)
        p = self.pos
        self.pos += 1
        p = self.pos
        if is_mfma:
            for r in dst:
                self.mfma_w[r] = (p, passes, ops[0]); self.valu_w.pop(r, None); self.trans_w.pop(r, None)
            for r in srcC: self.mfma_c[r] = (p, passes)
        elif is_valu:
            base = mn.replace('_e32', '').replace('_e64', '').replace('_dpp', '').replace('_sdwa', '')
            for r in dst:
                self.valu_w[r] = p; self.mfma_w.pop(r, None)
                if base in TRANS: self.trans_w[r] = p
                else: self.trans_w.pop(r, None)
                if base.startswith('v_dot'): self.dot_w[r] = p
                else: self.dot_w.pop(r, None)
                if r == ('s', 'exec'): self.valu_exec = p
        elif is_ds or is_vmem:
            for r in dst:
                self.valu_w.pop(r, None); self.mfma_w.pop(r, None); self.trans_w.pop(r, None)
            if is_vmem and 'store' in mn and ('x3' in mn or 'x4' in mn):
                for r in R[0] if mn.startswith('buffer') else R[1]: self.store_r[r] = p
            if is_vmem and 'store' in mn and 'x2' in mn:
                pass
        else:
            if ops and regs_of(ops[0]) == {('s', 'm0')} and mn.startswith('s_'): self.salu_m0 = p
            if mn.startswith('s_') and ops and not mn.startswith('s_cmp') and not mn.startswith('s_cbranch') and not mn.startswith('s_waitcnt'):
                for r in regs_of(ops[0]): self.valu_w.pop(r, None)
    def text(self):
        return '\n'.join(self.lines) + '\n'

def v(a, n=1): return f'v{a}' if n == 1 else f'v[{a}:{a+n-1}]'
def a_(a, n=1): return f'a{a}' if n == 1 else f'a[{a}:{a+n-1}]'
def s(a, n=1): return f's{a}' if n == 1 else f's[{a}:{a+n-1}]'
```

```python
from asmlib import *
import gen as G
from gen import srd, lane_setup, xreduce, wreg
import struct
def f2h(x): return hex(struct.unpack('<I', struct.pack('<f', x))[0])
LOG2E = f2h(1.4426950408889634)

def tile_c(A, dst, i, swave=3, sodd=24):
    if i < 6:
        A(f"s_mul_i32 s{dst}, s{swave}, 7\ns_add_u32 s{dst}, s{dst}, s{sodd}\ns_add_u32 s{dst}, s{dst}, {i}")
    else:
        A(f"s_mul_i32 s{dst}, s{sodd}, 6\ns_sub_u32 s{dst}, 6, s{dst}\ns_mul_i32 s{dst+1}, s{swave}, 7\ns_add_u32 s{dst}, s{dst}, s{dst+1}")

def load_weights7(A, wsrd, vl16, st=26):
    for i in range(7):
        tile_c(A, st, i)
        A(f"s_mul_i32 s{st}, s{st}, 14336")
        for u in range(14):
            A(f"buffer_load_dwordx4 {wreg(i, u)}, v{vl16}, s[{wsrd}:{wsrd+3}], s{st} offen offset:{(u % 4)*1024}")
            if u % 4 == 3: A(f"s_add_u32 s{st}, s{st}, 4096")

def gemm1_body(A, pfx):
    A(f"""
    s_and_b32 s24, s3, 1
    s_and_b32 s25, s22, 15
    v_lshlrev_b32 v4, 4, v1
    s_mul_i32 s26, s22, {G.WF_UNIT}
    s_add_u32 s26, s26, {hex(G.WF_OFF)}
    """)
    srd(A, 36, 18, "s26", G.WF_UNIT)
    srd(A, 40, 18, G.XNF_OFF, G.XN_SZ)
    def dma(seg_sgpr, buf_sgpr):
        A(f"""s_mul_i32 s28, s{seg_sgpr}, 28672
        s_mul_i32 s29, s3, 7168
        s_add_u32 s28, s28, s29
        s_add_u32 s29, s29, s{buf_sgpr}
        s_mov_b32 m0, s29""")
        for k in range(7):
            if k == 4: A("s_add_u32 s28, s28, 4096\ns_add_u32 s29, s29, 4096\ns_mov_b32 m0, s29")
            A(f"buffer_load_dwordx4 v4, s[40:43], s28 offen offset:{(k % 4)*1024} lds")
    A("s_mov_b32 s30, 0")
    dma(23, 30)
    load_weights7(A, 36, 4)
    A("s_cmp_ge_u32 s22, 16")
    A(f"s_cbranch_scc1 {pfx}_vo")
    acc = lambda tt, i: 64 + (tt*7 + i)*4
    for typ in (0, 1):
        L = f"{pfx}_{'kq' if typ == 0 else 'vo'}"
        if typ == 1: A.label(L); A.reset_state()
        if typ == 0:
            A(f"s_mul_i32 s26, s25, 28672\ns_add_u32 s26, s26, {hex(G.KQF_OFF)}")
            srd(A, 44, 18, "s26", 64*G.SEG_SZ - 15*28672)
            A("""s_mul_i32 s31, s3, 7
            s_add_u32 s31, s31, s24
            s_lshr_b32 s31, s31, 1
            s_lshl_b32 s31, s31, 10""")
            tile_c(A, 32, 6)
            A("s_lshr_b32 s32, s32, 1\ns_lshl_b32 s32, s32, 10\ns_lshl_b32 s33, s24, 3\nv_add_u32 v5, s33, v4")
        else:
            A(f"s_lshl_b32 s26, s25, 10\ns_add_u32 s26, s26, {hex(G.VOF_OFF)}")
            srd(A, 44, 18, "s26", 64*G.SEG_SZ - 15*1024)
            tile_c(A, 31, 0); A("s_lshl_b32 s31, s31, 14")
            tile_c(A, 32, 6); A("s_lshl_b32 s32, s32, 14")
        A("s_waitcnt vmcnt(0)\ns_barrier")
        A.label(L + "_loop"); A.reset_state()
        A(f"""
        v_add_u32 v6, s30, v4
        s_xor_b32 s30, s30, 28672
        s_add_u32 s34, s23, 7
        s_cmp_ge_u32 s34, 64
        s_cbranch_scc1 {L}_nodma
        """)
        dma(34, 30)
        A.label(L + "_nodma")
        xr = lambda u, tt: 48 + ((u % 2)*2 + tt)*4
        def rd(u):
            for tt in range(2): A(f"ds_read_b128 {v(xr(u, tt), 4)}, v6 offset:{(tt*14 + u)*1024}")
        rd(0)
        for u in range(14):
            if u + 1 < 14: rd(u + 1)
            A(f"s_waitcnt lgkmcnt({2 if u + 1 < 14 else 0})")
            for tt in range(2):
                for i in range(7):
                    c = v(acc(tt, i), 4) if u else "0"
                    if typ == 0: A(f"v_mfma_f32_16x16x32_bf16 {v(acc(tt, i), 4)}, {wreg(i, u)}, {v(xr(u, tt), 4)}, {c}")
                    else: A(f"v_mfma_f32_16x16x32_bf16 {v(acc(tt, i), 4)}, {v(xr(u, tt), 4)}, {wreg(i, u)}, {c}")
        A(f"s_mul_i32 s35, s23, {G.SEG_SZ}")
        nst = 0
        if typ == 0:
            for tt in range(2):
                A(f"s_add_u32 s28, s35, s31\ns_add_u32 s28, s28, {tt*14336}\ns_add_u32 s29, s35, s32\ns_add_u32 s29, s29, {tt*14336}")
                for p in range(3):
                    o = 16 + (tt*4 + p)*4
                    for e in range(2):
                        b = acc(tt, 2*p + e)
                        A(f"v_cvt_pk_bf16_f32 v{o+2*e}, v{b}, v{b+1}\nv_cvt_pk_bf16_f32 v{o+2*e+1}, v{b+2}, v{b+3}")
                    A(f"buffer_store_dwordx4 {v(o, 4)}, v4, s[44:47], s28 offen offset:{p*1024}"); nst += 1
                o = 16 + (tt*4 + 3)*4; b = acc(tt, 6)
                A(f"v_cvt_pk_bf16_f32 v{o}, v{b}, v{b+1}\nv_cvt_pk_bf16_f32 v{o+1}, v{b+2}, v{b+3}")
                A(f"buffer_store_dwordx2 {v(o, 2)}, v5, s[44:47], s29 offen"); nst += 1
        else:
            A("s_add_u32 s28, s35, s31")
            for i in range(7):
                o = 16 + i*4
                for tt in range(2):
                    b = acc(tt, i)
                    A(f"v_cvt_pk_bf16_f32 v{o+2*tt}, v{b}, v{b+1}\nv_cvt_pk_bf16_f32 v{o+2*tt+1}, v{b+2}, v{b+3}")
                if i == 6: A("s_add_u32 s28, s35, s32")
                A(f"buffer_store_dwordx4 {v(o, 4)}, v4, s[44:47], s28 offen"); nst += 1
                if i < 5: A("s_add_u32 s28, s28, 16384")
        A(f"""
        s_waitcnt vmcnt({nst})
        s_barrier
        s_add_u32 s23, s23, 7
        s_cmp_lt_u32 s23, 64
        """)
        A.flush()
        A(f"s_cbranch_scc1 {L}_loop")
        A(f"s_branch {pfx}_done")

def moe_body(A, pfx):
    srd(A, 36, 18, G.R_OFF, 8192)
    srd(A, 40, 18, G.XN_OFF, G.XN_SZ)
    srd(A, 44, 8, 0, 448*3584)
    srd(A, 48, 10, 0, 448*3584)
    srd(A, 52, 12, 0, 1792*896)
    srd(A, 56, 18, G.MOEP_OFF, G.MOEP_SZ)
    srd(A, 60, 18, G.IDX_OFF, 64)
    K, WG, WU, WD, XS = 16, 48, 0, 112, 160
    A("v_lshlrev_b32 v4, 4, v1")
    for k in range(8):
        A(f"s_mov_b32 s26, {(k//4)*4096}\nbuffer_load_dwordx4 {v(K+4*k, 4)}, v4, s[36:39], s26 offen offset:{(k % 4)*1024}")
    A(f"""
    v_mul_u32_u24 v5, {8*3584}, v3
    v_lshl_add_u32 v5, v2, 1, v5
    s_lshl_b32 s26, s22, 7
    s_lshl_b32 s27, s3, 5
    s_add_u32 s26, s26, s27
    v_add_u32 v5, s26, v5
    v_mul_u32_u24 v6, {4*896}, v3
    v_lshl_add_u32 v6, v2, 1, v6
    s_mul_i32 s26, s22, {64*896}
    s_mul_i32 s27, s3, 224
    s_add_u32 s26, s26, s27
    v_add_u32 v6, s26, v6
    """)
    A("s_waitcnt vmcnt(0)\ns_mov_b32 s28, 0xffff0000\ns_mov_b32 s29, 0x80000000")
    for k in range(8):
        for j in range(4):
            r = K + 4*k + j
            A(f"""v_ashrrev_i32 v7, 31, v{r}
            v_or_b32 v7, s29, v7
            v_xor_b32 v{r}, v7, v{r}
            v_lshlrev_b32 v7, 2, v1
            v_sub_u32 v7, {2047 - k*256 - j}, v7
            v_and_or_b32 v{r}, v{r}, s28, v7""")
    for u in range(14):
        for q in range(4): A(f"v_mov_b32 v{WG + 8*u + 4 + q}, 0\nv_accvgpr_write_b32 a{WU + 8*u + 4 + q}, 0")
    for f in range(28):
        for q in range(2): A(f"v_accvgpr_write_b32 a{WD + 4*f + 2 + q}, 0")
    for u in range(14):
        for j in range(8):
            if j % 2 == 0: A(f"s_mov_b32 s26, {(32*u + j)*3584}")
            hi = "_hi" if j % 2 else ""
            off = 3584 if j % 2 else 0
            op = "buffer_load_short_d16_hi" if j % 2 else "buffer_load_ushort"
            A(f"{op} v{WG + 8*u + 4*(j % 2) + j//2}, v5, s[44:47], s26 offen offset:{off}")
            A(f"{op} a{WU + 8*u + 4*(j % 2) + j//2}, v5, s[48:51], s26 offen offset:{off}")
    for wp in range(4):
        for j in range(4):
            A(f"s_mov_b32 s26, {(16*wp + j)*896}")
            hi = "_hi" if j % 2 else ""
            for i in range(7):
                op = "buffer_load_short_d16_hi" if j % 2 else "buffer_load_ushort"
                A(f"{op} a{WD + (i*4 + wp)*4 + 2*(j % 2) + j//2}, v6, s[52:55], s26 offen offset:{i*32}")
    for rnd in range(8):
        if rnd == 0:
            A(f"v_max3_u32 v7, v{K}, v{K+1}, v{K+2}")
            for r in range(3, 31, 2): A(f"v_max3_u32 v7, v7, v{K+r}, v{K+r+1}")
            A(f"v_max_u32 v7, v7, v{K+31}")
            op = "v_max_u32"
        else:
            A(f"s_sub_u32 s30, s{63+rnd}, 1")
            A(f"v_sub_u32 v7, s30, v{K}")
            for r in range(1, 31, 2):
                A(f"v_sub_u32 v8, s30, v{K+r}\nv_sub_u32 v9, s30, v{K+r+1}\nv_min3_u32 v7, v7, v8, v9")
            A(f"v_sub_u32 v8, s30, v{K+31}\nv_min_u32 v7, v7, v8")
            op = "v_min_u32"
        for rr in (8, 4, 2, 1): A(f"{op}_dpp v7, v7, v7 row_ror:{rr} row_mask:0xf bank_mask:0xf")
        xreduce(A, op, 7, 8)
        A(f"v_readfirstlane_b32 s{64+rnd}, v7")
        if rnd: A(f"s_nop 1\ns_sub_u32 s{64+rnd}, s30, s{64+rnd}")
        else: A("s_nop 1")
    for i in range(8):
        A(f"s_and_b32 s{64+i}, s{64+i}, 0xffff\ns_sub_u32 s{64+i}, 2047, s{64+i}")
    A("v_and_b32 v7, 7, v2\nv_mov_b32 v8, 0")
    for i in range(8):
        A(f"v_mov_b32 v9, s{64+i}\nv_cmp_ne_u32 vcc, {i}, v7\nv_cndmask_b32 v8, v9, v8, vcc")
    A(f"""
    v_mul_u32_u24 v9, 896, v8
    v_lshl_add_u32 v9, v3, 4, v9
    """)
    for u in range(14): A(f"buffer_load_dwordx4 {v(XS+4*u, 4)}, v9, s[40:43], 0 offen offset:{u*64}")
    A(f"""
    s_or_b32 s26, s22, s3
    s_cmp_lg_u32 s26, 0
    s_cbranch_scc1 {pfx}_noidx
    v_lshlrev_b32 v10, 2, v1
    s_mov_b64 exec, 0xff
    buffer_store_dword v8, v10, s[60:63], 0 offen
    s_mov_b64 exec, -1
    """)
    A.label(f"{pfx}_noidx")
    A("s_waitcnt vmcnt(0)")
    for u in range(14):
        for o in range(2):
            A(f"v_mfma_f32_16x16x32_bf16 v[16:19], {v(WG+8*u+4*o, 4)}, {v(XS+4*u, 4)}, {'v[16:19]' if (u or o) else '0'}")
            A(f"v_mfma_f32_16x16x32_bf16 v[20:23], {a_(WU+8*u+4*o, 4)}, {v(XS+4*u, 4)}, {'v[20:23]' if (u or o) else '0'}")
    A(f"s_mov_b32 s26, {LOG2E}")
    for p in range(2):
        A(f"""v_cvt_pk_bf16_f32 v24, v{16+2*p}, v{17+2*p}
        v_cvt_pk_bf16_f32 v25, v{20+2*p}, v{21+2*p}
        v_lshlrev_b32 v26, 16, v24
        v_and_b32 v27, s28, v24
        v_mul_f32 v28, s26, v26
        v_mul_f32 v29, s26, v27
        v_exp_f32 v28, -v28
        v_exp_f32 v29, -v29
        v_add_f32 v28, 1.0, v28
        v_add_f32 v29, 1.0, v29
        v_rcp_f32 v28, v28
        v_rcp_f32 v29, v29
        v_mul_f32 v26, v26, v28
        v_mul_f32 v27, v27, v29
        v_cvt_pk_bf16_f32 v24, v26, v27
        v_lshlrev_b32 v26, 16, v24
        v_and_b32 v27, s28, v24
        v_lshlrev_b32 v28, 16, v25
        v_and_b32 v29, s28, v25
        v_mul_f32 v26, v26, v28
        v_mul_f32 v27, v27, v29
        v_cvt_pk_bf16_f32 v{30+p}, v26, v27""")
    A("""v_lshlrev_b32 v10, 3, v0
    v_lshlrev_b32 v11, 3, v1
    ds_write_b64 v10, v[30:31]
    s_waitcnt lgkmcnt(0)
    s_barrier""")
    for wp in range(4): A(f"ds_read_b64 {v(32+2*wp, 2)}, v11 offset:{wp*512}")
    A(f"""s_waitcnt lgkmcnt(0)
    v_mul_u32_u24 v12, 1792, v2
    v_lshl_add_u32 v12, v3, 4, v12
    s_mul_i32 s26, s22, 14336
    s_mul_i32 s27, s3, 448
    s_add_u32 s26, s26, s27""")
    for i in range(7):
        for wp in range(4):
            d = v(WG + 4*i, 4)
            for o in range(2):
                A(f"v_mfma_f32_16x16x16_bf16 {d}, {a_(WD + (i*4 + wp)*4 + 2*o, 2)}, {v(32+2*wp, 2)}, {d if (wp or o) else '0'}")
    A("v_cmp_gt_u32 vcc, 8, v2\ns_and_saveexec_b64 s[30:31], vcc")
    for i in range(7):
        A(f"buffer_store_dwordx4 {v(WG + 4*i, 4)}, v12, s[56:59], s26 offen offset:{i*64}")
    A("s_mov_b64 exec, s[30:31]")

def k2(A):
    A.label("gemm1_kernel")
    A(f"""
    s_cmp_ge_u32 s2, 256
    s_cbranch_scc1 K2_done
    s_load_dwordx2 s[18:19], s[0:1], 112
    s_load_dwordx4 s[8:11], s[0:1], 72
    s_load_dwordx2 s[12:13], s[0:1], 88
    """)
    lane_setup(A)
    A(f"""
    s_and_b32 s20, s2, 7
    s_lshr_b32 s21, s2, 3
    s_waitcnt lgkmcnt(0)
    s_cmp_eq_u32 s20, 0
    s_cbranch_scc1 K2_moe
    s_sub_u32 s20, s20, 1
    s_lshl_b32 s20, s20, 5
    s_add_u32 s20, s20, s21
    s_mul_i32 s22, s20, 9363
    s_lshr_b32 s22, s22, 16
    s_mul_i32 s23, s22, 7
    s_sub_u32 s23, s20, s23
    """)
    gemm1_body(A, "K2")
    A.label("K2_moe"); A.reset_state()
    A("s_cmp_ge_u32 s21, 28\ns_cbranch_scc1 K2_done\ns_mov_b32 s22, s21")
    moe_body(A, "K2")
    A.label("K2_done")
    A("s_endpgm")

def rest():
    import kernels3
    return [("gemm1_kernel", k2, 256, 2*28672)] + kernels3.rest()
```

```python
from asmlib import *
import gen as G
from gen import srd, lane_setup, xreduce, wreg
from kernels2 import tile_c, load_weights7, f2h
import os
SPIN_MAX = 1 << 22
NINF = "0xff800000"

def interleave(A, main, side, per=2, lead=0):
    side = list(side)
    for k, m in enumerate(main):
        A(m)
        if k >= lead:
            for _ in range(per):
                if side: A(side.pop(0))
    for x in side: A(x)

def poll(A, L, n, reg0, srdn, voff, soff, tmp, bail, scnt=27):
    A(f"s_mov_b32 s{scnt}, 0")
    A.flush()
    A.label(L)
    for t in range(n):
        if t == 4: A(f"s_add_u32 s{scnt+1}, s{soff}, 4096")
        if t == 8: A(f"s_add_u32 s{scnt+1}, s{soff}, 8192")
        so = soff if t < 4 else scnt + 1
        A(f"buffer_load_dwordx4 {v(reg0+4*t, 4)}, v{voff}, s[{srdn}:{srdn+3}], s{so} offen offset:{(t % 4)*1024} sc1")
    A(f"s_add_u32 s{scnt}, s{scnt}, 1\ns_cmp_gt_u32 s{scnt}, {SPIN_MAX}\ns_cbranch_scc1 {bail}")
    for t in range(n):
        r = reg0 + 4*t
        A(f"s_waitcnt vmcnt({n-1-t})")
        if t == 0: A(f"v_pk_max_u16 v{tmp}, v{r}, v{r+1}")
        else: A(f"v_pk_max_u16 v{tmp}, v{tmp}, v{r}\nv_pk_max_u16 v{tmp}, v{tmp}, v{r+1}")
        A(f"v_pk_max_u16 v{tmp}, v{tmp}, v{r+2}\nv_pk_max_u16 v{tmp}, v{tmp}, v{r+3}")
    A(f"v_lshlrev_b32 v{tmp+1}, 16, v{tmp}\nv_max_u32 v{tmp}, v{tmp}, v{tmp+1}\nv_cmp_le_u32 vcc, s26, v{tmp}")
    A(f"s_cbranch_vccnz {L}")

def publish(A, L, stores):
    A(f"s_cmp_lg_u32 s65, 0\ns_cbranch_scc1 {L}_wt")
    for ex, st in stores:
        if ex: A(f"s_mov_b64 exec, {ex}")
        A(st)
    A(f"s_branch {L}_pd")
    A.label(f"{L}_wt")
    for ex, st in stores:
        if ex: A(f"s_mov_b64 exec, {ex}")
        A(st + " sc1")
    A.label(f"{L}_pd")
    A("s_mov_b64 exec, -1")

def team_flavor(A, bail):
    A(f"""
    v_lshlrev_b32 v5, 2, v1
    s_mov_b32 s27, 0
    s_mov_b64 exec, 0x3fffffff
    """)
    A.label("K3_fl");
    A(f"""
    buffer_load_dword v6, v5, s[60:63], 0 offen sc1
    s_add_u32 s27, s27, 1
    s_cmp_gt_u32 s27, {SPIN_MAX}
    s_cbranch_scc1 {bail}
    s_waitcnt vmcnt(0)
    v_cmp_eq_u32 vcc, 0, v6
    s_cbranch_vccnz K3_fl
    v_cmp_ne_u32 vcc, s29, v6
    s_mov_b64 exec, -1
    s_cmp_lg_u64 vcc, 0
    s_cselect_b32 s65, 1, 0
    """)

KQL, XSL, TL, SMX = 0, 57344, 143360, 150528
MF, TA, KX, SM, SXX, PXO = 8, 36, 64, 96, 100, 108

def a_dma(A, seg, kqo, xso):
    A(f"""s_mul_i32 s28, s{seg}, {G.SEG_SZ}
    s_mul_i32 s29, s3, 7168
    s_add_u32 s28, s28, s29
    s_add_u32 s30, s29, s{xso}
    s_mul_i32 s31, s{seg}, 28672
    s_add_u32 s31, s31, s29
    s_add_u32 s29, s29, s{kqo}
    s_mov_b32 m0, s30""")
    for k in range(7):
        if k == 4: A("s_add_u32 s31, s31, 4096\ns_add_u32 s30, s30, 4096\ns_mov_b32 m0, s30")
        A(f"buffer_load_dwordx4 v4, s[52:55], s31 offen offset:{(k % 4)*1024} lds")
    A("s_mov_b32 m0, s29")
    for k in range(7):
        if k == 4: A("s_add_u32 s28, s28, 4096\ns_add_u32 s29, s29, 4096\ns_mov_b32 m0, s29")
        A(f"buffer_load_dwordx4 v4, s[48:51], s28 offen offset:{(k % 4)*1024} lds")

def a_kx_preload(A, ts):
    A("v_add_u32 v119, s88, v4\nv_add_u32 v119, s93, v119")
    for k, t in enumerate(ts):
        for z in range(2):
            A(f"ds_read_b128 {v(KX + 8*k + 4*z, 4)}, v119 offset:{(2*t + z)*1024}")

def a_sxx(A):
    A("v_add_u32 v118, s88, v4\nv_add_u32 v119, s91, v4\nv_add_u32 v119, s94, v119")
    ring = lambda k: MF + (k % 4)*12
    def rd(k):
        A(f"ds_read_b128 {v(ring(k), 4)}, v118 offset:{k*1024}")
        A(f"ds_read_b128 {v(ring(k)+4, 4)}, v118 offset:{14336 + k*1024}")
        A(f"ds_read_b128 {v(ring(k)+8, 4)}, v119 offset:{k*1024}")
    rd(0); rd(1); rd(2)
    for k in range(14):
        if k + 3 < 14: rd(k + 3)
        A(f"s_waitcnt lgkmcnt({3*min(3, 13-k)})")
        for kt in range(2):
            d = v(SXX + 4*kt, 4)
            A(f"v_mfma_f32_16x16x32_bf16 {d}, {v(ring(k)+4*kt, 4)}, {v(ring(k)+8, 4)}, {d if k else '0'}")
    A(f"v_mov_b32 v118, {NINF}")
    for r in range(4):
        A(f"v_cndmask_b32 v{SXX+r}, v118, v{SXX+r}, s[{66+2*r}:{67+2*r}]")
        A(f"v_cndmask_b32 v{SXX+4+r}, v118, v{SXX+4+r}, s[{80+2*r}:{81+2*r}]")

def a_px_store(A):
    A(f"""s_mul_i32 s28, s95, {G.PXF_SEG}
    s_add_u32 s28, s28, s96
    buffer_store_dwordx4 {v(PXO, 4)}, v4, s[56:59], s28 offen
    s_add_u32 s28, s28, s97
    s_mov_b64 exec, s[78:79]
    buffer_store_dwordx2 {v(PXO+4, 2)}, v117, s[56:59], s28 offen
    s_mov_b64 exec, -1""")

def a_loop(A, role):
    L = f"K3a{role}"
    ts = [0, 1, 2, 3] if role == 1 else [4, 5, 6]
    if role == 1: a_sxx(A)
    a_kx_preload(A, ts)
    A.flush()
    A.label(L + "_loop"); A.reset_state()
    for r in range(TA, TA + 28): A(f"v_mov_b32 v{r}, 0")
    for r in range(SM, SM + 4): A(f"v_mov_b32 v{r}, 0")
    A(f"s_lshl_b32 s32, s64, 13\ns_waitcnt lgkmcnt(0)\ns_barrier")
    poll(A, L + "_poll", 7, MF, 40, 4, 32, 118, "K3_end")
    A(f"v_mov_b32 v118, s98\nv_mov_b32 v119, s99\nv_cndmask_b32 v118, v118, v119, s[100:101]")
    main = []
    for k, t in enumerate(ts):
        main.append(f"v_smfmac_f32_16x16x64_bf16 {v(SM, 4)}, {v(MF+4*t, 4)}, {v(KX+8*k, 8)}, v118")
    for t in range(7):
        main.append(f"v_smfmac_f32_16x16x64_bf16 {v(TA+24, 4)}, {v(MF+4*t, 4)}, {wreg(6, 2*t, 8)}, v118")
    for m in main[:4]: A(m)
    A(f"s_add_u32 s33, s64, 2\ns_cmp_ge_u32 s33, 64\ns_cbranch_scc1 {L}_nodma")
    a_dma(A, 33, 89, 92)
    A.label(L + "_nodma")
    if role == 1:
        A(f"s_cmp_eq_u32 s64, 0\ns_cbranch_scc1 {L}_nopx\ns_sub_u32 s95, s64, 1")
        a_px_store(A)
        A.label(L + "_nopx")
    post_smx = [f"v_permlane32_swap_b32 v{SM}, v{SM+1}", f"v_permlane32_swap_b32 v{SM+2}, v{SM+3}",
                f"v_add_f32 v{SM}, v{SM}, v{SM+1}", f"v_add_f32 v{SM+2}, v{SM+2}, v{SM+3}",
                f"ds_write_b32 v7, v{SM}", f"ds_write_b32 v7, v{SM+2} offset:128"]
    interleave(A, main[4:], post_smx, per=2, lead=2)
    b = TA + 24
    post = []
    for r in range(4): post.append(f"v_mov_b32 v{KX+r}, v{b+r}")
    for r in range(4): post.append(f"v_permlane32_swap_b32 v{b+r}, v{KX+r}")
    for r in range(4): post.append(f"v_add_f32 v{b+r}, v{b+r}, v{KX+r}")
    post += [f"v_cvt_pk_bf16_f32 v{b}, v{b}, v{b+1}", f"v_cvt_pk_bf16_f32 v{b+1}, v{b+2}, v{b+3}", f"ds_write_b64 v6, {v(b, 2)}"]
    for p in range(3):
        x, y = TA + 8*p, TA + 8*p + 4
        main = []
        for t in range(7):
            main.append(f"v_smfmac_f32_16x16x64_bf16 {v(x, 4)}, {v(MF+4*t, 4)}, {wreg(2*p, 2*t, 8)}, v118")
            main.append(f"v_smfmac_f32_16x16x64_bf16 {v(y, 4)}, {v(MF+4*t, 4)}, {wreg(2*p+1, 2*t, 8)}, v118")
        interleave(A, main, post, per=2, lead=3)
        post = []
        for r in range(4): post.append(f"v_permlane32_swap_b32 v{x+r}, v{y+r}")
        for r in range(4): post.append(f"v_add_f32 v{x+r}, v{x+r}, v{y+r}")
        post += [f"v_cvt_pk_bf16_f32 v{x}, v{x}, v{x+1}", f"v_cvt_pk_bf16_f32 v{x+1}, v{x+2}, v{x+3}", f"ds_write_b64 v5, {v(x, 2)} offset:{p*512}"]
    for x in post: A(x)
    A("s_waitcnt lgkmcnt(0)\ns_barrier")
    if role == 0:
        for t in range(7):
            for z in range(2): A(f"ds_read_b64_tr_b16 {v(TA + 4*t + 2*z, 2)}, v114 offset:{t*1024 + z*32}")
            if t == 3:
                pass
        for t in range(7):
            A(f"s_waitcnt lgkmcnt({2*(6-t)})" if t < 6 else "s_waitcnt lgkmcnt(0)")
            if t == 6:
                pass
            A(f"v_mfma_f32_16x16x32_bf16 {v(SM, 4)}, {v(TA+4*t, 4)}, {v(MF+4*t, 4)}, {v(SM, 4) if t else '0'}")
            if t == 0:
                pass
        for k in range(4): A(f"ds_read_b64 {v(KX + 2*k, 2)}, v115 offset:{k*512}")
        X = KX
        D, S = SM, TA
        for r in range(4): A(f"v_permlane32_swap_b32 v{D+r}, v{S+r}")
        A("s_waitcnt lgkmcnt(0)")
        A(f"v_pk_add_f32 {v(X, 2)}, {v(X, 2)}, {v(X+4, 2)}\nv_pk_add_f32 {v(X+2, 2)}, {v(X+2, 2)}, {v(X+6, 2)}")
        for r in range(4): A(f"v_add_f32_dpp v{D+r}, v{S+r}, v{D+r} row_ror:8 row_mask:0xf bank_mask:0xf")
        m, t1, l = TA+8, TA+9, TA+10
        A(f"""v_max3_f32 v{m}, v{D}, v{D+1}, v{D+2}
        v_mov_b32 v{t1}, {NINF}
        v_max_f32 v{m}, v{m}, v{D+3}
        v_max3_f32 v{l}, v{X}, v{X+1}, v{X+2}
        v_cndmask_b32 v{m}, v{t1}, v{m}, s[74:75]
        v_max3_f32 v{m}, v{m}, v{l}, v{X+3}""")
        xreduce(A, "v_max_f32", m, t1, steps=(8, 16, 32))
        for r in range(4): A(f"v_sub_f32 v{X+r}, v{X+r}, v{m}\nv_sub_f32 v{D+r}, v{D+r}, v{m}")
        for r in range(4): A(f"v_exp_f32 v{X+r}, v{X+r}\nv_exp_f32 v{D+r}, v{D+r}")
        A(f"""v_add_f32 v{l}, v{D}, v{D+1}
        v_add_f32 v{t1}, v{D+2}, v{D+3}
        v_add_f32 v{m}, v{X}, v{X+1}
        v_add_f32 v{l}, v{l}, v{t1}
        v_add_f32 v{t1}, v{X+2}, v{X+3}
        v_cndmask_b32 v{l}, 0, v{l}, s[74:75]
        v_add_f32 v{m}, v{m}, v{t1}
        v_add_f32 v{l}, v{l}, v{m}""")
        xreduce(A, "v_add_f32", l, t1, steps=(8, 16, 32))
        A(f"v_rcp_f32 v{l}, v{l}\ns_mul_i32 s32, s64, {G.PF_STRIDE}")
        for r in range(4): A(f"v_mul_f32 v{X+r}, v{X+r}, v{l}\nv_mul_f32 v{D+r}, v{D+r}, v{l}")
        A(f"""v_cvt_pk_bf16_f32 v{X}, v{X}, v{X+1}
        v_cvt_pk_bf16_f32 v{X+1}, v{X+2}, v{X+3}
        v_cvt_pk_bf16_f32 v{D}, v{D}, v{D+1}
        v_cvt_pk_bf16_f32 v{D+1}, v{D+2}, v{D+3}
        v_pk_min_u16 v{X}, v{X}, s25
        v_pk_min_u16 v{X+1}, v{X+1}, s25
        v_pk_min_u16 v{D}, v{D}, s25
        v_pk_min_u16 v{D+1}, v{D+1}, s25""")
        publish(A, L + "_pub", [(None, f"buffer_store_dwordx2 {v(X, 2)}, v116, s[44:47], s32 offen"),
                                ("s[74:75]", f"buffer_store_dword v{D}, v117, s[44:47], s32 offen"),
                                (None, f"buffer_store_dword v{D+1}, v117, s[44:47], s32 offen offset:128")])
    if role == 1:
        A("v_add_u32 v119, s90, v4\nv_add_u32 v119, s94, v119")
        ring = lambda k: MF + (k % 4)*8
        def rd(k):
            for z in range(2): A(f"ds_read_b64_tr_b16 {v(ring(k) + 2*z, 2)}, v114 offset:{k*512 + z*256}")
            A(f"ds_read_b128 {v(ring(k)+4, 4)}, v119 offset:{k*1024}")
        rd(0); rd(1); rd(2)
        for k in range(14):
            if k + 3 < 14: rd(k + 3)
            A(f"s_waitcnt lgkmcnt({3*min(3, 13-k)})")
            A(f"v_mfma_f32_16x16x32_bf16 {v(SM, 4)}, {v(ring(k), 4)}, {v(ring(k)+4, 4)}, {v(SM, 4) if k else '0'}")
        m, t1, l = TA+16, TA+17, TA+18
        vals = list(range(SM, SM + 12))
        A(f"v_max3_f32 v{m}, v{SXX}, v{SXX+1}, v{SXX+2}")
        for r in (3, 5): A(f"v_max3_f32 v{m}, v{m}, v{SXX+r}, v{SXX+r+1}")
        A(f"v_max3_f32 v{m}, v{m}, v{SXX+7}, v{SM}\nv_max3_f32 v{m}, v{m}, v{SM+1}, v{SM+2}\nv_max_f32 v{m}, v{m}, v{SM+3}")
        xreduce(A, "v_max_f32", m, t1)
        for r in vals: A(f"v_sub_f32 v{r}, v{r}, v{m}")
        for r in vals: A(f"v_exp_f32 v{r}, v{r}")
        A(f"v_add_f32 v{l}, v{SM}, v{SM+1}\nv_add_f32 v{t1}, v{SM+2}, v{SM+3}\nv_add_f32 v{l}, v{l}, v{t1}\nv_cndmask_b32 v{l}, 0, v{l}, s[76:77]")
        for r in range(8): A(f"v_add_f32 v{l}, v{l}, v{SXX+r}")
        xreduce(A, "v_add_f32", l, t1)
        A(f"v_rcp_f32 v{l}, v{l}")
        for r in vals: A(f"v_mul_f32 v{r}, v{r}, v{l}")
        for k in range(4): A(f"v_cvt_pk_bf16_f32 v{PXO+k}, v{SXX+2*k}, v{SXX+2*k+1}")
        for k in range(2): A(f"v_cvt_pk_bf16_f32 v{PXO+4+k}, v{SM+2*k}, v{SM+2*k+1}")
    A(f"s_cmp_eq_u32 s64, 63\ns_cbranch_scc1 {L}_exit")
    A("""s_add_u32 s64, s64, 1
    s_mov_b32 s28, s90
    s_mov_b32 s90, s91
    s_mov_b32 s91, s92
    s_mov_b32 s92, s28""")
    if role == 1:
        A("s_mov_b32 s34, s91\ns_mov_b32 s91, s90")
        a_sxx(A)
        A("s_mov_b32 s91, s34")
    a_kx_preload(A, ts)
    A("s_mov_b32 s28, s88\ns_mov_b32 s88, s89\ns_mov_b32 s89, s28")
    A.flush()
    A(f"s_branch {L}_loop")
    A.label(L + "_exit"); A.reset_state()
    if role == 1:
        A("s_mov_b32 s95, 63")
        a_px_store(A)
    A("s_branch K3_end")

def a_cu(A):
    A(f"s_mul_i32 s26, s22, {G.WF_UNIT}\ns_add_u32 s26, s26, {hex(G.WF_OFF)}")
    srd(A, 36, 18, "s26", G.WF_UNIT)
    A(f"s_mul_i32 s26, s22, 28672\ns_add_u32 s26, s26, {hex(G.KQF_OFF)}")
    srd(A, 48, 18, "s26", 64*G.SEG_SZ - 15*28672)
    srd(A, 52, 18, G.XNF_OFF, G.XN_SZ)
    srd(A, 56, 18, G.PXF_OFF, 64*G.PXF_SEG)
    A(f"""s_and_b32 s24, s3, 1
    s_mov_b32 s88, {KQL}
    s_mov_b32 s89, {KQL + 28672}
    s_mov_b32 s90, {XSL}
    s_mov_b32 s91, {XSL + 28672}
    s_mov_b32 s92, {XSL + 2*28672}
    s_mov_b32 s33, 0""")
    a_dma(A, 33, 88, 90)
    A("s_mov_b32 s33, 1")
    a_dma(A, 33, 89, 91)
    load_weights7(A, 36, 4, st=28)
    tile_c(A, 28, 0); tile_c(A, 30, 6)
    A(f"""
    v_and_b32 v7, 1, v3
    v_lshlrev_b32 v7, 7, v7
    v_lshl_add_u32 v7, v2, 3, v7
    v_lshrrev_b32 v8, 1, v3
    v_lshl_add_u32 v5, v8, 8, v7
    s_lshl_b32 s28, s28, 8
    s_add_u32 s28, s28, {TL}
    v_add_u32 v5, s28, v5
    s_lshl_b32 s30, s30, 8
    s_add_u32 s30, s30, {TL}
    v_add_u32 v6, s30, v7
    s_lshr_b32 s28, s3, 1
    s_mul_i32 s93, s28, 14336
    s_xor_b32 s29, s28, s24
    s_xor_b32 s29, s29, 1
    s_lshl_b32 s29, s29, 1
    s_add_u32 s29, s29, s28
    s_lshl_b32 s29, s29, 9
    s_add_u32 s29, s29, {SMX}
    v_and_b32 v7, 1, v3
    v_lshl_add_u32 v7, v7, 2, v8
    v_lshlrev_b32 v7, 6, v7
    v_lshl_add_u32 v7, v2, 2, v7
    v_add_u32 v7, s29, v7
    ; masks
    v_cmp_gt_u32 s[76:77], 2, v3
    v_cmp_gt_u32 vcc, 8, v2
    s_and_b64 s[74:75], s[76:77], vcc
    v_cmp_lt_u32 s[100:101], 7, v2
    s_and_b32 s28, s22, 1
    v_cmp_eq_u32 s[78:79], s28, v8
    s_mov_b32 s98, 0x4444
    s_mov_b32 s99, 0xeeee
    s_mov_b32 s25, 0xfffefffe
    s_mov_b32 s64, 0
    v_lshlrev_b32 v9, 2, v3
    """)
    for r in range(4):
        A(f"v_add_u32 v10, {r}, v9\nv_cmp_le_u32 s[{66+2*r}:{67+2*r}], v10, v2")
    A("s_cmp_eq_u32 s3, 2")
    for r in range(4):
        A(f"s_cselect_b64 s[{80+2*r}:{81+2*r}], s[{66+2*r}:{67+2*r}], 0\ns_cselect_b64 s[{66+2*r}:{67+2*r}], -1, s[{66+2*r}:{67+2*r}]")
    A(f"""
    s_cselect_b32 s94, 14336, 0
    s_cselect_b32 s96, 20480, 0
    s_lshl_b32 s28, s22, 10
    s_add_u32 s96, s96, s28
    s_lshr_b32 s29, s22, 2
    s_add_u32 s29, s29, 16
    s_lshl_b32 s97, s29, 10
    s_sub_u32 s97, s97, s28
    v_lshrrev_b32 v10, 2, v2
    v_and_b32 v11, 3, v2
    v_mov_b32 v115, 0
    v_mov_b32 v116, 0
    s_cmp_eq_u32 s3, 0
    s_cbranch_scc1 K3a_c0
    v_and_b32 v12, 1, v11
    v_lshlrev_b32 v12, 7, v12
    v_add_u32 v13, v9, v10
    v_lshl_add_u32 v114, v13, 3, v12
    v_add_u32 v114, {TL}, v114
    s_bfe_u32 s28, s22, 0x10001
    s_lshl_b32 s28, s28, 3
    v_add_u32 v117, s28, v4
    s_branch K3a_c1
    """)
    A.label("K3a_c0")
    A(f"""
    v_lshrrev_b32 v12, 1, v10
    v_lshl_add_u32 v12, v8, 1, v12
    v_lshlrev_b32 v114, 8, v12
    v_and_b32 v12, 1, v11
    v_lshl_add_u32 v114, v12, 7, v114
    v_and_b32 v12, 1, v3
    v_lshlrev_b32 v12, 3, v12
    v_and_b32 v13, 2, v11
    v_add_u32 v12, v12, v13
    v_and_b32 v13, 1, v10
    v_add_u32 v12, v12, v13
    v_lshl_add_u32 v114, v12, 3, v114
    v_add_u32 v114, {TL}, v114
    v_and_b32 v12, 7, v2
    v_lshrrev_b32 v13, 3, v2
    v_lshlrev_b32 v115, 6, v12
    v_lshl_add_u32 v115, v3, 4, v115
    v_lshl_add_u32 v115, v13, 3, v115
    v_add_u32 v115, {SMX}, v115
    v_lshlrev_b32 v116, 4, v2
    v_lshl_add_u32 v116, v8, 8, v116
    v_and_b32 v13, 1, v3
    v_lshl_add_u32 v116, v13, 3, v116
    s_lshl_b32 s28, s22, 9
    v_add_u32 v116, s28, v116
    v_lshlrev_b32 v117, 4, v12
    v_lshl_add_u32 v117, v3, 3, v117
    s_lshr_b32 s28, s22, 2
    s_lshl_b32 s28, s28, 9
    s_and_b32 s29, s22, 1
    s_lshl_b32 s29, s29, 8
    s_add_u32 s28, s28, s29
    s_bfe_u32 s29, s22, 0x10001
    s_lshl_b32 s29, s29, 2
    s_add_u32 s28, s28, s29
    s_add_u32 s28, s28, 8192
    v_add_u32 v117, s28, v117
    """)
    A.label("K3a_c1")
    A("s_mov_b32 s26, 0xffff0000\ns_waitcnt vmcnt(0)\ns_barrier")
    A(f"""s_mov_b32 s34, s91
    s_mov_b32 s91, s90
    s_cmp_eq_u32 s3, 0
    s_cbranch_scc1 K3a_r0
    s_cmp_eq_u32 s3, 3
    s_cbranch_scc1 K3a_r3""")
    for role, lab in ((1, None), (0, "K3a_r0"), (3, "K3a_r3")):
        if lab: A.label(lab); A.reset_state()
        a_loop_entry(A, role)

def a_loop_entry(A, role):
    L = f"K3a{role}"
    ts = [0, 1, 2, 3] if role == 1 else [4, 5, 6]
    import types
    a_loop2(A, role)

def a_loop2(A, role):
    orig_flush = A.flush
    state = {"first": True}
    def flush_once(n=None):
        if state["first"]:
            state["first"] = False
            A("s_mov_b32 s91, s34\ns_mov_b32 s28, s88\ns_mov_b32 s88, s89\ns_mov_b32 s89, s28")
        orig_flush()
    A.flush = flush_once
    a_loop(A, role)
    A.flush = orig_flush

WL, VOL, WZL = 0, 114688, 147456
def wregB(i, u, n=4):
    idx = 56*i + 4*u
    if idx < 256:
        assert idx + n <= 256
        return a_(idx, n)
    return v(176 + idx - 256, n)

def b_cu(A):
    BA, LW, Z, PFR, PA = 36, 68, 36, 116, 156
    srd(A, 36, 18, G.WF_OFF + 16*G.WF_UNIT, 16*G.WF_UNIT)
    srd(A, 48, 18, G.VOF_OFF, 64*G.SEG_SZ)
    srd(A, 52, 18, G.WZ_OFF, 64*G.WZ_SEG)
    for i in range(8):
        ct, q = i // 4, i % 4
        A(f"""s_lshl_b32 s28, s3, 2
        s_add_u32 s28, s28, {q}
        s_mul_i32 s28, s28, {G.WF_UNIT}
        s_mul_i32 s29, s22, 28672
        s_add_u32 s28, s28, s29
        s_add_u32 s28, s28, {ct*14336}""")
        if i >= 6:
            A(f"s_mul_i32 s29, s3, 28672\ns_add_u32 s29, s29, {WL + (i-6)*14336}\ns_mov_b32 m0, s29")
        for u in range(14):
            if i < 6: A(f"buffer_load_dwordx4 {wregB(i, u)}, v4, s[36:39], s28 offen offset:{(u % 4)*1024}")
            else: A(f"buffer_load_dwordx4 v4, s[36:39], s28 offen offset:{(u % 4)*1024} lds")
            if u % 4 == 3:
                A("s_add_u32 s28, s28, 4096")
                if i >= 6: A("s_add_u32 s29, s29, 4096\ns_mov_b32 m0, s29")
    A(f"""
    s_mul_i32 s28, s3, 28672
    v_add_u32 v5, s28, v4
    v_cmp_lt_u32 vcc, 7, v2
    v_mov_b32 v160, 0x4444
    v_mov_b32 v161, 0xeeee
    v_cndmask_b32 v160, v160, v161, vcc
    s_mov_b32 s25, 0xfffefffe
    s_mov_b32 s26, 0xffff0000
    s_mov_b32 s64, 0
    s_mov_b32 s66, {WZL}
    s_and_b32 s24, s3, 1
    s_lshl_b32 s28, s24, 14
    s_add_u32 s28, s28, {VOL}
    v_add_u32 v6, s28, v4
    ; mem store offset: c = 2j+ct ; t=c/4, ga=c%4 -> c*256 ; row=4(g&1)+g/2 ; + (row + 8*((n>>1)&1))*16 + (2*(n>>2)+(n&1))*2
    v_and_b32 v8, 1, v3
    v_lshrrev_b32 v9, 1, v3
    v_lshl_add_u32 v8, v8, 2, v9
    v_bfe_u32 v9, v2, 1, 1
    v_lshl_add_u32 v8, v9, 3, v8
    v_lshlrev_b32 v7, 4, v8
    v_lshrrev_b32 v9, 2, v2
    v_lshl_add_u32 v7, v9, 2, v7
    v_and_b32 v9, 1, v2
    v_lshl_add_u32 v7, v9, 1, v7
    s_lshl_b32 s28, s22, 1
    s_add_u32 s28, s28, s24
    s_lshl_b32 s67, s28, 12
    s_lshl_b32 s28, s28, 8
    v_add_u32 v7, s28, v7
    s_waitcnt vmcnt(0)
    """)
    L = "K3b"
    A.flush()
    A.label(L + "_loop"); A.reset_state()
    for r in range(BA, BA + 32): A(f"v_mov_b32 v{r}, 0")
    lw = lambda k: LW + (k % 4)*8
    def rdw(k):
        for z in range(2): A(f"ds_read_b128 {v(lw(k) + 4*z, 4)}, v5 offset:{(k // 7)*14336 + (2*(k % 7) + z)*1024}")
    for k in range(4): rdw(k)
    A("s_lshl_b32 s32, s64, 13")
    poll(A, L + "_pm", 7, MF, 40, 4, 32, 162, "K3_end")
    sm = lambda i, t, B: f"v_smfmac_f32_16x16x64_bf16 {v(BA+4*i, 4)}, {v(MF+4*t, 4)}, {B}, v160"
    for t in range(4): A(sm(0, t, wregB(0, 2*t, 8)))
    A(f"""s_mul_i32 s28, s64, {G.SEG_SZ}
    s_lshl_b32 s29, s22, 15
    s_add_u32 s28, s28, s29
    s_lshl_b32 s29, s3, 13
    s_add_u32 s28, s28, s29
    s_add_u32 s29, s29, {VOL}
    s_mov_b32 m0, s29""")
    for k in range(8):
        if k == 4: A("s_add_u32 s28, s28, 4096\ns_add_u32 s29, s29, 4096\ns_mov_b32 m0, s29")
        A(f"buffer_load_dwordx4 v4, s[48:51], s28 offen offset:{(k % 4)*1024} lds")
    for t in range(4, 7): A(sm(0, t, wregB(0, 2*t, 8)))
    for k in range(14):
        A(f"s_waitcnt lgkmcnt({2*min(3, 13-k)})")
        A(sm(6 + k // 7, k % 7, v(lw(k), 8)))
        i = 1 + k // 7
        A(sm(i, k % 7, wregB(i, 2*(k % 7), 8)))
        if k + 4 < 14: rdw(k + 4)
    def post(ct):
        o = []
        for beta in range(2):
            x, y = BA + 4*(ct*4 + 2*beta), BA + 4*(ct*4 + 2*beta + 1)
            for r in range(4): o.append(f"v_permlane32_swap_b32 v{x+r}, v{y+r}")
            for r in range(4): o.append(f"v_add_f32 v{x+r}, v{x+r}, v{y+r}")
            o.append(f"v_cvt_pk_bf16_f32 v{164+4*ct+2*beta}, v{x}, v{x+1}")
            o.append(f"v_cvt_pk_bf16_f32 v{165+4*ct+2*beta}, v{x+2}, v{x+3}")
        o.append(f"ds_write_b128 v163, {v(164+4*ct, 4)} offset:{ct*4096}")
        return o
    A("s_lshl_b32 s28, s3, 10\ns_add_u32 s28, s28, s66\nv_add_u32 v163, s28, v4")
    for t in range(7): A(sm(3, t, wregB(3, 2*t, 8)))
    main = []
    for t in range(7):
        main.append(sm(4, t, wregB(4, 2*t, 8))); main.append(sm(5, t, wregB(5, 2*t, 8)))
    interleave(A, main, post(0), per=2, lead=3)
    for x in post(1): A(x)
    A(f"s_waitcnt vmcnt(0) lgkmcnt(0)\ns_barrier\ns_cmp_ge_u32 s3, 2\ns_cbranch_scc1 {L}_copy")
    A(f"s_cmp_eq_u32 s64, 63\ns_cbranch_scc1 K3_end")
    A("s_lshl_b32 s28, s24, 12\ns_add_u32 s28, s28, s66\nv_add_u32 v163, s28, v4")
    for f in range(16):
        A(f"ds_read_b128 {v(Z + 4*f, 4)}, v6 offset:{f*1024}")
        if f == 11: A("s_waitcnt lgkmcnt(4)")
    for f in range(4): A(f"ds_read_b128 {v(Z + 64 + 4*f, 4)}, v163 offset:{f*1024}")
    for r in range(4): A(f"v_mov_b32 v{PA+r}, 0")
    A(f"s_mul_i32 s32, s64, {G.PF_STRIDE}\ns_waitcnt lgkmcnt(0)")
    poll(A, L + "_pp", 10, PFR, 44, 4, 32, 162, "K3_end")
    for u in range(10):
        A(f"v_smfmac_f32_16x16x64_bf16 {v(PA, 4)}, {v(PFR+4*u, 4)}, {v(Z+8*u, 8)}, v160")
    A(f"""s_lshl_b32 s32, s64, 13
    s_add_u32 s32, s32, 8192
    v_permlane32_swap_b32 v{PA}, v{PA+1}
    v_permlane32_swap_b32 v{PA+2}, v{PA+3}
    v_add_f32 v{PA}, v{PA}, v{PA+1}
    v_add_f32 v{PA+2}, v{PA+2}, v{PA+3}
    v_cvt_pk_bf16_f32 v{PA}, v{PA}, v{PA+2}
    v_pk_min_u16 v{PA}, v{PA}, s25""")
    publish(A, L + "_pub", [(None, f"buffer_store_short v{PA}, v7, s[40:43], s32 offen"),
                            (None, f"buffer_store_short_d16_hi v{PA}, v7, s[40:43], s32 offen offset:32")])
    A(f"s_branch {L}_next")
    A.label(L + "_copy"); A.reset_state()
    A("s_lshl_b32 s28, s24, 12\ns_add_u32 s28, s28, s66\nv_add_u32 v163, s28, v4")
    for f in range(4): A(f"ds_read_b128 {v(PFR + 4*f, 4)}, v163 offset:{f*1024}")
    A(f"s_mul_i32 s28, s64, {G.WZ_SEG}\ns_add_u32 s28, s28, s67\ns_waitcnt lgkmcnt(0)")
    for f in range(4): A(f"buffer_store_dwordx4 {v(PFR + 4*f, 4)}, v4, s[52:55], s28 offen offset:{f*1024}")
    A(f"s_cmp_eq_u32 s64, 63\ns_cbranch_scc1 K3_end")
    A.label(L + "_next")
    A(f"s_add_u32 s64, s64, 1\ns_xor_b32 s66, s66, {WZL ^ (WZL + 8192)}")
    A.flush()
    A(f"s_branch {L}_loop")

def k3(A):
    A.label("chain_kernel")
    A(f"""
    s_and_b32 s20, s2, 7
    s_lshr_b32 s21, s2, 3
    s_cmp_lg_u32 s20, 0
    s_cbranch_scc1 K3_end
    s_cmp_ge_u32 s21, 30
    s_cbranch_scc1 K3_end
    s_load_dwordx4 s[16:19], s[0:1], 104
    s_getreg_b32 s29, hwreg(HW_REG_XCC_ID, 0, 4)
    """)
    lane_setup(A)
    A("v_lshlrev_b32 v4, 4, v1\ns_add_u32 s29, s29, 1\ns_waitcnt lgkmcnt(0)")
    srd(A, 60, 16, 0, 256)
    srd(A, 40, 18, G.MEMF_OFF, 64*G.MEMF_STRIDE)
    srd(A, 44, 18, G.PF_OFF, 64*G.PF_STRIDE)
    A(f"""
    v_mov_b32 v5, s29
    s_lshl_b32 s28, s21, 2
    v_mov_b32 v6, s28
    s_mov_b64 exec, 1
    buffer_store_dword v5, v6, s[60:63], 0 offen sc1
    s_mov_b64 exec, -1
    """)
    team_flavor(A, "K3_end")
    A("s_cmp_ge_u32 s21, 16\ns_cbranch_scc1 K3_b\ns_mov_b32 s22, s21")
    a_cu(A)
    A.label("K3_b"); A.reset_state()
    A("s_sub_u32 s22, s21, 16")
    b_cu(A)
    A.label("K3_end")
    A("s_endpgm")

def rest():
    import kernels4
    return [("chain_kernel", k3, 256, 163840)] + kernels4.rest()
```

```python
from asmlib import *
import gen as G
from gen import srd, lane_setup, xreduce
from kernels2 import f2h, LOG2E

def gemm2_task(A, L):
    Z, XX, XN, UP, MP, ACC, PR = 16, 96, 100, 104, 112, 224, 232
    A(f"""s_mul_i32 s28, s22, {G.PXF_SEG}
    s_mul_i32 s29, s3, 10240
    s_add_u32 s28, s28, s29
    s_mov_b32 m0, s29""")
    for k in range(10):
        if k and k % 4 == 0: A("s_add_u32 s28, s28, 4096\ns_add_u32 s29, s29, 4096\ns_mov_b32 m0, s29")
        A(f"buffer_load_dwordx4 v4, s[36:39], s28 offen offset:{(k % 4)*1024} lds")
    A(f"""s_lshl_b32 s24, s23, 2
    s_add_u32 s24, s24, s3
    s_mul_i32 s28, s22, {G.SEG_SZ}
    s_lshl_b32 s29, s24, 14
    s_add_u32 s28, s28, s29""")
    for f in range(16):
        if f and f % 4 == 0: A("s_add_u32 s28, s28, 4096")
        A(f"buffer_load_dwordx4 {v(Z+4*f, 4)}, v4, s[40:43], s28 offen offset:{(f % 4)*1024}")
    A(f"s_mul_i32 s28, s22, {G.WZ_SEG}\ns_lshl_b32 s29, s24, 12\ns_add_u32 s28, s28, s29")
    for f in range(4): A(f"buffer_load_dwordx4 {v(Z+64+4*f, 4)}, v4, s[44:47], s28 offen offset:{f*1024}")
    A(f"""v_mul_u32_u24 v5, 896, v2
    v_lshl_add_u32 v5, v3, 3, v5
    s_mul_i32 s30, s22, {32*896}
    s_lshl_b32 s29, s24, 5
    s_add_u32 s30, s30, s29
    s_add_u32 s31, s30, {16*896}
    v_lshlrev_b32 v6, 2, v1""")
    for qt in range(2):
        A(f"buffer_load_dwordx2 {v(XX+2*qt, 2)}, v5, s[48:51], s{30+qt} offen")
        A(f"buffer_load_dwordx2 {v(XN+2*qt, 2)}, v5, s[52:55], s{30+qt} offen")
    A("buffer_load_dword v7, v6, s[60:63], 0 offen")
    for r in range(8): A(f"v_mov_b32 v{UP+r}, 0")
    A("s_waitcnt vmcnt(25)\ns_barrier")
    ring = lambda f: PR + (f % 3)*8
    def rd(f):
        for qt in range(2): A(f"ds_read_b128 {v(ring(f)+4*qt, 4)}, v4 offset:{qt*20480 + f*1024}")
    rd(0); rd(1)
    for f in range(20):
        if f + 2 < 20: rd(f + 2)
        A(f"s_waitcnt vmcnt({24 - f}) lgkmcnt({2*min(2, 19-f)})")
        for qt in range(2):
            d = v(ACC+4*qt, 4)
            A(f"v_mfma_f32_16x16x32_bf16 {d}, {v(Z+4*f, 4)}, {v(ring(f)+4*qt, 4)}, {d if f else '0'}")
    A(f"""s_waitcnt vmcnt(0)
    s_mov_b32 s26, 0xffff0000
    s_mov_b32 s32, 0
    s_lshl_b32 s33, s22, 5
    v_add_u32 v8, s33, v2
    v_add_u32 v9, 16, v8
    v_lshlrev_b32 v10, 4, v3""")
    A.flush()
    A.label(L + "_moe"); A.reset_state()
    A(f"""s_nop 3
    v_readlane_b32 s34, v7, s32
    s_nop 3
    s_lshr_b32 s35, s34, 5
    s_cmp_lg_u32 s35, s22
    s_cbranch_scc1 {L}_moen
    s_mul_i32 s28, s32, 1792
    s_lshl_b32 s29, s24, 6
    s_add_u32 s28, s28, s29
    s_lshl_b32 s29, s34, 2
    v_mov_b32 v11, s29
    buffer_load_dword v12, v11, s[64:67], 0 offen""")
    for m in range(28):
        A(f"buffer_load_dwordx4 {v(MP+4*m, 4)}, v10, s[56:59], s28 offen\ns_add_u32 s28, s28, 14336")
    A("s_waitcnt vmcnt(0)")
    for m in range(1, 28):
        A(f"v_pk_add_f32 {v(MP, 2)}, {v(MP, 2)}, {v(MP+4*m, 2)}\nv_pk_add_f32 {v(MP+2, 2)}, {v(MP+2, 2)}, {v(MP+4*m+2, 2)}")
    A(f"""v_mul_f32 v12, {LOG2E}, v12
    v_exp_f32 v12, -v12
    v_cvt_pk_bf16_f32 v{MP}, v{MP}, v{MP+1}
    v_add_f32 v12, 1.0, v12
    v_rcp_f32 v12, v12
    v_cvt_pk_bf16_f32 v{MP+2}, v{MP+2}, v{MP+3}
    v_cvt_pk_bf16_f32 v12, v12, v12
    v_and_b32 v12, s26, v12
    v_and_b32 v{MP+1}, s26, v{MP}
    v_lshlrev_b32 v{MP}, 16, v{MP}
    v_and_b32 v{MP+3}, s26, v{MP+2}
    v_lshlrev_b32 v{MP+2}, 16, v{MP+2}""")
    for r in range(4): A(f"v_mul_f32 v{MP+r}, v{MP+r}, v12")
    A(f"""v_cvt_pk_bf16_f32 v{MP}, v{MP}, v{MP+1}
    v_cvt_pk_bf16_f32 v{MP+2}, v{MP+2}, v{MP+3}
    v_and_b32 v{MP+1}, s26, v{MP}
    v_lshlrev_b32 v{MP}, 16, v{MP}
    v_and_b32 v{MP+3}, s26, v{MP+2}
    v_lshlrev_b32 v{MP+2}, 16, v{MP+2}""")
    for qt in range(2):
        A(f"v_cmp_eq_u32 vcc, s34, v{8+qt}")
        for r in range(4): A(f"v_cndmask_b32 v{UP+4*qt+r}, v{UP+4*qt+r}, v{MP+r}, vcc")
    A.flush()
    A.label(L + "_moen"); A.reset_state()
    A(f"s_add_u32 s32, s32, 1\ns_cmp_lt_u32 s32, 8\ns_cbranch_scc1 {L}_moe")
    T = MP
    for qt in range(2):
        for p in range(2):
            a0 = ACC + 4*qt + 2*p; u0 = UP + 4*qt + 2*p
            A(f"""v_cvt_pk_bf16_f32 v{T}, v{a0}, v{a0+1}
            v_lshlrev_b32 v{T+2}, 16, v{XX+2*qt+p}
            v_and_b32 v{T+3}, s26, v{XX+2*qt+p}
            v_and_b32 v{T+1}, s26, v{T}
            v_lshlrev_b32 v{T}, 16, v{T}
            v_lshlrev_b32 v{T+4}, 16, v{XN+2*qt+p}
            v_and_b32 v{T+5}, s26, v{XN+2*qt+p}
            v_pk_add_f32 {v(T, 2)}, {v(T, 2)}, {v(T+2, 2)}
            v_pk_add_f32 {v(T+4, 2)}, {v(T+4, 2)}, {v(u0, 2)}
            v_cvt_pk_bf16_f32 v{T}, v{T}, v{T+1}
            v_cvt_pk_bf16_f32 v{T+4}, v{T+4}, v{T+5}
            v_and_b32 v{T+1}, s26, v{T}
            v_lshlrev_b32 v{T}, 16, v{T}
            v_and_b32 v{T+5}, s26, v{T+4}
            v_lshlrev_b32 v{T+4}, 16, v{T+4}
            v_pk_add_f32 {v(T, 2)}, {v(T, 2)}, {v(T+4, 2)}
            v_cvt_pk_bf16_f32 v{T+8+2*qt+p}, v{T}, v{T+1}""")
        A(f"buffer_store_dwordx2 {v(T+8+2*qt, 2)}, v5, s[68:71], s{30+qt} offen")

def gemm2_srds(A):
    srd(A, 36, 18, G.PXF_OFF, 64*G.PXF_SEG)
    srd(A, 40, 18, G.VOF_OFF, 64*G.SEG_SZ)
    srd(A, 44, 18, G.WZ_OFF, 64*G.WZ_SEG)
    srd(A, 48, 4, 0, G.XN_SZ)
    srd(A, 52, 18, G.XN_OFF, G.XN_SZ)
    srd(A, 56, 18, G.MOEP_OFF, G.MOEP_SZ)
    srd(A, 60, 18, G.IDX_OFF, 32)
    srd(A, 64, 18, G.R_OFF, 8192)
    srd(A, 68, 6, 0, G.XN_SZ)

def k4(A):
    A.label("gemm2_kernel")
    A(f"""
    s_cmp_ge_u32 s2, 448
    s_cbranch_scc1 K4_end
    s_load_dwordx2 s[4:5], s[0:1], 0
    s_load_dwordx2 s[6:7], s[0:1], 96
    s_load_dwordx2 s[18:19], s[0:1], 112
    """)
    lane_setup(A)
    A("""v_lshlrev_b32 v4, 4, v1
    s_mul_i32 s22, s2, 9363
    s_lshr_b32 s22, s22, 16
    s_mul_i32 s23, s22, 7
    s_sub_u32 s23, s2, s23
    s_waitcnt lgkmcnt(0)""")
    gemm2_srds(A)
    gemm2_task(A, "K4")
    A.label("K4_end")
    A("s_endpgm")

def rest():
    return [("gemm2_kernel", k4, 448, 40960)]
```

```python
import sys
from asmlib import *

NAME = "parallel_sum__memory_aug_recurrent_mem_tr__moe_arch_mod__prompt"
XN_OFF, XN_SZ = 0x0000000, 2048*896
XNF_OFF = 0x0200000
R_OFF = 0x0400000
MOEP_OFF, MOEP_SZ = 0x0410000, 28*8*448*4
IDX_OFF = 0x0480000
MEMF_OFF, MEMF_STRIDE = 0x0500000, 8192
PF_OFF, PF_STRIDE = 0x0600000, 10240
WF_OFF, WF_UNIT = 0x0800000, 28*14*1024
KQF_OFF, SEG_SZ = 0x1800000, 16*28*1024
VOF_OFF = 0x3400000
PXF_OFF, PXF_SEG = 0x5000000, 40*1024
WZ_OFF, WZ_SEG = 0x5400000, 28*4*1024
W3_SZ = 448*8192
SCALE_LOG2E = 0x3db8aa3b
import struct
assert abs(struct.unpack('<f', struct.pack('<I', SCALE_LOG2E))[0] - 1.4426950408889634/16) < 1e-8

KARG = dict(x=0, mem0=8, wq=16, wk=24, wv=32, wo=40, wr=64, wg=72, wu=80, wd=88, out=96, dbg=104, ws=112)

def srd(A, d, base, off, size):
    if off == 0:
        A(f"s_mov_b32 s{d}, s{base}\ns_mov_b32 s{d+1}, s{base+1}")
    else:
        o = off if isinstance(off, str) else hex(off)
        A(f"s_add_u32 s{d}, s{base}, {o}\ns_addc_u32 s{d+1}, s{base+1}, 0")
    A(f"s_mov_b32 s{d+2}, {hex(size)}\ns_mov_b32 s{d+3}, 0x20000")

def lane_setup(A, vlane=1, vn=2, vg=3, swave=3):
    A(f"""
    v_and_b32 v{vlane}, 63, v0
    v_lshrrev_b32 v{vg}, 6, v0
    v_and_b32 v{vn}, 15, v0
    v_readfirstlane_b32 s{swave}, v{vg}
    v_bfe_u32 v{vg}, v0, 4, 2
    """)

def xreduce(A, op, x, t, steps=(16, 32)):
    for st in steps:
        if st == 8:
            A(f"{op}_dpp v{x}, v{x}, v{x} row_ror:8 row_mask:0xf bank_mask:0xf")
        else:
            A(f"v_mov_b32 v{t}, v{x}")
            A(f"v_permlane{st}_swap_b32 v{x}, v{t}")
            A(f"{op} v{x}, v{x}, v{t}")

def wreg(i, u, n=4):
    idx = 56*i + 4*u
    if idx < 256:
        assert idx + n <= 256
        return a_(idx, n)
    return v(120 + idx - 256, n)

def k1(A):
    A.label("prep_kernel")
    A(f"""
    s_cmp_ge_u32 s2, 256
    s_cbranch_scc1 K1_end
    s_load_dwordx4 s[4:7], s[0:1], 0
    s_load_dwordx8 s[8:15], s[0:1], 16
    s_load_dwordx2 s[16:17], s[0:1], 64
    s_load_dwordx2 s[18:19], s[0:1], 112
    """)
    lane_setup(A)
    A(f"""
    s_and_b32 s20, s2, 7
    s_lshr_b32 s21, s2, 3
    s_waitcnt lgkmcnt(0)
    s_cmp_ge_u32 s21, 28
    s_cbranch_scc1 K1_ln
    ; unit = xcd*4 + slot/7 ; rb = slot%7
    s_mul_i32 s22, s21, 37
    s_lshr_b32 s22, s22, 8
    s_mul_i32 s23, s22, 7
    s_sub_u32 s23, s21, s23
    s_lshl_b32 s24, s20, 2
    s_add_u32 s22, s22, s24
    s_and_b32 s24, s22, 15
    s_lshl_b32 s25, s24, 9
    ; vA = (8*(n>>2)+(n&3))*8192 + g*16
    v_lshrrev_b32 v4, 2, v2
    v_lshlrev_b32 v4, 3, v4
    v_and_b32 v5, 3, v2
    v_add_u32 v4, v4, v5
    v_lshlrev_b32 v4, 13, v4
    v_lshl_add_u32 v4, v3, 4, v4
    v_lshlrev_b32 v5, 4, v1
    s_mul_i32 s26, s22, {WF_UNIT}
    s_add_u32 s26, s26, {hex(WF_OFF)}
    """)
    srd(A, 36, 18, "s26", WF_UNIT)
    A("s_cmp_ge_u32 s22, 16\ns_cbranch_scc1 K1_type1")
    def areg(mt, ks): return v(8 + (mt*8 + ks)*4, 4)
    def acc(i, mt): return a_((i*4 + mt)*4, 4)
    def load_a(Asrd):
        for mt in range(4):
            A(f"s_lshl_b32 s27, s23, 19\ns_add_u32 s27, s27, s25\ns_add_u32 s27, s27, {(32*(mt >> 1) + 4*(mt & 1))*8192}")
            for ks in range(8):
                A(f"buffer_load_dwordx4 {areg(mt, ks)}, v4, s[{Asrd}:{Asrd+3}], s27 offen offset:{ks*64}")
    def epilogue(i, scale, tmp):
        for up in range(2):
            for ep in range(2):
                b = (i*4 + up*2 + ep)*4
                for r in range(4):
                    A(f"v_accvgpr_read_b32 v{tmp+8+r}, a{b+r}")
                if scale:
                    for r in range(4): A(f"v_mul_f32 v{tmp+8+r}, s30, v{tmp+8+r}")
                A(f"v_cvt_pk_bf16_f32 v{tmp+up*4+ep*2}, v{tmp+8}, v{tmp+9}")
                A(f"v_cvt_pk_bf16_f32 v{tmp+up*4+ep*2+1}, v{tmp+10}, v{tmp+11}")
            A(f"s_mul_i32 s27, s3, {7*14*1024}\ns_lshl_b32 s28, s23, 11\ns_add_u32 s27, s27, s28\ns_add_u32 s27, s27, {(i*14 + up)*1024}")
            A(f"buffer_store_dwordx4 {v(tmp+up*4, 4)}, v5, s[36:39], s27 offen")
    srd(A, 40, 10, 0, W3_SZ)
    srd(A, 44, 8, 0, W3_SZ)
    A(f"s_mov_b32 s30, {hex(SCALE_LOG2E)}")
    load_a(40)
    def breg0(i, ks):
        idx = (i*8 + ks)*4
        return a_(112 + idx, 4) if idx < 144 else v(136 + idx - 144, 4)
    for i in range(7):
        A(f"""s_mul_i32 s27, s3, 7
        s_add_u32 s27, s27, {i}
        s_lshr_b32 s28, s27, 1
        s_and_b32 s27, s27, 1
        s_lshl_b32 s28, s28, 18
        s_lshl_b32 s27, s27, 15
        s_add_u32 s27, s27, s28
        s_add_u32 s27, s27, s25""")
        for ks in range(8):
            A(f"buffer_load_dwordx4 {breg0(i, ks)}, v4, s[44:47], s27 offen offset:{ks*64}")
    nst = 0
    for i in range(7):
        A(f"s_waitcnt vmcnt({min(63, (6-i)*8 + nst)})")
        for ks in range(8):
            for mt in range(4):
                c = acc(i, mt) if ks else "0"
                A(f"v_mfma_f32_16x16x32_bf16 {acc(i, mt)}, {areg(mt, ks)}, {breg0(i, ks)}, {c}")
        if i > 0:
            epilogue(i-1, True, 216); nst += 2
    epilogue(6, True, 216)
    A("s_branch K1_end")
    A.label("K1_type1"); A.reset_state()
    srd(A, 40, 12, 0, W3_SZ)
    A(f"s_mul_i32 s27, s24, {256*896}")
    srd(A, 44, 14, "s27", 256*896)
    load_a(40)
    for k in range(7):
        A(f"""v_add_u32 v6, {k*64}, v1
        v_mul_u32_u24 v7, 4682, v6
        v_lshrrev_b32 v7, 16, v7
        v_mul_u32_u24 v232, 14, v7
        v_sub_u32 v6, v6, v232
        v_lshlrev_b32 v6, 4, v6
        v_mul_u32_u24 v232, 896, v7
        v_add_u32 v{216+k}, v232, v6
        v_and_b32 v232, 19, v7
        v_bfe_u32 v233, v7, 2, 1
        v_lshl_or_b32 v232, v233, 3, v232
        v_bfe_u32 v233, v7, 3, 1
        v_lshl_or_b32 v232, v233, 2, v232
        v_mul_u32_u24 v232, 224, v232
        v_add_u32 v{224+k}, v232, v6""")
    A(f"s_mul_i32 s28, s3, 224\ns_mul_i32 s29, s3, {128*224}")
    for k in range(7): A(f"v_add_u32 v{224+k}, s29, v{224+k}")
    def sreg(q, k):
        idx = (q*7 + k)*4
        return a_(112 + idx, 4) if idx < 144 else v(136 + idx - 144, 4)
    for q in range(8):
        A(f"s_add_u32 s27, s28, {q*32*896}")
        for k in range(7):
            A(f"buffer_load_dwordx4 {sreg(q, k)}, v{216+k}, s[44:47], s27 offen")
    A(f"""v_lshrrev_b32 v6, 2, v2
    v_and_b32 v7, 1, v3
    v_lshl_add_u32 v6, v7, 2, v6
    v_lshrrev_b32 v7, 1, v3
    v_lshl_add_u32 v6, v7, 4, v6
    v_mul_u32_u24 v6, 224, v6
    v_and_b32 v7, 3, v2
    v_lshl_add_u32 v6, v7, 3, v6
    v_add_u32 v6, s29, v6""")
    for half in range(2):
        for q in range(4):
            A(f"s_waitcnt vmcnt({(7 - (half*4 + q))*7})")
            for k in range(7):
                A(f"ds_write_b128 v{224+k}, {sreg(half*4 + q, k)} offset:{q*32*224}")
        A("s_waitcnt lgkmcnt(0)")
        seq = [(ks, i) for ks in range(4) for i in range(7)]
        def rd(n):
            ks, i = seq[n]
            b = 236 + (n % 4)*4
            for z in range(2):
                A(f"ds_read_b64_tr_b16 {v(b + 2*z, 2)}, v6 offset:{ks*32*224 + z*8*224 + i*32}")
        rd(0); rd(1); rd(2)
        for n, (ks, i) in enumerate(seq):
            if n + 3 < len(seq): rd(n + 3)
            left = min(3, len(seq) - 1 - n)
            A(f"s_waitcnt lgkmcnt({2*left})")
            for mt in range(4):
                c = acc(i, mt) if (ks or half) else "0"
                A(f"v_mfma_f32_16x16x32_bf16 {acc(i, mt)}, {areg(mt, half*4 + ks)}, {v(236 + (n % 4)*4, 4)}, {c}")
    for i in range(7): epilogue(i, False, 216)
    A("s_branch K1_end")
    A.label("K1_ln"); A.reset_state()
    A(f"""
    s_sub_u32 s21, s21, 28
    s_lshl_b32 s22, s20, 2
    s_add_u32 s22, s22, s21
    s_lshl_b32 s23, s22, 2
    s_add_u32 s23, s23, s3
    """)
    srd(A, 36, 4, 0, XN_SZ)
    srd(A, 40, 16, 0, 896)
    srd(A, 44, 18, XN_OFF, XN_SZ)
    srd(A, 48, 18, XNF_OFF, XN_SZ)
    srd(A, 52, 18, R_OFF, 8192)
    srd(A, 56, 18, MEMF_OFF, 64*MEMF_STRIDE)
    srd(A, 60, 18, PF_OFF, 64*PF_STRIDE)
    srd(A, 64, 6, 0, 7168)
    A(f"""
    v_mul_u32_u24 v4, 896, v2
    v_lshl_add_u32 v4, v3, 4, v4
    v_lshlrev_b32 v5, 4, v3
    v_lshlrev_b32 v6, 4, v1
    s_mul_i32 s24, s23, {16*896}
    """)
    X, W, F = 8, 64, 120
    for u in range(14): A(f"buffer_load_dwordx4 {v(X+4*u, 4)}, v4, s[36:39], s24 offen offset:{u*64}")
    for u in range(14): A(f"buffer_load_dwordx4 {v(W+4*u, 4)}, v5, s[40:43], 0 offen offset:{u*64}")
    A("v_mov_b32 v232, -1\nv_mov_b32 v233, -1\nv_mov_b32 v234, -1\nv_mov_b32 v235, -1")
    for k in range(4):
        A(f"s_lshl_b32 s25, s23, 10\ns_add_u32 s25, s25, {8192 + k*128*1024}")
        A(f"buffer_store_dwordx4 v[232:235], v6, s[56:59], s25 offen")
    for k in range(5):
        A(f"s_lshl_b32 s25, s23, 10\ns_add_u32 s25, s25, {k*128*1024}")
        A(f"buffer_store_dwordx4 v[232:235], v6, s[60:63], s25 offen")
    A("s_waitcnt vmcnt(23)")
    A("s_mov_b32 s26, 0xffff0000")
    for j in range(56):
        A(f"v_lshlrev_b32 v{F+2*j}, 16, v{X+j}\nv_and_b32 v{F+2*j+1}, s26, v{X+j}")
    A(f"v_pk_add_f32 v[236:237], {v(F,2)}, {v(F+2,2)}\nv_pk_add_f32 v[238:239], {v(F+4,2)}, {v(F+6,2)}")
    for j in range(4, 56, 2):
        A(f"v_pk_add_f32 v[236:237], v[236:237], {v(F+2*j,2)}\nv_pk_add_f32 v[238:239], v[238:239], {v(F+2*j+2,2)}")
    A("v_pk_add_f32 v[236:237], v[236:237], v[238:239]\nv_add_f32 v236, v236, v237")
    xreduce(A, "v_add_f32", 236, 237)
    A(f"v_mul_f32 v236, {hex(struct.unpack('<I', struct.pack('<f', 1/448))[0])}, v236\nv_mov_b32 v237, v236")
    A("v_mov_b32 v240, 0\nv_mov_b32 v241, 0\nv_mov_b32 v242, 0\nv_mov_b32 v243, 0")
    for j in range(0, 56, 2):
        A(f"v_pk_add_f32 v[244:245], {v(F+2*j,2)}, v[236:237] neg_lo:[0,1] neg_hi:[0,1]")
        A(f"v_pk_add_f32 v[246:247], {v(F+2*j+2,2)}, v[236:237] neg_lo:[0,1] neg_hi:[0,1]")
        A(f"v_pk_fma_f32 v[240:241], v[244:245], v[244:245], v[240:241]")
        A(f"v_pk_fma_f32 v[242:243], v[246:247], v[246:247], v[242:243]")
    A("v_pk_add_f32 v[240:241], v[240:241], v[242:243]\nv_add_f32 v240, v240, v241")
    xreduce(A, "v_add_f32", 240, 241)
    A(f"""v_mul_f32 v240, {hex(struct.unpack('<I', struct.pack('<f', 1/448))[0])}, v240
    v_cvt_pk_bf16_f32 v236, v236, v240
    v_and_b32 v240, s26, v236
    v_lshlrev_b32 v236, 16, v236
    v_add_f32 v240, {hex(struct.unpack('<I', struct.pack('<f', 1e-5))[0])}, v240
    v_cvt_pk_bf16_f32 v240, v240, v240
    v_and_b32 v240, s26, v240
    v_sqrt_f32 v240, v240
    v_mov_b32 v237, v236
    v_cvt_pk_bf16_f32 v240, v240, v240
    v_and_b32 v240, s26, v240
    v_rcp_f32 v240, v240
    s_nop 0
    v_mov_b32 v241, v240""")
    for j in range(56):
        A(f"v_pk_add_f32 {v(F+2*j,2)}, {v(F+2*j,2)}, v[236:237] neg_lo:[0,1] neg_hi:[0,1]")
        A(f"v_cvt_pk_bf16_f32 v{X+j}, v{F+2*j}, v{F+2*j+1}")
        A(f"v_lshlrev_b32 v{F+2*j}, 16, v{X+j}\nv_and_b32 v{F+2*j+1}, s26, v{X+j}")
        A(f"v_pk_mul_f32 {v(F+2*j,2)}, {v(F+2*j,2)}, v[240:241]")
        A(f"v_cvt_pk_bf16_f32 v{X+j}, v{F+2*j}, v{F+2*j+1}")
    A(f"s_mul_i32 s25, s23, {14*1024}")
    for u in range(14):
        A(f"buffer_store_dwordx4 {v(X+4*u, 4)}, v4, s[44:47], s24 offen offset:{u*64}")
        A(f"buffer_store_dwordx4 {v(X+4*u, 4)}, v6, s[48:51], s25 offen offset:{(u % 4)*1024}")
        if u % 4 == 3: A("s_add_u32 s25, s25, 4096")
    A("s_waitcnt vmcnt(37)")
    A("v_mov_b32 v240, 0\nv_mov_b32 v241, 0\nv_mov_b32 v242, 0\nv_mov_b32 v243, 0")
    for j in range(56):
        t = 244 + 4*(j % 2)
        A(f"v_lshlrev_b32 v{t}, 16, v{X+j}\nv_and_b32 v{t+1}, s26, v{X+j}\nv_lshlrev_b32 v{t+2}, 16, v{W+j}\nv_and_b32 v{t+3}, s26, v{W+j}")
        A(f"v_pk_fma_f32 {v(240+2*(j%2),2)}, {v(t,2)}, {v(t+2,2)}, {v(240+2*(j%2),2)}")
    A("v_pk_add_f32 v[240:241], v[240:241], v[242:243]\nv_add_f32 v240, v240, v241")
    xreduce(A, "v_add_f32", 240, 241)
    A(f"""v_cvt_pk_bf16_f32 v240, v240, v240
    v_and_b32 v240, s26, v240
    v_lshlrev_b32 v241, 2, v2
    s_lshl_b32 s25, s23, 6
    s_mov_b64 exec, 0xffff
    buffer_store_dword v240, v241, s[52:55], s25 offen
    s_mov_b64 exec, -1
    s_cmp_lg_u32 s23, 0
    s_cbranch_scc1 K1_end
    v_and_b32 v4, 7, v2
    v_mul_u32_u24 v4, 896, v4
    v_lshl_add_u32 v4, v3, 5, v4
    v_cmp_lt_u32 vcc, 7, v2
    """)
    for t in range(7):
        A(f"buffer_load_dwordx4 {v(F+8*t, 4)}, v4, s[64:67], 0 offen offset:{t*128}")
        A(f"buffer_load_dwordx4 {v(F+8*t+4, 4)}, v4, s[64:67], 0 offen offset:{t*128+16}")
    A("s_waitcnt vmcnt(0)\ns_mov_b32 s27, 0xfffefffe")
    for t in range(7):
        for aa in range(4):
            A(f"v_cndmask_b32 v{W+4*t+aa}, v{F+8*t+2*aa}, v{F+8*t+2*aa+1}, vcc")
            A(f"v_pk_min_u16 v{W+4*t+aa}, v{W+4*t+aa}, s27")
        A(f"s_mov_b32 s25, {t*1024}\nbuffer_store_dwordx4 {v(W+4*t, 4)}, v6, s[56:59], s25 offen")
    A.label("K1_end")
    A("s_endpgm")

KD = """
.section .rodata,"a"
.p2align 6
.amdhsa_kernel {name}
  .amdhsa_next_free_vgpr {nv}
  .amdhsa_next_free_sgpr 102
  .amdhsa_accum_offset 256
  .amdhsa_group_segment_fixed_size 0
  .amdhsa_kernarg_size 120
  .amdhsa_user_sgpr_count 2
  .amdhsa_user_sgpr_kernarg_segment_ptr 1
  .amdhsa_system_sgpr_workgroup_id_x 1
.end_amdhsa_kernel
"""

def build(kernels):
    out = []
    for name, fn, grid, lds in kernels:
        out.append(f"; @launch kernel={name} grid=({grid},1,1) block=(256,1,1) lds={lds}")
    out.append('.amdgcn_target "amdgcn-amd-amdhsa--gfx950"\n.text')
    for name, fn, grid, lds in kernels:
        A = Asm()
        fn(A)
        out.append(f".globl {name}\n.p2align 8\n.type {name},@function")
        out.append(A.text())
    for name, fn, grid, lds in kernels:
        out.append(KD.format(name=name, nv=256 if name == 'gemm2_kernel' else 512))
    return '\n'.join(out)

if __name__ == "__main__":
    import kernels2
    ks = [("prep_kernel", k1, 256, 4*128*224)] + kernels2.rest()
    sys.stdout.write(build(ks))
```

```python
from asmlib import *
import gen as G
from gen import srd, lane_setup, xreduce, wreg, flag_set, flag_wait, tl
import struct
def f2h(x): return hex(struct.unpack('<I', struct.pack('<f', x))[0])
LOG2E = f2h(1.4426950408889634)

def tile_c(A, dst, i, swave=3, sodd=24):
    if i < 6:
        A(f"s_mul_i32 s{dst}, s{swave}, 7\ns_add_u32 s{dst}, s{dst}, s{sodd}\ns_add_u32 s{dst}, s{dst}, {i}")
    else:
        A(f"s_mul_i32 s{dst}, s{sodd}, 6\ns_sub_u32 s{dst}, 6, s{dst}\ns_mul_i32 s{dst+1}, s{swave}, 7\ns_add_u32 s{dst}, s{dst}, s{dst+1}")

def load_weights7(A, wsrd, vl16, st=26):
    for i in range(7):
        tile_c(A, st, i)
        A(f"s_mul_i32 s{st}, s{st}, 14336")
        for u in range(14):
            A(f"buffer_load_dwordx4 {wreg(i, u)}, v{vl16}, s[{wsrd}:{wsrd+3}], s{st} offen offset:{(u % 4)*1024} sc1")
            if u % 4 == 3: A(f"s_add_u32 s{st}, s{st}, 4096")

def gemm1_body(A, pfx):
    A(f"""
    s_and_b32 s24, s3, 1
    s_and_b32 s25, s22, 15
    v_lshlrev_b32 v4, 4, v1
    s_mul_i32 s26, s22, {G.WF_UNIT}
    s_add_u32 s26, s26, {hex(G.WF_OFF)}
    """)
    srd(A, 36, 18, "s26", G.WF_UNIT)
    srd(A, 40, 18, G.XNF_OFF, G.XN_SZ)
    srd(A, 48, 18, G.FLG_OFF, G.FLG_SZ)
    def dma(seg_sgpr, buf_sgpr):
        A(f"""s_mul_i32 s28, s{seg_sgpr}, 28672
        s_mul_i32 s29, s3, 7168
        s_add_u32 s28, s28, s29
        s_add_u32 s29, s29, s{buf_sgpr}
        s_mov_b32 m0, s29""")
        for k in range(7):
            if k == 4: A("s_add_u32 s28, s28, 4096\ns_add_u32 s29, s29, 4096\ns_mov_b32 m0, s29")
            A(f"buffer_load_dwordx4 v4, s[40:43], s28 offen offset:{(k % 4)*1024} lds")
    A("s_mov_b32 s30, 0")
    dma(23, 30)
    load_weights7(A, 36, 4)
    A("s_cmp_ge_u32 s22, 16")
    A(f"s_cbranch_scc1 {pfx}_vo")
    acc = lambda tt, i: 64 + (tt*7 + i)*4
    for typ in (0, 1):
        L = f"{pfx}_{'kq' if typ == 0 else 'vo'}"
        if typ == 1: A.label(L); A.reset_state()
        if typ == 0:
            A(f"s_mul_i32 s26, s25, 28672\ns_add_u32 s26, s26, {hex(G.KQF_OFF)}")
            srd(A, 44, 18, "s26", 64*G.SEG_SZ - 15*28672)
            A("""s_mul_i32 s31, s3, 7
            s_add_u32 s31, s31, s24
            s_lshr_b32 s31, s31, 1
            s_lshl_b32 s31, s31, 10""")
            tile_c(A, 32, 6)
            A("s_lshr_b32 s32, s32, 1\ns_lshl_b32 s32, s32, 10\ns_lshl_b32 s33, s24, 3\nv_add_u32 v5, s33, v4")
        else:
            A(f"s_lshl_b32 s26, s25, 10\ns_add_u32 s26, s26, {hex(G.VOF_OFF)}")
            srd(A, 44, 18, "s26", 64*G.SEG_SZ - 15*1024)
            tile_c(A, 31, 0); A("s_lshl_b32 s31, s31, 14")
            tile_c(A, 32, 6); A("s_lshl_b32 s32, s32, 14")
        A("s_waitcnt vmcnt(0)\ns_barrier")
        tl(A, 1)
        A.label(L + "_loop"); A.reset_state()
        A(f"""
        v_add_u32 v6, s30, v4
        s_xor_b32 s30, s30, 28672
        s_add_u32 s34, s23, 7
        s_cmp_ge_u32 s34, 64
        s_cbranch_scc1 {L}_nodma
        """)
        dma(34, 30)
        A.label(L + "_nodma")
        xr = lambda u, tt: 48 + ((u % 2)*2 + tt)*4
        def rd(u):
            for tt in range(2): A(f"ds_read_b128 {v(xr(u, tt), 4)}, v6 offset:{(tt*14 + u)*1024}")
        rd(0)
        for u in range(14):
            if u + 1 < 14: rd(u + 1)
            A(f"s_waitcnt lgkmcnt({2 if u + 1 < 14 else 0})")
            for tt in range(2):
                for i in range(7):
                    c = v(acc(tt, i), 4) if u else "0"
                    if typ == 0: A(f"v_mfma_f32_16x16x32_bf16 {v(acc(tt, i), 4)}, {wreg(i, u)}, {v(xr(u, tt), 4)}, {c}")
                    else: A(f"v_mfma_f32_16x16x32_bf16 {v(acc(tt, i), 4)}, {v(xr(u, tt), 4)}, {wreg(i, u)}, {c}")
        A(f"s_mul_i32 s35, s23, {G.SEG_SZ}")
        nst = 0
        if typ == 0:
            for tt in range(2):
                A(f"s_add_u32 s28, s35, s31\ns_add_u32 s28, s28, {tt*14336}\ns_add_u32 s29, s35, s32\ns_add_u32 s29, s29, {tt*14336}")
                for p in range(3):
                    o = 16 + (tt*4 + p)*4
                    for e in range(2):
                        b = acc(tt, 2*p + e)
                        A(f"v_cvt_pk_bf16_f32 v{o+2*e}, v{b}, v{b+1}\nv_cvt_pk_bf16_f32 v{o+2*e+1}, v{b+2}, v{b+3}")
                    A(f"buffer_store_dwordx4 {v(o, 4)}, v4, s[44:47], s28 offen offset:{p*1024} sc1"); nst += 1
                o = 16 + (tt*4 + 3)*4; b = acc(tt, 6)
                A(f"v_cvt_pk_bf16_f32 v{o}, v{b}, v{b+1}\nv_cvt_pk_bf16_f32 v{o+1}, v{b+2}, v{b+3}")
                A(f"buffer_store_dwordx2 {v(o, 2)}, v5, s[44:47], s29 offen sc1"); nst += 1
        else:
            A("s_add_u32 s28, s35, s31")
            for i in range(7):
                o = 16 + i*4
                for tt in range(2):
                    b = acc(tt, i)
                    A(f"v_cvt_pk_bf16_f32 v{o+2*tt}, v{b}, v{b+1}\nv_cvt_pk_bf16_f32 v{o+2*tt+1}, v{b+2}, v{b+3}")
                if i == 6: A("s_add_u32 s28, s35, s32")
                A(f"buffer_store_dwordx4 {v(o, 4)}, v4, s[44:47], s28 offen sc1"); nst += 1
                if i < 5: A("s_add_u32 s28, s28, 16384")
        A(f"""
        s_cmp_lt_u32 s23, 7
        s_cselect_b32 s28, 0, 7
        s_cbranch_scc1 {L}_drain
        s_waitcnt vmcnt({nst})
        s_branch {L}_drained""")
        A.label(L + "_drain")
        A("s_waitcnt vmcnt(0)")
        A.label(L + "_drained")
        A(f"""s_barrier
        s_sub_u32 s28, s23, s28
        s_lshl_b32 s28, s28, 8
        s_lshl_b32 s29, s22, 2
        s_add_u32 s28, s28, s29
        s_cmp_lg_u32 s3, 0
        s_cbranch_scc1 {L}_nofl""")
        flag_set(A, 48, 28, 6, 7)
        A.label(L + "_nofl")
        A(f"s_add_u32 s23, s23, 7\ns_cmp_lt_u32 s23, 64")
        A.flush()
        A(f"s_cbranch_scc1 {L}_loop")
        A(f"""s_waitcnt vmcnt(0)
        s_barrier
        s_sub_u32 s28, s23, 7
        s_lshl_b32 s28, s28, 8
        s_lshl_b32 s29, s22, 2
        s_add_u32 s28, s28, s29
        s_cmp_lg_u32 s3, 0
        s_cbranch_scc1 {pfx}_done""")
        flag_set(A, 48, 28, 6, 7)
        A(f"s_branch {pfx}_done")

def moe_body(A, pfx):
    srd(A, 36, 18, G.R_OFF, 8192)
    srd(A, 40, 18, G.XN_OFF, G.XN_SZ)
    srd(A, 44, 8, 0, 448*3584)
    srd(A, 48, 10, 0, 448*3584)
    srd(A, 52, 12, 0, 1792*896)
    srd(A, 56, 18, G.MOEP_OFF, G.MOEP_SZ)
    srd(A, 60, 18, G.IDX_OFF, 64)
    K, WG, WU, WD, XS = 16, 48, 0, 112, 160
    A("v_lshlrev_b32 v4, 4, v1")
    for k in range(8):
        A(f"s_mov_b32 s26, {(k//4)*4096}\nbuffer_load_dwordx4 {v(K+4*k, 4)}, v4, s[36:39], s26 offen offset:{(k % 4)*1024}")
    A(f"""
    v_mul_u32_u24 v5, {8*3584}, v3
    v_lshl_add_u32 v5, v2, 1, v5
    s_lshl_b32 s26, s22, 7
    s_lshl_b32 s27, s3, 5
    s_add_u32 s26, s26, s27
    v_add_u32 v5, s26, v5
    v_mul_u32_u24 v6, {4*896}, v3
    v_lshl_add_u32 v6, v2, 1, v6
    s_mul_i32 s26, s22, {64*896}
    s_mul_i32 s27, s3, 224
    s_add_u32 s26, s26, s27
    v_add_u32 v6, s26, v6
    """)
    A("s_waitcnt vmcnt(0)\ns_mov_b32 s28, 0xffff0000\ns_mov_b32 s29, 0x80000000")
    for k in range(8):
        for j in range(4):
            r = K + 4*k + j
            A(f"""v_ashrrev_i32 v7, 31, v{r}
            v_or_b32 v7, s29, v7
            v_xor_b32 v{r}, v7, v{r}
            v_lshlrev_b32 v7, 2, v1
            v_sub_u32 v7, {2047 - k*256 - j}, v7
            v_and_or_b32 v{r}, v{r}, s28, v7""")
    for u in range(14):
        for q in range(4): A(f"v_mov_b32 v{WG + 8*u + 4 + q}, 0\nv_accvgpr_write_b32 a{WU + 8*u + 4 + q}, 0")
    for f in range(28):
        for q in range(2): A(f"v_accvgpr_write_b32 a{WD + 4*f + 2 + q}, 0")
    for u in range(14):
        for j in range(8):
            if j % 2 == 0: A(f"s_mov_b32 s26, {(32*u + j)*3584}")
            hi = "_hi" if j % 2 else ""
            off = 3584 if j % 2 else 0
            op = "buffer_load_short_d16_hi" if j % 2 else "buffer_load_ushort"
            A(f"{op} v{WG + 8*u + 4*(j % 2) + j//2}, v5, s[44:47], s26 offen offset:{off}")
            A(f"{op} a{WU + 8*u + 4*(j % 2) + j//2}, v5, s[48:51], s26 offen offset:{off}")
    for wp in range(4):
        for j in range(4):
            A(f"s_mov_b32 s26, {(16*wp + j)*896}")
            hi = "_hi" if j % 2 else ""
            for i in range(7):
                op = "buffer_load_short_d16_hi" if j % 2 else "buffer_load_ushort"
                A(f"{op} a{WD + (i*4 + wp)*4 + 2*(j % 2) + j//2}, v6, s[52:55], s26 offen offset:{i*32}")
    for rnd in range(8):
        if rnd == 0:
            A(f"v_max3_u32 v7, v{K}, v{K+1}, v{K+2}")
            for r in range(3, 31, 2): A(f"v_max3_u32 v7, v7, v{K+r}, v{K+r+1}")
            A(f"v_max_u32 v7, v7, v{K+31}")
            op = "v_max_u32"
        else:
            A(f"s_sub_u32 s30, s{63+rnd}, 1")
            A(f"v_sub_u32 v7, s30, v{K}")
            for r in range(1, 31, 2):
                A(f"v_sub_u32 v8, s30, v{K+r}\nv_sub_u32 v9, s30, v{K+r+1}\nv_min3_u32 v7, v7, v8, v9")
            A(f"v_sub_u32 v8, s30, v{K+31}\nv_min_u32 v7, v7, v8")
            op = "v_min_u32"
        for rr in (8, 4, 2, 1): A(f"{op}_dpp v7, v7, v7 row_ror:{rr} row_mask:0xf bank_mask:0xf")
        xreduce(A, op, 7, 8)
        A(f"v_readfirstlane_b32 s{64+rnd}, v7")
        if rnd: A(f"s_nop 1\ns_sub_u32 s{64+rnd}, s30, s{64+rnd}")
        else: A("s_nop 1")
    for i in range(8):
        A(f"s_and_b32 s{64+i}, s{64+i}, 0xffff\ns_sub_u32 s{64+i}, 2047, s{64+i}")
    A("v_and_b32 v7, 7, v2\nv_mov_b32 v8, 0")
    for i in range(8):
        A(f"v_mov_b32 v9, s{64+i}\nv_cmp_ne_u32 vcc, {i}, v7\nv_cndmask_b32 v8, v9, v8, vcc")
    A(f"""
    v_mul_u32_u24 v9, 896, v8
    v_lshl_add_u32 v9, v3, 4, v9
    """)
    for u in range(14): A(f"buffer_load_dwordx4 {v(XS+4*u, 4)}, v9, s[40:43], 0 offen offset:{u*64}")
    A(f"""
    s_or_b32 s26, s22, s3
    s_cmp_lg_u32 s26, 0
    s_cbranch_scc1 {pfx}_noidx
    v_lshlrev_b32 v10, 2, v1
    s_mov_b64 exec, 0xff
    buffer_store_dword v8, v10, s[60:63], 0 offen sc1
    s_mov_b64 exec, -1
    """)
    A.label(f"{pfx}_noidx")
    A("s_waitcnt vmcnt(0)")
    for u in range(14):
        for o in range(2):
            A(f"v_mfma_f32_16x16x32_bf16 v[16:19], {v(WG+8*u+4*o, 4)}, {v(XS+4*u, 4)}, {'v[16:19]' if (u or o) else '0'}")
            A(f"v_mfma_f32_16x16x32_bf16 v[20:23], {a_(WU+8*u+4*o, 4)}, {v(XS+4*u, 4)}, {'v[20:23]' if (u or o) else '0'}")
    A(f"s_mov_b32 s26, {LOG2E}")
    for p in range(2):
        A(f"""v_cvt_pk_bf16_f32 v24, v{16+2*p}, v{17+2*p}
        v_cvt_pk_bf16_f32 v25, v{20+2*p}, v{21+2*p}
        v_lshlrev_b32 v26, 16, v24
        v_and_b32 v27, s28, v24
        v_mul_f32 v28, s26, v26
        v_mul_f32 v29, s26, v27
        v_exp_f32 v28, -v28
        v_exp_f32 v29, -v29
        v_add_f32 v28, 1.0, v28
        v_add_f32 v29, 1.0, v29
        v_rcp_f32 v28, v28
        v_rcp_f32 v29, v29
        v_mul_f32 v26, v26, v28
        v_mul_f32 v27, v27, v29
        v_cvt_pk_bf16_f32 v24, v26, v27
        v_lshlrev_b32 v26, 16, v24
        v_and_b32 v27, s28, v24
        v_lshlrev_b32 v28, 16, v25
        v_and_b32 v29, s28, v25
        v_mul_f32 v26, v26, v28
        v_mul_f32 v27, v27, v29
        v_cvt_pk_bf16_f32 v{30+p}, v26, v27""")
    A("""v_lshlrev_b32 v10, 3, v0
    v_lshlrev_b32 v11, 3, v1
    ds_write_b64 v10, v[30:31]
    s_waitcnt lgkmcnt(0)
    s_barrier""")
    for wp in range(4): A(f"ds_read_b64 {v(32+2*wp, 2)}, v11 offset:{wp*512}")
    A(f"""s_waitcnt lgkmcnt(0)
    v_mul_u32_u24 v12, 1792, v2
    v_lshl_add_u32 v12, v3, 4, v12
    s_mul_i32 s26, s22, 14336
    s_mul_i32 s27, s3, 448
    s_add_u32 s26, s26, s27""")
    for i in range(7):
        for wp in range(4):
            d = v(WG + 4*i, 4)
            for o in range(2):
                A(f"v_mfma_f32_16x16x16_bf16 {d}, {a_(WD + (i*4 + wp)*4 + 2*o, 2)}, {v(32+2*wp, 2)}, {d if (wp or o) else '0'}")
    A("v_cmp_gt_u32 vcc, 8, v2\ns_and_saveexec_b64 s[30:31], vcc")
    for i in range(7):
        A(f"buffer_store_dwordx4 {v(WG + 4*i, 4)}, v12, s[56:59], s26 offen offset:{i*64} sc1")
    A("s_mov_b64 exec, s[30:31]")
    srd(A, 36, 18, G.FLG_OFF, G.FLG_SZ)
    A(f"s_waitcnt vmcnt(0)\ns_barrier\ns_lshl_b32 s28, s22, 2\ns_add_u32 s28, s28, 16384\ns_cmp_lg_u32 s3, 0\ns_cbranch_scc1 {pfx}_moed")
    flag_set(A, 36, 28, 6, 7)
    A.label(pfx + "_moed")


def wserve_body(A, L, bail):
    srd(A, 36, 18, G.MEMG_OFF, 64*8192)
    srd(A, 40, 18, G.WZ_OFF, 64*G.WZ_SEG)
    tile_c(A, 31, 0); tile_c(A, 32, 6)
    A(f"""s_mov_b32 s23, s21
    s_lshl_b32 s31, s31, 12
    s_lshl_b32 s32, s32, 12
    s_lshl_b32 s28, s25, 8
    v_lshlrev_b32 v5, 2, v1
    v_add_u32 v5, s28, v5
    v_and_b32 v6, 1, v1
    v_cmp_eq_u32 vcc, 1, v6
    v_mov_b32 v8, 0x4444
    v_mov_b32 v6, 0xeeee
    v_cndmask_b32 v8, v8, v6, vcc
    v_mov_b32 v9, 192""")
    MF, AC = 16, 64
    A.label(L + "_loop"); A.reset_state()
    for r in range(28): A(f"v_mov_b32 v{AC+r}, 0")
    A("s_lshl_b32 s33, s23, 8")
    flag_wait(A, L + "_w", 48, 9, 33, 7, bail, sleep=2)
    A("s_lshl_b32 s28, s23, 13\ns_add_u32 s29, s28, 4096")
    for t in range(7): A(f"buffer_load_dwordx4 {v(MF+4*t, 4)}, v4, s[36:39], s{28 + t // 4} offen offset:{(t % 4)*1024} sc1")
    for t in range(7):
        A(f"s_waitcnt vmcnt({6-t})")
        for i in range(7): A(f"v_smfmac_f32_16x16x64_bf16 {v(AC+4*i, 4)}, {v(MF+4*t, 4)}, {wreg(i, 2*t, 8)}, v8")
    A(f"s_mul_i32 s28, s23, {G.WZ_SEG}\ns_add_u32 s29, s28, s32\ns_add_u32 s28, s28, s31")
    for i in range(7):
        x = AC + 4*i
        A(f"v_add_f32 v{x}, v{x}, v{x+1}\nv_add_f32 v{x+2}, v{x+2}, v{x+3}\nv_cvt_pk_bf16_f32 v{x}, v{x}, v{x+2}")
        A(f"buffer_store_dword v{x}, v5, s[40:43], s{29 if i == 6 else 28} offen sc1")
        if i < 5: A("s_add_u32 s28, s28, 4096")
    A(f"""s_lshl_b32 s28, s25, 2
    s_add_u32 s28, s28, s33
    s_add_u32 s28, s28, 128
    s_waitcnt vmcnt(0)
    s_barrier
    s_cmp_lg_u32 s3, 0
    s_cbranch_scc1 {L}_nf""")
    flag_set(A, 48, 28, 6, 7)
    A.label(L + "_nf")
    A(f"s_add_u32 s23, s23, 7\ns_cmp_lt_u32 s23, 64\ns_cbranch_scc1 {L}_loop\ns_branch {bail}")
```

```python
from asmlib import *
import gen as G
from gen import srd, lane_setup, xreduce, wreg, flag_set, flag_wait
from kernels2 import tile_c, load_weights7, f2h
import os
SPIN_MAX = 1 << 22
NINF = "0xff800000"
STAMP = int(os.environ.get("STAMP", "0"))
HU_P_AT = int(os.environ.get("HU_P_AT", "1"))
HU_M_AT = int(os.environ.get("HU_M_AT", "0"))
A_DMA = int(os.environ.get("A_DMA", "0"))
DSP = int(os.environ.get("DSP", "3"))
DSPB = int(os.environ.get("DSPB", "4"))
NT = os.environ.get("NT", "")
DBG2_OFF = 0x5E00000
QP = "quad_perm:[1,0,3,2] row_mask:0xf bank_mask:0xf"

def stamp(A, k):
    if STAMP: A(f"{'s_memrealtime' if STAMP == 2 else 's_memtime'} s[{4+2*k}:{5+2*k}]")
def stamp_cnt(A, k):
    if STAMP: A(f"s_mov_b32 s{16+k}, s27")
def stamp_out(A, tmp, lds, nw):
    if not STAMP: return
    lab = f"STK{len(A.lines)}"
    A(f"s_waitcnt lgkmcnt(0)\ns_lshr_b32 s28, s64, 4\ns_cmp_lg_u32 s28, 1\ns_cbranch_scc1 {lab}\ns_cmp_ge_u32 s3, {nw}\ns_cbranch_scc1 {lab}")
    for k in range(6): A(f"v_mov_b32 v{tmp+k}, s{4+2*k}")
    A(f"v_mov_b32 v{tmp+6}, s16\nv_mov_b32 v{tmp+7}, s17")
    A(f"""s_lshl_b32 s28, s3, 4
    s_add_u32 s28, s28, s64
    s_lshl_b32 s28, s28, 5
    s_add_u32 s28, s28, {lds - 512}
    v_mov_b32 v{tmp+8}, s28
    ds_write_b128 v{tmp+8}, {v(tmp, 4)}
    ds_write_b128 v{tmp+8}, {v(tmp+4, 4)} offset:16""")
    A.label(lab)
def stamp_dump(A, lds):
    if not STAMP: return
    A(f"""s_lshl_b32 s28, s3, 9
    v_bfe_u32 v8, v4, 4, 4
    v_lshlrev_b32 v8, 5, v8
    v_add_u32 v9, s28, v8
    v_add_u32 v9, {lds}, v9
    v_min_u32 v9, {163840 - 32}, v9
    s_lshl_b32 s28, s3, 11
    s_add_u32 s28, s28, 512
    v_add_u32 v8, s28, v8
    s_waitcnt lgkmcnt(0)
    ds_read_b128 v[12:15], v9
    ds_read_b128 v[16:19], v9 offset:16
    s_lshl_b32 s28, s21, 13
    s_waitcnt lgkmcnt(0)
    buffer_store_dwordx4 v[12:15], v8, s[60:63], s28 offen
    buffer_store_dwordx4 v[16:19], v8, s[60:63], s28 offen offset:16""")

def team_flavor(A, bail):
    A(f"v_lshlrev_b32 v5, 2, v1\ns_mov_b32 s27, 0\ns_mov_b32 exec_hi, 0")
    L = bail + "_fl" + str(len(A.lines))
    A.label(L)
    A(f"""
    buffer_load_dword v6, v5, s[60:63], 0 offen sc1
    s_add_u32 s27, s27, 1
    s_cmp_gt_u32 s27, {SPIN_MAX}
    s_cbranch_scc1 {bail}
    s_waitcnt vmcnt(0)
    v_cmp_eq_u32 vcc, 0, v6
    s_cbranch_vccnz {L}
    v_cmp_ne_u32 vcc, s35, v6
    s_mov_b64 exec, -1
    s_cmp_lg_u64 vcc, 0
    s_cselect_b32 s65, 1, 0
    """)
    if STAMP: srd(A, 60, 18, DBG2_OFF, 32*4*64*32)

HUD = int(os.environ.get("HUD", "2"))
def hu_wait(A, L, srdn, voff, soff, hr, bail, HUD=HUD):
    ld = lambda k: f"buffer_load_dword v{hr[k]}, v{voff}, s[{srdn}:{srdn+3}], s{soff} offen sc1"
    A("s_mov_b32 s27, 0")
    for k in range(HUD - 1): A(ld(k))
    A.label(L)
    for k in range(HUD):
        A(ld((k + HUD - 1) % HUD))
        A(f"s_waitcnt vmcnt({HUD-1})\nv_cmp_eq_u32 vcc, -1, v{hr[k]}\ns_cbranch_vccz {L}_ok")
    A(f"s_add_u32 s27, s27, 1\ns_cmp_gt_u32 s27, {SPIN_MAX}\ns_cbranch_scc0 {L}\ns_branch {bail}")
    A.label(L + "_ok")

def frag_loads(A, n, reg0, srdn, voff, soffs):
    for t in range(n):
        A(f"buffer_load_dwordx4 {v(reg0+4*t, 4)}, v{voff}, s[{srdn}:{srdn+3}], s{soffs[t // 4]} offen offset:{(t % 4)*1024} sc1")

def exact_check(A, L, n, reg0, tmp, retry, back, bail):
    A.label(L); A.reset_state()
    A("s_waitcnt vmcnt(0)")
    tmp, t2 = tmp if isinstance(tmp, tuple) else (tmp, tmp + 1)
    A(f"v_pk_max_u16 v{tmp}, v{reg0}, v{reg0+1}")
    for r in range(reg0 + 2, reg0 + 4*n): A(f"v_pk_max_u16 v{tmp}, v{tmp}, v{r}")
    A(f"""v_lshlrev_b32 v{t2}, 16, v{tmp}
    v_max_u32 v{tmp}, v{tmp}, v{t2}
    v_cmp_le_u32 vcc, s26, v{tmp}
    s_cbranch_vccz {back}
    s_add_u32 s27, s27, 1
    s_cmp_gt_u32 s27, {SPIN_MAX}
    s_cbranch_scc1 {bail}
    s_branch {retry}""")

def dma_ops(n, srdn, sg, sl, fl=''):
    o = []
    for k in range(n):
        pre = ""
        if k == 0: pre = f"s_mov_b32 m0, s{sl}\n"
        elif k % 4 == 0:
            pre = "s_add_u32 m0, m0, 4096\n"
            if not isinstance(sg, tuple): pre = f"s_add_u32 s{sg}, s{sg}, 4096\n" + pre
        g = sg[k // 4] if isinstance(sg, tuple) else sg
        o.append(pre + f"buffer_load_dwordx4 v4, s[{srdn}:{srdn+3}], s{g} offen offset:{(k % 4)*1024}{fl} lds")
    return o

TL, SMX, MFLA = 0, 7168, 8192
MF, TA, XB = 8, 36, 64
VTOUCH = int(os.environ.get("VTOUCH", "1"))

def mem_fetch(A, base):
    A(f"s_mov_b32 s97, {base}")
    for z in dma_ops(7, 40, (32, 34), 97, " sc1"): A(z)
    A("s_waitcnt vmcnt(0)")

def a_xb_load(A):
    A(f"s_mul_i32 s28, s33, 28672\ns_add_u32 s28, s28, s94")
    for k in range(14):
        if k and k % 4 == 0: A("s_add_u32 s28, s28, 4096")
        A(f"buffer_load_dwordx4 {v(XB+4*k, 4)}, v4, s[52:55], s28 offen offset:{(k % 4)*1024}")

def a_loop(A, role, fl):
    L = f"K3a{role}f{fl}"
    sc = " sc1" if fl else ""
    if role == 1:
        A("s_mov_b32 s33, 0"); a_xb_load(A)
    A.label(L + "_loop"); A.reset_state()
    stamp(A, 0)
    A(f"""s_lshl_b32 s32, s64, 13
    s_add_u32 s34, s32, 4096
    s_add_u32 s33, s64, 1
    s_min_u32 s33, s33, 63""")
    zero = [f"v_mov_b32 v{r}, 0" for r in range(TA, TA + 28)]
    for z in zero: A(z)
    if VTOUCH: A(f"s_mul_i32 s30, s33, {G.SEG_SZ}\ns_add_u32 s30, s30, s93")
    if role == 0:
        A(f"v_mov_b32 v{XB+4}, {NINF}\nv_mov_b32 v{XB+5}, {NINF}\ns_mul_i32 s31, s64, {G.PF_STRIDE}")
        A(f"s_cmp_eq_u32 s64, 0\ns_cbranch_scc1 {L}_hu_ok")
        hu_wait(A, L + "_hu", 40, 111, 32, (108, 109, 107), "K3_end")
    if role == 3 and VTOUCH:
        A(f"s_lshl_b32 s28, s33, 8\ns_add_u32 s29, s28, 256\ns_waitcnt vmcnt(0)\nv_cmp_eq_u32 vcc, 0, v115\ns_cbranch_vccz {L}_wv_ok")
        flag_wait(A, L + "_wv", 56, 117, 28, 116, "K3_end", sleep=2)
    stamp(A, 1)
    A("s_mov_b32 s27, 0")
    A.label(L + "_go"); A.reset_state()
    if role == 0: mem_fetch(A, MFLA)
    A("s_barrier")
    for t in range(7): A(f"ds_read_b128 {v(MF+4*t, 4)}, v1 offset:{t*1024}")
    smf = lambda d, t, B: f"v_smfmac_f32_16x16x64_bf16 {v(d, 4)}, {v(MF+4*t, 4)}, {B}, v2"
    dm = []
    if VTOUCH and role != 1:
        for k in range(4 if role == 3 else 3):
            dm.append(f"buffer_load_dword v119, v118, s[48:51], s30 offen sc1\ns_add_u32 s30, s30, 4096")
        if role == 3: dm.append("buffer_load_dword v115, v117, s[56:59], s29 offen sc1")
    cnt = [0, 8]
    def emit(z, side=None):
        A(z); cnt[0] += 1
        if side: A(side)
        elif dm and cnt[0] >= cnt[1]: A(dm.pop(0)); cnt[1] = cnt[0] + 3
    for t in range(7):
        A(f"s_waitcnt lgkmcnt({6 - t})")
        if t == 0: stamp(A, 2)
        for d, i in ((TA+24, 6), (TA, 0), (TA+4, 1)): emit(smf(d, t, wreg(i, 2*t, 8)))
    def fin(x): return [f"v_add_f32 v{x}, v{x}, v{x+1}", f"v_add_f32 v{x+2}, v{x+2}, v{x+3}", f"v_cvt_pk_bf16_f32 v{x}, v{x}, v{x+2}"]
    def post_pair(p):
        x, y = TA + 8*p, TA + 8*p + 4
        return fin(x) + fin(y) + [f"ds_write2st64_b32 v5, v{x}, v{y} offset0:{2*p} offset1:{2*p+1}"]
    b = TA + 24
    chk = [f"v_add_f32 v{b}, v{b}, v{b+1}", f"v_add_f32 v{b+2}, v{b+2}, v{b+3}", f"v_cmp_u_f32 vcc, v{b}, v{b+2}",
           f"s_cbranch_vccnz {L}_slow\n{L}_back:", f"v_cvt_pk_bf16_f32 v{b}, v{b}, v{b+2}", f"ds_write_b32 v6, v{b}"]
    seq1 = [None]*4 + chk + post_pair(0)[:4]
    seq2 = post_pair(0)[4:] + [None]*2 + post_pair(1)
    for p, side in ((1, seq1), (2, seq2)):
        x, y = TA + 8*p, TA + 8*p + 4
        side = list(side)
        for t in range(7):
            for d, i in ((x, 2*p), (y, 2*p + 1)):
                emit(smf(d, t, wreg(i, 2*t, 8)), side.pop(0) if side else None)
    for z in post_pair(2): A(z)
    stamp(A, 3); stamp_cnt(A, 0)
    A("s_waitcnt lgkmcnt(0)\ns_barrier")
    stamp(A, 4)
    tr = lambda t: [f"ds_read_b64_tr_b16 {v(TA + 4*t + 2*z, 2)}, v0 offset:{t*1024 + z*32}" for z in range(2)]
    if role != 3:
        for t in range(7):
            for z in tr(t): A(z)
    if role == 1:
        D = MF
        for r in range(4): A(f"v_mov_b32 v{D+r}, 0")
        for t in range(7):
            A(f"s_waitcnt lgkmcnt({2*(6-t)})" + (" vmcnt(0)" if t == 0 else ""))
            A(f"v_smfmac_f32_16x16x64_bf16 {v(D, 4)}, {v(TA+4*t, 4)}, {v(XB+8*t, 8)}, v3")
        A(f"""v_permlane32_swap_b32 v{D}, v{D+1}
        v_permlane32_swap_b32 v{D+2}, v{D+3}
        v_add_f32 v{D}, v{D}, v{D+1}
        v_add_f32 v{D+2}, v{D+2}, v{D+3}
        ds_write2_b32 v7, v{D}, v{D+2} offset0:0 offset1:32
        s_waitcnt lgkmcnt(0)
        s_barrier
        s_barrier""")
        a_xb_load(A)
    if role == 3: A("s_barrier\ns_barrier")
    if role == 0:
        X, R, D = XB, XB + 4, XB + 8
        m, t1, l = XB+12, XB+13, XB+14
        for t in range(7):
            A(f"s_waitcnt lgkmcnt({2*(6-t)})")
            A(f"v_mfma_f32_16x16x32_bf16 {v(D, 4)}, {v(MF+4*t, 4)}, {v(TA+4*t, 4)}, {v(D, 4) if t else '0'}")
        def hu_pub(k):
            if HU_P_AT == k: A(f"buffer_store_dword v112, v110, s[40:43], s32 offen{sc}")
        hu_pub(0)
        A(f"v_add_f32_dpp v{R}, v{D+1}, v{D} row_ror:8 row_mask:0xf bank_mask:0x3")
        A(f"v_add_f32_dpp v{R+1}, v{D+3}, v{D+2} row_ror:8 row_mask:0xf bank_mask:0x3")
        A(f"v_max_f32 v{m}, v{R}, v{R+1}\ns_barrier")
        A(f"ds_read_b64 {v(X, 2)}, v7\nds_read_b64 {v(X+2, 2)}, v7 offset:512")
        hu_pub(1)
        A(f"""s_waitcnt lgkmcnt(1)
        v_max3_f32 v{m}, v{m}, v{X}, v{X+1}
        s_waitcnt lgkmcnt(0)
        v_max3_f32 v{m}, v{m}, v{X+2}, v{X+3}""")
        xreduce(A, "v_max_f32", m, t1, steps=(8, 16, 32))
        hu_pub(2)
        for r in (X, X+2, R): A(f"v_pk_add_f32 {v(r, 2)}, {v(r, 2)}, {v(m, 2)} op_sel_hi:[1,0] neg_lo:[0,1] neg_hi:[0,1]")
        for r in range(6): A(f"v_exp_f32 v{X+r}, v{X+r}")
        hu_pub(3)
        A(f"""v_pk_add_f32 {v(l, 2)}, {v(X, 2)}, {v(X+2, 2)}
        v_pk_add_f32 {v(l, 2)}, {v(l, 2)}, {v(R, 2)}
        v_add_f32 v{l}, v{l}, v{l+1}""")
        xreduce(A, "v_add_f32", l, t1, steps=(8, 16, 32))
        A(f"v_rcp_f32 v{l}, v{l}")
        for r in (X, X+2, R): A(f"v_pk_mul_f32 {v(r, 2)}, {v(r, 2)}, {v(l, 2)} op_sel_hi:[1,0] clamp")
        A(f"""v_cvt_pk_bf16_f32 v{X}, v{X}, v{X+1}
        v_cvt_pk_bf16_f32 v{X+1}, v{X+2}, v{X+3}
        v_cvt_pk_bf16_f32 v{R}, v{R}, v{R+1}
        buffer_store_dwordx2 {v(X, 2)}, v116, s[44:47], s31 offen{sc}
        buffer_store_dword v{R}, v117, s[44:47], s31 offen{sc}
        s_barrier""")
    stamp(A, 5)
    stamp_out(A, TA + 8, MFLA + 7168, 4)
    A(f"s_add_u32 s64, s64, 1\ns_cmp_lt_u32 s64, 63")
    A.flush()
    A(f"s_cbranch_scc1 {L}_loop")
    stamp_dump(A, MFLA + 7168)
    A("s_branch K3_end")
    exact_check(A, L + "_slow", 7, MF, (TA + 25, TA + 27), L + "_retry", L + "_back", "K3_end")
    A.label(L + "_retry"); A.reset_state()
    for z in zero: A(z)
    if VTOUCH: A(f"s_mul_i32 s30, s33, {G.SEG_SZ}\ns_add_u32 s30, s30, s93")
    A(f"s_barrier\ns_branch {L}_go")

def a_cu(A):
    A(f"s_mul_i32 s26, s22, {G.WF_UNIT}\ns_add_u32 s26, s26, {hex(G.WF_OFF)}")
    srd(A, 36, 18, "s26", G.WF_UNIT)
    srd(A, 48, 18, G.VOF_OFF, 64*G.SEG_SZ)
    srd(A, 52, 18, G.XNF_OFF, G.XN_SZ)
    srd(A, 56, 18, G.FLG_OFF, G.FLG_SZ)
    A("s_and_b32 s24, s3, 1")
    load_weights7(A, 36, 4, st=28)
    team_flavor(A, "K3_end")
    tile_c(A, 28, 0); tile_c(A, 30, 6)
    A(f"""
    v_lshrrev_b32 v8, 1, v3
    v_and_b32 v9, 1, v3
    v_lshlrev_b32 v7, 7, v8
    v_lshl_add_u32 v7, v2, 3, v7
    v_lshl_add_u32 v7, v9, 2, v7
    s_lshl_b32 s28, s28, 8
    v_add_u32 v5, s28, v7
    s_lshl_b32 s30, s30, 8
    v_add_u32 v6, s30, v7
    s_mov_b32 s64, 0
    s_mov_b32 s26, 0xffff0000
    v_lshrrev_b32 v10, 2, v2
    v_and_b32 v11, 3, v2
    v_lshrrev_b32 v12, 1, v10
    v_lshl_add_u32 v12, v8, 1, v12
    v_lshlrev_b32 v0, 8, v12
    v_and_b32 v12, 1, v11
    v_lshl_add_u32 v0, v12, 7, v0
    v_lshlrev_b32 v12, 3, v9
    v_and_b32 v13, 2, v11
    v_add_u32 v12, v12, v13
    v_and_b32 v13, 1, v10
    v_add_u32 v12, v12, v13
    v_lshl_add_u32 v0, v12, 3, v0
    s_sub_u32 s28, s3, 1
    s_and_b32 s28, s28, 1
    s_mul_i32 s94, s28, 14336
    s_lshl_b32 s28, s28, 9
    s_add_u32 s28, s28, {SMX}
    v_lshl_add_u32 v7, v9, 2, v8
    v_lshlrev_b32 v7, 6, v7
    v_lshl_add_u32 v7, v2, 2, v7
    v_add_u32 v7, s28, v7
    v_lshlrev_b32 v118, 6, v1
    s_mul_i32 s93, s22, 28672
    s_cmp_eq_u32 s3, 0
    s_cselect_b32 s28, 16384, 0
    s_add_u32 s93, s93, s28
    v_and_b32 v12, 7, v2
    v_lshrrev_b32 v13, 3, v2
    v_lshlrev_b32 v14, 6, v12
    v_lshl_add_u32 v14, v3, 4, v14
    v_lshl_add_u32 v14, v13, 3, v14
    v_add_u32 v14, {SMX}, v14
    s_cmp_eq_u32 s3, 0
    s_cselect_b64 vcc, -1, 0
    v_cndmask_b32 v7, v7, v14, vcc
    v_lshlrev_b32 v116, 5, v12
    v_lshl_add_u32 v116, v13, 4, v116
    v_lshl_add_u32 v116, v8, 8, v116
    v_lshl_add_u32 v116, v9, 3, v116
    s_lshl_b32 s28, s22, 9
    v_add_u32 v116, s28, v116
    v_lshlrev_b32 v117, 5, v12
    v_lshl_add_u32 v117, v8, 8, v117
    v_lshl_add_u32 v117, v9, 3, v117
    s_lshr_b32 s28, s22, 2
    s_lshl_b32 s28, s28, 9
    s_and_b32 s29, s22, 1
    s_lshl_b32 s29, s29, 4
    s_add_u32 s28, s28, s29
    s_bfe_u32 s29, s22, 0x10001
    s_lshl_b32 s29, s29, 2
    s_add_u32 s28, s28, s29
    s_add_u32 s28, s28, 8192
    v_add_u32 v117, s28, v117
    v_mov_b32 v14, 0x7ffffff0
    v_cmp_gt_u32 vcc, 8, v2
    v_cndmask_b32 v117, v14, v117, vcc
    v_min_u32 v13, 15, v1
    v_lshlrev_b32 v13, 2, v13
    v_add_u32 v13, 64, v13
    s_cmp_eq_u32 s3, 3
    s_cselect_b64 vcc, -1, 0
    v_cndmask_b32 v117, v117, v13, vcc
    v_min_u32 v111, 27, v1
    v_lshlrev_b32 v111, 2, v111
    v_add_u32 v111, 7168, v111
    v_mov_b32 v112, 0
    v_mov_b32 v115, 0
    s_lshl_b32 s29, s22, 2
    s_add_u32 s29, s29, {8192 + 7296}
    v_mov_b32 v110, s29
    v_cmp_eq_u32 vcc, 0, v1
    v_cndmask_b32 v110, v14, v110, vcc
    v_mov_b32 v12, 0x4444
    v_mov_b32 v14, 0xeeee
    v_cmp_lt_u32 vcc, 7, v2
    v_cndmask_b32 v3, v12, v14, vcc
    v_and_b32 v2, 1, v2
    v_cmp_eq_u32 vcc, 1, v2
    v_cndmask_b32 v2, v12, v14, vcc
    v_add_u32 v1, {MFLA}, v4
    s_waitcnt vmcnt(0)
    s_cmp_lg_u32 s65, 0
    s_cbranch_scc1 K3a_fl1""")
    for fl in (0, 1):
        if fl: A.label("K3a_fl1"); A.reset_state()
        A(f"s_cmp_eq_u32 s3, 0\ns_cbranch_scc1 K3a_r0f{fl}\ns_cmp_eq_u32 s3, 3\ns_cbranch_scc1 K3a_r3f{fl}")
        for role in (1, 0, 3):
            if role != 1: A.label(f"K3a_r{role}f{fl}"); A.reset_state()
            a_loop(A, role, fl)

WL, VOL, WZL, MFLB = 0, 114688, 147456, 155648
def wregB(i, u, n=4):
    idx = 56*i + 4*u
    if idx < 256:
        assert idx + n <= 256
        return a_(idx, n)
    return v(176 + idx - 256, n)
BA, LW, Z, PFR, PA, KEEP, KEEPM = 36, 68, 36, 116, 156, 100, 152

def b_loop(A, fl):
    L = f"K3bf{fl}"
    sc = " sc1" if fl else ""
    A.label(L + "_loop"); A.reset_state()
    zero = [f"v_mov_b32 v{r}, 0" for r in range(BA, BA + 32)]
    for z in zero: A(z)
    lw = lambda k: LW + (k % 4)*8
    def rdw(k):
        for z in range(2): A(f"ds_read_b128 {v(lw(k) + 4*z, 4)}, v5 offset:{(k // 7)*14336 + (2*(k % 7) + z)*1024}")
    for k in range(4): rdw(k)
    A(f"""s_lshl_b32 s32, s64, 13
    s_add_u32 s34, s32, 4096
    s_mul_i32 s30, s64, {G.SEG_SZ}
    s_lshl_b32 s31, s22, 15
    s_add_u32 s30, s30, s31
    s_lshl_b32 s31, s3, 13
    s_add_u32 s30, s30, s31
    s_add_u32 s29, s30, 4096
    s_add_u32 s31, s31, {VOL}
    s_lshl_b32 s28, s3, 10
    s_add_u32 s28, s28, s66
    v_add_u32 v174, s28, v4
    v_lshrrev_b32 v163, 2, v4
    v_min_u32 v163, 60, v163
    v_add_u32 v163, 64, v163""")
    stamp(A, 0)
    A(f"s_lshl_b32 s28, s64, 8\ns_add_u32 s33, s28, 256\ns_cmp_lg_u32 s3, 3\ns_cbranch_scc1 {L}_wv_ok\nv_cmp_eq_u32 vcc, 0, v0\ns_cbranch_vccz {L}_wv_ok")
    flag_wait(A, L + "_wv", 68, 163, 28, PFR, "K3_end", sleep=2)
    A(f"s_mov_b32 s27, 0\ns_waitcnt lgkmcnt(0)\ns_cmp_lg_u32 s3, 2\ns_cbranch_scc1 {L}_join\ns_cmp_eq_u32 s64, 0\ns_cbranch_scc1 {L}_hm_ok")
    hu_wait(A, L + "_hm", 40, 161, 32, (PFR, PFR+1, PFR+2), "K3_end")
    A("s_mov_b32 s27, 0")
    A.label(L + "_go"); A.reset_state()
    mem_fetch(A, MFLB)
    A.label(L + "_join")
    A("s_barrier")
    for t in range(7): A(f"ds_read_b128 {v(MF+4*t, 4)}, v162 offset:{t*1024}")
    sm0 = lambda i, t, B: f"v_smfmac_f32_16x16x64_bf16 {v(BA+4*i, 4)}, {v(MF+4*t, 4)}, {B}, v160"
    dm = dma_ops(8, 48, (30, 29), 31, ' sc1') + ["buffer_load_dword v0, v163, s[68:71], s33 offen sc1"]
    cnt = [0, 1]
    def sm(i, t, B):
        cnt[0] += 1
        z = sm0(i, t, B)
        if dm and cnt[0] >= cnt[1]: z += "\n" + dm.pop(0); cnt[1] = cnt[0] + DSPB
        return z
    for t in range(7):
        A(f"s_waitcnt lgkmcnt({6 - t})")
        if t == 0: stamp(A, 1)
        A(sm(0, t, wregB(0, 2*t, 8)))
    for t in range(7):
        A(sm(1, t, wregB(1, 2*t, 8)))
        if t == 3: A(f"v_add_f32 v{BA}, v{BA}, v{BA+1}")
        if t == 4: A(f"v_add_f32 v{BA+2}, v{BA+2}, v{BA+3}")
        if t == 5: A(f"v_cmp_u_f32 vcc, v{BA}, v{BA+2}")
        if t == 6: A(f"s_cbranch_vccnz {L}_slowm\n{L}_backm:")
    stamp_cnt(A, 0)
    for k in range(14):
        A(f"s_waitcnt lgkmcnt({2*min(3, 13-k)})")
        A(sm(6 + k // 7, k % 7, v(lw(k), 8)))
        i = 2 + k // 7
        A(sm(i, k % 7, wregB(i, 2*(k % 7), 8)))
        if k + 4 < 14: rdw(k + 4)
    def fin(i):
        x = BA + 4*i
        o = [] if i == 0 else [f"v_add_f32 v{x}, v{x}, v{x+1}", f"v_add_f32 v{x+2}, v{x+2}, v{x+3}"]
        return o + [f"v_cvt_pk_bf16_f32 v{164+i}, v{x}, v{x+2}"]
    side = fin(0) + fin(1) + fin(2) + fin(6) + fin(3) + [f"ds_write_b128 v174, v[164:167]"]
    for t in range(7):
        for i in (4, 5):
            A(sm(i, t, wregB(i, 2*t, 8)))
            if side: A(side.pop(0))
    for z in side + fin(7) + fin(4) + fin(5) + [f"ds_write_b128 v174, v[168:171] offset:4096"]: A(z)
    stamp(A, 2)
    A(f"s_waitcnt vmcnt(0) lgkmcnt(0)\ns_barrier\ns_cmp_ge_u32 s3, 2\ns_cbranch_scc1 {L}_next")
    A("s_lshl_b32 s28, s24, 12\ns_add_u32 s28, s28, s66\nv_add_u32 v163, s28, v4")
    for f in range(16):
        A(f"ds_read_b128 {v(Z + 4*f, 4)}, v6 offset:{f*1024}")
        if f == 11: A("s_waitcnt lgkmcnt(4)")
    for f in range(4): A(f"ds_read_b128 {v(Z + 64 + 4*f, 4)}, v163 offset:{f*1024}")
    for r in range(4): A(f"v_mov_b32 v{PA+r}, 0")
    A(f"""s_mul_i32 s28, s64, {G.PF_STRIDE}
    s_add_u32 s29, s28, 4096
    s_add_u32 s30, s28, 8192
    s_add_u32 s34, s32, 8192
    s_waitcnt lgkmcnt(0)""")
    stamp(A, 3)
    hu_wait(A, L + "_hp", 40, 172, 32, (PFR, PFR+1, PFR+2, PFR+3), "K3_end", HUD=int(os.environ.get("HUDP", "2")))
    A("s_mov_b32 s27, 0")
    A.label(L + "_gop"); A.reset_state()
    order = [8, 9, 0, 1, 2, 3, 4, 5, 6, 7]
    for k, t in enumerate(order):
        A(f"buffer_load_dwordx4 {v(PFR+4*t, 4)}, v4, s[44:47], s{28 + t // 4} offen offset:{(t % 4)*1024} sc1")
        if HU_M_AT < 0 and k == 10 + HU_M_AT: A(f"buffer_store_dword v175, v173, s[40:43], s32 offen{sc}")
    for k, u in enumerate(order):
        A(f"s_waitcnt vmcnt({9-k + (1 if (k > HU_M_AT + 1 if HU_M_AT >= 0 else k <= 10 + HU_M_AT) else 0)})")
        if k == 0: stamp(A, 4)
        A(f"v_smfmac_f32_16x16x64_bf16 {v(PA, 4)}, {v(PFR+4*u, 4)}, {v(Z+8*u, 8)}, v160")
        if k == 0: A(f"v_max_u32 v164, v{PFR+32}, v{PFR+33}")
        if k == 1: A(f"v_max3_u32 v164, v164, v{PFR+36}, v{PFR+37}\nv_cmp_eq_u32 vcc, -1, v164\ns_cbranch_vccnz {L}_early")
        if HU_M_AT >= 0 and k == HU_M_AT + 1: A(f"buffer_store_dword v175, v173, s[40:43], s32 offen{sc}")
    A(f"""v_add_f32 v{PA}, v{PA}, v{PA+1}
    v_add_f32 v{PA+2}, v{PA+2}, v{PA+3}
    v_cmp_u_f32 vcc, v{PA}, v{PA+2}
    v_cvt_pk_bf16_f32 v{PA}, v{PA}, v{PA+2}
    s_cbranch_vccnz {L}_slowp""")
    A.label(L + "_backp")
    A(f"""buffer_store_short v{PA}, v7, s[40:43], s34 offen{sc}
    buffer_store_short_d16_hi v{PA}, v7, s[40:43], s34 offen offset:32{sc}""")
    stamp_cnt(A, 1)
    A.label(L + "_next")
    stamp(A, 5)
    stamp_out(A, 116, MFLB + 7168, 2)
    A(f"s_add_u32 s64, s64, 1\ns_cmp_lt_u32 s64, 63")
    A.flush()
    A(f"s_cbranch_scc1 {L}_loop")
    A.label(L + "_exit"); A.reset_state()
    stamp_dump(A, MFLB + 7168)
    A("s_branch K3_end")
    exact_check(A, L + "_slowm", 7, MF, 164, L + "_retrym", L + "_backm", "K3_end")
    A.label(L + "_retrym"); A.reset_state()
    for z in zero[:8]: A(z)
    A(f"s_barrier\ns_cmp_lg_u32 s3, 2\ns_cbranch_scc1 {L}_join\ns_branch {L}_go")
    exact_check(A, L + "_slowp", 10, PFR, 164, L + "_retryp", L + "_nanp", "K3_end")
    A.label(L + "_nanp"); A.reset_state()
    A(f"v_pk_min_u16 v{PA}, v{PA}, s25\ns_branch {L}_backp")
    A.label(L + "_early"); A.reset_state()
    A(f"s_add_u32 s27, s27, 1\ns_cmp_gt_u32 s27, {SPIN_MAX}\ns_cbranch_scc1 K3_end\ns_waitcnt vmcnt(0)\ns_nop 7")
    A.label(L + "_retryp"); A.reset_state()
    for r in range(4): A(f"v_mov_b32 v{PA+r}, 0")
    A(f"s_nop 1\ns_branch {L}_gop")

def b_cu(A):
    srd(A, 36, 18, G.WF_OFF + 16*G.WF_UNIT, 16*G.WF_UNIT)
    srd(A, 48, 18, G.VOF_OFF, 64*G.SEG_SZ)
    srd(A, 68, 18, G.FLG_OFF, G.FLG_SZ)
    for i in range(8):
        ct, q = i // 4, i % 4
        A(f"""s_lshl_b32 s28, s3, 2
        s_add_u32 s28, s28, {q}
        s_mul_i32 s28, s28, {G.WF_UNIT}
        s_mul_i32 s29, s22, 28672
        s_add_u32 s28, s28, s29
        s_add_u32 s28, s28, {ct*14336}""")
        if i >= 6:
            A(f"s_mul_i32 s29, s3, 28672\ns_add_u32 s29, s29, {WL + (i-6)*14336}")
            for z in dma_ops(14, 36, 28, 29): A(z)
        else:
            for u in range(14):
                A(f"buffer_load_dwordx4 {wregB(i, u)}, v4, s[36:39], s28 offen offset:{(u % 4)*1024}")
                if u % 4 == 3: A("s_add_u32 s28, s28, 4096")
    team_flavor(A, "K3_end")
    A(f"""
    s_mul_i32 s28, s3, 28672
    v_add_u32 v5, s28, v4
    v_and_b32 v9, 1, v2
    v_cmp_eq_u32 vcc, 1, v9
    v_mov_b32 v160, 0x4444
    v_mov_b32 v161, 0xeeee
    v_cndmask_b32 v160, v160, v161, vcc
    s_mov_b32 s25, 0xfffefffe
    s_mov_b32 s26, 0xffff0000
    s_mov_b32 s64, 0
    s_mov_b32 s66, {WZL}
    s_and_b32 s24, s3, 1
    s_lshl_b32 s28, s24, 14
    s_add_u32 s28, s28, {VOL}
    v_add_u32 v6, s28, v4
    v_bfe_u32 v8, v2, 1, 1
    v_lshl_add_u32 v8, v3, 2, v8
    v_lshlrev_b32 v7, 4, v8
    v_lshrrev_b32 v8, 2, v2
    v_lshl_add_u32 v7, v8, 2, v7
    v_lshl_add_u32 v7, v9, 1, v7
    s_lshl_b32 s28, s22, 1
    s_add_u32 s28, s28, s24
    s_lshl_b32 s67, s28, 12
    s_lshl_b32 s29, s28, 8
    v_add_u32 v7, s29, v7
    v_min_u32 v161, 27, v1
    v_lshlrev_b32 v161, 2, v161
    v_add_u32 v161, 7168, v161
    v_min_u32 v172, 15, v1
    v_lshlrev_b32 v172, 2, v172
    v_add_u32 v172, {8192 + 7296}, v172
    s_lshl_b32 s28, s28, 2
    s_add_u32 s28, s28, {8192 + 7168}
    v_mov_b32 v173, s28
    v_mov_b32 v8, 0x7ffffff0
    v_cmp_eq_u32 vcc, 0, v1
    v_cndmask_b32 v173, v8, v173, vcc
    v_mov_b32 v175, 0
    v_mov_b32 v0, 0
    v_add_u32 v162, {MFLB}, v4
    s_mov_b32 s97, {MFLB}
    s_mul_i32 s98, s24, 3072
    s_waitcnt vmcnt(0)
    s_cmp_lg_u32 s65, 0
    s_cbranch_scc1 K3bf1_loop
    """)
    b_loop(A, 0)
    b_loop(A, 1)

def warm_cu(A):
    L = "K3w"
    srd(A, 52, 18, G.XNF_OFF, G.XN_SZ)
    A(f"""v_min_u32 v5, 27, v1
    v_lshlrev_b32 v5, 2, v5
    v_add_u32 v5, 7168, v5
    s_lshl_b32 s28, s3, 10
    v_add_u32 v6, s28, v4
    s_mov_b32 s64, 0""")
    def touch(sreg):
        A(f"s_lshl_b32 s28, s{sreg}, 13\ns_add_u32 s28, s28, 8192\ns_mul_i32 s29, s{sreg}, {G.PF_STRIDE}\ns_mul_i32 s30, s{sreg}, 28672\ns_add_u32 s30, s30, {1*28672}")
        for k in range(2): A(f"buffer_load_dwordx4 v[16:19], v6, s[40:43], s28 offen sc1\ns_add_u32 s28, s28, 4096")
        for k in range(3): A(f"buffer_load_dwordx4 v[16:19], v6, s[44:47], s29 offen sc1\ns_add_u32 s29, s29, 4096")
        for k in range(7): A(f"buffer_load_dwordx4 v[16:19], v6, s[52:55], s30 offen sc1\ns_add_u32 s30, s30, 4096")
    for k in range(3):
        A(f"s_mov_b32 s33, {k}"); touch(33)
    A.label(L + "_loop")
    A(f"s_add_u32 s64, s64, 1\ns_cmp_ge_u32 s64, 61\ns_cbranch_scc1 K3_end\ns_lshl_b32 s32, s64, 13\ns_mov_b32 s27, 0")
    A.label(L + "_w")
    A(f"""s_sleep 4
    buffer_load_dword v8, v5, s[40:43], s32 offen sc1
    s_add_u32 s27, s27, 1
    s_cmp_gt_u32 s27, {SPIN_MAX}
    s_cbranch_scc1 K3_end
    s_waitcnt vmcnt(0)
    v_cmp_eq_u32 vcc, -1, v8
    s_cbranch_vccnz {L}_w
    s_add_u32 s33, s64, 2""")
    touch(33)
    A(f"s_branch {L}_loop")

def fwd_cu(A):
    L = "K3f"
    srd(A, 52, 18, G.MEMG_OFF, 64*8192)
    srd(A, 56, 18, G.FLG_OFF, G.FLG_SZ)
    A(f"""v_min_u32 v5, 27, v1
    v_lshlrev_b32 v5, 2, v5
    v_add_u32 v5, 7168, v5
    s_lshl_b32 s28, s3, 11
    s_min_u32 s28, s28, 5120
    v_add_u32 v6, s28, v4
    s_mov_b32 s26, 0xffff0000
    s_mov_b32 s64, 0""")
    A.label(L + "_loop")
    A(f"s_lshl_b32 s32, s64, 13\ns_mov_b32 s27, 0\ns_cmp_eq_u32 s64, 0\ns_cbranch_scc1 {L}_get")
    A.label(L + "_w")
    A(f"""s_sleep 2
    buffer_load_dword v8, v5, s[40:43], s32 offen sc1
    s_add_u32 s27, s27, 1
    s_cmp_gt_u32 s27, {SPIN_MAX}
    s_cbranch_scc1 K3_end
    s_waitcnt vmcnt(0)
    v_cmp_eq_u32 vcc, -1, v8
    s_cbranch_vccnz {L}_w""")
    A.label(L + "_get")
    A(f"""buffer_load_dwordx4 v[16:19], v6, s[40:43], s32 offen sc1
    buffer_load_dwordx4 v[20:23], v6, s[40:43], s32 offen offset:1024 sc1""")
    exact_check(A, L + "_chk", 2, 16, 8, L + "_get", L + "_ok", "K3_end")
    A.label(L + "_ok")
    A(f"""buffer_store_dwordx4 v[16:19], v6, s[52:55], s32 offen sc1
    buffer_store_dwordx4 v[20:23], v6, s[52:55], s32 offen offset:1024 sc1
    s_lshl_b32 s28, s64, 8
    s_add_u32 s28, s28, 192
    s_waitcnt vmcnt(0)
    s_barrier
    s_cmp_lg_u32 s3, 0
    s_cbranch_scc1 {L}_nf""")
    flag_set(A, 56, 28, 8, 9)
    A.label(L + "_nf")
    A(f"s_add_u32 s64, s64, 1\ns_cmp_lt_u32 s64, 64\ns_cbranch_scc1 {L}_loop\ns_branch K3_end")

def team(A):
    A("s_getreg_b32 s35, hwreg(HW_REG_XCC_ID, 0, 4)\ns_add_u32 s35, s35, 1")
    srd(A, 60, 16, 0, 256)
    srd(A, 40, 18, G.MEMF_OFF, 64*G.MEMF_STRIDE)
    srd(A, 44, 18, G.PF_OFF, 64*G.PF_STRIDE)
    A(f"""
    v_mov_b32 v5, s35
    s_lshl_b32 s28, s21, 2
    v_mov_b32 v6, s28
    s_mov_b64 exec, 1
    buffer_store_dword v5, v6, s[60:63], 0 offen sc1
    s_mov_b64 exec, -1
    """)
    A("s_cmp_eq_u32 s21, 31\ns_cbranch_scc1 K3_w\ns_cmp_eq_u32 s21, 30\ns_cbranch_scc1 K3_f")
    A("s_cmp_ge_u32 s21, 16\ns_cbranch_scc1 K3_b\ns_mov_b32 s22, s21")
    a_cu(A)
    A.label("K3_b"); A.reset_state()
    A("s_sub_u32 s22, s21, 16")
    b_cu(A)
    A.label("K3_w"); A.reset_state()
    warm_cu(A)
    A.label("K3_f"); A.reset_state()
    fwd_cu(A)
```

```python
from asmlib import *
import gen as G
from gen import srd, lane_setup, xreduce, flag_set, flag_wait
from kernels2 import f2h, LOG2E

def gemm2_task(A, L, bail):
    Z, XX, XN, UP, MP, ACC, PR = 16, 96, 100, 104, 112, 224, 232
    A(f"""s_lshl_b32 s24, s23, 2
    s_add_u32 s24, s24, s3
    s_lshl_b32 s33, s22, 8
    v_min_u32 v6, 15, v1
    v_lshlrev_b32 v6, 2, v6
    v_add_u32 v6, 64, v6""")
    flag_wait(A, L + "_wv", 92, 6, 33, 7, bail)
    A(f"""s_mul_i32 s28, s22, {G.SEG_SZ}
    s_lshl_b32 s29, s24, 14
    s_add_u32 s28, s28, s29""")
    for f in range(16):
        if f and f % 4 == 0: A("s_add_u32 s28, s28, 4096")
        A(f"buffer_load_dwordx4 {v(Z+4*f, 4)}, v4, s[40:43], s28 offen offset:{(f % 4)*1024} sc1")
    A(f"""v_mul_u32_u24 v5, 896, v2
    v_lshl_add_u32 v5, v3, 3, v5
    s_mul_i32 s30, s22, {32*896}
    s_lshl_b32 s29, s24, 5
    s_add_u32 s30, s30, s29
    s_add_u32 s31, s30, {16*896}""")
    for qt in range(2):
        A(f"buffer_load_dwordx2 {v(XX+2*qt, 2)}, v5, s[48:51], s{30+qt} offen")
        A(f"buffer_load_dwordx2 {v(XN+2*qt, 2)}, v5, s[52:55], s{30+qt} offen")
    for r in range(8): A(f"v_mov_b32 v{UP+r}, 0")
    A("""v_min_u32 v6, 27, v1
    v_lshlrev_b32 v6, 2, v6
    s_mov_b32 s28, 16384""")
    flag_wait(A, L + "_wm", 92, 6, 28, 7, bail)
    A("""v_lshlrev_b32 v6, 2, v1
    buffer_load_dword v13, v6, s[60:63], 0 offen sc1
    v_min_u32 v6, 19, v1
    v_lshlrev_b32 v6, 2, v6
    v_add_u32 v7, 176, v6
    v_add_u32 v6, 128, v6
    v_cmp_lt_u32 vcc, 15, v1
    v_cndmask_b32 v6, v6, v7, vcc""")
    flag_wait(A, L + "_wp", 92, 6, 33, 7, bail, sleep=2)
    A(f"""s_mul_i32 s28, s22, {G.PXF_SEG}
    s_mul_i32 s29, s3, 10240
    s_add_u32 s28, s28, s29
    s_mov_b32 m0, s29""")
    for kk in range(10):
        if kk and kk % 4 == 0: A("s_add_u32 s28, s28, 4096\ns_add_u32 m0, m0, 4096")
        A(f"buffer_load_dwordx4 v4, s[36:39], s28 offen offset:{(kk % 4)*1024} sc1 lds")
    A(f"s_mul_i32 s28, s22, {G.WZ_SEG}\ns_lshl_b32 s29, s24, 12\ns_add_u32 s28, s28, s29")
    A("v_lshlrev_b32 v6, 2, v1")
    for f in range(16): A(f"buffer_load_dword v{Z+64+f}, v6, s[44:47], s28 offen offset:{f*256} sc1")
    A("s_waitcnt vmcnt(16)\ns_barrier")
    ring = lambda f: PR + (f % 3)*8
    def rd(f):
        for qt in range(2): A(f"ds_read_b128 {v(ring(f)+4*qt, 4)}, v4 offset:{qt*20480 + f*1024}")
    rd(0); rd(1)
    for f in range(20):
        if f + 2 < 20: rd(f + 2)
        A(f"s_waitcnt vmcnt({min(16, 4*(19 - f))}) lgkmcnt({2*min(2, 19-f)})")
        for qt in range(2):
            d = v(ACC+4*qt, 4)
            A(f"v_mfma_f32_16x16x32_bf16 {d}, {v(Z+4*f, 4)}, {v(ring(f)+4*qt, 4)}, {d if f else '0'}")
    A(f"""s_waitcnt vmcnt(0)
    s_mov_b32 s26, 0xffff0000
    s_mov_b32 s32, 0
    s_lshl_b32 s33, s22, 5
    v_add_u32 v8, s33, v2
    v_add_u32 v9, 16, v8
    v_lshlrev_b32 v10, 4, v3""")
    A.flush()
    A.label(L + "_moe"); A.reset_state()
    A(f"""s_nop 3
    v_readlane_b32 s34, v13, s32
    s_nop 3
    s_lshr_b32 s35, s34, 5
    s_cmp_lg_u32 s35, s22
    s_cbranch_scc1 {L}_moen
    s_mul_i32 s28, s32, 1792
    s_lshl_b32 s29, s24, 6
    s_add_u32 s28, s28, s29
    s_lshl_b32 s29, s34, 2
    v_mov_b32 v11, s29
    buffer_load_dword v12, v11, s[64:67], 0 offen""")
    for m in range(28):
        A(f"buffer_load_dwordx4 {v(MP+4*m, 4)}, v10, s[56:59], s28 offen sc1\ns_add_u32 s28, s28, 14336")
    A("s_waitcnt vmcnt(0)")
    for m in range(1, 28):
        A(f"v_pk_add_f32 {v(MP, 2)}, {v(MP, 2)}, {v(MP+4*m, 2)}\nv_pk_add_f32 {v(MP+2, 2)}, {v(MP+2, 2)}, {v(MP+4*m+2, 2)}")
    A(f"""v_mul_f32 v12, {LOG2E}, v12
    v_exp_f32 v12, -v12
    v_cvt_pk_bf16_f32 v{MP}, v{MP}, v{MP+1}
    v_add_f32 v12, 1.0, v12
    v_rcp_f32 v12, v12
    v_cvt_pk_bf16_f32 v{MP+2}, v{MP+2}, v{MP+3}
    v_cvt_pk_bf16_f32 v12, v12, v12
    v_and_b32 v12, s26, v12
    v_and_b32 v{MP+1}, s26, v{MP}
    v_lshlrev_b32 v{MP}, 16, v{MP}
    v_and_b32 v{MP+3}, s26, v{MP+2}
    v_lshlrev_b32 v{MP+2}, 16, v{MP+2}""")
    for r in range(4): A(f"v_mul_f32 v{MP+r}, v{MP+r}, v12")
    A(f"""v_cvt_pk_bf16_f32 v{MP}, v{MP}, v{MP+1}
    v_cvt_pk_bf16_f32 v{MP+2}, v{MP+2}, v{MP+3}
    v_and_b32 v{MP+1}, s26, v{MP}
    v_lshlrev_b32 v{MP}, 16, v{MP}
    v_and_b32 v{MP+3}, s26, v{MP+2}
    v_lshlrev_b32 v{MP+2}, 16, v{MP+2}""")
    for qt in range(2):
        A(f"v_cmp_eq_u32 vcc, s34, v{8+qt}")
        for r in range(4): A(f"v_cndmask_b32 v{UP+4*qt+r}, v{UP+4*qt+r}, v{MP+r}, vcc")
    A.flush()
    A.label(L + "_moen"); A.reset_state()
    A(f"s_add_u32 s32, s32, 1\ns_cmp_lt_u32 s32, 8\ns_cbranch_scc1 {L}_moe")
    T = MP
    for qt in range(2):
        for p in range(2):
            a0 = ACC + 4*qt + 2*p; u0 = UP + 4*qt + 2*p
            A(f"""v_cvt_pk_bf16_f32 v{T}, v{a0}, v{a0+1}
            v_lshlrev_b32 v{T+2}, 16, v{XX+2*qt+p}
            v_and_b32 v{T+3}, s26, v{XX+2*qt+p}
            v_and_b32 v{T+1}, s26, v{T}
            v_lshlrev_b32 v{T}, 16, v{T}
            v_lshlrev_b32 v{T+4}, 16, v{XN+2*qt+p}
            v_and_b32 v{T+5}, s26, v{XN+2*qt+p}
            v_pk_add_f32 {v(T, 2)}, {v(T, 2)}, {v(T+2, 2)}
            v_pk_add_f32 {v(T+4, 2)}, {v(T+4, 2)}, {v(u0, 2)}
            v_cvt_pk_bf16_f32 v{T}, v{T}, v{T+1}
            v_cvt_pk_bf16_f32 v{T+4}, v{T+4}, v{T+5}
            v_and_b32 v{T+1}, s26, v{T}
            v_lshlrev_b32 v{T}, 16, v{T}
            v_and_b32 v{T+5}, s26, v{T+4}
            v_lshlrev_b32 v{T+4}, 16, v{T+4}
            v_pk_add_f32 {v(T, 2)}, {v(T, 2)}, {v(T+4, 2)}
            v_cvt_pk_bf16_f32 v{T+8+2*qt+p}, v{T}, v{T+1}""")
        A(f"buffer_store_dwordx2 {v(T+8+2*qt, 2)}, v5, s[68:71], s{30+qt} offen")

NINF = "0xff800000"
def xattn_task(A, L, bail):
    TX, RG, SD, SO, SMM = 16, 128, 160, 168, 172
    A(f"""s_mul_i32 s28, s22, 28672
    s_mul_i32 s29, s3, 7168
    s_add_u32 s28, s28, s29
    s_mov_b32 m0, s29""")
    for k in range(7):
        if k == 4: A("s_add_u32 s28, s28, 4096\ns_add_u32 m0, m0, 4096")
        A(f"buffer_load_dwordx4 v4, s[76:79], s28 offen offset:{(k % 4)*1024} lds")
    A(f"""s_lshl_b32 s24, s23, 2
    s_add_u32 s24, s24, s3
    s_mul_i32 s28, s22, {G.SEG_SZ}
    s_mul_i32 s29, s24, 28672
    s_add_u32 s28, s28, s29
    s_lshl_b32 s33, s22, 8
    s_lshl_b32 s29, s24, 2
    v_mov_b32 v6, s29""")
    flag_wait(A, L + "_wt", 92, 6, 33, 7, bail)
    order = [(qt, vv) for vv in range(14) for qt in range(2)]
    for qt, vv in order:
        A(f"s_add_u32 s29, s28, {qt*14336 + (vv // 4)*4096}")
        A(f"buffer_load_dwordx4 {v(TX + (qt*14 + vv)*4, 4)}, v4, s[72:75], s29 offen offset:{(vv % 4)*1024} sc1")
    A("v_lshlrev_b32 v5, 2, v3")
    for r in range(4): A(f"v_add_u32 v6, {r}, v5\nv_cmp_le_u32 s[{84+2*r}:{85+2*r}], v6, v2")
    A("""v_and_b32 v6, 1, v2
    v_cmp_eq_u32 vcc, 1, v6
    v_mov_b32 v7, 0x4444
    v_mov_b32 v6, 0xeeee
    v_cndmask_b32 v7, v7, v6, vcc
    s_waitcnt vmcnt(28)
    s_barrier""")
    ring = lambda k: RG + (k % 4)*8
    def rd(k):
        for kt in range(2): A(f"ds_read_b128 {v(ring(k)+4*kt, 4)}, v4 offset:{kt*14336 + k*1024}")
    for k in range(3): rd(k)
    tx = lambda qt, vv, n=4: v(TX + (qt*14 + vv)*4, n)
    for k in range(14):
        if k + 3 < 14: rd(k + 3)
        A(f"s_waitcnt vmcnt({2*(13-k)}) lgkmcnt({2*min(3, 13-k)})")
        for d, kt, qt in ((SD, 0, 0), (SO, 0, 1), (SD+4, 1, 1)):
            A(f"v_mfma_f32_16x16x32_bf16 {v(d, 4)}, {v(ring(k)+4*kt, 4)}, {tx(qt, k)}, {v(d, 4) if k else '0'}")
    for r in range(8): A(f"v_mov_b32 v{SMM+r}, 0")
    A("v_mov_b32 v6, 192")
    flag_wait(A, L + "_wm", 92, 6, 33, 9, bail, sleep=2)
    A(f"""s_lshl_b32 s28, s22, 13
    s_lshl_b32 s29, s3, 11
    s_add_u32 s28, s28, s29
    s_add_u32 m0, s29, 28672""")
    for kk in range(2): A(f"buffer_load_dwordx4 v4, s[80:83], s28 offen offset:{kk*1024} sc1 lds")
    A("s_waitcnt vmcnt(0)\ns_barrier")
    for t in range(7): A(f"ds_read_b128 {v(RG+4*t, 4)}, v4 offset:{28672 + t*1024}")
    A(f"v_mov_b32 v6, {NINF}")
    for q in range(2):
        for r in range(4): A(f"v_cndmask_b32 v{SD+4*q+r}, v6, v{SD+4*q+r}, s[{84+2*r}:{85+2*r}]")
    for t in range(7):
        A(f"s_waitcnt lgkmcnt({6-t})")
        for qt in range(2): A(f"v_smfmac_f32_16x16x64_bf16 {v(SMM+4*qt, 4)}, {v(RG+4*t, 4)}, {tx(qt, 2*t, 8)}, v7")
    A(f"""s_mul_i32 s28, s22, {G.PXF_SEG}
    s_lshl_b32 s29, s24, 10
    s_add_u32 s29, s29, s28
    s_add_u32 s30, s23, 16
    s_lshl_b32 s30, s30, 10
    s_add_u32 s30, s30, s28
    s_lshl_b32 s31, s3, 2
    v_add_u32 v8, s31, v4""")
    m, t1, l, O = 180, 182, 184, 188
    for qt in range(2):
        M, Dg = SMM + 4*qt, SD + 4*qt
        A(f"v_add_f32 v{M}, v{M}, v{M+1}\nv_add_f32 v{M+1}, v{M+2}, v{M+3}")
        prs = [M, Dg, Dg+2] + ([SO, SO+2] if qt else [])
        A(f"v_max3_f32 v{m}, v{M}, v{M+1}, v{Dg}\nv_max3_f32 v{m}, v{m}, v{Dg+1}, v{Dg+2}\nv_max_f32 v{m}, v{m}, v{Dg+3}")
        if qt: A(f"v_max3_f32 v{m}, v{m}, v{SO}, v{SO+1}\nv_max3_f32 v{m}, v{m}, v{SO+2}, v{SO+3}")
        xreduce(A, "v_max_f32", m, t1)
        for r in prs: A(f"v_pk_add_f32 {v(r, 2)}, {v(r, 2)}, {v(m, 2)} op_sel_hi:[1,0] neg_lo:[0,1] neg_hi:[0,1]")
        for r in prs: A(f"v_exp_f32 v{r}, v{r}\nv_exp_f32 v{r+1}, v{r+1}")
        A(f"v_pk_add_f32 {v(l, 2)}, {v(prs[0], 2)}, {v(prs[1], 2)}")
        for r in prs[2:]: A(f"v_pk_add_f32 {v(l, 2)}, {v(l, 2)}, {v(r, 2)}")
        A(f"v_add_f32 v{l}, v{l}, v{l+1}")
        xreduce(A, "v_add_f32", l, t1)
        A(f"v_rcp_f32 v{l}, v{l}")
        for r in prs: A(f"v_pk_mul_f32 {v(r, 2)}, {v(r, 2)}, {v(l, 2)} op_sel_hi:[1,0]")
        o = O + 8*qt
        if qt == 0:
            A(f"v_cvt_pk_bf16_f32 v{o}, v{Dg}, v{Dg+1}\nv_cvt_pk_bf16_f32 v{o+1}, v{Dg+2}, v{Dg+3}\nv_mov_b32 v{o+2}, 0\nv_mov_b32 v{o+3}, 0")
        else:
            A(f"v_cvt_pk_bf16_f32 v{o}, v{SO}, v{SO+1}\nv_cvt_pk_bf16_f32 v{o+1}, v{SO+2}, v{SO+3}\nv_cvt_pk_bf16_f32 v{o+2}, v{Dg}, v{Dg+1}\nv_cvt_pk_bf16_f32 v{o+3}, v{Dg+2}, v{Dg+3}")
        A(f"v_cvt_pk_bf16_f32 v{o+4}, v{M}, v{M+1}")
        A(f"buffer_store_dwordx4 {v(o, 4)}, v4, s[36:39], s29 offen sc1\nbuffer_store_dword v{o+4}, v8, s[36:39], s30 offen sc1")
        if qt == 0: A("s_add_u32 s29, s29, 20480\ns_add_u32 s30, s30, 20480")

    A(f"s_waitcnt vmcnt(0)\ns_barrier\ns_lshl_b32 s28, s23, 2\ns_add_u32 s28, s28, s33\ns_add_u32 s28, s28, 240\ns_cmp_lg_u32 s3, 0\ns_cbranch_scc1 {L}_nofl")
    flag_set(A, 92, 28, 6, 7)
    A.label(L + "_nofl")

def xattn_srds(A):
    srd(A, 36, 18, G.PXF_OFF, 64*G.PXF_SEG)
    srd(A, 72, 18, G.KQF_OFF, 64*G.SEG_SZ)
    srd(A, 76, 18, G.XNF_OFF, G.XN_SZ)
    srd(A, 80, 18, G.MEMG_OFF, 64*8192)

def gemm2_srds(A):
    srd(A, 36, 18, G.PXF_OFF, 64*G.PXF_SEG)
    srd(A, 40, 18, G.VOF_OFF, 64*G.SEG_SZ)
    srd(A, 44, 18, G.WZ_OFF, 64*G.WZ_SEG)
    srd(A, 48, 4, 0, G.XN_SZ)
    srd(A, 52, 18, G.XN_OFF, G.XN_SZ)
    srd(A, 56, 18, G.MOEP_OFF, G.MOEP_SZ)
    srd(A, 60, 18, G.IDX_OFF, 32)
    srd(A, 64, 18, G.R_OFF, 8192)
    srd(A, 68, 6, 0, G.XN_SZ)
```

```python
from asmlib import *
import gen as G
from gen import srd, lane_setup
import kernels2 as K2, kernels3 as K3, kernels4 as K4

def kmain(A):
    A.label("main_kernel")
    A("""
    s_cmp_ge_u32 s2, 256
    s_cbranch_scc1 K3_end
    s_load_dwordx4 s[16:19], s[0:1], 104
    s_load_dwordx2 s[4:5], s[0:1], 0
    s_load_dwordx2 s[6:7], s[0:1], 96
    s_load_dwordx4 s[8:11], s[0:1], 72
    s_load_dwordx2 s[12:13], s[0:1], 88
    """)
    lane_setup(A)
    A("""v_lshlrev_b32 v4, 4, v1
    s_and_b32 s20, s2, 7
    s_lshr_b32 s21, s2, 3
    s_waitcnt lgkmcnt(0)
    s_cmp_lg_u32 s20, 0
    s_cbranch_scc1 KM_worker""")
    K3.team(A)
    A.label("KM_worker"); A.reset_state()
    A("""s_sub_u32 s20, s20, 1
    s_lshl_b32 s20, s20, 5
    s_add_u32 s20, s20, s21
    s_mul_i32 s22, s20, 9363
    s_lshr_b32 s22, s22, 16
    s_mul_i32 s23, s22, 7
    s_sub_u32 s23, s20, s23
    s_mov_b32 s21, s23""")
    K2.gemm1_body(A, "KG")
    A.label("KG_done"); A.reset_state()
    A("s_cmp_lt_u32 s22, 16\ns_cbranch_scc1 KM_t0")
    K2.wserve_body(A, "KW", "K3_end")
    A.label("KM_t0"); A.reset_state()
    A("s_and_b32 s28, s20, 3\ns_cmp_lg_u32 s28, 1\ns_cbranch_scc1 KM_tasks\ns_lshr_b32 s22, s20, 2\ns_barrier")
    K2.moe_body(A, "KE")
    A.label("KM_tasks"); A.reset_state()
    K4.gemm2_srds(A)
    K4.xattn_srds(A)
    srd(A, 92, 18, G.FLG_OFF, G.FLG_SZ)
    A("v_lshlrev_b32 v4, 4, v1")
    A.label("KM_next"); A.reset_state()
    A("""s_mul_i32 s22, s20, 5958
    s_lshr_b32 s22, s22, 16
    s_mul_i32 s23, s22, 11
    s_sub_u32 s23, s20, s23
    s_barrier
    s_cmp_ge_u32 s23, 4
    s_cbranch_scc1 KM_g""")
    K4.xattn_task(A, "KX", "K3_end")
    A("s_branch KM_adv")
    A.label("KM_g"); A.reset_state()
    A("s_sub_u32 s23, s23, 4")
    K4.gemm2_task(A, "K4", "K3_end")
    A.label("KM_adv")
    A("s_add_u32 s20, s20, 112\ns_cmp_lt_u32 s20, 704")
    A.flush()
    A("s_cbranch_scc1 KM_next")
    A.label("K3_end")
    A("s_endpgm")
```

```python
import sys
from asmlib import *

NAME = "parallel_sum__memory_aug_recurrent_mem_tr__moe_arch_mod__prompt"
XN_OFF, XN_SZ = 0x0000000, 2048*896
XNF_OFF = 0x0200000
R_OFF = 0x0400000
MOEP_OFF, MOEP_SZ = 0x0410000, 28*8*448*4
IDX_OFF = 0x0480000
MEMF_OFF, MEMF_STRIDE = 0x0500000, 8192
PF_OFF, PF_STRIDE = 0x0600000, 10240
WF_OFF, WF_UNIT = 0x0800000, 28*14*1024
KQF_OFF, SEG_SZ = 0x1800000, 16*28*1024
VOF_OFF = 0x3400000
PXF_OFF, PXF_SEG = 0x5000000, 40*1024
WZ_OFF, WZ_SEG = 0x5400000, 28*4*1024
MEMG_OFF = 0x5C00000
FLG_OFF, FLG_SZ = 0x5D00000, 17*1024
SPIN_MAX = 1 << 22
W3_SZ = 448*8192
SCALE_LOG2E = 0x3db8aa3b
import struct
assert abs(struct.unpack('<f', struct.pack('<I', SCALE_LOG2E))[0] - 1.4426950408889634/16) < 1e-8

KARG = dict(x=0, mem0=8, wq=16, wk=24, wv=32, wo=40, wr=64, wg=72, wu=80, wd=88, out=96, dbg=104, ws=112)

def srd(A, d, base, off, size):
    if off == 0:
        A(f"s_mov_b32 s{d}, s{base}\ns_mov_b32 s{d+1}, s{base+1}")
    else:
        o = off if isinstance(off, str) else hex(off)
        A(f"s_add_u32 s{d}, s{base}, {o}\ns_addc_u32 s{d+1}, s{base+1}, 0")
    A(f"s_mov_b32 s{d+2}, {hex(size)}\ns_mov_b32 s{d+3}, 0x20000")

def lane_setup(A, vlane=1, vn=2, vg=3, swave=3):
    A(f"""
    v_and_b32 v{vlane}, 63, v0
    v_lshrrev_b32 v{vg}, 6, v0
    v_and_b32 v{vn}, 15, v0
    v_readfirstlane_b32 s{swave}, v{vg}
    v_bfe_u32 v{vg}, v0, 4, 2
    """)

def xreduce(A, op, x, t, steps=(16, 32)):
    for st in steps:
        if st == 8:
            A(f"{op}_dpp v{x}, v{x}, v{x} row_ror:8 row_mask:0xf bank_mask:0xf")
        else:
            A(f"v_mov_b32 v{t}, v{x}")
            A(f"v_permlane{st}_swap_b32 v{x}, v{t}")
            A(f"{op} v{x}, v{x}, v{t}")

def flag_wait(A, L, srdn, voff, soff, tmp, bail, sleep=6, cnt=27):
    A(f"s_mov_b32 s{cnt}, 0")
    A.label(L)
    A(f"""buffer_load_dword v{tmp}, v{voff}, s[{srdn}:{srdn+3}], s{soff} offen sc1
    s_add_u32 s{cnt}, s{cnt}, 1
    s_cmp_gt_u32 s{cnt}, {SPIN_MAX}
    s_cbranch_scc1 {bail}
    s_waitcnt vmcnt(0)
    v_cmp_eq_u32 vcc, 0, v{tmp}
    s_cbranch_vccz {L}_ok
    s_sleep {sleep}
    s_branch {L}""")
    A.label(L + "_ok")

def flag_set(A, srdn, soff, t0, t1):
    A(f"""v_mov_b32 v{t0}, 1
    v_mov_b32 v{t1}, 0
    s_mov_b64 exec, 1
    buffer_store_dword v{t0}, v{t1}, s[{srdn}:{srdn+3}], s{soff} offen sc1
    s_mov_b64 exec, -1""")

def wreg(i, u, n=4):
    idx = 56*i + 4*u
    if idx < 256:
        assert idx + n <= 256
        return a_(idx, n)
    return v(120 + idx - 256, n)

def k1(A):
    A.label("prep_kernel")
    A(f"""
    s_cmp_ge_u32 s2, 256
    s_cbranch_scc1 K1_end
    s_load_dwordx4 s[4:7], s[0:1], 0
    s_load_dwordx8 s[8:15], s[0:1], 16
    s_load_dwordx2 s[16:17], s[0:1], 64
    s_load_dwordx2 s[18:19], s[0:1], 112
    """)
    lane_setup(A)
    A(f"""
    s_and_b32 s20, s2, 7
    s_lshr_b32 s21, s2, 3
    s_waitcnt lgkmcnt(0)
    s_cmp_ge_u32 s21, 28
    s_cbranch_scc1 K1_ln
    ; unit = xcd*4 + slot/7 ; rb = slot%7
    s_mul_i32 s22, s21, 37
    s_lshr_b32 s22, s22, 8
    s_mul_i32 s23, s22, 7
    s_sub_u32 s23, s21, s23
    s_lshl_b32 s24, s20, 2
    s_add_u32 s22, s22, s24
    s_and_b32 s24, s22, 15
    s_lshl_b32 s25, s24, 9
    ; vA = (8*(n>>2)+(n&3))*8192 + g*16
    v_lshrrev_b32 v4, 2, v2
    v_lshlrev_b32 v4, 3, v4
    v_and_b32 v5, 3, v2
    v_add_u32 v4, v4, v5
    v_lshlrev_b32 v4, 13, v4
    v_lshl_add_u32 v4, v3, 4, v4
    v_lshlrev_b32 v5, 4, v1
    s_mul_i32 s26, s22, {WF_UNIT}
    s_add_u32 s26, s26, {hex(WF_OFF)}
    """)
    srd(A, 36, 18, "s26", WF_UNIT)
    A("s_cmp_ge_u32 s22, 16\ns_cbranch_scc1 K1_type1")
    def areg(mt, ks): return v(8 + (mt*8 + ks)*4, 4)
    def acc(i, mt): return a_((i*4 + mt)*4, 4)
    def load_a(Asrd):
        for mt in range(4):
            A(f"s_lshl_b32 s27, s23, 19\ns_add_u32 s27, s27, s25\ns_add_u32 s27, s27, {(32*(mt >> 1) + 4*(mt & 1))*8192}")
            for ks in range(8):
                A(f"buffer_load_dwordx4 {areg(mt, ks)}, v4, s[{Asrd}:{Asrd+3}], s27 offen offset:{ks*64}")
    def epilogue(i, scale, tmp):
        for up in range(2):
            for ep in range(2):
                b = (i*4 + up*2 + ep)*4
                for r in range(4):
                    A(f"v_accvgpr_read_b32 v{tmp+8+r}, a{b+r}")
                if scale:
                    for r in range(4): A(f"v_mul_f32 v{tmp+8+r}, s30, v{tmp+8+r}")
                A(f"v_cvt_pk_bf16_f32 v{tmp+up*4+ep*2}, v{tmp+8}, v{tmp+9}")
                A(f"v_cvt_pk_bf16_f32 v{tmp+up*4+ep*2+1}, v{tmp+10}, v{tmp+11}")
            A(f"s_mul_i32 s27, s3, {7*14*1024}\ns_lshl_b32 s28, s23, 11\ns_add_u32 s27, s27, s28\ns_add_u32 s27, s27, {(i*14 + up)*1024}")
            A(f"buffer_store_dwordx4 {v(tmp+up*4, 4)}, v5, s[36:39], s27 offen")
    srd(A, 40, 8, 0, W3_SZ)
    srd(A, 44, 10, 0, W3_SZ)
    A(f"s_mov_b32 s30, {hex(SCALE_LOG2E)}")
    load_a(40)
    def breg0(i, ks):
        idx = (i*8 + ks)*4
        return a_(112 + idx, 4) if idx < 144 else v(136 + idx - 144, 4)
    for i in range(7):
        A(f"""s_mul_i32 s27, s3, 7
        s_add_u32 s27, s27, {i}
        s_lshr_b32 s28, s27, 1
        s_and_b32 s27, s27, 1
        s_lshl_b32 s28, s28, 18
        s_lshl_b32 s27, s27, 15
        s_add_u32 s27, s27, s28
        s_add_u32 s27, s27, s25""")
        for ks in range(8):
            A(f"buffer_load_dwordx4 {breg0(i, ks)}, v4, s[44:47], s27 offen offset:{ks*64}")
    nst = 0
    for i in range(7):
        A(f"s_waitcnt vmcnt({min(63, (6-i)*8 + nst)})")
        for ks in range(8):
            for mt in range(4):
                c = acc(i, mt) if ks else "0"
                A(f"v_mfma_f32_16x16x32_bf16 {acc(i, mt)}, {areg(mt, ks)}, {breg0(i, ks)}, {c}")
        if i > 0:
            epilogue(i-1, True, 216); nst += 2
    epilogue(6, True, 216)
    A("s_branch K1_end")
    A.label("K1_type1"); A.reset_state()
    srd(A, 40, 12, 0, W3_SZ)
    A(f"s_mul_i32 s27, s24, {256*896}")
    srd(A, 44, 14, "s27", 256*896)
    load_a(40)
    for k in range(7):
        A(f"""v_add_u32 v6, {k*64}, v1
        v_mul_u32_u24 v7, 4682, v6
        v_lshrrev_b32 v7, 16, v7
        v_mul_u32_u24 v232, 14, v7
        v_sub_u32 v6, v6, v232
        v_lshlrev_b32 v6, 4, v6
        v_mul_u32_u24 v232, 896, v7
        v_add_u32 v{216+k}, v232, v6
        v_and_b32 v232, 19, v7
        v_bfe_u32 v233, v7, 2, 1
        v_lshl_or_b32 v232, v233, 3, v232
        v_bfe_u32 v233, v7, 3, 1
        v_lshl_or_b32 v232, v233, 2, v232
        v_mul_u32_u24 v232, 224, v232
        v_add_u32 v{224+k}, v232, v6""")
    A(f"s_mul_i32 s28, s3, 224\ns_mul_i32 s29, s3, {128*224}")
    for k in range(7): A(f"v_add_u32 v{224+k}, s29, v{224+k}")
    def sreg(q, k):
        idx = (q*7 + k)*4
        return a_(112 + idx, 4) if idx < 144 else v(136 + idx - 144, 4)
    for q in range(8):
        A(f"s_add_u32 s27, s28, {q*32*896}")
        for k in range(7):
            A(f"buffer_load_dwordx4 {sreg(q, k)}, v{216+k}, s[44:47], s27 offen")
    A(f"""v_lshrrev_b32 v6, 2, v2
    v_and_b32 v7, 1, v3
    v_lshl_add_u32 v6, v7, 2, v6
    v_lshrrev_b32 v7, 1, v3
    v_lshl_add_u32 v6, v7, 4, v6
    v_mul_u32_u24 v6, 224, v6
    v_and_b32 v7, 3, v2
    v_lshl_add_u32 v6, v7, 3, v6
    v_add_u32 v6, s29, v6""")
    for half in range(2):
        for q in range(4):
            A(f"s_waitcnt vmcnt({(7 - (half*4 + q))*7})")
            for k in range(7):
                A(f"ds_write_b128 v{224+k}, {sreg(half*4 + q, k)} offset:{q*32*224}")
        A("s_waitcnt lgkmcnt(0)")
        seq = [(ks, i) for ks in range(4) for i in range(7)]
        def rd(n):
            ks, i = seq[n]
            b = 236 + (n % 4)*4
            for z in range(2):
                A(f"ds_read_b64_tr_b16 {v(b + 2*z, 2)}, v6 offset:{ks*32*224 + z*8*224 + i*32}")
        rd(0); rd(1); rd(2)
        for n, (ks, i) in enumerate(seq):
            if n + 3 < len(seq): rd(n + 3)
            left = min(3, len(seq) - 1 - n)
            A(f"s_waitcnt lgkmcnt({2*left})")
            for mt in range(4):
                c = acc(i, mt) if (ks or half) else "0"
                A(f"v_mfma_f32_16x16x32_bf16 {acc(i, mt)}, {areg(mt, half*4 + ks)}, {v(236 + (n % 4)*4, 4)}, {c}")
    for i in range(7): epilogue(i, False, 216)
    A("s_branch K1_end")
    A.label("K1_ln"); A.reset_state()
    A(f"""
    s_sub_u32 s21, s21, 28
    s_lshl_b32 s22, s20, 2
    s_add_u32 s22, s22, s21
    s_lshl_b32 s23, s22, 2
    s_add_u32 s23, s23, s3
    """)
    srd(A, 36, 4, 0, XN_SZ)
    srd(A, 40, 16, 0, 896)
    srd(A, 44, 18, XN_OFF, XN_SZ)
    srd(A, 48, 18, XNF_OFF, XN_SZ)
    srd(A, 52, 18, R_OFF, 8192)
    srd(A, 56, 18, MEMF_OFF, 64*MEMF_STRIDE)
    srd(A, 60, 18, PF_OFF, 64*PF_STRIDE)
    srd(A, 64, 6, 0, 7168)
    A(f"""
    v_mul_u32_u24 v4, 896, v2
    v_lshl_add_u32 v4, v3, 4, v4
    v_lshlrev_b32 v5, 4, v3
    v_lshlrev_b32 v6, 4, v1
    s_mul_i32 s24, s23, {16*896}
    """)
    X, W, F = 8, 64, 120
    for u in range(14): A(f"buffer_load_dwordx4 {v(X+4*u, 4)}, v4, s[36:39], s24 offen offset:{u*64}")
    for u in range(14): A(f"buffer_load_dwordx4 {v(W+4*u, 4)}, v5, s[40:43], 0 offen offset:{u*64}")
    A("v_mov_b32 v232, -1\nv_mov_b32 v233, -1\nv_mov_b32 v234, -1\nv_mov_b32 v235, -1")
    for k in range(4):
        A(f"s_lshl_b32 s25, s23, 10\ns_add_u32 s25, s25, {8192 + k*128*1024}")
        A(f"buffer_store_dwordx4 v[232:235], v6, s[56:59], s25 offen")
    for k in range(5):
        A(f"s_lshl_b32 s25, s23, 10\ns_add_u32 s25, s25, {k*128*1024}")
        A(f"buffer_store_dwordx4 v[232:235], v6, s[60:63], s25 offen")
    srd(A, 68, 18, FLG_OFF, FLG_SZ)
    A("v_mov_b32 v236, 0\nv_mov_b32 v237, 0\nv_mov_b32 v238, 0\nv_mov_b32 v239, 0\ns_lshl_b32 s25, s23, 10")
    A("buffer_store_dwordx4 v[236:239], v6, s[68:71], s25 offen")
    A("s_waitcnt vmcnt(24)")
    A("s_mov_b32 s26, 0xffff0000")
    for j in range(56):
        A(f"v_lshlrev_b32 v{F+2*j}, 16, v{X+j}\nv_and_b32 v{F+2*j+1}, s26, v{X+j}")
    A(f"v_pk_add_f32 v[236:237], {v(F,2)}, {v(F+2,2)}\nv_pk_add_f32 v[238:239], {v(F+4,2)}, {v(F+6,2)}")
    for j in range(4, 56, 2):
        A(f"v_pk_add_f32 v[236:237], v[236:237], {v(F+2*j,2)}\nv_pk_add_f32 v[238:239], v[238:239], {v(F+2*j+2,2)}")
    A("v_pk_add_f32 v[236:237], v[236:237], v[238:239]\nv_add_f32 v236, v236, v237")
    xreduce(A, "v_add_f32", 236, 237)
    A(f"v_mul_f32 v236, {hex(struct.unpack('<I', struct.pack('<f', 1/448))[0])}, v236\nv_mov_b32 v237, v236")
    A("v_mov_b32 v240, 0\nv_mov_b32 v241, 0\nv_mov_b32 v242, 0\nv_mov_b32 v243, 0")
    for j in range(0, 56, 2):
        A(f"v_pk_add_f32 v[244:245], {v(F+2*j,2)}, v[236:237] neg_lo:[0,1] neg_hi:[0,1]")
        A(f"v_pk_add_f32 v[246:247], {v(F+2*j+2,2)}, v[236:237] neg_lo:[0,1] neg_hi:[0,1]")
        A(f"v_pk_fma_f32 v[240:241], v[244:245], v[244:245], v[240:241]")
        A(f"v_pk_fma_f32 v[242:243], v[246:247], v[246:247], v[242:243]")
    A("v_pk_add_f32 v[240:241], v[240:241], v[242:243]\nv_add_f32 v240, v240, v241")
    xreduce(A, "v_add_f32", 240, 241)
    A(f"""v_mul_f32 v240, {hex(struct.unpack('<I', struct.pack('<f', 1/448))[0])}, v240
    v_cvt_pk_bf16_f32 v236, v236, v240
    v_and_b32 v240, s26, v236
    v_lshlrev_b32 v236, 16, v236
    v_add_f32 v240, {hex(struct.unpack('<I', struct.pack('<f', 1e-5))[0])}, v240
    v_cvt_pk_bf16_f32 v240, v240, v240
    v_and_b32 v240, s26, v240
    v_sqrt_f32 v240, v240
    v_mov_b32 v237, v236
    v_cvt_pk_bf16_f32 v240, v240, v240
    v_and_b32 v240, s26, v240
    v_rcp_f32 v240, v240
    s_nop 0
    v_mov_b32 v241, v240""")
    for j in range(56):
        A(f"v_pk_add_f32 {v(F+2*j,2)}, {v(F+2*j,2)}, v[236:237] neg_lo:[0,1] neg_hi:[0,1]")
        A(f"v_cvt_pk_bf16_f32 v{X+j}, v{F+2*j}, v{F+2*j+1}")
        A(f"v_lshlrev_b32 v{F+2*j}, 16, v{X+j}\nv_and_b32 v{F+2*j+1}, s26, v{X+j}")
        A(f"v_pk_mul_f32 {v(F+2*j,2)}, {v(F+2*j,2)}, v[240:241]")
        A(f"v_cvt_pk_bf16_f32 v{X+j}, v{F+2*j}, v{F+2*j+1}")
    A(f"s_mul_i32 s25, s23, {14*1024}")
    for u in range(14):
        A(f"buffer_store_dwordx4 {v(X+4*u, 4)}, v4, s[44:47], s24 offen offset:{u*64}")
        A(f"buffer_store_dwordx4 {v(X+4*u, 4)}, v6, s[48:51], s25 offen offset:{(u % 4)*1024}")
        if u % 4 == 3: A("s_add_u32 s25, s25, 4096")
    A("s_waitcnt vmcnt(38)")
    A("v_mov_b32 v240, 0\nv_mov_b32 v241, 0\nv_mov_b32 v242, 0\nv_mov_b32 v243, 0")
    for j in range(56):
        t = 244 + 4*(j % 2)
        A(f"v_lshlrev_b32 v{t}, 16, v{X+j}\nv_and_b32 v{t+1}, s26, v{X+j}\nv_lshlrev_b32 v{t+2}, 16, v{W+j}\nv_and_b32 v{t+3}, s26, v{W+j}")
        A(f"v_pk_fma_f32 {v(240+2*(j%2),2)}, {v(t,2)}, {v(t+2,2)}, {v(240+2*(j%2),2)}")
    A("v_pk_add_f32 v[240:241], v[240:241], v[242:243]\nv_add_f32 v240, v240, v241")
    xreduce(A, "v_add_f32", 240, 241)
    A(f"""v_cvt_pk_bf16_f32 v240, v240, v240
    v_and_b32 v240, s26, v240
    v_lshlrev_b32 v241, 2, v2
    s_lshl_b32 s25, s23, 6
    s_mov_b64 exec, 0xffff
    buffer_store_dword v240, v241, s[52:55], s25 offen
    s_mov_b64 exec, -1
    s_cmp_lg_u32 s23, 0
    s_cbranch_scc1 K1_end
    v_lshrrev_b32 v4, 1, v2
    v_mul_u32_u24 v4, 896, v4
    v_lshl_add_u32 v4, v3, 5, v4
    v_and_b32 v5, 1, v2
    v_cmp_eq_u32 vcc, 1, v5
    """)
    for t in range(7):
        A(f"buffer_load_dwordx4 {v(F+8*t, 4)}, v4, s[64:67], 0 offen offset:{t*128}")
        A(f"buffer_load_dwordx4 {v(F+8*t+4, 4)}, v4, s[64:67], 0 offen offset:{t*128+16}")
    A("s_waitcnt vmcnt(0)\ns_mov_b32 s27, 0xfffefffe")
    for t in range(7):
        for aa in range(4):
            A(f"v_cndmask_b32 v{W+4*t+aa}, v{F+8*t+2*aa}, v{F+8*t+2*aa+1}, vcc")
            A(f"v_pk_min_u16 v{W+4*t+aa}, v{W+4*t+aa}, s27")
        A(f"s_mov_b32 s25, {t*1024}\nbuffer_store_dwordx4 {v(W+4*t, 4)}, v6, s[56:59], s25 offen")
    A.label("K1_end")
    A("s_endpgm")

KD = """
.section .rodata,"a"
.p2align 6
.amdhsa_kernel {name}
  .amdhsa_next_free_vgpr {nv}
  .amdhsa_next_free_sgpr 102
  .amdhsa_accum_offset 256
  .amdhsa_group_segment_fixed_size 0
  .amdhsa_kernarg_size 120
  .amdhsa_user_sgpr_count 2
  .amdhsa_user_sgpr_kernarg_segment_ptr 1
  .amdhsa_system_sgpr_workgroup_id_x 1
.end_amdhsa_kernel
"""

def build(kernels):
    out = []
    for name, fn, grid, lds in kernels:
        out.append(f"; @launch kernel={name} grid=({grid},1,1) block=(256,1,1) lds={lds}")
    out.append('.amdgcn_target "amdgcn-amd-amdhsa--gfx950"\n.text')
    for name, fn, grid, lds in kernels:
        A = Asm()
        fn(A)
        out.append(f".globl {name}\n.p2align 8\n.type {name},@function")
        out.append(A.text())
    for name, fn, grid, lds in kernels:
        out.append(KD.format(name=name, nv=256 if name in ('gemm2_kernel', 'xattn_kernel') else 512))
    return '\n'.join(out)

if __name__ == "__main__":
    import kmain
    ks = [("prep_kernel", k1, 256, 4*128*224), ("main_kernel", kmain.kmain, 256, 163840)]
    sys.stdout.write(build(ks))
```

```python
from asmlib import *
import gen as G
from gen import srd, lane_setup, xreduce, wreg, flag_set, flag_wait, tl, tl_dump
from kernels2 import tile_c, load_weights7, f2h
import os
SPIN_MAX = 1 << 22
NINF = "0xff800000"
STAMP = int(os.environ.get("STAMP", "0"))
HU_P_AT = int(os.environ.get("HU_P_AT", "2"))
HU_M_AT = int(os.environ.get("HU_M_AT", "0"))
A_DMA = int(os.environ.get("A_DMA", "0"))
DSP = int(os.environ.get("DSP", "3"))
DSPB = int(os.environ.get("DSPB", "2"))
NT = os.environ.get("NT", "")
DBG2_OFF = 0x5E00000
QP = "quad_perm:[1,0,3,2] row_mask:0xf bank_mask:0xf"

def stamp(A, k):
    if STAMP: A(f"{'s_memrealtime' if STAMP == 2 else 's_memtime'} s[{4+2*k}:{5+2*k}]")
def stamp_cnt(A, k):
    if STAMP: A(f"s_mov_b32 s{16+k}, s27")
def stamp_out(A, tmp, lds, nw):
    if not STAMP: return
    lab = f"STK{len(A.lines)}"
    A(f"s_waitcnt lgkmcnt(0)\ns_lshr_b32 s28, s64, 4\ns_cmp_lg_u32 s28, 1\ns_cbranch_scc1 {lab}\ns_cmp_ge_u32 s3, {nw}\ns_cbranch_scc1 {lab}")
    for k in range(6): A(f"v_mov_b32 v{tmp+k}, s{4+2*k}")
    A(f"v_mov_b32 v{tmp+6}, s16\nv_mov_b32 v{tmp+7}, s17")
    A(f"""s_lshl_b32 s28, s3, 4
    s_add_u32 s28, s28, s64
    s_lshl_b32 s28, s28, 5
    s_add_u32 s28, s28, {lds - 512}
    v_mov_b32 v{tmp+8}, s28
    ds_write_b128 v{tmp+8}, {v(tmp, 4)}
    ds_write_b128 v{tmp+8}, {v(tmp+4, 4)} offset:16""")
    A.label(lab)
def stamp_dump(A, lds):
    if not STAMP: return
    A(f"""s_lshl_b32 s28, s3, 9
    v_bfe_u32 v8, v4, 4, 4
    v_lshlrev_b32 v8, 5, v8
    v_add_u32 v9, s28, v8
    v_add_u32 v9, {lds}, v9
    v_min_u32 v9, {163840 - 32}, v9
    s_lshl_b32 s28, s3, 11
    s_add_u32 s28, s28, 512
    v_add_u32 v8, s28, v8
    s_waitcnt lgkmcnt(0)
    ds_read_b128 v[12:15], v9
    ds_read_b128 v[16:19], v9 offset:16
    s_lshl_b32 s28, s21, 13
    s_waitcnt lgkmcnt(0)
    buffer_store_dwordx4 v[12:15], v8, s[60:63], s28 offen
    buffer_store_dwordx4 v[16:19], v8, s[60:63], s28 offen offset:16""")

def team_flavor(A, bail):
    A(f"v_lshlrev_b32 v5, 2, v1\ns_mov_b32 s27, 0\ns_mov_b32 exec_hi, 0")
    L = bail + "_fl" + str(len(A.lines))
    A.label(L)
    A(f"""
    buffer_load_dword v6, v5, s[60:63], 0 offen sc1
    s_add_u32 s27, s27, 1
    s_cmp_gt_u32 s27, {SPIN_MAX}
    s_cbranch_scc1 {bail}
    s_waitcnt vmcnt(0)
    v_cmp_eq_u32 vcc, 0, v6
    s_cbranch_vccnz {L}
    v_cmp_ne_u32 vcc, s35, v6
    s_mov_b64 exec, -1
    s_cmp_lg_u64 vcc, 0
    s_cselect_b32 s65, 1, 0
    """)
    if STAMP: srd(A, 60, 18, DBG2_OFF, 32*4*64*32)

HUD = int(os.environ.get("HUD", "3"))
def hu_wait(A, L, srdn, voff, soff, hr, bail, HUD=HUD):
    ld = lambda k: f"buffer_load_dword v{hr[k]}, v{voff}, s[{srdn}:{srdn+3}], s{soff} offen sc1"
    A("s_mov_b32 s27, 0")
    for k in range(HUD - 1): A(ld(k))
    A.label(L)
    for k in range(HUD):
        A(ld((k + HUD - 1) % HUD))
        A(f"s_waitcnt vmcnt({HUD-1})\nv_cmp_eq_u32 vcc, -1, v{hr[k]}\ns_cbranch_vccz {L}_ok")
    A(f"s_add_u32 s27, s27, 1\ns_cmp_gt_u32 s27, {SPIN_MAX}\ns_cbranch_scc0 {L}\ns_branch {bail}")
    A.label(L + "_ok")

def frag_loads(A, n, reg0, srdn, voff, soffs):
    for t in range(n):
        A(f"buffer_load_dwordx4 {v(reg0+4*t, 4)}, v{voff}, s[{srdn}:{srdn+3}], s{soffs[t // 4]} offen offset:{(t % 4)*1024} sc1")

def exact_check(A, L, n, reg0, tmp, retry, back, bail):
    A.label(L); A.reset_state()
    A("s_waitcnt vmcnt(0)")
    tmp, t2 = tmp if isinstance(tmp, tuple) else (tmp, tmp + 1)
    A(f"v_pk_max_u16 v{tmp}, v{reg0}, v{reg0+1}")
    for r in range(reg0 + 2, reg0 + 4*n): A(f"v_pk_max_u16 v{tmp}, v{tmp}, v{r}")
    A(f"""v_lshlrev_b32 v{t2}, 16, v{tmp}
    v_max_u32 v{tmp}, v{tmp}, v{t2}
    v_cmp_le_u32 vcc, s26, v{tmp}
    s_cbranch_vccz {back}
    s_add_u32 s27, s27, 1
    s_cmp_gt_u32 s27, {SPIN_MAX}
    s_cbranch_scc1 {bail}
    s_branch {retry}""")

def dma_ops(n, srdn, sg, sl, fl=''):
    o = []
    for k in range(n):
        pre = ""
        if k == 0: pre = f"s_mov_b32 m0, s{sl}\n"
        elif k % 4 == 0:
            pre = "s_add_u32 m0, m0, 4096\n"
            if not isinstance(sg, tuple): pre = f"s_add_u32 s{sg}, s{sg}, 4096\n" + pre
        g = sg[k // 4] if isinstance(sg, tuple) else sg
        o.append(pre + f"buffer_load_dwordx4 v4, s[{srdn}:{srdn+3}], s{g} offen offset:{(k % 4)*1024}{fl} lds")
    return o

TL, SMX, MFLA = 0, 7168, 8192
MF, TA, XB = 8, 36, 64
VTOUCH = int(os.environ.get("VTOUCH", "1"))

def mem_fetch(A, base):
    A(f"s_mov_b32 s97, {base}")
    for z in dma_ops(7, 40, (32, 34), 97, " sc1"): A(z)
    A("s_waitcnt vmcnt(0)")

def a_xb_load(A):
    A(f"s_mul_i32 s28, s33, 28672\ns_add_u32 s28, s28, s94")
    for k in range(14):
        if k and k % 4 == 0: A("s_add_u32 s28, s28, 4096")
        A(f"buffer_load_dwordx4 {v(XB+4*k, 4)}, v4, s[52:55], s28 offen offset:{(k % 4)*1024}")

def a_loop(A, role, fl):
    L = f"K3a{role}f{fl}"
    sc = " sc1" if fl else ""
    if role == 1:
        A("s_mov_b32 s33, 0"); a_xb_load(A)
    A.label(L + "_loop"); A.reset_state()
    stamp(A, 0)
    A(f"""s_lshl_b32 s32, s64, 13
    s_add_u32 s34, s32, 4096
    s_add_u32 s33, s64, 1
    s_min_u32 s33, s33, 63""")
    zero = [f"v_mov_b32 v{r}, 0" for r in range(TA, TA + 28)]
    for z in zero: A(z)
    if VTOUCH: A(f"s_mul_i32 s30, s33, {G.SEG_SZ}\ns_add_u32 s30, s30, s93")
    if role == 0:
        A(f"v_mov_b32 v{XB+4}, {NINF}\nv_mov_b32 v{XB+5}, {NINF}\ns_mul_i32 s31, s64, {G.PF_STRIDE}")
        A(f"s_cmp_eq_u32 s64, 0\ns_cbranch_scc1 {L}_hu_ok")
        hu_wait(A, L + "_hu", 40, 111, 32, (108, 109, 107), "K3_end")
    if role == 3 and VTOUCH:
        A(f"s_lshl_b32 s28, s33, 8\ns_add_u32 s29, s28, 256\ns_waitcnt vmcnt(0)\nv_cmp_ne_u32 vcc, s96, v115\ns_cbranch_vccz {L}_wv_ok")
        flag_wait(A, L + "_wv", 56, 117, 28, 116, "K3_end", sleep=2)
    stamp(A, 1)
    A("s_mov_b32 s27, 0")
    A.label(L + "_go"); A.reset_state()
    if role == 0: mem_fetch(A, MFLA)
    A("s_barrier")
    for t in range(7): A(f"ds_read_b128 {v(MF+4*t, 4)}, v1 offset:{t*1024}")
    smf = lambda d, t, B: f"v_smfmac_f32_16x16x64_bf16 {v(d, 4)}, {v(MF+4*t, 4)}, {B}, v2"
    dm = []
    if VTOUCH and role != 1:
        for k in range(4 if role == 3 else 3):
            dm.append(f"buffer_load_dword v119, v118, s[48:51], s30 offen sc1\ns_add_u32 s30, s30, 4096")
        if role == 3: dm.append("buffer_load_dword v115, v117, s[56:59], s29 offen sc1")
    cnt = [0, 8]
    def emit(z, side=None):
        A(z); cnt[0] += 1
        if side: A(side)
        elif dm and cnt[0] >= cnt[1]: A(dm.pop(0)); cnt[1] = cnt[0] + 3
    for t in range(7):
        A(f"s_waitcnt lgkmcnt({6 - t})")
        if t == 0: stamp(A, 2)
        for d, i in ((TA+24, 6), (TA, 0), (TA+4, 1)): emit(smf(d, t, wreg(i, 2*t, 8)))
    def fin(x): return [f"v_add_f32 v{x}, v{x}, v{x+1}", f"v_add_f32 v{x+2}, v{x+2}, v{x+3}", f"v_cvt_pk_bf16_f32 v{x}, v{x}, v{x+2}"]
    def post_pair(p):
        x, y = TA + 8*p, TA + 8*p + 4
        return fin(x) + fin(y) + [f"ds_write2st64_b32 v5, v{x}, v{y} offset0:{2*p} offset1:{2*p+1}"]
    b = TA + 24
    chk = [f"v_add_f32 v{b}, v{b}, v{b+1}", f"v_add_f32 v{b+2}, v{b+2}, v{b+3}", f"v_cmp_u_f32 vcc, v{b}, v{b+2}",
           f"s_cbranch_vccnz {L}_slow\n{L}_back:", f"v_cvt_pk_bf16_f32 v{b}, v{b}, v{b+2}", f"ds_write_b32 v6, v{b}"]
    seq1 = [None]*4 + chk + post_pair(0)[:4]
    seq2 = post_pair(0)[4:] + [None]*2 + post_pair(1)
    for p, side in ((1, seq1), (2, seq2)):
        x, y = TA + 8*p, TA + 8*p + 4
        side = list(side)
        for t in range(7):
            for d, i in ((x, 2*p), (y, 2*p + 1)):
                emit(smf(d, t, wreg(i, 2*t, 8)), side.pop(0) if side else None)
    for z in post_pair(2): A(z)
    stamp(A, 3); stamp_cnt(A, 0)
    A("s_waitcnt lgkmcnt(0)\ns_barrier")
    stamp(A, 4)
    tr = lambda t: [f"ds_read_b64_tr_b16 {v(TA + 4*t + 2*z, 2)}, v0 offset:{t*1024 + z*32}" for z in range(2)]
    if role != 3:
        for t in range(7):
            for z in tr(t): A(z)
    if role == 1:
        D = MF
        for r in range(4): A(f"v_mov_b32 v{D+r}, 0")
        for t in range(7):
            A(f"s_waitcnt lgkmcnt({2*(6-t)})" + (" vmcnt(0)" if t == 0 else ""))
            A(f"v_smfmac_f32_16x16x64_bf16 {v(D, 4)}, {v(TA+4*t, 4)}, {v(XB+8*t, 8)}, v3")
        A(f"""v_permlane32_swap_b32 v{D}, v{D+1}
        v_permlane32_swap_b32 v{D+2}, v{D+3}
        v_add_f32 v{D}, v{D}, v{D+1}
        v_add_f32 v{D+2}, v{D+2}, v{D+3}
        ds_write2_b32 v7, v{D}, v{D+2} offset0:0 offset1:32
        s_waitcnt lgkmcnt(0)
        s_barrier
        s_barrier""")
        a_xb_load(A)
    if role == 3: A("s_barrier\ns_barrier")
    if role == 0:
        X, R, D = XB, XB + 4, XB + 8
        m, t1, l = XB+12, XB+13, XB+14
        for t in range(7):
            A(f"s_waitcnt lgkmcnt({2*(6-t)})")
            A(f"v_mfma_f32_16x16x32_bf16 {v(D, 4)}, {v(MF+4*t, 4)}, {v(TA+4*t, 4)}, {v(D, 4) if t else '0'}")
        def hu_pub(k):
            if HU_P_AT == k: A(f"buffer_store_dword v112, v110, s[40:43], s32 offen{sc}")
        hu_pub(0)
        A(f"v_add_f32_dpp v{R}, v{D+1}, v{D} row_ror:8 row_mask:0xf bank_mask:0x3")
        A(f"v_add_f32_dpp v{R+1}, v{D+3}, v{D+2} row_ror:8 row_mask:0xf bank_mask:0x3")
        A(f"v_max_f32 v{m}, v{R}, v{R+1}\ns_barrier")
        A(f"ds_read_b64 {v(X, 2)}, v7\nds_read_b64 {v(X+2, 2)}, v7 offset:512")
        hu_pub(1)
        A(f"""s_waitcnt lgkmcnt(1)
        v_max3_f32 v{m}, v{m}, v{X}, v{X+1}
        s_waitcnt lgkmcnt(0)
        v_max3_f32 v{m}, v{m}, v{X+2}, v{X+3}""")
        xreduce(A, "v_max_f32", m, t1, steps=(8, 16, 32))
        hu_pub(2)
        for r in (X, X+2, R): A(f"v_pk_add_f32 {v(r, 2)}, {v(r, 2)}, {v(m, 2)} op_sel_hi:[1,0] neg_lo:[0,1] neg_hi:[0,1]")
        for r in range(6): A(f"v_exp_f32 v{X+r}, v{X+r}")
        hu_pub(3)
        A(f"""v_pk_add_f32 {v(l, 2)}, {v(X, 2)}, {v(X+2, 2)}
        v_pk_add_f32 {v(l, 2)}, {v(l, 2)}, {v(R, 2)}
        v_add_f32 v{l}, v{l}, v{l+1}""")
        xreduce(A, "v_add_f32", l, t1, steps=(8, 16, 32))
        A(f"v_rcp_f32 v{l}, v{l}")
        for r in (X, X+2, R): A(f"v_pk_mul_f32 {v(r, 2)}, {v(r, 2)}, {v(l, 2)} op_sel_hi:[1,0] clamp")
        A(f"""v_cvt_pk_bf16_f32 v{X}, v{X}, v{X+1}
        v_cvt_pk_bf16_f32 v{X+1}, v{X+2}, v{X+3}
        v_cvt_pk_bf16_f32 v{R}, v{R}, v{R+1}
        buffer_store_dwordx2 {v(X, 2)}, v116, s[44:47], s31 offen{sc}
        buffer_store_dword v{R}, v117, s[44:47], s31 offen{sc}
        s_barrier""")
    stamp(A, 5)
    if role == 0: tl(A, 0, 64)
    if role == 3 and G.TLM: A("s_memtime s[100:101]\ns_min_u32 m0, s64, 59\ns_waitcnt lgkmcnt(0)\nv_writelane_b32 v113, s100, m0")
    stamp_out(A, TA + 8, MFLA + 7168, 4)
    A(f"s_add_u32 s64, s64, 1\ns_cmp_lt_u32 s64, 63")
    A.flush()
    A(f"s_cbranch_scc1 {L}_loop")
    stamp_dump(A, MFLA + 7168)
    if role != 1: tl_dump(A, 1)
    A("s_branch K3_end")
    exact_check(A, L + "_slow", 7, MF, (TA + 25, TA + 27), L + "_retry", L + "_back", "K3_end")
    A.label(L + "_retry"); A.reset_state()
    for z in zero: A(z)
    if VTOUCH: A(f"s_mul_i32 s30, s33, {G.SEG_SZ}\ns_add_u32 s30, s30, s93")
    A(f"s_barrier\ns_branch {L}_go")

def a_cu(A):
    A(f"s_mul_i32 s26, s22, {G.WF_UNIT}\ns_add_u32 s26, s26, {hex(G.WF_OFF)}")
    srd(A, 36, 18, "s26", G.WF_UNIT)
    srd(A, 48, 18, G.VOF_OFF, 64*G.SEG_SZ)
    srd(A, 52, 18, G.XNF_OFF, G.XN_SZ)
    srd(A, 56, 18, G.FLG_OFF, G.FLG_SZ)
    A(f"s_and_b32 s24, s3, 1\nv_min_u32 v5, 6, v1\nv_lshlrev_b32 v5, 2, v5\ns_mul_i32 s28, s22, 28\ns_add_u32 s28, s28, {G.FLG_PROD}")
    flag_wait(A, "K3a_wp", 56, 5, 28, 6, "K3_end", sleep=1)
    tl(A, 62)
    load_weights7(A, 36, 4, st=28)
    team_flavor(A, "K3_end")
    tile_c(A, 28, 0); tile_c(A, 30, 6)
    A(f"""
    v_lshrrev_b32 v8, 1, v3
    v_and_b32 v9, 1, v3
    v_lshlrev_b32 v7, 7, v8
    v_lshl_add_u32 v7, v2, 3, v7
    v_lshl_add_u32 v7, v9, 2, v7
    s_lshl_b32 s28, s28, 8
    v_add_u32 v5, s28, v7
    s_lshl_b32 s30, s30, 8
    v_add_u32 v6, s30, v7
    s_mov_b32 s64, 0
    s_mov_b32 s26, 0xffff0000
    v_lshrrev_b32 v10, 2, v2
    v_and_b32 v11, 3, v2
    v_lshrrev_b32 v12, 1, v10
    v_lshl_add_u32 v12, v8, 1, v12
    v_lshlrev_b32 v0, 8, v12
    v_and_b32 v12, 1, v11
    v_lshl_add_u32 v0, v12, 7, v0
    v_lshlrev_b32 v12, 3, v9
    v_and_b32 v13, 2, v11
    v_add_u32 v12, v12, v13
    v_and_b32 v13, 1, v10
    v_add_u32 v12, v12, v13
    v_lshl_add_u32 v0, v12, 3, v0
    s_sub_u32 s28, s3, 1
    s_and_b32 s28, s28, 1
    s_mul_i32 s94, s28, 14336
    s_lshl_b32 s28, s28, 9
    s_add_u32 s28, s28, {SMX}
    v_lshl_add_u32 v7, v9, 2, v8
    v_lshlrev_b32 v7, 6, v7
    v_lshl_add_u32 v7, v2, 2, v7
    v_add_u32 v7, s28, v7
    v_lshlrev_b32 v118, 6, v1
    s_mul_i32 s93, s22, 28672
    s_cmp_eq_u32 s3, 0
    s_cselect_b32 s28, 16384, 0
    s_add_u32 s93, s93, s28
    v_and_b32 v12, 7, v2
    v_lshrrev_b32 v13, 3, v2
    v_lshlrev_b32 v14, 6, v12
    v_lshl_add_u32 v14, v3, 4, v14
    v_lshl_add_u32 v14, v13, 3, v14
    v_add_u32 v14, {SMX}, v14
    s_cmp_eq_u32 s3, 0
    s_cselect_b64 vcc, -1, 0
    v_cndmask_b32 v7, v7, v14, vcc
    v_lshlrev_b32 v116, 5, v12
    v_lshl_add_u32 v116, v13, 4, v116
    v_lshl_add_u32 v116, v8, 8, v116
    v_lshl_add_u32 v116, v9, 3, v116
    s_lshl_b32 s28, s22, 9
    v_add_u32 v116, s28, v116
    v_lshlrev_b32 v117, 5, v12
    v_lshl_add_u32 v117, v8, 8, v117
    v_lshl_add_u32 v117, v9, 3, v117
    s_lshr_b32 s28, s22, 2
    s_lshl_b32 s28, s28, 9
    s_and_b32 s29, s22, 1
    s_lshl_b32 s29, s29, 4
    s_add_u32 s28, s28, s29
    s_bfe_u32 s29, s22, 0x10001
    s_lshl_b32 s29, s29, 2
    s_add_u32 s28, s28, s29
    s_add_u32 s28, s28, 8192
    v_add_u32 v117, s28, v117
    v_mov_b32 v14, 0x7ffffff0
    v_cmp_gt_u32 vcc, 8, v2
    v_cndmask_b32 v117, v14, v117, vcc
    v_min_u32 v13, 15, v1
    v_lshlrev_b32 v13, 2, v13
    v_add_u32 v13, 64, v13
    s_cmp_eq_u32 s3, 3
    s_cselect_b64 vcc, -1, 0
    v_cndmask_b32 v117, v117, v13, vcc
    v_min_u32 v111, 27, v1
    v_lshlrev_b32 v111, 2, v111
    v_add_u32 v111, 7168, v111
    v_mov_b32 v112, 0
    v_not_b32 v115, s96
    s_lshl_b32 s29, s22, 2
    s_add_u32 s29, s29, {8192 + 7296}
    v_mov_b32 v110, s29
    v_cmp_eq_u32 vcc, 0, v1
    v_cndmask_b32 v110, v14, v110, vcc
    v_mov_b32 v12, 0x4444
    v_mov_b32 v14, 0xeeee
    v_cmp_lt_u32 vcc, 7, v2
    v_cndmask_b32 v3, v12, v14, vcc
    v_and_b32 v2, 1, v2
    v_cmp_eq_u32 vcc, 1, v2
    v_cndmask_b32 v2, v12, v14, vcc
    v_add_u32 v1, {MFLA}, v4
    s_waitcnt vmcnt(0)""")
    if G.TLM: A("s_cmp_lg_u32 s3, 3\ns_cbranch_scc1 K3a_tl\ns_memrealtime s[100:101]\ns_waitcnt lgkmcnt(0)\nv_writelane_b32 v113, s100, 63\nK3a_tl:")
    A("""s_cmp_lg_u32 s65, 0
    s_cbranch_scc1 K3a_fl1""")
    for fl in (0, 1):
        if fl: A.label("K3a_fl1"); A.reset_state()
        A(f"s_cmp_eq_u32 s3, 0\ns_cbranch_scc1 K3a_r0f{fl}\ns_cmp_eq_u32 s3, 3\ns_cbranch_scc1 K3a_r3f{fl}")
        for role in (1, 0, 3):
            if role != 1: A.label(f"K3a_r{role}f{fl}"); A.reset_state()
            a_loop(A, role, fl)

WL, VOL, WZL, MFLB = 0, 114688, 147456, 155648
def wregB(i, u, n=4):
    idx = 56*i + 4*u
    if idx < 256:
        assert idx + n <= 256
        return a_(idx, n)
    return v(176 + idx - 256, n)
BA, LW, Z, PFR, PA, KEEP, KEEPM = 36, 68, 36, 116, 156, 100, 152

def b_loop(A, fl):
    L = f"K3bf{fl}"
    sc = " sc1" if fl else ""
    A.label(L + "_loop"); A.reset_state()
    zero = [f"v_mov_b32 v{r}, 0" for r in range(BA, BA + 32)]
    for z in zero: A(z)
    lw = lambda k: LW + (k % 4)*8
    def rdw(k):
        for z in range(2): A(f"ds_read_b128 {v(lw(k) + 4*z, 4)}, v5 offset:{(k // 7)*14336 + (2*(k % 7) + z)*1024}")
    for k in range(4): rdw(k)
    A(f"""s_lshl_b32 s32, s64, 13
    s_add_u32 s34, s32, 4096
    s_mul_i32 s30, s64, {G.SEG_SZ}
    s_lshl_b32 s31, s22, 15
    s_add_u32 s30, s30, s31
    s_lshl_b32 s31, s3, 13
    s_add_u32 s30, s30, s31
    s_add_u32 s29, s30, 4096
    s_add_u32 s31, s31, {VOL}
    s_lshl_b32 s28, s3, 10
    s_add_u32 s28, s28, s66
    v_add_u32 v174, s28, v4
    v_lshrrev_b32 v163, 2, v4
    v_min_u32 v163, 60, v163
    v_add_u32 v163, 64, v163""")
    stamp(A, 0)
    A(f"s_lshl_b32 s28, s64, 8\ns_add_u32 s33, s28, 256\ns_cmp_lg_u32 s3, 3\ns_cbranch_scc1 {L}_wv_ok\nv_cmp_ne_u32 vcc, s96, v0\ns_cbranch_vccz {L}_wv_ok")
    flag_wait(A, L + "_wv", 68, 163, 28, PFR, "K3_end", sleep=2)
    A(f"s_mov_b32 s27, 0\ns_waitcnt lgkmcnt(0)\ns_cmp_lg_u32 s3, 2\ns_cbranch_scc1 {L}_join\ns_cmp_eq_u32 s64, 0\ns_cbranch_scc1 {L}_hm_ok")
    hu_wait(A, L + "_hm", 40, 161, 32, (PFR, PFR+1, PFR+2), "K3_end")
    A("s_mov_b32 s27, 0")
    A.label(L + "_go"); A.reset_state()
    mem_fetch(A, MFLB)
    A.label(L + "_join")
    A("s_barrier")
    for t in range(7): A(f"ds_read_b128 {v(MF+4*t, 4)}, v162 offset:{t*1024}")
    sm0 = lambda i, t, B: f"v_smfmac_f32_16x16x64_bf16 {v(BA+4*i, 4)}, {v(MF+4*t, 4)}, {B}, v160"
    dm = dma_ops(8, 48, (30, 29), 31, ' sc1') + ["buffer_load_dword v0, v163, s[68:71], s33 offen sc1"]
    cnt = [0, 1]
    def sm(i, t, B):
        cnt[0] += 1
        z = sm0(i, t, B)
        if dm and cnt[0] >= cnt[1]: z += "\n" + dm.pop(0); cnt[1] = cnt[0] + DSPB
        return z
    for t in range(7):
        A(f"s_waitcnt lgkmcnt({6 - t})")
        if t == 0: stamp(A, 1)
        A(sm(0, t, wregB(0, 2*t, 8)))
    for t in range(7):
        A(sm(1, t, wregB(1, 2*t, 8)))
        if t == 3: A(f"v_add_f32 v{BA}, v{BA}, v{BA+1}")
        if t == 4: A(f"v_add_f32 v{BA+2}, v{BA+2}, v{BA+3}")
        if t == 5: A(f"v_cmp_u_f32 vcc, v{BA}, v{BA+2}")
        if t == 6: A(f"s_cbranch_vccnz {L}_slowm\n{L}_backm:")
    stamp_cnt(A, 0)
    for k in range(14):
        A(f"s_waitcnt lgkmcnt({2*min(3, 13-k)})")
        A(sm(6 + k // 7, k % 7, v(lw(k), 8)))
        i = 2 + k // 7
        A(sm(i, k % 7, wregB(i, 2*(k % 7), 8)))
        if k + 4 < 14: rdw(k + 4)
    def fin(i):
        x = BA + 4*i
        o = [] if i == 0 else [f"v_add_f32 v{x}, v{x}, v{x+1}", f"v_add_f32 v{x+2}, v{x+2}, v{x+3}"]
        return o + [f"v_cvt_pk_bf16_f32 v{164+i}, v{x}, v{x+2}"]
    side = fin(0) + fin(1) + fin(2) + fin(6) + fin(3) + [f"ds_write_b128 v174, v[164:167]"]
    for t in range(7):
        for i in (4, 5):
            A(sm(i, t, wregB(i, 2*t, 8)))
            if side: A(side.pop(0))
    for z in side + fin(7) + fin(4) + fin(5) + [f"ds_write_b128 v174, v[168:171] offset:4096"]: A(z)
    stamp(A, 2)
    A(f"s_waitcnt vmcnt(0) lgkmcnt(0)\ns_barrier\ns_cmp_ge_u32 s3, 2\ns_cbranch_scc1 {L}_next")
    A("s_lshl_b32 s28, s24, 12\ns_add_u32 s28, s28, s66\nv_add_u32 v163, s28, v4")
    for f in range(16):
        A(f"ds_read_b128 {v(Z + 4*f, 4)}, v6 offset:{f*1024}")
        if f == 11: A("s_waitcnt lgkmcnt(4)")
    for f in range(4): A(f"ds_read_b128 {v(Z + 64 + 4*f, 4)}, v163 offset:{f*1024}")
    for r in range(4): A(f"v_mov_b32 v{PA+r}, 0")
    A(f"""s_mul_i32 s28, s64, {G.PF_STRIDE}
    s_add_u32 s29, s28, 4096
    s_add_u32 s30, s28, 8192
    s_add_u32 s34, s32, 8192
    s_waitcnt lgkmcnt(0)""")
    stamp(A, 3)
    hu_wait(A, L + "_hp", 40, 172, 32, (PFR, PFR+1, PFR+2, PFR+3), "K3_end", HUD=int(os.environ.get("HUDP", "4")))
    stamp(A, 2)
    A("s_mov_b32 s27, 0")
    A.label(L + "_gop"); A.reset_state()
    order = [8, 9, 0, 1, 2, 3, 4, 5, 6, 7]
    for k, t in enumerate(order):
        A(f"buffer_load_dwordx4 {v(PFR+4*t, 4)}, v4, s[44:47], s{28 + t // 4} offen offset:{(t % 4)*1024} sc1")
        if HU_M_AT < 0 and k == 10 + HU_M_AT: A(f"buffer_store_dword v175, v173, s[40:43], s32 offen{sc}")
    for k, u in enumerate(order):
        A(f"s_waitcnt vmcnt({9-k + (1 if (k > HU_M_AT + 1 if HU_M_AT >= 0 else k <= 10 + HU_M_AT) else 0)})")
        if k == 0: stamp(A, 4)
        A(f"v_smfmac_f32_16x16x64_bf16 {v(PA, 4)}, {v(PFR+4*u, 4)}, {v(Z+8*u, 8)}, v160")
        if k == 0: A(f"v_max_u32 v164, v{PFR+32}, v{PFR+33}")
        if k == 1: A(f"v_max3_u32 v164, v164, v{PFR+36}, v{PFR+37}\nv_cmp_eq_u32 vcc, -1, v164\ns_cbranch_vccnz {L}_early")
        if HU_M_AT >= 0 and k == HU_M_AT + 1: A(f"buffer_store_dword v175, v173, s[40:43], s32 offen{sc}")
    A(f"""v_add_f32 v{PA}, v{PA}, v{PA+1}
    v_add_f32 v{PA+2}, v{PA+2}, v{PA+3}
    v_cmp_u_f32 vcc, v{PA}, v{PA+2}
    v_cvt_pk_bf16_f32 v{PA}, v{PA}, v{PA+2}
    s_cbranch_vccnz {L}_slowp""")
    A.label(L + "_backp")
    A(f"""buffer_store_short v{PA}, v7, s[40:43], s34 offen{sc}
    buffer_store_short_d16_hi v{PA}, v7, s[40:43], s34 offen offset:32{sc}""")
    stamp_cnt(A, 1)
    A.label(L + "_next")
    stamp(A, 5)
    tl(A, 0, 64)
    stamp_out(A, 116, MFLB + 7168, 2)
    A(f"s_add_u32 s64, s64, 1\ns_cmp_lt_u32 s64, 63")
    A.flush()
    A(f"s_cbranch_scc1 {L}_loop")
    A.label(L + "_exit"); A.reset_state()
    stamp_dump(A, MFLB + 7168)
    tl_dump(A, 1)
    A("s_branch K3_end")
    exact_check(A, L + "_slowm", 7, MF, 164, L + "_retrym", L + "_backm", "K3_end")
    A.label(L + "_retrym"); A.reset_state()
    for z in zero[:8]: A(z)
    A(f"s_barrier\ns_cmp_lg_u32 s3, 2\ns_cbranch_scc1 {L}_join\ns_branch {L}_go")
    exact_check(A, L + "_slowp", 10, PFR, 164, L + "_retryp", L + "_nanp", "K3_end")
    A.label(L + "_nanp"); A.reset_state()
    A(f"v_pk_min_u16 v{PA}, v{PA}, s25\ns_branch {L}_backp")
    A.label(L + "_early"); A.reset_state()
    A(f"s_add_u32 s27, s27, 1\ns_cmp_gt_u32 s27, {SPIN_MAX}\ns_cbranch_scc1 K3_end\ns_waitcnt vmcnt(0)\ns_nop 7")
    A.label(L + "_retryp"); A.reset_state()
    for r in range(4): A(f"v_mov_b32 v{PA+r}, 0")
    A(f"s_nop 1\ns_branch {L}_gop")

def b_cu(A):
    srd(A, 36, 18, G.WF_OFF + 16*G.WF_UNIT, 16*G.WF_UNIT)
    srd(A, 48, 18, G.VOF_OFF, 64*G.SEG_SZ)
    srd(A, 68, 18, G.FLG_OFF, G.FLG_SZ)
    A(f"v_min_u32 v5, 55, v1\nv_lshlrev_b32 v5, 2, v5\ns_mov_b32 s28, {G.FLG_PROD + 448}\ns_mov_b32 s29, {G.FLG_PROD + 448 + 224}")
    flag_wait(A, "K3b_wp0", 68, 5, 28, 6, "K3_end", sleep=1)
    flag_wait(A, "K3b_wp1", 68, 5, 29, 6, "K3_end", sleep=1)
    for i in range(8):
        ct, q = i // 4, i % 4
        A(f"""s_lshl_b32 s28, s3, 2
        s_add_u32 s28, s28, {q}
        s_mul_i32 s28, s28, {G.WF_UNIT}
        s_mul_i32 s29, s22, 28672
        s_add_u32 s28, s28, s29
        s_add_u32 s28, s28, {ct*14336}""")
        if i >= 6:
            A(f"s_mul_i32 s29, s3, 28672\ns_add_u32 s29, s29, {WL + (i-6)*14336}")
            for z in dma_ops(14, 36, 28, 29): A(z)
        else:
            for u in range(14):
                A(f"buffer_load_dwordx4 {wregB(i, u)}, v4, s[36:39], s28 offen offset:{(u % 4)*1024}")
                if u % 4 == 3: A("s_add_u32 s28, s28, 4096")
    team_flavor(A, "K3_end")
    A(f"""
    s_mul_i32 s28, s3, 28672
    v_add_u32 v5, s28, v4
    v_and_b32 v9, 1, v2
    v_cmp_eq_u32 vcc, 1, v9
    v_mov_b32 v160, 0x4444
    v_mov_b32 v161, 0xeeee
    v_cndmask_b32 v160, v160, v161, vcc
    s_mov_b32 s25, 0xfffefffe
    s_mov_b32 s26, 0xffff0000
    s_mov_b32 s64, 0
    s_mov_b32 s66, {WZL}
    s_and_b32 s24, s3, 1
    s_lshl_b32 s28, s24, 14
    s_add_u32 s28, s28, {VOL}
    v_add_u32 v6, s28, v4
    v_bfe_u32 v8, v2, 1, 1
    v_lshl_add_u32 v8, v3, 2, v8
    v_lshlrev_b32 v7, 4, v8
    v_lshrrev_b32 v8, 2, v2
    v_lshl_add_u32 v7, v8, 2, v7
    v_lshl_add_u32 v7, v9, 1, v7
    s_lshl_b32 s28, s22, 1
    s_add_u32 s28, s28, s24
    s_lshl_b32 s67, s28, 12
    s_lshl_b32 s29, s28, 8
    v_add_u32 v7, s29, v7
    v_min_u32 v161, 27, v1
    v_lshlrev_b32 v161, 2, v161
    v_add_u32 v161, 7168, v161
    v_min_u32 v172, 15, v1
    v_lshlrev_b32 v172, 2, v172
    v_add_u32 v172, {8192 + 7296}, v172
    s_lshl_b32 s28, s28, 2
    s_add_u32 s28, s28, {8192 + 7168}
    v_mov_b32 v173, s28
    v_mov_b32 v8, 0x7ffffff0
    v_cmp_eq_u32 vcc, 0, v1
    v_cndmask_b32 v173, v8, v173, vcc
    v_mov_b32 v175, 0
    v_not_b32 v0, s96
    v_add_u32 v162, {MFLB}, v4
    s_mov_b32 s97, {MFLB}
    s_mul_i32 s98, s24, 3072
    s_waitcnt vmcnt(0)
    """)
    G.TLV[0] = 3
    tl(A, 63)
    A("s_cmp_lg_u32 s65, 0\ns_cbranch_scc1 K3bf1_loop")
    b_loop(A, 0)
    b_loop(A, 1)

def warm_cu(A):
    L = "K3w"
    srd(A, 52, 18, G.XNF_OFF, G.XN_SZ)
    A(f"""v_min_u32 v5, 27, v1
    v_lshlrev_b32 v5, 2, v5
    v_add_u32 v5, 7168, v5
    s_lshl_b32 s28, s3, 10
    v_add_u32 v6, s28, v4
    s_mov_b32 s64, 0""")
    def touch(sreg):
        A(f"s_lshl_b32 s28, s{sreg}, 13\ns_add_u32 s28, s28, 8192\ns_mul_i32 s29, s{sreg}, {G.PF_STRIDE}\ns_mul_i32 s30, s{sreg}, 28672\ns_add_u32 s30, s30, {1*28672}")
        for k in range(2): A(f"buffer_load_dwordx4 v[16:19], v6, s[40:43], s28 offen sc1\ns_add_u32 s28, s28, 4096")
        for k in range(3): A(f"buffer_load_dwordx4 v[16:19], v6, s[44:47], s29 offen sc1\ns_add_u32 s29, s29, 4096")
        for k in range(7): A(f"buffer_load_dwordx4 v[16:19], v6, s[52:55], s30 offen sc1\ns_add_u32 s30, s30, 4096")
    for k in range(3):
        A(f"s_mov_b32 s33, {k}"); touch(33)
    A.label(L + "_loop")
    A(f"s_add_u32 s64, s64, 1\ns_cmp_ge_u32 s64, 61\ns_cbranch_scc1 K3_end\ns_lshl_b32 s32, s64, 13\ns_mov_b32 s27, 0")
    A.label(L + "_w")
    A(f"""s_sleep 4
    buffer_load_dword v8, v5, s[40:43], s32 offen sc1
    s_add_u32 s27, s27, 1
    s_cmp_gt_u32 s27, {SPIN_MAX}
    s_cbranch_scc1 K3_end
    s_waitcnt vmcnt(0)
    v_cmp_eq_u32 vcc, -1, v8
    s_cbranch_vccnz {L}_w
    s_add_u32 s33, s64, 2""")
    touch(33)
    A(f"s_branch {L}_loop")

def fwd_cu(A):
    L = "K3f"
    srd(A, 52, 18, G.MEMG_OFF, 64*8192)
    srd(A, 56, 18, G.FLG_OFF, G.FLG_SZ)
    A(f"""v_min_u32 v5, 27, v1
    v_lshlrev_b32 v5, 2, v5
    v_add_u32 v5, 7168, v5
    s_lshl_b32 s28, s3, 11
    s_min_u32 s28, s28, 5120
    v_add_u32 v6, s28, v4
    s_mov_b32 s26, 0xffff0000
    s_mov_b32 s64, 0""")
    A.label(L + "_loop")
    A(f"s_lshl_b32 s32, s64, 13\ns_mov_b32 s27, 0\ns_cmp_eq_u32 s64, 0\ns_cbranch_scc1 {L}_get")
    A.label(L + "_w")
    A(f"""s_sleep 2
    buffer_load_dword v8, v5, s[40:43], s32 offen sc1
    s_add_u32 s27, s27, 1
    s_cmp_gt_u32 s27, {SPIN_MAX}
    s_cbranch_scc1 K3_end
    s_waitcnt vmcnt(0)
    v_cmp_eq_u32 vcc, -1, v8
    s_cbranch_vccnz {L}_w""")
    A.label(L + "_get")
    A(f"""buffer_load_dwordx4 v[16:19], v6, s[40:43], s32 offen sc1
    buffer_load_dwordx4 v[20:23], v6, s[40:43], s32 offen offset:1024 sc1""")
    exact_check(A, L + "_chk", 2, 16, 8, L + "_get", L + "_ok", "K3_end")
    A.label(L + "_ok")
    A(f"""buffer_store_dwordx4 v[16:19], v6, s[52:55], s32 offen sc1
    buffer_store_dwordx4 v[20:23], v6, s[52:55], s32 offen offset:1024 sc1
    s_lshl_b32 s28, s64, 8
    s_add_u32 s28, s28, 192
    s_waitcnt vmcnt(0)
    s_barrier
    s_cmp_lg_u32 s3, 0
    s_cbranch_scc1 {L}_nf""")
    flag_set(A, 56, 28, 8, 9)
    A.label(L + "_nf")
    A(f"s_add_u32 s64, s64, 1\ns_cmp_lt_u32 s64, 64\ns_cbranch_scc1 {L}_loop\ns_branch K3_end")

def team(A):
    A("s_getreg_b32 s35, hwreg(HW_REG_XCC_ID, 0, 4)\ns_add_u32 s35, s35, 1")
    srd(A, 60, 16, 0, 256)
    srd(A, 40, 18, G.MEMF_OFF, 64*G.MEMF_STRIDE)
    srd(A, 44, 18, G.PF_OFF, 64*G.PF_STRIDE)
    A("s_lshl_b32 s23, s21, 2\ns_add_u32 s23, s23, s3")
    G.ln_body(A, "KL")
    srd(A, 56, 18, G.FLG_OFF, G.FLG_SZ)
    A(f"""s_waitcnt vmcnt(0)
    s_barrier
    s_lshl_b32 s28, s21, 2
    s_add_u32 s29, s28, {G.FLG_LN}
    v_mov_b32 v5, s35
    v_mov_b32 v6, s28
    v_mov_b32 v7, s96
    v_mov_b32 v8, s29
    s_mov_b64 exec, 1
    buffer_store_dword v5, v6, s[60:63], 0 offen sc1
    buffer_store_dword v7, v8, s[56:59], 0 offen sc1
    s_mov_b64 exec, -1
    """)
    if G.TLM: A("v_writelane_b32 v113, s84, 63"); tl(A, 61)
    A("s_cmp_eq_u32 s21, 31\ns_cbranch_scc1 K3_w\ns_cmp_eq_u32 s21, 30\ns_cbranch_scc1 K3_f")
    A("s_cmp_ge_u32 s21, 16\ns_cbranch_scc1 K3_b\ns_mov_b32 s22, s21")
    a_cu(A)
    A.label("K3_b"); A.reset_state()
    A("s_sub_u32 s22, s21, 16")
    b_cu(A)
    A.label("K3_w"); A.reset_state()
    warm_cu(A)
    A.label("K3_f"); A.reset_state()
    fwd_cu(A)
```

```python
from asmlib import *
import gen as G
from gen import srd, lane_setup, tl, tls, tl_dump, TLV, TLM, flag_set, flag_wait
import kernels2 as K2, kernels3 as K3, kernels4 as K4

def kmain(A):
    A.label("main_kernel")
    A("""
    s_cmp_ge_u32 s2, 256
    s_cbranch_scc1 K3_end
    s_load_dwordx4 s[16:19], s[0:1], 104
    s_load_dwordx2 s[4:5], s[0:1], 0
    s_load_dwordx2 s[6:7], s[0:1], 96
    s_load_dwordx4 s[8:11], s[0:1], 72
    s_load_dwordx2 s[12:13], s[0:1], 88
    """)
    lane_setup(A)
    A("""v_lshlrev_b32 v4, 4, v1
    s_and_b32 s20, s2, 7
    s_lshr_b32 s21, s2, 3
    s_waitcnt lgkmcnt(0)
    s_add_u32 s14, s18, """ + hex(G.FLG_OFF + G.FLG_EPOCH) + """
    s_addc_u32 s15, s19, 0
    s_load_dword s96, s[14:15], 0
    s_cmp_lg_u32 s20, 0
    s_cbranch_scc1 KM_worker
    s_load_dwordx2 s[76:77], s[0:1], 8
    s_load_dwordx2 s[78:79], s[0:1], 64
    s_waitcnt lgkmcnt(0)
    s_add_u32 s96, s96, 1""")
    TLV[0] = 113
    tls(A, 0)
    K3.team(A)
    TLV[0] = 15
    A.label("KM_worker"); A.reset_state()
    A("""s_load_dwordx4 s[76:79], s[0:1], 16
    s_load_dwordx4 s[80:83], s[0:1], 32
    s_sub_u32 s20, s20, 1
    s_lshl_b32 s20, s20, 5
    s_add_u32 s20, s20, s21
    s_mul_i32 s22, s20, 9363
    s_lshr_b32 s22, s22, 16
    s_mul_i32 s23, s22, 7
    s_sub_u32 s23, s20, s23
    s_mov_b32 s21, s23
    s_waitcnt lgkmcnt(0)
    s_add_u32 s96, s96, 1""")
    tls(A, 0)
    G.prod_body(A, "KP")
    srd(A, 48, 18, G.FLG_OFF, G.FLG_SZ)
    tls(A, 3)
    A(f"s_waitcnt vmcnt(0)\ns_barrier\ns_lshl_b32 s28, s20, 2\ns_add_u32 s28, s28, {G.FLG_PROD}\ns_cmp_lg_u32 s3, 0\ns_cbranch_scc1 KP_nf")
    flag_set(A, 48, 28, 6, 7)
    A.label("KP_nf")
    tls(A, 4)
    A(f"v_min_u32 v5, 6, v1\nv_lshlrev_b32 v5, 2, v5\ns_mul_i32 s28, s22, 28\ns_add_u32 s28, s28, {G.FLG_PROD}")
    flag_wait(A, "KP_w", 48, 5, 28, 6, "K3_end", sleep=1)
    A(f"v_min_u32 v5, 31, v1\nv_lshlrev_b32 v5, 2, v5\ns_mov_b32 s28, {G.FLG_LN}")
    flag_wait(A, "KP_l", 48, 5, 28, 6, "K3_end", sleep=1)
    tls(A, 5)
    if TLM:
        for k in range(6): A(f"v_writelane_b32 v15, s{84+k}, {20+k}")
    K2.gemm1_body(A, "KG")
    A.label("KG_done"); A.reset_state()
    tl(A, 2)
    A("s_cmp_lt_u32 s22, 16\ns_cbranch_scc1 KM_t0")
    K2.wserve_body(A, "KW", "KM_end")
    A.label("KM_t0"); A.reset_state()
    A("s_and_b32 s28, s20, 3\ns_cmp_lg_u32 s28, 1\ns_cbranch_scc1 KM_tasks\ns_lshr_b32 s22, s20, 2\ns_barrier")
    K2.moe_body(A, "KE")
    A.label("KM_tasks"); A.reset_state()
    tl(A, 3)
    if TLM: A("s_mov_b32 s21, 4")
    K4.gemm2_srds(A)
    K4.xattn_srds(A)
    srd(A, 92, 18, G.FLG_OFF, G.FLG_SZ)
    A("v_lshlrev_b32 v4, 4, v1")
    A.label("KM_next"); A.reset_state()
    A("""s_mul_i32 s22, s20, 5958
    s_lshr_b32 s22, s22, 16
    s_mul_i32 s23, s22, 11
    s_sub_u32 s23, s20, s23
    s_barrier
    s_cmp_ge_u32 s23, 4
    s_cbranch_scc1 KM_g""")
    K4.xattn_task(A, "KX", "K3_end")
    A("s_branch KM_adv")
    A.label("KM_g"); A.reset_state()
    A("s_sub_u32 s23, s23, 4")
    K4.gemm2_task(A, "K4", "K3_end")
    A.label("KM_adv")
    if TLM:
        A("s_waitcnt vmcnt(0)"); tl(A, 0, 21); A("s_add_u32 s21, s21, 1")
    A(f"s_cmp_lg_u32 s20, 703\ns_cbranch_scc1 KM_ne\ns_cmp_lg_u32 s3, 0\ns_cbranch_scc1 KM_ne\ns_mov_b32 s28, {G.FLG_EPOCH}")
    flag_set(A, 92, 28, 6, 7)
    A.label("KM_ne")
    A("s_add_u32 s20, s20, 112\ns_cmp_lt_u32 s20, 704")
    A.flush()
    A("s_cbranch_scc1 KM_next")
    A.label("KM_end")
    tl(A, 15); tl_dump(A, 1)
    A.label("K3_end")
    A("s_endpgm")
```

```python
import sys
from asmlib import *

NAME = "parallel_sum__memory_aug_recurrent_mem_tr__moe_arch_mod__prompt"
XN_OFF, XN_SZ = 0x0000000, 2048*896
XNF_OFF = 0x0200000
R_OFF = 0x0400000
MOEP_OFF, MOEP_SZ = 0x0410000, 28*8*448*4
IDX_OFF = 0x0480000
MEMF_OFF, MEMF_STRIDE = 0x0500000, 8192
PF_OFF, PF_STRIDE = 0x0600000, 10240
WF_OFF, WF_UNIT = 0x0800000, 28*14*1024
KQF_OFF, SEG_SZ = 0x1800000, 16*28*1024
VOF_OFF = 0x3400000
PXF_OFF, PXF_SEG = 0x5000000, 40*1024
WZ_OFF, WZ_SEG = 0x5400000, 28*4*1024
MEMG_OFF = 0x5C00000
FLG_OFF, FLG_SZ = 0x5D00000, 17*1024
SPIN_MAX = 1 << 22
W3_SZ = 448*8192
SCALE_LOG2E = 0x3db8aa3b
import struct
assert abs(struct.unpack('<f', struct.pack('<I', SCALE_LOG2E))[0] - 1.4426950408889634/16) < 1e-8

KARG = dict(x=0, mem0=8, wq=16, wk=24, wv=32, wo=40, wr=64, wg=72, wu=80, wd=88, out=96, dbg=104, ws=112)

def srd(A, d, base, off, size):
    if off == 0:
        A(f"s_mov_b32 s{d}, s{base}\ns_mov_b32 s{d+1}, s{base+1}")
    else:
        o = off if isinstance(off, str) else hex(off)
        A(f"s_add_u32 s{d}, s{base}, {o}\ns_addc_u32 s{d+1}, s{base+1}, 0")
    A(f"s_mov_b32 s{d+2}, {hex(size)}\ns_mov_b32 s{d+3}, 0x20000")

def lane_setup(A, vlane=1, vn=2, vg=3, swave=3):
    A(f"""
    v_and_b32 v{vlane}, 63, v0
    v_lshrrev_b32 v{vg}, 6, v0
    v_and_b32 v{vn}, 15, v0
    v_readfirstlane_b32 s{swave}, v{vg}
    v_bfe_u32 v{vg}, v0, 4, 2
    """)

def xreduce(A, op, x, t, steps=(16, 32)):
    for st in steps:
        if st == 8:
            A(f"{op}_dpp v{x}, v{x}, v{x} row_ror:8 row_mask:0xf bank_mask:0xf")
        else:
            A(f"v_mov_b32 v{t}, v{x}")
            A(f"v_permlane{st}_swap_b32 v{x}, v{t}")
            A(f"{op} v{x}, v{x}, v{t}")

import os
TLM = int(os.environ.get("TLM", "0"))
def tl(A, k, sreg=None):
    if not TLM: return
    if sreg is None: A(f"s_memrealtime s[100:101]\ns_waitcnt lgkmcnt(0)\nv_writelane_b32 v{TLV[0]}, s100, {k}")
    else: A(f"s_memrealtime s[100:101]\ns_mov_b32 m0, s{sreg}\ns_waitcnt lgkmcnt(0)\nv_writelane_b32 v{TLV[0]}, s100, m0")
TLV = [15]
def tl_dump(A, kern, wsreg=18):
    if not TLM: return
    A(f"""s_add_u32 s96, s{wsreg}, {hex(0x5F00000 + kern*0x40000)}
    s_addc_u32 s97, s{wsreg+1}, 0
    s_mov_b32 s98, 0x40000
    s_mov_b32 s99, 0x20000
    v_mbcnt_lo_u32_b32 v14, -1, 0
    v_mbcnt_hi_u32_b32 v14, -1, v14
    v_lshlrev_b32 v14, 2, v14
    s_lshl_b32 s100, s2, 10
    s_lshl_b32 s101, s3, 8
    s_add_u32 s100, s100, s101
    buffer_store_dword v{TLV[0]}, v14, s[96:99], s100 offen""")

def flag_wait(A, L, srdn, voff, soff, tmp, bail, sleep=6, cnt=27):
    A(f"s_mov_b32 s{cnt}, 0")
    A.label(L)
    A(f"""buffer_load_dword v{tmp}, v{voff}, s[{srdn}:{srdn+3}], s{soff} offen sc1
    s_add_u32 s{cnt}, s{cnt}, 1
    s_cmp_gt_u32 s{cnt}, {SPIN_MAX}
    s_cbranch_scc1 {bail}
    s_waitcnt vmcnt(0)
    v_cmp_eq_u32 vcc, 0, v{tmp}
    s_cbranch_vccz {L}_ok
    s_sleep {sleep}
    s_branch {L}""")
    A.label(L + "_ok")

def flag_set(A, srdn, soff, t0, t1):
    A(f"""v_mov_b32 v{t0}, 1
    v_mov_b32 v{t1}, 0
    s_mov_b64 exec, 1
    buffer_store_dword v{t0}, v{t1}, s[{srdn}:{srdn+3}], s{soff} offen sc1
    s_mov_b64 exec, -1""")

def wreg(i, u, n=4):
    idx = 56*i + 4*u
    if idx < 256:
        assert idx + n <= 256
        return a_(idx, n)
    return v(120 + idx - 256, n)

def k1(A):
    A.label("prep_kernel")
    A(f"""
    s_cmp_ge_u32 s2, 256
    s_cbranch_scc1 K1_end
    s_load_dwordx4 s[4:7], s[0:1], 0
    s_load_dwordx8 s[8:15], s[0:1], 16
    s_load_dwordx2 s[16:17], s[0:1], 64
    s_load_dwordx2 s[18:19], s[0:1], 112
    """)
    lane_setup(A)
    TLV[0] = 255
    tl(A, 0)
    A(f"""
    s_and_b32 s20, s2, 7
    s_lshr_b32 s21, s2, 3
    s_waitcnt lgkmcnt(0)
    s_cmp_ge_u32 s21, 28
    s_cbranch_scc1 K1_ln
    ; unit = xcd*4 + slot/7 ; rb = slot%7
    s_mul_i32 s22, s21, 37
    s_lshr_b32 s22, s22, 8
    s_mul_i32 s23, s22, 7
    s_sub_u32 s23, s21, s23
    s_lshl_b32 s24, s20, 2
    s_add_u32 s22, s22, s24
    s_and_b32 s24, s22, 15
    s_lshl_b32 s25, s24, 9
    ; vA = (8*(n>>2)+(n&3))*8192 + g*16
    v_lshrrev_b32 v4, 2, v2
    v_lshlrev_b32 v4, 3, v4
    v_and_b32 v5, 3, v2
    v_add_u32 v4, v4, v5
    v_lshlrev_b32 v4, 13, v4
    v_lshl_add_u32 v4, v3, 4, v4
    v_lshlrev_b32 v5, 4, v1
    s_mul_i32 s26, s22, {WF_UNIT}
    s_add_u32 s26, s26, {hex(WF_OFF)}
    """)
    srd(A, 36, 18, "s26", WF_UNIT)
    A("s_cmp_ge_u32 s22, 16\ns_cbranch_scc1 K1_type1")
    def areg(mt, ks): return v(8 + (mt*8 + ks)*4, 4)
    def acc(i, mt): return a_((i*4 + mt)*4, 4)
    def load_a(Asrd):
        for mt in range(4):
            A(f"s_lshl_b32 s27, s23, 19\ns_add_u32 s27, s27, s25\ns_add_u32 s27, s27, {(32*(mt >> 1) + 4*(mt & 1))*8192}")
            for ks in range(8):
                A(f"buffer_load_dwordx4 {areg(mt, ks)}, v4, s[{Asrd}:{Asrd+3}], s27 offen offset:{ks*64}")
    def epilogue(i, scale, tmp):
        for up in range(2):
            for ep in range(2):
                b = (i*4 + up*2 + ep)*4
                for r in range(4):
                    A(f"v_accvgpr_read_b32 v{tmp+8+r}, a{b+r}")
                if scale:
                    for r in range(4): A(f"v_mul_f32 v{tmp+8+r}, s30, v{tmp+8+r}")
                A(f"v_cvt_pk_bf16_f32 v{tmp+up*4+ep*2}, v{tmp+8}, v{tmp+9}")
                A(f"v_cvt_pk_bf16_f32 v{tmp+up*4+ep*2+1}, v{tmp+10}, v{tmp+11}")
            A(f"s_mul_i32 s27, s3, {7*14*1024}\ns_lshl_b32 s28, s23, 11\ns_add_u32 s27, s27, s28\ns_add_u32 s27, s27, {(i*14 + up)*1024}")
            A(f"buffer_store_dwordx4 {v(tmp+up*4, 4)}, v5, s[36:39], s27 offen")
    srd(A, 40, 8, 0, W3_SZ)
    srd(A, 44, 10, 0, W3_SZ)
    A(f"s_mov_b32 s30, {hex(SCALE_LOG2E)}")
    load_a(40)
    def breg0(i, ks):
        idx = (i*8 + ks)*4
        return a_(112 + idx, 4) if idx < 144 else v(136 + idx - 144, 4)
    for i in range(7):
        A(f"""s_mul_i32 s27, s3, 7
        s_add_u32 s27, s27, {i}
        s_lshr_b32 s28, s27, 1
        s_and_b32 s27, s27, 1
        s_lshl_b32 s28, s28, 18
        s_lshl_b32 s27, s27, 15
        s_add_u32 s27, s27, s28
        s_add_u32 s27, s27, s25""")
        for ks in range(8):
            A(f"buffer_load_dwordx4 {breg0(i, ks)}, v4, s[44:47], s27 offen offset:{ks*64}")
    nst = 0
    for i in range(7):
        if i == 0: tl(A, 2)
        A(f"s_waitcnt vmcnt({min(63, (6-i)*8 + nst)})")
        tl(A, 3 + i)
        for ks in range(8):
            for mt in range(4):
                c = acc(i, mt) if ks else "0"
                A(f"v_mfma_f32_16x16x32_bf16 {acc(i, mt)}, {areg(mt, ks)}, {breg0(i, ks)}, {c}")
        if i > 0:
            epilogue(i-1, True, 216); nst += 2
    epilogue(6, True, 216)
    A("s_branch K1_end")
    A.label("K1_type1"); A.reset_state()
    srd(A, 40, 12, 0, W3_SZ)
    A(f"s_mul_i32 s27, s24, {256*896}")
    srd(A, 44, 14, "s27", 256*896)
    load_a(40)
    for k in range(7):
        A(f"""v_add_u32 v6, {k*64}, v1
        v_mul_u32_u24 v7, 4682, v6
        v_lshrrev_b32 v7, 16, v7
        v_mul_u32_u24 v232, 14, v7
        v_sub_u32 v6, v6, v232
        v_lshlrev_b32 v6, 4, v6
        v_mul_u32_u24 v232, 896, v7
        v_add_u32 v{216+k}, v232, v6
        v_and_b32 v232, 19, v7
        v_bfe_u32 v233, v7, 2, 1
        v_lshl_or_b32 v232, v233, 3, v232
        v_bfe_u32 v233, v7, 3, 1
        v_lshl_or_b32 v232, v233, 2, v232
        v_mul_u32_u24 v232, 224, v232
        v_add_u32 v{224+k}, v232, v6""")
    A(f"s_mul_i32 s28, s3, 224\ns_mul_i32 s29, s3, {128*224}")
    for k in range(7): A(f"v_add_u32 v{224+k}, s29, v{224+k}")
    def sreg(q, k):
        idx = (q*7 + k)*4
        return a_(112 + idx, 4) if idx < 144 else v(136 + idx - 144, 4)
    for q in range(8):
        A(f"s_add_u32 s27, s28, {q*32*896}")
        for k in range(7):
            A(f"buffer_load_dwordx4 {sreg(q, k)}, v{216+k}, s[44:47], s27 offen")
    A(f"""v_lshrrev_b32 v6, 2, v2
    v_and_b32 v7, 1, v3
    v_lshl_add_u32 v6, v7, 2, v6
    v_lshrrev_b32 v7, 1, v3
    v_lshl_add_u32 v6, v7, 4, v6
    v_mul_u32_u24 v6, 224, v6
    v_and_b32 v7, 3, v2
    v_lshl_add_u32 v6, v7, 3, v6
    v_add_u32 v6, s29, v6""")
    for half in range(2):
        for q in range(4):
            if half == 0 and q == 0: tl(A, 2)
            A(f"s_waitcnt vmcnt({(7 - (half*4 + q))*7})")
            tl(A, 3 + half*4 + q)
            for k in range(7):
                A(f"ds_write_b128 v{224+k}, {sreg(half*4 + q, k)} offset:{q*32*224}")
        A("s_waitcnt lgkmcnt(0)")
        seq = [(ks, i) for ks in range(4) for i in range(7)]
        def rd(n):
            ks, i = seq[n]
            b = 236 + (n % 4)*4
            for z in range(2):
                A(f"ds_read_b64_tr_b16 {v(b + 2*z, 2)}, v6 offset:{ks*32*224 + z*8*224 + i*32}")
        rd(0); rd(1); rd(2)
        for n, (ks, i) in enumerate(seq):
            if n + 3 < len(seq): rd(n + 3)
            left = min(3, len(seq) - 1 - n)
            A(f"s_waitcnt lgkmcnt({2*left})")
            for mt in range(4):
                c = acc(i, mt) if (ks or half) else "0"
                A(f"v_mfma_f32_16x16x32_bf16 {acc(i, mt)}, {areg(mt, half*4 + ks)}, {v(236 + (n % 4)*4, 4)}, {c}")
    tl(A, 11)
    for i in range(7): epilogue(i, False, 216)
    A("s_branch K1_end")
    A.label("K1_ln"); A.reset_state()
    A(f"""
    s_sub_u32 s21, s21, 28
    s_lshl_b32 s22, s20, 2
    s_add_u32 s22, s22, s21
    s_lshl_b32 s23, s22, 2
    s_add_u32 s23, s23, s3
    """)
    srd(A, 36, 4, 0, XN_SZ)
    srd(A, 40, 16, 0, 896)
    srd(A, 44, 18, XN_OFF, XN_SZ)
    srd(A, 48, 18, XNF_OFF, XN_SZ)
    srd(A, 52, 18, R_OFF, 8192)
    srd(A, 56, 18, MEMF_OFF, 64*MEMF_STRIDE)
    srd(A, 60, 18, PF_OFF, 64*PF_STRIDE)
    srd(A, 64, 6, 0, 7168)
    A(f"""
    v_mul_u32_u24 v4, 896, v2
    v_lshl_add_u32 v4, v3, 4, v4
    v_lshlrev_b32 v5, 4, v3
    v_lshlrev_b32 v6, 4, v1
    s_mul_i32 s24, s23, {16*896}
    """)
    X, W, F = 8, 64, 120
    for u in range(14): A(f"buffer_load_dwordx4 {v(X+4*u, 4)}, v4, s[36:39], s24 offen offset:{u*64}")
    for u in range(14): A(f"buffer_load_dwordx4 {v(W+4*u, 4)}, v5, s[40:43], 0 offen offset:{u*64}")
    A("v_mov_b32 v232, -1\nv_mov_b32 v233, -1\nv_mov_b32 v234, -1\nv_mov_b32 v235, -1")
    for k in range(4):
        A(f"s_lshl_b32 s25, s23, 10\ns_add_u32 s25, s25, {8192 + k*128*1024}")
        A(f"buffer_store_dwordx4 v[232:235], v6, s[56:59], s25 offen")
    for k in range(5):
        A(f"s_lshl_b32 s25, s23, 10\ns_add_u32 s25, s25, {k*128*1024}")
        A(f"buffer_store_dwordx4 v[232:235], v6, s[60:63], s25 offen")
    srd(A, 68, 18, FLG_OFF, FLG_SZ)
    A("v_mov_b32 v236, 0\nv_mov_b32 v237, 0\nv_mov_b32 v238, 0\nv_mov_b32 v239, 0\ns_lshl_b32 s25, s23, 10")
    A("buffer_store_dwordx4 v[236:239], v6, s[68:71], s25 offen")
    tl(A, 2)
    A("s_waitcnt vmcnt(24)")
    tl(A, 3)
    A("s_mov_b32 s26, 0xffff0000")
    for j in range(56):
        A(f"v_lshlrev_b32 v{F+2*j}, 16, v{X+j}\nv_and_b32 v{F+2*j+1}, s26, v{X+j}")
    A(f"v_pk_add_f32 v[236:237], {v(F,2)}, {v(F+2,2)}\nv_pk_add_f32 v[238:239], {v(F+4,2)}, {v(F+6,2)}")
    for j in range(4, 56, 2):
        A(f"v_pk_add_f32 v[236:237], v[236:237], {v(F+2*j,2)}\nv_pk_add_f32 v[238:239], v[238:239], {v(F+2*j+2,2)}")
    A("v_pk_add_f32 v[236:237], v[236:237], v[238:239]\nv_add_f32 v236, v236, v237")
    xreduce(A, "v_add_f32", 236, 237)
    A(f"v_mul_f32 v236, {hex(struct.unpack('<I', struct.pack('<f', 1/448))[0])}, v236\nv_mov_b32 v237, v236")
    A("v_mov_b32 v240, 0\nv_mov_b32 v241, 0\nv_mov_b32 v242, 0\nv_mov_b32 v243, 0")
    for j in range(0, 56, 2):
        A(f"v_pk_add_f32 v[244:245], {v(F+2*j,2)}, v[236:237] neg_lo:[0,1] neg_hi:[0,1]")
        A(f"v_pk_add_f32 v[246:247], {v(F+2*j+2,2)}, v[236:237] neg_lo:[0,1] neg_hi:[0,1]")
        A(f"v_pk_fma_f32 v[240:241], v[244:245], v[244:245], v[240:241]")
        A(f"v_pk_fma_f32 v[242:243], v[246:247], v[246:247], v[242:243]")
    A("v_pk_add_f32 v[240:241], v[240:241], v[242:243]\nv_add_f32 v240, v240, v241")
    xreduce(A, "v_add_f32", 240, 241)
    A(f"""v_mul_f32 v240, {hex(struct.unpack('<I', struct.pack('<f', 1/448))[0])}, v240
    v_cvt_pk_bf16_f32 v236, v236, v240
    v_and_b32 v240, s26, v236
    v_lshlrev_b32 v236, 16, v236
    v_add_f32 v240, {hex(struct.unpack('<I', struct.pack('<f', 1e-5))[0])}, v240
    v_cvt_pk_bf16_f32 v240, v240, v240
    v_and_b32 v240, s26, v240
    v_sqrt_f32 v240, v240
    v_mov_b32 v237, v236
    v_cvt_pk_bf16_f32 v240, v240, v240
    v_and_b32 v240, s26, v240
    v_rcp_f32 v240, v240
    s_nop 0
    v_mov_b32 v241, v240""")
    for j in range(56):
        A(f"v_pk_add_f32 {v(F+2*j,2)}, {v(F+2*j,2)}, v[236:237] neg_lo:[0,1] neg_hi:[0,1]")
        A(f"v_cvt_pk_bf16_f32 v{X+j}, v{F+2*j}, v{F+2*j+1}")
        A(f"v_lshlrev_b32 v{F+2*j}, 16, v{X+j}\nv_and_b32 v{F+2*j+1}, s26, v{X+j}")
        A(f"v_pk_mul_f32 {v(F+2*j,2)}, {v(F+2*j,2)}, v[240:241]")
        A(f"v_cvt_pk_bf16_f32 v{X+j}, v{F+2*j}, v{F+2*j+1}")
    tl(A, 4)
    A(f"s_mul_i32 s25, s23, {14*1024}")
    for u in range(14):
        A(f"buffer_store_dwordx4 {v(X+4*u, 4)}, v4, s[44:47], s24 offen offset:{u*64}")
        A(f"buffer_store_dwordx4 {v(X+4*u, 4)}, v6, s[48:51], s25 offen offset:{(u % 4)*1024}")
        if u % 4 == 3: A("s_add_u32 s25, s25, 4096")
    A("s_waitcnt vmcnt(38)")
    A("v_mov_b32 v240, 0\nv_mov_b32 v241, 0\nv_mov_b32 v242, 0\nv_mov_b32 v243, 0")
    for j in range(56):
        t = 244 + 4*(j % 2)
        A(f"v_lshlrev_b32 v{t}, 16, v{X+j}\nv_and_b32 v{t+1}, s26, v{X+j}\nv_lshlrev_b32 v{t+2}, 16, v{W+j}\nv_and_b32 v{t+3}, s26, v{W+j}")
        A(f"v_pk_fma_f32 {v(240+2*(j%2),2)}, {v(t,2)}, {v(t+2,2)}, {v(240+2*(j%2),2)}")
    A("v_pk_add_f32 v[240:241], v[240:241], v[242:243]\nv_add_f32 v240, v240, v241")
    xreduce(A, "v_add_f32", 240, 241)
    A(f"""v_cvt_pk_bf16_f32 v240, v240, v240
    v_and_b32 v240, s26, v240
    v_lshlrev_b32 v241, 2, v2
    s_lshl_b32 s25, s23, 6
    s_mov_b64 exec, 0xffff
    buffer_store_dword v240, v241, s[52:55], s25 offen
    s_mov_b64 exec, -1
    s_cmp_lg_u32 s23, 0
    s_cbranch_scc1 K1_end
    v_lshrrev_b32 v4, 1, v2
    v_mul_u32_u24 v4, 896, v4
    v_lshl_add_u32 v4, v3, 5, v4
    v_and_b32 v5, 1, v2
    v_cmp_eq_u32 vcc, 1, v5
    """)
    for t in range(7):
        A(f"buffer_load_dwordx4 {v(F+8*t, 4)}, v4, s[64:67], 0 offen offset:{t*128}")
        A(f"buffer_load_dwordx4 {v(F+8*t+4, 4)}, v4, s[64:67], 0 offen offset:{t*128+16}")
    A("s_waitcnt vmcnt(0)\ns_mov_b32 s27, 0xfffefffe")
    for t in range(7):
        for aa in range(4):
            A(f"v_cndmask_b32 v{W+4*t+aa}, v{F+8*t+2*aa}, v{F+8*t+2*aa+1}, vcc")
            A(f"v_pk_min_u16 v{W+4*t+aa}, v{W+4*t+aa}, s27")
        A(f"s_mov_b32 s25, {t*1024}\nbuffer_store_dwordx4 {v(W+4*t, 4)}, v6, s[56:59], s25 offen")
    A.label("K1_end")
    if TLM:
        A("s_cmp_ge_u32 s2, 256\ns_cbranch_scc1 K1_end2\ns_waitcnt vmcnt(0)")
        tl(A, 1); tl_dump(A, 0)
        A.label("K1_end2")
    A("s_endpgm")

KD = """
.section .rodata,"a"
.p2align 6
.amdhsa_kernel {name}
  .amdhsa_next_free_vgpr {nv}
  .amdhsa_next_free_sgpr 102
  .amdhsa_accum_offset 256
  .amdhsa_group_segment_fixed_size 0
  .amdhsa_kernarg_size 120
  .amdhsa_user_sgpr_count 2
  .amdhsa_user_sgpr_kernarg_segment_ptr 1
  .amdhsa_system_sgpr_workgroup_id_x 1
.end_amdhsa_kernel
"""

def build(kernels):
    out = []
    for name, fn, grid, lds in kernels:
        out.append(f"; @launch kernel={name} grid=({grid},1,1) block=(256,1,1) lds={lds}")
    out.append('.amdgcn_target "amdgcn-amd-amdhsa--gfx950"\n.text')
    for name, fn, grid, lds in kernels:
        A = Asm()
        fn(A)
        out.append(f".globl {name}\n.p2align 8\n.type {name},@function")
        out.append(A.text())
    for name, fn, grid, lds in kernels:
        out.append(KD.format(name=name, nv=256 if name in ('gemm2_kernel', 'xattn_kernel') else 512))
    return '\n'.join(out)

if __name__ == "__main__":
    import kmain
    ks = [("prep_kernel", k1, 256, 4*128*224), ("main_kernel", kmain.kmain, 256, 163840)]
    sys.stdout.write(build(ks))
```

```python
from asmlib import *
import gen as G
from gen import srd, lane_setup, xreduce, wreg, flag_set, flag_wait, tl
import struct
def f2h(x): return hex(struct.unpack('<I', struct.pack('<f', x))[0])
LOG2E = f2h(1.4426950408889634)

def tile_c(A, dst, i, swave=3, sodd=24):
    if i < 6:
        A(f"s_mul_i32 s{dst}, s{swave}, 7\ns_add_u32 s{dst}, s{dst}, s{sodd}\ns_add_u32 s{dst}, s{dst}, {i}")
    else:
        A(f"s_mul_i32 s{dst}, s{sodd}, 6\ns_sub_u32 s{dst}, 6, s{dst}\ns_mul_i32 s{dst+1}, s{swave}, 7\ns_add_u32 s{dst}, s{dst}, s{dst+1}")

def load_weights7(A, wsrd, vl16, st=26):
    for i in range(7):
        tile_c(A, st, i)
        A(f"s_mul_i32 s{st}, s{st}, 14336")
        for u in range(14):
            A(f"buffer_load_dwordx4 {wreg(i, u)}, v{vl16}, s[{wsrd}:{wsrd+3}], s{st} offen offset:{(u % 4)*1024}")
            if u % 4 == 3: A(f"s_add_u32 s{st}, s{st}, 4096")

def gemm1_body(A, pfx):
    A(f"""
    s_and_b32 s24, s3, 1
    s_and_b32 s25, s22, 15
    v_lshlrev_b32 v4, 4, v1
    s_mul_i32 s26, s22, {G.WF_UNIT}
    s_add_u32 s26, s26, {hex(G.WF_OFF)}
    """)
    srd(A, 36, 18, "s26", G.WF_UNIT)
    srd(A, 40, 18, G.XNF_OFF, G.XN_SZ)
    srd(A, 48, 18, G.FLG_OFF, G.FLG_SZ)
    def dma(seg_sgpr, buf_sgpr):
        A(f"""s_mul_i32 s28, s{seg_sgpr}, 28672
        s_mul_i32 s29, s3, 7168
        s_add_u32 s28, s28, s29
        s_add_u32 s29, s29, s{buf_sgpr}
        s_mov_b32 m0, s29""")
        for k in range(7):
            if k == 4: A("s_add_u32 s28, s28, 4096\ns_add_u32 s29, s29, 4096\ns_mov_b32 m0, s29")
            A(f"buffer_load_dwordx4 v4, s[40:43], s28 offen offset:{(k % 4)*1024} lds")
    A("s_mov_b32 s30, 0")
    dma(23, 30)
    load_weights7(A, 36, 4)
    A("s_cmp_ge_u32 s22, 16")
    A(f"s_cbranch_scc1 {pfx}_vo")
    acc = lambda tt, i: 64 + (tt*7 + i)*4
    for typ in (0, 1):
        L = f"{pfx}_{'kq' if typ == 0 else 'vo'}"
        if typ == 1: A.label(L); A.reset_state()
        if typ == 0:
            A(f"s_mul_i32 s26, s25, 28672\ns_add_u32 s26, s26, {hex(G.KQF_OFF)}")
            srd(A, 44, 18, "s26", 64*G.SEG_SZ - 15*28672)
            A("""s_mul_i32 s31, s3, 7
            s_add_u32 s31, s31, s24
            s_lshr_b32 s31, s31, 1
            s_lshl_b32 s31, s31, 10""")
            tile_c(A, 32, 6)
            A("s_lshr_b32 s32, s32, 1\ns_lshl_b32 s32, s32, 10\ns_lshl_b32 s33, s24, 3\nv_add_u32 v5, s33, v4")
        else:
            A(f"s_lshl_b32 s26, s25, 10\ns_add_u32 s26, s26, {hex(G.VOF_OFF)}")
            srd(A, 44, 18, "s26", 64*G.SEG_SZ - 15*1024)
            tile_c(A, 31, 0); A("s_lshl_b32 s31, s31, 14")
            tile_c(A, 32, 6); A("s_lshl_b32 s32, s32, 14")
        A("s_waitcnt vmcnt(0)\ns_barrier")
        tl(A, 1)
        A.label(L + "_loop"); A.reset_state()
        A(f"""
        v_add_u32 v6, s30, v4
        s_xor_b32 s30, s30, 28672
        s_add_u32 s34, s23, 7
        s_cmp_ge_u32 s34, 64
        s_cbranch_scc1 {L}_nodma
        """)
        dma(34, 30)
        A.label(L + "_nodma")
        xr = lambda u, tt: 48 + ((u % 2)*2 + tt)*4
        def rd(u):
            for tt in range(2): A(f"ds_read_b128 {v(xr(u, tt), 4)}, v6 offset:{(tt*14 + u)*1024}")
        rd(0)
        for u in range(14):
            if u + 1 < 14: rd(u + 1)
            A(f"s_waitcnt lgkmcnt({2 if u + 1 < 14 else 0})")
            for tt in range(2):
                for i in range(7):
                    c = v(acc(tt, i), 4) if u else "0"
                    if typ == 0: A(f"v_mfma_f32_16x16x32_bf16 {v(acc(tt, i), 4)}, {wreg(i, u)}, {v(xr(u, tt), 4)}, {c}")
                    else: A(f"v_mfma_f32_16x16x32_bf16 {v(acc(tt, i), 4)}, {v(xr(u, tt), 4)}, {wreg(i, u)}, {c}")
        A(f"s_mul_i32 s35, s23, {G.SEG_SZ}")
        nst = 0
        if typ == 0:
            for tt in range(2):
                A(f"s_add_u32 s28, s35, s31\ns_add_u32 s28, s28, {tt*14336}\ns_add_u32 s29, s35, s32\ns_add_u32 s29, s29, {tt*14336}")
                for p in range(3):
                    o = 16 + (tt*4 + p)*4
                    for e in range(2):
                        b = acc(tt, 2*p + e)
                        A(f"v_cvt_pk_bf16_f32 v{o+2*e}, v{b}, v{b+1}\nv_cvt_pk_bf16_f32 v{o+2*e+1}, v{b+2}, v{b+3}")
                    A(f"buffer_store_dwordx4 {v(o, 4)}, v4, s[44:47], s28 offen offset:{p*1024} sc1"); nst += 1
                o = 16 + (tt*4 + 3)*4; b = acc(tt, 6)
                A(f"v_cvt_pk_bf16_f32 v{o}, v{b}, v{b+1}\nv_cvt_pk_bf16_f32 v{o+1}, v{b+2}, v{b+3}")
                A(f"buffer_store_dwordx2 {v(o, 2)}, v5, s[44:47], s29 offen sc1"); nst += 1
        else:
            A("s_add_u32 s28, s35, s31")
            for i in range(7):
                o = 16 + i*4
                for tt in range(2):
                    b = acc(tt, i)
                    A(f"v_cvt_pk_bf16_f32 v{o+2*tt}, v{b}, v{b+1}\nv_cvt_pk_bf16_f32 v{o+2*tt+1}, v{b+2}, v{b+3}")
                if i == 6: A("s_add_u32 s28, s35, s32")
                A(f"buffer_store_dwordx4 {v(o, 4)}, v4, s[44:47], s28 offen sc1"); nst += 1
                if i < 5: A("s_add_u32 s28, s28, 16384")
        A(f"""
        s_cmp_lt_u32 s23, 7
        s_cselect_b32 s28, 0, 7
        s_cbranch_scc1 {L}_drain
        s_waitcnt vmcnt({nst})
        s_branch {L}_drained""")
        A.label(L + "_drain")
        A("s_waitcnt vmcnt(0)")
        A.label(L + "_drained")
        A(f"""s_barrier
        s_sub_u32 s28, s23, s28
        s_lshl_b32 s28, s28, 8
        s_lshl_b32 s29, s22, 2
        s_add_u32 s28, s28, s29
        s_cmp_lg_u32 s3, 0
        s_cbranch_scc1 {L}_nofl""")
        flag_set(A, 48, 28, 6, 7)
        A.label(L + "_nofl")
        A(f"s_add_u32 s23, s23, 7\ns_cmp_lt_u32 s23, 64")
        A.flush()
        A(f"s_cbranch_scc1 {L}_loop")
        A(f"""s_waitcnt vmcnt(0)
        s_barrier
        s_sub_u32 s28, s23, 7
        s_lshl_b32 s28, s28, 8
        s_lshl_b32 s29, s22, 2
        s_add_u32 s28, s28, s29
        s_cmp_lg_u32 s3, 0
        s_cbranch_scc1 {pfx}_done""")
        flag_set(A, 48, 28, 6, 7)
        A(f"s_branch {pfx}_done")

def moe_body(A, pfx):
    srd(A, 36, 18, G.R_OFF, 8192)
    srd(A, 40, 18, G.XN_OFF, G.XN_SZ)
    srd(A, 44, 8, 0, 448*3584)
    srd(A, 48, 10, 0, 448*3584)
    srd(A, 52, 12, 0, 1792*896)
    srd(A, 56, 18, G.MOEP_OFF, G.MOEP_SZ)
    srd(A, 60, 18, G.IDX_OFF, 64)
    K, WG, WU, WD, XS = 16, 48, 0, 112, 160
    A("v_lshlrev_b32 v4, 4, v1")
    for k in range(8):
        A(f"s_mov_b32 s26, {(k//4)*4096}\nbuffer_load_dwordx4 {v(K+4*k, 4)}, v4, s[36:39], s26 offen offset:{(k % 4)*1024}")
    A(f"""
    v_mul_u32_u24 v5, {8*3584}, v3
    v_lshl_add_u32 v5, v2, 1, v5
    s_lshl_b32 s26, s22, 7
    s_lshl_b32 s27, s3, 5
    s_add_u32 s26, s26, s27
    v_add_u32 v5, s26, v5
    v_mul_u32_u24 v6, {4*896}, v3
    v_lshl_add_u32 v6, v2, 1, v6
    s_mul_i32 s26, s22, {64*896}
    s_mul_i32 s27, s3, 224
    s_add_u32 s26, s26, s27
    v_add_u32 v6, s26, v6
    """)
    A("s_waitcnt vmcnt(0)\ns_mov_b32 s28, 0xffff0000\ns_mov_b32 s29, 0x80000000")
    for k in range(8):
        for j in range(4):
            r = K + 4*k + j
            A(f"""v_ashrrev_i32 v7, 31, v{r}
            v_or_b32 v7, s29, v7
            v_xor_b32 v{r}, v7, v{r}
            v_lshlrev_b32 v7, 2, v1
            v_sub_u32 v7, {2047 - k*256 - j}, v7
            v_and_or_b32 v{r}, v{r}, s28, v7""")
    for u in range(14):
        for q in range(4): A(f"v_mov_b32 v{WG + 8*u + 4 + q}, 0\nv_accvgpr_write_b32 a{WU + 8*u + 4 + q}, 0")
    for f in range(28):
        for q in range(2): A(f"v_accvgpr_write_b32 a{WD + 4*f + 2 + q}, 0")
    for u in range(14):
        for j in range(8):
            if j % 2 == 0: A(f"s_mov_b32 s26, {(32*u + j)*3584}")
            hi = "_hi" if j % 2 else ""
            off = 3584 if j % 2 else 0
            op = "buffer_load_short_d16_hi" if j % 2 else "buffer_load_ushort"
            A(f"{op} v{WG + 8*u + 4*(j % 2) + j//2}, v5, s[44:47], s26 offen offset:{off}")
            A(f"{op} a{WU + 8*u + 4*(j % 2) + j//2}, v5, s[48:51], s26 offen offset:{off}")
    for wp in range(4):
        for j in range(4):
            A(f"s_mov_b32 s26, {(16*wp + j)*896}")
            hi = "_hi" if j % 2 else ""
            for i in range(7):
                op = "buffer_load_short_d16_hi" if j % 2 else "buffer_load_ushort"
                A(f"{op} a{WD + (i*4 + wp)*4 + 2*(j % 2) + j//2}, v6, s[52:55], s26 offen offset:{i*32}")
    for rnd in range(8):
        if rnd == 0:
            A(f"v_max3_u32 v7, v{K}, v{K+1}, v{K+2}")
            for r in range(3, 31, 2): A(f"v_max3_u32 v7, v7, v{K+r}, v{K+r+1}")
            A(f"v_max_u32 v7, v7, v{K+31}")
            op = "v_max_u32"
        else:
            A(f"s_sub_u32 s30, s{63+rnd}, 1")
            A(f"v_sub_u32 v7, s30, v{K}")
            for r in range(1, 31, 2):
                A(f"v_sub_u32 v8, s30, v{K+r}\nv_sub_u32 v9, s30, v{K+r+1}\nv_min3_u32 v7, v7, v8, v9")
            A(f"v_sub_u32 v8, s30, v{K+31}\nv_min_u32 v7, v7, v8")
            op = "v_min_u32"
        for rr in (8, 4, 2, 1): A(f"{op}_dpp v7, v7, v7 row_ror:{rr} row_mask:0xf bank_mask:0xf")
        xreduce(A, op, 7, 8)
        A(f"v_readfirstlane_b32 s{64+rnd}, v7")
        if rnd: A(f"s_nop 1\ns_sub_u32 s{64+rnd}, s30, s{64+rnd}")
        else: A("s_nop 1")
    for i in range(8):
        A(f"s_and_b32 s{64+i}, s{64+i}, 0xffff\ns_sub_u32 s{64+i}, 2047, s{64+i}")
    A("v_and_b32 v7, 7, v2\nv_mov_b32 v8, 0")
    for i in range(8):
        A(f"v_mov_b32 v9, s{64+i}\nv_cmp_ne_u32 vcc, {i}, v7\nv_cndmask_b32 v8, v9, v8, vcc")
    A(f"""
    v_mul_u32_u24 v9, 896, v8
    v_lshl_add_u32 v9, v3, 4, v9
    """)
    for u in range(14): A(f"buffer_load_dwordx4 {v(XS+4*u, 4)}, v9, s[40:43], 0 offen offset:{u*64}")
    A(f"""
    s_or_b32 s26, s22, s3
    s_cmp_lg_u32 s26, 0
    s_cbranch_scc1 {pfx}_noidx
    v_lshlrev_b32 v10, 2, v1
    s_mov_b64 exec, 0xff
    buffer_store_dword v8, v10, s[60:63], 0 offen sc1
    s_mov_b64 exec, -1
    """)
    A.label(f"{pfx}_noidx")
    A("s_waitcnt vmcnt(0)")
    for u in range(14):
        for o in range(2):
            A(f"v_mfma_f32_16x16x32_bf16 v[16:19], {v(WG+8*u+4*o, 4)}, {v(XS+4*u, 4)}, {'v[16:19]' if (u or o) else '0'}")
            A(f"v_mfma_f32_16x16x32_bf16 v[20:23], {a_(WU+8*u+4*o, 4)}, {v(XS+4*u, 4)}, {'v[20:23]' if (u or o) else '0'}")
    A(f"s_mov_b32 s26, {LOG2E}")
    for p in range(2):
        A(f"""v_cvt_pk_bf16_f32 v24, v{16+2*p}, v{17+2*p}
        v_cvt_pk_bf16_f32 v25, v{20+2*p}, v{21+2*p}
        v_lshlrev_b32 v26, 16, v24
        v_and_b32 v27, s28, v24
        v_mul_f32 v28, s26, v26
        v_mul_f32 v29, s26, v27
        v_exp_f32 v28, -v28
        v_exp_f32 v29, -v29
        v_add_f32 v28, 1.0, v28
        v_add_f32 v29, 1.0, v29
        v_rcp_f32 v28, v28
        v_rcp_f32 v29, v29
        v_mul_f32 v26, v26, v28
        v_mul_f32 v27, v27, v29
        v_cvt_pk_bf16_f32 v24, v26, v27
        v_lshlrev_b32 v26, 16, v24
        v_and_b32 v27, s28, v24
        v_lshlrev_b32 v28, 16, v25
        v_and_b32 v29, s28, v25
        v_mul_f32 v26, v26, v28
        v_mul_f32 v27, v27, v29
        v_cvt_pk_bf16_f32 v{30+p}, v26, v27""")
    A("""v_lshlrev_b32 v10, 3, v0
    v_lshlrev_b32 v11, 3, v1
    ds_write_b64 v10, v[30:31]
    s_waitcnt lgkmcnt(0)
    s_barrier""")
    for wp in range(4): A(f"ds_read_b64 {v(32+2*wp, 2)}, v11 offset:{wp*512}")
    A(f"""s_waitcnt lgkmcnt(0)
    v_mul_u32_u24 v12, 1792, v2
    v_lshl_add_u32 v12, v3, 4, v12
    s_mul_i32 s26, s22, 14336
    s_mul_i32 s27, s3, 448
    s_add_u32 s26, s26, s27""")
    for i in range(7):
        for wp in range(4):
            d = v(WG + 4*i, 4)
            for o in range(2):
                A(f"v_mfma_f32_16x16x16_bf16 {d}, {a_(WD + (i*4 + wp)*4 + 2*o, 2)}, {v(32+2*wp, 2)}, {d if (wp or o) else '0'}")
    A("v_cmp_gt_u32 vcc, 8, v2\ns_and_saveexec_b64 s[30:31], vcc")
    for i in range(7):
        A(f"buffer_store_dwordx4 {v(WG + 4*i, 4)}, v12, s[56:59], s26 offen offset:{i*64} sc1")
    A("s_mov_b64 exec, s[30:31]")
    srd(A, 36, 18, G.FLG_OFF, G.FLG_SZ)
    A(f"s_waitcnt vmcnt(0)\ns_barrier\ns_lshl_b32 s28, s22, 2\ns_add_u32 s28, s28, 16384\ns_cmp_lg_u32 s3, 0\ns_cbranch_scc1 {pfx}_moed")
    flag_set(A, 36, 28, 6, 7)
    A.label(pfx + "_moed")


def wserve_body(A, L, bail):
    srd(A, 36, 18, G.MEMG_OFF, 64*8192)
    srd(A, 40, 18, G.WZ_OFF, 64*G.WZ_SEG)
    tile_c(A, 31, 0); tile_c(A, 32, 6)
    A(f"""s_mov_b32 s23, s21
    s_lshl_b32 s31, s31, 12
    s_lshl_b32 s32, s32, 12
    s_lshl_b32 s28, s25, 8
    v_lshlrev_b32 v5, 2, v1
    v_add_u32 v5, s28, v5
    v_and_b32 v6, 1, v1
    v_cmp_eq_u32 vcc, 1, v6
    v_mov_b32 v8, 0x4444
    v_mov_b32 v6, 0xeeee
    v_cndmask_b32 v8, v8, v6, vcc
    v_mov_b32 v9, 192""")
    MF, AC = 16, 64
    A.label(L + "_loop"); A.reset_state()
    for r in range(28): A(f"v_mov_b32 v{AC+r}, 0")
    A("s_lshl_b32 s33, s23, 8")
    flag_wait(A, L + "_w", 48, 9, 33, 7, bail, sleep=2)
    A("s_lshl_b32 s28, s23, 13\ns_add_u32 s29, s28, 4096")
    for t in range(7): A(f"buffer_load_dwordx4 {v(MF+4*t, 4)}, v4, s[36:39], s{28 + t // 4} offen offset:{(t % 4)*1024} sc1")
    for t in range(7):
        A(f"s_waitcnt vmcnt({6-t})")
        for i in range(7): A(f"v_smfmac_f32_16x16x64_bf16 {v(AC+4*i, 4)}, {v(MF+4*t, 4)}, {wreg(i, 2*t, 8)}, v8")
    A(f"s_mul_i32 s28, s23, {G.WZ_SEG}\ns_add_u32 s29, s28, s32\ns_add_u32 s28, s28, s31")
    for i in range(7):
        x = AC + 4*i
        A(f"v_add_f32 v{x}, v{x}, v{x+1}\nv_add_f32 v{x+2}, v{x+2}, v{x+3}\nv_cvt_pk_bf16_f32 v{x}, v{x}, v{x+2}")
        A(f"buffer_store_dword v{x}, v5, s[40:43], s{29 if i == 6 else 28} offen sc1")
        if i < 5: A("s_add_u32 s28, s28, 4096")
    A(f"""s_lshl_b32 s28, s25, 2
    s_add_u32 s28, s28, s33
    s_add_u32 s28, s28, 128
    s_waitcnt vmcnt(0)
    s_barrier
    s_cmp_lg_u32 s3, 0
    s_cbranch_scc1 {L}_nf""")
    flag_set(A, 48, 28, 6, 7)
    A.label(L + "_nf")
    A(f"s_add_u32 s23, s23, 7\ns_cmp_lt_u32 s23, 64\ns_cbranch_scc1 {L}_loop\ns_branch {bail}")
```

```python
from asmlib import *
import gen as G
from gen import srd, lane_setup, xreduce, wreg, flag_set, flag_wait, tl, tl_dump
from kernels2 import tile_c, load_weights7, f2h
import os
SPIN_MAX = 1 << 22
NINF = "0xff800000"
STAMP = int(os.environ.get("STAMP", "0"))
HU_P_AT = int(os.environ.get("HU_P_AT", "1"))
HU_M_AT = int(os.environ.get("HU_M_AT", "0"))
A_DMA = int(os.environ.get("A_DMA", "0"))
DSP = int(os.environ.get("DSP", "3"))
DSPB = int(os.environ.get("DSPB", "4"))
NT = os.environ.get("NT", "")
DBG2_OFF = 0x5E00000
QP = "quad_perm:[1,0,3,2] row_mask:0xf bank_mask:0xf"

def stamp(A, k):
    if STAMP: A(f"{'s_memrealtime' if STAMP == 2 else 's_memtime'} s[{4+2*k}:{5+2*k}]")
def stamp_cnt(A, k):
    if STAMP: A(f"s_mov_b32 s{16+k}, s27")
def stamp_out(A, tmp, lds, nw):
    if not STAMP: return
    lab = f"STK{len(A.lines)}"
    A(f"s_waitcnt lgkmcnt(0)\ns_lshr_b32 s28, s64, 4\ns_cmp_lg_u32 s28, 1\ns_cbranch_scc1 {lab}\ns_cmp_ge_u32 s3, {nw}\ns_cbranch_scc1 {lab}")
    for k in range(6): A(f"v_mov_b32 v{tmp+k}, s{4+2*k}")
    A(f"v_mov_b32 v{tmp+6}, s16\nv_mov_b32 v{tmp+7}, s17")
    A(f"""s_lshl_b32 s28, s3, 4
    s_add_u32 s28, s28, s64
    s_lshl_b32 s28, s28, 5
    s_add_u32 s28, s28, {lds - 512}
    v_mov_b32 v{tmp+8}, s28
    ds_write_b128 v{tmp+8}, {v(tmp, 4)}
    ds_write_b128 v{tmp+8}, {v(tmp+4, 4)} offset:16""")
    A.label(lab)
def stamp_dump(A, lds):
    if not STAMP: return
    A(f"""s_lshl_b32 s28, s3, 9
    v_bfe_u32 v8, v4, 4, 4
    v_lshlrev_b32 v8, 5, v8
    v_add_u32 v9, s28, v8
    v_add_u32 v9, {lds}, v9
    v_min_u32 v9, {163840 - 32}, v9
    s_lshl_b32 s28, s3, 11
    s_add_u32 s28, s28, 512
    v_add_u32 v8, s28, v8
    s_waitcnt lgkmcnt(0)
    ds_read_b128 v[12:15], v9
    ds_read_b128 v[16:19], v9 offset:16
    s_lshl_b32 s28, s21, 13
    s_waitcnt lgkmcnt(0)
    buffer_store_dwordx4 v[12:15], v8, s[60:63], s28 offen
    buffer_store_dwordx4 v[16:19], v8, s[60:63], s28 offen offset:16""")

def team_flavor(A, bail):
    A(f"v_lshlrev_b32 v5, 2, v1\ns_mov_b32 s27, 0\ns_mov_b32 exec_hi, 0")
    L = bail + "_fl" + str(len(A.lines))
    A.label(L)
    A(f"""
    buffer_load_dword v6, v5, s[60:63], 0 offen sc1
    s_add_u32 s27, s27, 1
    s_cmp_gt_u32 s27, {SPIN_MAX}
    s_cbranch_scc1 {bail}
    s_waitcnt vmcnt(0)
    v_cmp_eq_u32 vcc, 0, v6
    s_cbranch_vccnz {L}
    v_cmp_ne_u32 vcc, s35, v6
    s_mov_b64 exec, -1
    s_cmp_lg_u64 vcc, 0
    s_cselect_b32 s65, 1, 0
    """)
    if STAMP: srd(A, 60, 18, DBG2_OFF, 32*4*64*32)

HUD = int(os.environ.get("HUD", "2"))
def hu_wait(A, L, srdn, voff, soff, hr, bail, HUD=HUD):
    ld = lambda k: f"buffer_load_dword v{hr[k]}, v{voff}, s[{srdn}:{srdn+3}], s{soff} offen sc1"
    A("s_mov_b32 s27, 0")
    for k in range(HUD - 1): A(ld(k))
    A.label(L)
    for k in range(HUD):
        A(ld((k + HUD - 1) % HUD))
        A(f"s_waitcnt vmcnt({HUD-1})\nv_cmp_eq_u32 vcc, -1, v{hr[k]}\ns_cbranch_vccz {L}_ok")
    A(f"s_add_u32 s27, s27, 1\ns_cmp_gt_u32 s27, {SPIN_MAX}\ns_cbranch_scc0 {L}\ns_branch {bail}")
    A.label(L + "_ok")

def frag_loads(A, n, reg0, srdn, voff, soffs):
    for t in range(n):
        A(f"buffer_load_dwordx4 {v(reg0+4*t, 4)}, v{voff}, s[{srdn}:{srdn+3}], s{soffs[t // 4]} offen offset:{(t % 4)*1024} sc1")

def exact_check(A, L, n, reg0, tmp, retry, back, bail):
    A.label(L); A.reset_state()
    A("s_waitcnt vmcnt(0)")
    tmp, t2 = tmp if isinstance(tmp, tuple) else (tmp, tmp + 1)
    A(f"v_pk_max_u16 v{tmp}, v{reg0}, v{reg0+1}")
    for r in range(reg0 + 2, reg0 + 4*n): A(f"v_pk_max_u16 v{tmp}, v{tmp}, v{r}")
    A(f"""v_lshlrev_b32 v{t2}, 16, v{tmp}
    v_max_u32 v{tmp}, v{tmp}, v{t2}
    v_cmp_le_u32 vcc, s26, v{tmp}
    s_cbranch_vccz {back}
    s_add_u32 s27, s27, 1
    s_cmp_gt_u32 s27, {SPIN_MAX}
    s_cbranch_scc1 {bail}
    s_branch {retry}""")

def dma_ops(n, srdn, sg, sl, fl=''):
    o = []
    for k in range(n):
        pre = ""
        if k == 0: pre = f"s_mov_b32 m0, s{sl}\n"
        elif k % 4 == 0:
            pre = "s_add_u32 m0, m0, 4096\n"
            if not isinstance(sg, tuple): pre = f"s_add_u32 s{sg}, s{sg}, 4096\n" + pre
        g = sg[k // 4] if isinstance(sg, tuple) else sg
        o.append(pre + f"buffer_load_dwordx4 v4, s[{srdn}:{srdn+3}], s{g} offen offset:{(k % 4)*1024}{fl} lds")
    return o

TL, SMX, MFLA = 0, 7168, 8192
MF, TA, XB = 8, 36, 64
VTOUCH = int(os.environ.get("VTOUCH", "1"))

def mem_fetch(A, base):
    A(f"s_mov_b32 s97, {base}")
    for z in dma_ops(7, 40, (32, 34), 97, " sc1"): A(z)
    A("s_waitcnt vmcnt(0)")

def a_xb_load(A):
    A(f"s_mul_i32 s28, s33, 28672\ns_add_u32 s28, s28, s94")
    for k in range(14):
        if k and k % 4 == 0: A("s_add_u32 s28, s28, 4096")
        A(f"buffer_load_dwordx4 {v(XB+4*k, 4)}, v4, s[52:55], s28 offen offset:{(k % 4)*1024}")

def a_loop(A, role, fl):
    L = f"K3a{role}f{fl}"
    sc = " sc1" if fl else ""
    if role == 1:
        A("s_mov_b32 s33, 0"); a_xb_load(A)
    A.label(L + "_loop"); A.reset_state()
    stamp(A, 0)
    A(f"""s_lshl_b32 s32, s64, 13
    s_add_u32 s34, s32, 4096
    s_add_u32 s33, s64, 1
    s_min_u32 s33, s33, 63""")
    zero = [f"v_mov_b32 v{r}, 0" for r in range(TA, TA + 28)]
    for z in zero: A(z)
    if VTOUCH: A(f"s_mul_i32 s30, s33, {G.SEG_SZ}\ns_add_u32 s30, s30, s93")
    if role == 0:
        A(f"v_mov_b32 v{XB+4}, {NINF}\nv_mov_b32 v{XB+5}, {NINF}\ns_mul_i32 s31, s64, {G.PF_STRIDE}")
        A(f"s_cmp_eq_u32 s64, 0\ns_cbranch_scc1 {L}_hu_ok")
        hu_wait(A, L + "_hu", 40, 111, 32, (108, 109, 107), "K3_end")
    if role == 3 and VTOUCH:
        A(f"s_lshl_b32 s28, s33, 8\ns_add_u32 s29, s28, 256\ns_waitcnt vmcnt(0)\nv_cmp_eq_u32 vcc, 0, v115\ns_cbranch_vccz {L}_wv_ok")
        flag_wait(A, L + "_wv", 56, 117, 28, 116, "K3_end", sleep=2)
    stamp(A, 1)
    A("s_mov_b32 s27, 0")
    A.label(L + "_go"); A.reset_state()
    if role == 0: mem_fetch(A, MFLA)
    A("s_barrier")
    for t in range(7): A(f"ds_read_b128 {v(MF+4*t, 4)}, v1 offset:{t*1024}")
    smf = lambda d, t, B: f"v_smfmac_f32_16x16x64_bf16 {v(d, 4)}, {v(MF+4*t, 4)}, {B}, v2"
    dm = []
    if VTOUCH and role != 1:
        for k in range(4 if role == 3 else 3):
            dm.append(f"buffer_load_dword v119, v118, s[48:51], s30 offen sc1\ns_add_u32 s30, s30, 4096")
        if role == 3: dm.append("buffer_load_dword v115, v117, s[56:59], s29 offen sc1")
    cnt = [0, 8]
    def emit(z, side=None):
        A(z); cnt[0] += 1
        if side: A(side)
        elif dm and cnt[0] >= cnt[1]: A(dm.pop(0)); cnt[1] = cnt[0] + 3
    for t in range(7):
        A(f"s_waitcnt lgkmcnt({6 - t})")
        if t == 0: stamp(A, 2)
        for d, i in ((TA+24, 6), (TA, 0), (TA+4, 1)): emit(smf(d, t, wreg(i, 2*t, 8)))
    def fin(x): return [f"v_add_f32 v{x}, v{x}, v{x+1}", f"v_add_f32 v{x+2}, v{x+2}, v{x+3}", f"v_cvt_pk_bf16_f32 v{x}, v{x}, v{x+2}"]
    def post_pair(p):
        x, y = TA + 8*p, TA + 8*p + 4
        return fin(x) + fin(y) + [f"ds_write2st64_b32 v5, v{x}, v{y} offset0:{2*p} offset1:{2*p+1}"]
    b = TA + 24
    chk = [f"v_add_f32 v{b}, v{b}, v{b+1}", f"v_add_f32 v{b+2}, v{b+2}, v{b+3}", f"v_cmp_u_f32 vcc, v{b}, v{b+2}",
           f"s_cbranch_vccnz {L}_slow\n{L}_back:", f"v_cvt_pk_bf16_f32 v{b}, v{b}, v{b+2}", f"ds_write_b32 v6, v{b}"]
    seq1 = [None]*4 + chk + post_pair(0)[:4]
    seq2 = post_pair(0)[4:] + [None]*2 + post_pair(1)
    for p, side in ((1, seq1), (2, seq2)):
        x, y = TA + 8*p, TA + 8*p + 4
        side = list(side)
        for t in range(7):
            for d, i in ((x, 2*p), (y, 2*p + 1)):
                emit(smf(d, t, wreg(i, 2*t, 8)), side.pop(0) if side else None)
    for z in post_pair(2): A(z)
    stamp(A, 3); stamp_cnt(A, 0)
    A("s_waitcnt lgkmcnt(0)\ns_barrier")
    stamp(A, 4)
    tr = lambda t: [f"ds_read_b64_tr_b16 {v(TA + 4*t + 2*z, 2)}, v0 offset:{t*1024 + z*32}" for z in range(2)]
    if role != 3:
        for t in range(7):
            for z in tr(t): A(z)
    if role == 1:
        D = MF
        for r in range(4): A(f"v_mov_b32 v{D+r}, 0")
        for t in range(7):
            A(f"s_waitcnt lgkmcnt({2*(6-t)})" + (" vmcnt(0)" if t == 0 else ""))
            A(f"v_smfmac_f32_16x16x64_bf16 {v(D, 4)}, {v(TA+4*t, 4)}, {v(XB+8*t, 8)}, v3")
        A(f"""v_permlane32_swap_b32 v{D}, v{D+1}
        v_permlane32_swap_b32 v{D+2}, v{D+3}
        v_add_f32 v{D}, v{D}, v{D+1}
        v_add_f32 v{D+2}, v{D+2}, v{D+3}
        ds_write2_b32 v7, v{D}, v{D+2} offset0:0 offset1:32
        s_waitcnt lgkmcnt(0)
        s_barrier
        s_barrier""")
        a_xb_load(A)
    if role == 3: A("s_barrier\ns_barrier")
    if role == 0:
        X, R, D = XB, XB + 4, XB + 8
        m, t1, l = XB+12, XB+13, XB+14
        for t in range(7):
            A(f"s_waitcnt lgkmcnt({2*(6-t)})")
            A(f"v_mfma_f32_16x16x32_bf16 {v(D, 4)}, {v(MF+4*t, 4)}, {v(TA+4*t, 4)}, {v(D, 4) if t else '0'}")
        def hu_pub(k):
            if HU_P_AT == k: A(f"buffer_store_dword v112, v110, s[40:43], s32 offen{sc}")
        hu_pub(0)
        A(f"v_add_f32_dpp v{R}, v{D+1}, v{D} row_ror:8 row_mask:0xf bank_mask:0x3")
        A(f"v_add_f32_dpp v{R+1}, v{D+3}, v{D+2} row_ror:8 row_mask:0xf bank_mask:0x3")
        A(f"v_max_f32 v{m}, v{R}, v{R+1}\ns_barrier")
        A(f"ds_read_b64 {v(X, 2)}, v7\nds_read_b64 {v(X+2, 2)}, v7 offset:512")
        hu_pub(1)
        A(f"""s_waitcnt lgkmcnt(1)
        v_max3_f32 v{m}, v{m}, v{X}, v{X+1}
        s_waitcnt lgkmcnt(0)
        v_max3_f32 v{m}, v{m}, v{X+2}, v{X+3}""")
        xreduce(A, "v_max_f32", m, t1, steps=(8, 16, 32))
        hu_pub(2)
        for r in (X, X+2, R): A(f"v_pk_add_f32 {v(r, 2)}, {v(r, 2)}, {v(m, 2)} op_sel_hi:[1,0] neg_lo:[0,1] neg_hi:[0,1]")
        for r in range(6): A(f"v_exp_f32 v{X+r}, v{X+r}")
        hu_pub(3)
        A(f"""v_pk_add_f32 {v(l, 2)}, {v(X, 2)}, {v(X+2, 2)}
        v_pk_add_f32 {v(l, 2)}, {v(l, 2)}, {v(R, 2)}
        v_add_f32 v{l}, v{l}, v{l+1}""")
        xreduce(A, "v_add_f32", l, t1, steps=(8, 16, 32))
        A(f"v_rcp_f32 v{l}, v{l}")
        for r in (X, X+2, R): A(f"v_pk_mul_f32 {v(r, 2)}, {v(r, 2)}, {v(l, 2)} op_sel_hi:[1,0] clamp")
        A(f"""v_cvt_pk_bf16_f32 v{X}, v{X}, v{X+1}
        v_cvt_pk_bf16_f32 v{X+1}, v{X+2}, v{X+3}
        v_cvt_pk_bf16_f32 v{R}, v{R}, v{R+1}
        buffer_store_dwordx2 {v(X, 2)}, v116, s[44:47], s31 offen{sc}
        buffer_store_dword v{R}, v117, s[44:47], s31 offen{sc}
        s_barrier""")
    stamp(A, 5)
    if role == 0: tl(A, 0, 64)
    if role == 3 and G.TLM: A("s_memtime s[100:101]\ns_mov_b32 m0, s64\ns_waitcnt lgkmcnt(0)\nv_writelane_b32 v113, s100, m0")
    stamp_out(A, TA + 8, MFLA + 7168, 4)
    A(f"s_add_u32 s64, s64, 1\ns_cmp_lt_u32 s64, 63")
    A.flush()
    A(f"s_cbranch_scc1 {L}_loop")
    stamp_dump(A, MFLA + 7168)
    if role != 1: tl_dump(A, 1)
    A("s_branch K3_end")
    exact_check(A, L + "_slow", 7, MF, (TA + 25, TA + 27), L + "_retry", L + "_back", "K3_end")
    A.label(L + "_retry"); A.reset_state()
    for z in zero: A(z)
    if VTOUCH: A(f"s_mul_i32 s30, s33, {G.SEG_SZ}\ns_add_u32 s30, s30, s93")
    A(f"s_barrier\ns_branch {L}_go")

def a_cu(A):
    A(f"s_mul_i32 s26, s22, {G.WF_UNIT}\ns_add_u32 s26, s26, {hex(G.WF_OFF)}")
    srd(A, 36, 18, "s26", G.WF_UNIT)
    srd(A, 48, 18, G.VOF_OFF, 64*G.SEG_SZ)
    srd(A, 52, 18, G.XNF_OFF, G.XN_SZ)
    srd(A, 56, 18, G.FLG_OFF, G.FLG_SZ)
    A("s_and_b32 s24, s3, 1")
    load_weights7(A, 36, 4, st=28)
    team_flavor(A, "K3_end")
    tile_c(A, 28, 0); tile_c(A, 30, 6)
    A(f"""
    v_lshrrev_b32 v8, 1, v3
    v_and_b32 v9, 1, v3
    v_lshlrev_b32 v7, 7, v8
    v_lshl_add_u32 v7, v2, 3, v7
    v_lshl_add_u32 v7, v9, 2, v7
    s_lshl_b32 s28, s28, 8
    v_add_u32 v5, s28, v7
    s_lshl_b32 s30, s30, 8
    v_add_u32 v6, s30, v7
    s_mov_b32 s64, 0
    s_mov_b32 s26, 0xffff0000
    v_lshrrev_b32 v10, 2, v2
    v_and_b32 v11, 3, v2
    v_lshrrev_b32 v12, 1, v10
    v_lshl_add_u32 v12, v8, 1, v12
    v_lshlrev_b32 v0, 8, v12
    v_and_b32 v12, 1, v11
    v_lshl_add_u32 v0, v12, 7, v0
    v_lshlrev_b32 v12, 3, v9
    v_and_b32 v13, 2, v11
    v_add_u32 v12, v12, v13
    v_and_b32 v13, 1, v10
    v_add_u32 v12, v12, v13
    v_lshl_add_u32 v0, v12, 3, v0
    s_sub_u32 s28, s3, 1
    s_and_b32 s28, s28, 1
    s_mul_i32 s94, s28, 14336
    s_lshl_b32 s28, s28, 9
    s_add_u32 s28, s28, {SMX}
    v_lshl_add_u32 v7, v9, 2, v8
    v_lshlrev_b32 v7, 6, v7
    v_lshl_add_u32 v7, v2, 2, v7
    v_add_u32 v7, s28, v7
    v_lshlrev_b32 v118, 6, v1
    s_mul_i32 s93, s22, 28672
    s_cmp_eq_u32 s3, 0
    s_cselect_b32 s28, 16384, 0
    s_add_u32 s93, s93, s28
    v_and_b32 v12, 7, v2
    v_lshrrev_b32 v13, 3, v2
    v_lshlrev_b32 v14, 6, v12
    v_lshl_add_u32 v14, v3, 4, v14
    v_lshl_add_u32 v14, v13, 3, v14
    v_add_u32 v14, {SMX}, v14
    s_cmp_eq_u32 s3, 0
    s_cselect_b64 vcc, -1, 0
    v_cndmask_b32 v7, v7, v14, vcc
    v_lshlrev_b32 v116, 5, v12
    v_lshl_add_u32 v116, v13, 4, v116
    v_lshl_add_u32 v116, v8, 8, v116
    v_lshl_add_u32 v116, v9, 3, v116
    s_lshl_b32 s28, s22, 9
    v_add_u32 v116, s28, v116
    v_lshlrev_b32 v117, 5, v12
    v_lshl_add_u32 v117, v8, 8, v117
    v_lshl_add_u32 v117, v9, 3, v117
    s_lshr_b32 s28, s22, 2
    s_lshl_b32 s28, s28, 9
    s_and_b32 s29, s22, 1
    s_lshl_b32 s29, s29, 4
    s_add_u32 s28, s28, s29
    s_bfe_u32 s29, s22, 0x10001
    s_lshl_b32 s29, s29, 2
    s_add_u32 s28, s28, s29
    s_add_u32 s28, s28, 8192
    v_add_u32 v117, s28, v117
    v_mov_b32 v14, 0x7ffffff0
    v_cmp_gt_u32 vcc, 8, v2
    v_cndmask_b32 v117, v14, v117, vcc
    v_min_u32 v13, 15, v1
    v_lshlrev_b32 v13, 2, v13
    v_add_u32 v13, 64, v13
    s_cmp_eq_u32 s3, 3
    s_cselect_b64 vcc, -1, 0
    v_cndmask_b32 v117, v117, v13, vcc
    v_min_u32 v111, 27, v1
    v_lshlrev_b32 v111, 2, v111
    v_add_u32 v111, 7168, v111
    v_mov_b32 v112, 0
    v_mov_b32 v115, 0
    s_lshl_b32 s29, s22, 2
    s_add_u32 s29, s29, {8192 + 7296}
    v_mov_b32 v110, s29
    v_cmp_eq_u32 vcc, 0, v1
    v_cndmask_b32 v110, v14, v110, vcc
    v_mov_b32 v12, 0x4444
    v_mov_b32 v14, 0xeeee
    v_cmp_lt_u32 vcc, 7, v2
    v_cndmask_b32 v3, v12, v14, vcc
    v_and_b32 v2, 1, v2
    v_cmp_eq_u32 vcc, 1, v2
    v_cndmask_b32 v2, v12, v14, vcc
    v_add_u32 v1, {MFLA}, v4
    s_waitcnt vmcnt(0)""")
    if G.TLM: A("s_cmp_lg_u32 s3, 3\ns_cbranch_scc1 K3a_tl\ns_memrealtime s[100:101]\ns_waitcnt lgkmcnt(0)\nv_writelane_b32 v113, s100, 63\nK3a_tl:")
    A("""s_cmp_lg_u32 s65, 0
    s_cbranch_scc1 K3a_fl1""")
    for fl in (0, 1):
        if fl: A.label("K3a_fl1"); A.reset_state()
        A(f"s_cmp_eq_u32 s3, 0\ns_cbranch_scc1 K3a_r0f{fl}\ns_cmp_eq_u32 s3, 3\ns_cbranch_scc1 K3a_r3f{fl}")
        for role in (1, 0, 3):
            if role != 1: A.label(f"K3a_r{role}f{fl}"); A.reset_state()
            a_loop(A, role, fl)

WL, VOL, WZL, MFLB = 0, 114688, 147456, 155648
def wregB(i, u, n=4):
    idx = 56*i + 4*u
    if idx < 256:
        assert idx + n <= 256
        return a_(idx, n)
    return v(176 + idx - 256, n)
BA, LW, Z, PFR, PA, KEEP, KEEPM = 36, 68, 36, 116, 156, 100, 152

def b_loop(A, fl):
    L = f"K3bf{fl}"
    sc = " sc1" if fl else ""
    A.label(L + "_loop"); A.reset_state()
    zero = [f"v_mov_b32 v{r}, 0" for r in range(BA, BA + 32)]
    for z in zero: A(z)
    lw = lambda k: LW + (k % 4)*8
    def rdw(k):
        for z in range(2): A(f"ds_read_b128 {v(lw(k) + 4*z, 4)}, v5 offset:{(k // 7)*14336 + (2*(k % 7) + z)*1024}")
    for k in range(4): rdw(k)
    A(f"""s_lshl_b32 s32, s64, 13
    s_add_u32 s34, s32, 4096
    s_mul_i32 s30, s64, {G.SEG_SZ}
    s_lshl_b32 s31, s22, 15
    s_add_u32 s30, s30, s31
    s_lshl_b32 s31, s3, 13
    s_add_u32 s30, s30, s31
    s_add_u32 s29, s30, 4096
    s_add_u32 s31, s31, {VOL}
    s_lshl_b32 s28, s3, 10
    s_add_u32 s28, s28, s66
    v_add_u32 v174, s28, v4
    v_lshrrev_b32 v163, 2, v4
    v_min_u32 v163, 60, v163
    v_add_u32 v163, 64, v163""")
    stamp(A, 0)
    A(f"s_lshl_b32 s28, s64, 8\ns_add_u32 s33, s28, 256\ns_cmp_lg_u32 s3, 3\ns_cbranch_scc1 {L}_wv_ok\nv_cmp_eq_u32 vcc, 0, v0\ns_cbranch_vccz {L}_wv_ok")
    flag_wait(A, L + "_wv", 68, 163, 28, PFR, "K3_end", sleep=2)
    A(f"s_mov_b32 s27, 0\ns_waitcnt lgkmcnt(0)\ns_cmp_lg_u32 s3, 2\ns_cbranch_scc1 {L}_join\ns_cmp_eq_u32 s64, 0\ns_cbranch_scc1 {L}_hm_ok")
    hu_wait(A, L + "_hm", 40, 161, 32, (PFR, PFR+1, PFR+2), "K3_end")
    A("s_mov_b32 s27, 0")
    A.label(L + "_go"); A.reset_state()
    mem_fetch(A, MFLB)
    A.label(L + "_join")
    A("s_barrier")
    for t in range(7): A(f"ds_read_b128 {v(MF+4*t, 4)}, v162 offset:{t*1024}")
    sm0 = lambda i, t, B: f"v_smfmac_f32_16x16x64_bf16 {v(BA+4*i, 4)}, {v(MF+4*t, 4)}, {B}, v160"
    dm = dma_ops(8, 48, (30, 29), 31, ' sc1') + ["buffer_load_dword v0, v163, s[68:71], s33 offen sc1"]
    cnt = [0, 1]
    def sm(i, t, B):
        cnt[0] += 1
        z = sm0(i, t, B)
        if dm and cnt[0] >= cnt[1]: z += "\n" + dm.pop(0); cnt[1] = cnt[0] + DSPB
        return z
    for t in range(7):
        A(f"s_waitcnt lgkmcnt({6 - t})")
        if t == 0: stamp(A, 1)
        A(sm(0, t, wregB(0, 2*t, 8)))
    for t in range(7):
        A(sm(1, t, wregB(1, 2*t, 8)))
        if t == 3: A(f"v_add_f32 v{BA}, v{BA}, v{BA+1}")
        if t == 4: A(f"v_add_f32 v{BA+2}, v{BA+2}, v{BA+3}")
        if t == 5: A(f"v_cmp_u_f32 vcc, v{BA}, v{BA+2}")
        if t == 6: A(f"s_cbranch_vccnz {L}_slowm\n{L}_backm:")
    stamp_cnt(A, 0)
    for k in range(14):
        A(f"s_waitcnt lgkmcnt({2*min(3, 13-k)})")
        A(sm(6 + k // 7, k % 7, v(lw(k), 8)))
        i = 2 + k // 7
        A(sm(i, k % 7, wregB(i, 2*(k % 7), 8)))
        if k + 4 < 14: rdw(k + 4)
    def fin(i):
        x = BA + 4*i
        o = [] if i == 0 else [f"v_add_f32 v{x}, v{x}, v{x+1}", f"v_add_f32 v{x+2}, v{x+2}, v{x+3}"]
        return o + [f"v_cvt_pk_bf16_f32 v{164+i}, v{x}, v{x+2}"]
    side = fin(0) + fin(1) + fin(2) + fin(6) + fin(3) + [f"ds_write_b128 v174, v[164:167]"]
    for t in range(7):
        for i in (4, 5):
            A(sm(i, t, wregB(i, 2*t, 8)))
            if side: A(side.pop(0))
    for z in side + fin(7) + fin(4) + fin(5) + [f"ds_write_b128 v174, v[168:171] offset:4096"]: A(z)
    stamp(A, 2)
    A(f"s_waitcnt vmcnt(0) lgkmcnt(0)\ns_barrier\ns_cmp_ge_u32 s3, 2\ns_cbranch_scc1 {L}_next")
    A("s_lshl_b32 s28, s24, 12\ns_add_u32 s28, s28, s66\nv_add_u32 v163, s28, v4")
    for f in range(16):
        A(f"ds_read_b128 {v(Z + 4*f, 4)}, v6 offset:{f*1024}")
        if f == 11: A("s_waitcnt lgkmcnt(4)")
    for f in range(4): A(f"ds_read_b128 {v(Z + 64 + 4*f, 4)}, v163 offset:{f*1024}")
    for r in range(4): A(f"v_mov_b32 v{PA+r}, 0")
    A(f"""s_mul_i32 s28, s64, {G.PF_STRIDE}
    s_add_u32 s29, s28, 4096
    s_add_u32 s30, s28, 8192
    s_add_u32 s34, s32, 8192
    s_waitcnt lgkmcnt(0)""")
    stamp(A, 3)
    hu_wait(A, L + "_hp", 40, 172, 32, (PFR, PFR+1, PFR+2, PFR+3), "K3_end", HUD=int(os.environ.get("HUDP", "2")))
    A("s_mov_b32 s27, 0")
    A.label(L + "_gop"); A.reset_state()
    order = [8, 9, 0, 1, 2, 3, 4, 5, 6, 7]
    for k, t in enumerate(order):
        A(f"buffer_load_dwordx4 {v(PFR+4*t, 4)}, v4, s[44:47], s{28 + t // 4} offen offset:{(t % 4)*1024} sc1")
        if HU_M_AT < 0 and k == 10 + HU_M_AT: A(f"buffer_store_dword v175, v173, s[40:43], s32 offen{sc}")
    for k, u in enumerate(order):
        A(f"s_waitcnt vmcnt({9-k + (1 if (k > HU_M_AT + 1 if HU_M_AT >= 0 else k <= 10 + HU_M_AT) else 0)})")
        if k == 0: stamp(A, 4)
        A(f"v_smfmac_f32_16x16x64_bf16 {v(PA, 4)}, {v(PFR+4*u, 4)}, {v(Z+8*u, 8)}, v160")
        if k == 0: A(f"v_max_u32 v164, v{PFR+32}, v{PFR+33}")
        if k == 1: A(f"v_max3_u32 v164, v164, v{PFR+36}, v{PFR+37}\nv_cmp_eq_u32 vcc, -1, v164\ns_cbranch_vccnz {L}_early")
        if HU_M_AT >= 0 and k == HU_M_AT + 1: A(f"buffer_store_dword v175, v173, s[40:43], s32 offen{sc}")
    A(f"""v_add_f32 v{PA}, v{PA}, v{PA+1}
    v_add_f32 v{PA+2}, v{PA+2}, v{PA+3}
    v_cmp_u_f32 vcc, v{PA}, v{PA+2}
    v_cvt_pk_bf16_f32 v{PA}, v{PA}, v{PA+2}
    s_cbranch_vccnz {L}_slowp""")
    A.label(L + "_backp")
    A(f"""buffer_store_short v{PA}, v7, s[40:43], s34 offen{sc}
    buffer_store_short_d16_hi v{PA}, v7, s[40:43], s34 offen offset:32{sc}""")
    stamp_cnt(A, 1)
    A.label(L + "_next")
    stamp(A, 5)
    tl(A, 0, 64)
    stamp_out(A, 116, MFLB + 7168, 2)
    A(f"s_add_u32 s64, s64, 1\ns_cmp_lt_u32 s64, 63")
    A.flush()
    A(f"s_cbranch_scc1 {L}_loop")
    A.label(L + "_exit"); A.reset_state()
    stamp_dump(A, MFLB + 7168)
    tl_dump(A, 1)
    A("s_branch K3_end")
    exact_check(A, L + "_slowm", 7, MF, 164, L + "_retrym", L + "_backm", "K3_end")
    A.label(L + "_retrym"); A.reset_state()
    for z in zero[:8]: A(z)
    A(f"s_barrier\ns_cmp_lg_u32 s3, 2\ns_cbranch_scc1 {L}_join\ns_branch {L}_go")
    exact_check(A, L + "_slowp", 10, PFR, 164, L + "_retryp", L + "_nanp", "K3_end")
    A.label(L + "_nanp"); A.reset_state()
    A(f"v_pk_min_u16 v{PA}, v{PA}, s25\ns_branch {L}_backp")
    A.label(L + "_early"); A.reset_state()
    A(f"s_add_u32 s27, s27, 1\ns_cmp_gt_u32 s27, {SPIN_MAX}\ns_cbranch_scc1 K3_end\ns_waitcnt vmcnt(0)\ns_nop 7")
    A.label(L + "_retryp"); A.reset_state()
    for r in range(4): A(f"v_mov_b32 v{PA+r}, 0")
    A(f"s_nop 1\ns_branch {L}_gop")

def b_cu(A):
    srd(A, 36, 18, G.WF_OFF + 16*G.WF_UNIT, 16*G.WF_UNIT)
    srd(A, 48, 18, G.VOF_OFF, 64*G.SEG_SZ)
    srd(A, 68, 18, G.FLG_OFF, G.FLG_SZ)
    for i in range(8):
        ct, q = i // 4, i % 4
        A(f"""s_lshl_b32 s28, s3, 2
        s_add_u32 s28, s28, {q}
        s_mul_i32 s28, s28, {G.WF_UNIT}
        s_mul_i32 s29, s22, 28672
        s_add_u32 s28, s28, s29
        s_add_u32 s28, s28, {ct*14336}""")
        if i >= 6:
            A(f"s_mul_i32 s29, s3, 28672\ns_add_u32 s29, s29, {WL + (i-6)*14336}")
            for z in dma_ops(14, 36, 28, 29): A(z)
        else:
            for u in range(14):
                A(f"buffer_load_dwordx4 {wregB(i, u)}, v4, s[36:39], s28 offen offset:{(u % 4)*1024}")
                if u % 4 == 3: A("s_add_u32 s28, s28, 4096")
    team_flavor(A, "K3_end")
    A(f"""
    s_mul_i32 s28, s3, 28672
    v_add_u32 v5, s28, v4
    v_and_b32 v9, 1, v2
    v_cmp_eq_u32 vcc, 1, v9
    v_mov_b32 v160, 0x4444
    v_mov_b32 v161, 0xeeee
    v_cndmask_b32 v160, v160, v161, vcc
    s_mov_b32 s25, 0xfffefffe
    s_mov_b32 s26, 0xffff0000
    s_mov_b32 s64, 0
    s_mov_b32 s66, {WZL}
    s_and_b32 s24, s3, 1
    s_lshl_b32 s28, s24, 14
    s_add_u32 s28, s28, {VOL}
    v_add_u32 v6, s28, v4
    v_bfe_u32 v8, v2, 1, 1
    v_lshl_add_u32 v8, v3, 2, v8
    v_lshlrev_b32 v7, 4, v8
    v_lshrrev_b32 v8, 2, v2
    v_lshl_add_u32 v7, v8, 2, v7
    v_lshl_add_u32 v7, v9, 1, v7
    s_lshl_b32 s28, s22, 1
    s_add_u32 s28, s28, s24
    s_lshl_b32 s67, s28, 12
    s_lshl_b32 s29, s28, 8
    v_add_u32 v7, s29, v7
    v_min_u32 v161, 27, v1
    v_lshlrev_b32 v161, 2, v161
    v_add_u32 v161, 7168, v161
    v_min_u32 v172, 15, v1
    v_lshlrev_b32 v172, 2, v172
    v_add_u32 v172, {8192 + 7296}, v172
    s_lshl_b32 s28, s28, 2
    s_add_u32 s28, s28, {8192 + 7168}
    v_mov_b32 v173, s28
    v_mov_b32 v8, 0x7ffffff0
    v_cmp_eq_u32 vcc, 0, v1
    v_cndmask_b32 v173, v8, v173, vcc
    v_mov_b32 v175, 0
    v_mov_b32 v0, 0
    v_add_u32 v162, {MFLB}, v4
    s_mov_b32 s97, {MFLB}
    s_mul_i32 s98, s24, 3072
    s_waitcnt vmcnt(0)
    """)
    G.TLV[0] = 3
    tl(A, 63)
    A("s_cmp_lg_u32 s65, 0\ns_cbranch_scc1 K3bf1_loop")
    b_loop(A, 0)
    b_loop(A, 1)

def warm_cu(A):
    L = "K3w"
    srd(A, 52, 18, G.XNF_OFF, G.XN_SZ)
    A(f"""v_min_u32 v5, 27, v1
    v_lshlrev_b32 v5, 2, v5
    v_add_u32 v5, 7168, v5
    s_lshl_b32 s28, s3, 10
    v_add_u32 v6, s28, v4
    s_mov_b32 s64, 0""")
    def touch(sreg):
        A(f"s_lshl_b32 s28, s{sreg}, 13\ns_add_u32 s28, s28, 8192\ns_mul_i32 s29, s{sreg}, {G.PF_STRIDE}\ns_mul_i32 s30, s{sreg}, 28672\ns_add_u32 s30, s30, {1*28672}")
        for k in range(2): A(f"buffer_load_dwordx4 v[16:19], v6, s[40:43], s28 offen sc1\ns_add_u32 s28, s28, 4096")
        for k in range(3): A(f"buffer_load_dwordx4 v[16:19], v6, s[44:47], s29 offen sc1\ns_add_u32 s29, s29, 4096")
        for k in range(7): A(f"buffer_load_dwordx4 v[16:19], v6, s[52:55], s30 offen sc1\ns_add_u32 s30, s30, 4096")
    for k in range(3):
        A(f"s_mov_b32 s33, {k}"); touch(33)
    A.label(L + "_loop")
    A(f"s_add_u32 s64, s64, 1\ns_cmp_ge_u32 s64, 61\ns_cbranch_scc1 K3_end\ns_lshl_b32 s32, s64, 13\ns_mov_b32 s27, 0")
    A.label(L + "_w")
    A(f"""s_sleep 4
    buffer_load_dword v8, v5, s[40:43], s32 offen sc1
    s_add_u32 s27, s27, 1
    s_cmp_gt_u32 s27, {SPIN_MAX}
    s_cbranch_scc1 K3_end
    s_waitcnt vmcnt(0)
    v_cmp_eq_u32 vcc, -1, v8
    s_cbranch_vccnz {L}_w
    s_add_u32 s33, s64, 2""")
    touch(33)
    A(f"s_branch {L}_loop")

def fwd_cu(A):
    L = "K3f"
    srd(A, 52, 18, G.MEMG_OFF, 64*8192)
    srd(A, 56, 18, G.FLG_OFF, G.FLG_SZ)
    A(f"""v_min_u32 v5, 27, v1
    v_lshlrev_b32 v5, 2, v5
    v_add_u32 v5, 7168, v5
    s_lshl_b32 s28, s3, 11
    s_min_u32 s28, s28, 5120
    v_add_u32 v6, s28, v4
    s_mov_b32 s26, 0xffff0000
    s_mov_b32 s64, 0""")
    A.label(L + "_loop")
    A(f"s_lshl_b32 s32, s64, 13\ns_mov_b32 s27, 0\ns_cmp_eq_u32 s64, 0\ns_cbranch_scc1 {L}_get")
    A.label(L + "_w")
    A(f"""s_sleep 2
    buffer_load_dword v8, v5, s[40:43], s32 offen sc1
    s_add_u32 s27, s27, 1
    s_cmp_gt_u32 s27, {SPIN_MAX}
    s_cbranch_scc1 K3_end
    s_waitcnt vmcnt(0)
    v_cmp_eq_u32 vcc, -1, v8
    s_cbranch_vccnz {L}_w""")
    A.label(L + "_get")
    A(f"""buffer_load_dwordx4 v[16:19], v6, s[40:43], s32 offen sc1
    buffer_load_dwordx4 v[20:23], v6, s[40:43], s32 offen offset:1024 sc1""")
    exact_check(A, L + "_chk", 2, 16, 8, L + "_get", L + "_ok", "K3_end")
    A.label(L + "_ok")
    A(f"""buffer_store_dwordx4 v[16:19], v6, s[52:55], s32 offen sc1
    buffer_store_dwordx4 v[20:23], v6, s[52:55], s32 offen offset:1024 sc1
    s_lshl_b32 s28, s64, 8
    s_add_u32 s28, s28, 192
    s_waitcnt vmcnt(0)
    s_barrier
    s_cmp_lg_u32 s3, 0
    s_cbranch_scc1 {L}_nf""")
    flag_set(A, 56, 28, 8, 9)
    A.label(L + "_nf")
    A(f"s_add_u32 s64, s64, 1\ns_cmp_lt_u32 s64, 64\ns_cbranch_scc1 {L}_loop\ns_branch K3_end")

def team(A):
    A("s_getreg_b32 s35, hwreg(HW_REG_XCC_ID, 0, 4)\ns_add_u32 s35, s35, 1")
    srd(A, 60, 16, 0, 256)
    srd(A, 40, 18, G.MEMF_OFF, 64*G.MEMF_STRIDE)
    srd(A, 44, 18, G.PF_OFF, 64*G.PF_STRIDE)
    A(f"""
    v_mov_b32 v5, s35
    s_lshl_b32 s28, s21, 2
    v_mov_b32 v6, s28
    s_mov_b64 exec, 1
    buffer_store_dword v5, v6, s[60:63], 0 offen sc1
    s_mov_b64 exec, -1
    """)
    A("s_cmp_eq_u32 s21, 31\ns_cbranch_scc1 K3_w\ns_cmp_eq_u32 s21, 30\ns_cbranch_scc1 K3_f")
    A("s_cmp_ge_u32 s21, 16\ns_cbranch_scc1 K3_b\ns_mov_b32 s22, s21")
    a_cu(A)
    A.label("K3_b"); A.reset_state()
    A("s_sub_u32 s22, s21, 16")
    b_cu(A)
    A.label("K3_w"); A.reset_state()
    warm_cu(A)
    A.label("K3_f"); A.reset_state()
    fwd_cu(A)
```

```python
from asmlib import *
import gen as G
from gen import srd, lane_setup, tl, tl_dump, TLV, TLM
import kernels2 as K2, kernels3 as K3, kernels4 as K4

def kmain(A):
    A.label("main_kernel")
    A("""
    s_cmp_ge_u32 s2, 256
    s_cbranch_scc1 K3_end
    s_load_dwordx4 s[16:19], s[0:1], 104
    s_load_dwordx2 s[4:5], s[0:1], 0
    s_load_dwordx2 s[6:7], s[0:1], 96
    s_load_dwordx4 s[8:11], s[0:1], 72
    s_load_dwordx2 s[12:13], s[0:1], 88
    """)
    lane_setup(A)
    A("""v_lshlrev_b32 v4, 4, v1
    s_and_b32 s20, s2, 7
    s_lshr_b32 s21, s2, 3
    s_waitcnt lgkmcnt(0)
    s_cmp_lg_u32 s20, 0
    s_cbranch_scc1 KM_worker""")
    TLV[0] = 113
    tl(A, 63)
    K3.team(A)
    TLV[0] = 15
    A.label("KM_worker"); A.reset_state()
    A("""s_sub_u32 s20, s20, 1
    s_lshl_b32 s20, s20, 5
    s_add_u32 s20, s20, s21
    s_mul_i32 s22, s20, 9363
    s_lshr_b32 s22, s22, 16
    s_mul_i32 s23, s22, 7
    s_sub_u32 s23, s20, s23
    s_mov_b32 s21, s23""")
    tl(A, 0)
    K2.gemm1_body(A, "KG")
    A.label("KG_done"); A.reset_state()
    tl(A, 2)
    A("s_cmp_lt_u32 s22, 16\ns_cbranch_scc1 KM_t0")
    K2.wserve_body(A, "KW", "KM_end")
    A.label("KM_t0"); A.reset_state()
    A("s_and_b32 s28, s20, 3\ns_cmp_lg_u32 s28, 1\ns_cbranch_scc1 KM_tasks\ns_lshr_b32 s22, s20, 2\ns_barrier")
    K2.moe_body(A, "KE")
    A.label("KM_tasks"); A.reset_state()
    tl(A, 3)
    if TLM: A("s_mov_b32 s21, 4")
    K4.gemm2_srds(A)
    K4.xattn_srds(A)
    srd(A, 92, 18, G.FLG_OFF, G.FLG_SZ)
    A("v_lshlrev_b32 v4, 4, v1")
    A.label("KM_next"); A.reset_state()
    A("""s_mul_i32 s22, s20, 5958
    s_lshr_b32 s22, s22, 16
    s_mul_i32 s23, s22, 11
    s_sub_u32 s23, s20, s23
    s_barrier
    s_cmp_ge_u32 s23, 4
    s_cbranch_scc1 KM_g""")
    K4.xattn_task(A, "KX", "K3_end")
    A("s_branch KM_adv")
    A.label("KM_g"); A.reset_state()
    A("s_sub_u32 s23, s23, 4")
    K4.gemm2_task(A, "K4", "K3_end")
    A.label("KM_adv")
    if TLM:
        A("s_waitcnt vmcnt(0)"); tl(A, 0, 21); A("s_add_u32 s21, s21, 1")
    A("s_add_u32 s20, s20, 112\ns_cmp_lt_u32 s20, 704")
    A.flush()
    A("s_cbranch_scc1 KM_next")
    A.label("KM_end")
    tl(A, 15); tl_dump(A, 1)
    A.label("K3_end")
    A("s_endpgm")
```

```python
import sys
from asmlib import *

NAME = "parallel_sum__memory_aug_recurrent_mem_tr__moe_arch_mod__prompt"
XN_OFF, XN_SZ = 0x0000000, 2048*896
XNF_OFF = 0x0200000
R_OFF = 0x0400000
MOEP_OFF, MOEP_SZ = 0x0410000, 28*8*448*4
IDX_OFF = 0x0480000
MEMF_OFF, MEMF_STRIDE = 0x0500000, 8192
PF_OFF, PF_STRIDE = 0x0600000, 10240
WF_OFF, WF_UNIT = 0x0800000, 28*14*1024
KQF_OFF, SEG_SZ = 0x1800000, 16*28*1024
VOF_OFF = 0x3400000
PXF_OFF, PXF_SEG = 0x5000000, 40*1024
WZ_OFF, WZ_SEG = 0x5400000, 28*4*1024
MEMG_OFF = 0x5C00000
FLG_PROD, FLG_LN, FLG_EPOCH = 16640, 17664, 17920
FLG_OFF, FLG_SZ = 0x5D00000, 18*1024
SPIN_MAX = 1 << 22
W3_SZ = 448*8192
SCALE_LOG2E = 0x3db8aa3b
import struct
assert abs(struct.unpack('<f', struct.pack('<I', SCALE_LOG2E))[0] - 1.4426950408889634/16) < 1e-8

KARG = dict(x=0, mem0=8, wq=16, wk=24, wv=32, wo=40, wr=64, wg=72, wu=80, wd=88, out=96, dbg=104, ws=112)

def srd(A, d, base, off, size):
    if off == 0:
        A(f"s_mov_b32 s{d}, s{base}\ns_mov_b32 s{d+1}, s{base+1}")
    else:
        o = off if isinstance(off, str) else hex(off)
        A(f"s_add_u32 s{d}, s{base}, {o}\ns_addc_u32 s{d+1}, s{base+1}, 0")
    A(f"s_mov_b32 s{d+2}, {hex(size)}\ns_mov_b32 s{d+3}, 0x20000")

def lane_setup(A, vlane=1, vn=2, vg=3, swave=3):
    A(f"""
    v_and_b32 v{vlane}, 63, v0
    v_lshrrev_b32 v{vg}, 6, v0
    v_and_b32 v{vn}, 15, v0
    v_readfirstlane_b32 s{swave}, v{vg}
    v_bfe_u32 v{vg}, v0, 4, 2
    """)

def xreduce(A, op, x, t, steps=(16, 32)):
    for st in steps:
        if st == 8:
            A(f"{op}_dpp v{x}, v{x}, v{x} row_ror:8 row_mask:0xf bank_mask:0xf")
        else:
            A(f"v_mov_b32 v{t}, v{x}")
            A(f"v_permlane{st}_swap_b32 v{x}, v{t}")
            A(f"{op} v{x}, v{x}, v{t}")

import os
TLM = int(os.environ.get("TLM", "0"))
def tl(A, k, sreg=None):
    if not TLM: return
    if sreg is None: A(f"s_memrealtime s[100:101]\ns_waitcnt lgkmcnt(0)\nv_writelane_b32 v{TLV[0]}, s100, {k}")
    else: A(f"s_memrealtime s[100:101]\ns_mov_b32 m0, s{sreg}\ns_waitcnt lgkmcnt(0)\nv_writelane_b32 v{TLV[0]}, s100, m0")
TLV = [15]
def tls(A, k):
    if TLM: A(f"s_memrealtime s[100:101]\ns_waitcnt lgkmcnt(0)\ns_mov_b32 s{84+k}, s100")
def tl_dump(A, kern, wsreg=18):
    if not TLM: return
    A(f"""s_add_u32 s36, s{wsreg}, {hex(0x5F00000 + kern*0x40000)}
    s_addc_u32 s37, s{wsreg+1}, 0
    s_mov_b32 s38, 0x40000
    s_mov_b32 s39, 0x20000
    v_mbcnt_lo_u32_b32 v14, -1, 0
    v_mbcnt_hi_u32_b32 v14, -1, v14
    v_lshlrev_b32 v14, 2, v14
    s_lshl_b32 s100, s2, 10
    s_lshl_b32 s101, s3, 8
    s_add_u32 s100, s100, s101
    buffer_store_dword v{TLV[0]}, v14, s[36:39], s100 offen""")

def flag_wait(A, L, srdn, voff, soff, tmp, bail, sleep=6, cnt=27):
    A(f"s_mov_b32 s{cnt}, 0")
    A.label(L)
    A(f"""buffer_load_dword v{tmp}, v{voff}, s[{srdn}:{srdn+3}], s{soff} offen sc1
    s_add_u32 s{cnt}, s{cnt}, 1
    s_cmp_gt_u32 s{cnt}, {SPIN_MAX}
    s_cbranch_scc1 {bail}
    s_waitcnt vmcnt(0)
    v_cmp_ne_u32 vcc, s96, v{tmp}
    s_cbranch_vccz {L}_ok
    s_sleep {sleep}
    s_branch {L}""")
    A.label(L + "_ok")

def flag_set(A, srdn, soff, t0, t1):
    A(f"""v_mov_b32 v{t0}, s96
    v_mov_b32 v{t1}, 0
    s_mov_b64 exec, 1
    buffer_store_dword v{t0}, v{t1}, s[{srdn}:{srdn+3}], s{soff} offen sc1
    s_mov_b64 exec, -1""")

def wreg(i, u, n=4):
    idx = 56*i + 4*u
    if idx < 256:
        assert idx + n <= 256
        return a_(idx, n)
    return v(120 + idx - 256, n)

def prod_body(A, L):
    A(f"""s_and_b32 s24, s22, 15
    s_lshl_b32 s25, s24, 9
    s_mul_i32 s26, s22, {WF_UNIT}
    s_add_u32 s26, s26, {hex(WF_OFF)}""")
    srd(A, 36, 18, "s26", WF_UNIT)
    VO, RA = 216, 224
    A("""v_lshrrev_b32 v5, 5, v1
    v_and_b32 v6, 31, v1
    v_xor_b32 v6, v6, v5
    v_lshlrev_b32 v6, 4, v6
    v_lshl_add_u32 v6, v5, 13, v6""")
    for k in range(8):
        A(f"v_xor_b32 v{VO+k}, {2*k << 4}, v6\nv_add_u32 v{VO+k}, {(8*(k >> 1) + 2*(k & 1))*8192}, v{VO+k}")
    A("""v_and_b32 v5, 3, v2
    v_xor_b32 v5, v5, v3
    v_and_b32 v6, 12, v2
    v_or_b32 v5, v5, v6
    v_lshlrev_b32 v5, 4, v5
    v_lshl_add_u32 v5, v2, 9, v5""")
    for ks in range(8): A(f"v_xor_b32 v{RA+ks}, {ks << 6}, v5")
    def tile_dma(srdn, soff, lds):
        A(f"s_mov_b32 m0, {lds}")
        for k in range(8):
            A(f"buffer_load_dwordx4 v{VO+k}, s[{srdn}:{srdn+3}], s{soff} offen lds")
            if k < 7: A("s_add_u32 m0, m0, 1024")
    def areg(mt, ks): return v(8 + (mt*8 + ks)*4, 4)
    def acc(i, mt): return a_((i*4 + mt)*4, 4)
    def a_tiles(srdn):
        A(f"""s_lshl_b32 s27, s23, 19
        s_add_u32 s27, s27, s25
        s_lshr_b32 s28, s3, 1
        s_lshl_b32 s28, s28, 18
        s_add_u32 s27, s27, s28
        s_and_b32 s28, s3, 1
        s_lshl_b32 s28, s28, 15
        s_add_u32 s27, s27, s28
        s_lshl_b32 s29, s3, 13""")
        tile_dma(srdn, 27, "s29")
    def a_read():
        for mt in range(4):
            for ks in range(8):
                A(f"ds_read_b128 {areg(mt, ks)}, v{RA+ks} offset:{mt*8192}")
                if ks == 7: A("s_waitcnt lgkmcnt(7)" if mt < 3 else "s_waitcnt lgkmcnt(0)")
    def epilogue(i, scale, tmp=232):
        o = []
        for up in range(2):
            for ep in range(2):
                b = (i*4 + up*2 + ep)*4
                for r in range(4): o.append(f"v_accvgpr_read_b32 v{tmp+8+r}, a{b+r}")
                if scale:
                    for r in range(4): o.append(f"v_mul_f32 v{tmp+8+r}, s30, v{tmp+8+r}")
                o.append(f"v_cvt_pk_bf16_f32 v{tmp+up*4+ep*2}, v{tmp+8}, v{tmp+9}")
                o.append(f"v_cvt_pk_bf16_f32 v{tmp+up*4+ep*2+1}, v{tmp+10}, v{tmp+11}")
            o.append(f"s_add_u32 s28, s31, {(i*14 + up)*1024}\nbuffer_store_dwordx4 {v(tmp+up*4, 4)}, v4, s[36:39], s28 offen sc1")
        return o
    A(f"s_mul_i32 s31, s3, {7*14*1024}\ns_lshl_b32 s28, s23, 11\ns_add_u32 s31, s31, s28")
    A(f"s_cmp_ge_u32 s22, 16\ns_cbranch_scc1 {L}_type1")
    srd(A, 40, 76, 0, W3_SZ)
    srd(A, 44, 78, 0, W3_SZ)
    A(f"s_mov_b32 s30, {hex(SCALE_LOG2E)}\ns_lshl_b32 s32, s3, 15\ns_add_u32 s32, s32, 32768")
    a_tiles(40)
    def b_tile(i):
        A(f"""s_mul_i32 s27, s3, 7
        s_add_u32 s27, s27, {i}
        s_lshr_b32 s28, s27, 1
        s_and_b32 s27, s27, 1
        s_lshl_b32 s28, s28, 18
        s_lshl_b32 s27, s27, 15
        s_add_u32 s27, s27, s28
        s_add_u32 s27, s27, s25
        s_add_u32 s29, s32, {(i % 4)*8192}""")
        tile_dma(44, 27, "s29")
    for i in range(4): b_tile(i)
    tls(A, 1)
    A("s_waitcnt vmcnt(32)\ns_barrier")
    tls(A, 2)
    a_read()
    for ks in range(8): A(f"v_add_u32 v{RA+ks}, s32, v{RA+ks}")
    ops = [('b', i) for i in range(4)]
    BR = 136
    for i in range(7):
        after = ops[ops.index(('b', i)) + 1:]
        A(f"s_waitcnt vmcnt({sum(8 if k == 'b' else 2 for k, _ in after)})")
        for ks in range(8): A(f"ds_read_b128 {v(BR + ((i % 2)*8 + ks)*4, 4)}, v{RA+ks} offset:{(i % 4)*8192}")
        side = epilogue(i-1, True) if i else []
        for ks in range(8):
            A(f"s_waitcnt lgkmcnt({7-ks})")
            for mt in range(4):
                A(f"v_mfma_f32_16x16x32_bf16 {acc(i, mt)}, {areg(mt, ks)}, {v(BR + ((i % 2)*8 + ks)*4, 4)}, {acc(i, mt) if ks else '0'}")
                for _ in range(2):
                    if side and ks >= 1: A(side.pop(0))
        for z in side: A(z)
        if i: ops.append(('s', i-1))
        if i + 4 < 7: b_tile(i + 4); ops.append(('b', i + 4))
    for z in epilogue(6, True): A(z)
    A(f"s_branch {L}_done")
    A.label(L + "_type1"); A.reset_state()
    srd(A, 40, 80, 0, W3_SZ)
    A(f"s_mul_i32 s27, s24, {256*896}")
    srd(A, 44, 82, "s27", 256*896)
    a_tiles(40)
    SO, TR = 136, 144
    A("s_mul_i32 s28, s3, 448")
    for k in range(7):
        A(f"""v_add_u32 v5, s28, v1
        v_add_u32 v5, {k*64}, v5
        v_mul_u32_u24 v6, 37450, v5
        v_lshrrev_b32 v6, 21, v6
        v_mul_u32_u24 v7, 56, v6
        v_sub_u32 v5, v5, v7
        v_bfe_u32 v7, v6, 1, 2
        v_lshlrev_b32 v7, 1, v7
        v_xor_b32 v5, v5, v7
        v_lshlrev_b32 v5, 4, v5
        v_and_b32 v7, 19, v6
        v_bfe_u32 v160, v6, 2, 1
        v_lshl_or_b32 v7, v160, 3, v7
        v_bfe_u32 v160, v6, 3, 1
        v_lshl_or_b32 v7, v160, 2, v7
        v_mul_u32_u24 v7, 896, v7
        v_add_u32 v{SO+k}, v7, v5""")
    def chunk(ks):
        A(f"s_mul_i32 s29, s3, 7168\ns_add_u32 m0, s29, {32768 + (ks % 4)*28672}\ns_mov_b32 s27, {ks*32*896}")
        for k in range(7):
            A(f"buffer_load_dwordx4 v{SO+k}, s[44:47], s27 offen lds")
            if k < 6: A("s_add_u32 m0, m0, 1024")
    for ks in range(4): chunk(ks)
    A("""v_lshrrev_b32 v5, 2, v2
    v_and_b32 v6, 1, v3
    v_lshl_add_u32 v6, v6, 2, v5
    v_lshrrev_b32 v160, 1, v6
    v_lshrrev_b32 v7, 1, v3
    v_lshl_add_u32 v6, v7, 4, v6
    v_mul_u32_u24 v6, 896, v6
    v_and_b32 v7, 3, v2
    v_lshl_add_u32 v6, v7, 3, v6
    v_add_u32 v6, 32768, v6""")
    for i in range(7):
        A(f"""s_mul_i32 s27, s3, 7
        s_add_u32 s27, s27, {i}
        v_xor_b32 v5, s27, v160
        v_lshl_add_u32 v{TR+i}, v5, 5, v6
        v_add_u32 v{TR+7+i}, 57344, v{TR+i}""")
    tls(A, 1)
    A("s_waitcnt vmcnt(28)\ns_barrier")
    tls(A, 2)
    a_read()
    BR = 164
    for ks in range(8):
        A(f"s_waitcnt vmcnt({7*(min(ks + 2, 7) - ks) if ks else 21})\ns_barrier")
        if 1 <= ks <= 4: chunk(ks + 3)
        def rd(i):
            for z in range(2):
                A(f"ds_read_b64_tr_b16 {v(BR + 4*i + 2*z, 2)}, v{TR + 7*((ks % 4) // 2) + i} offset:{(ks % 2)*28672 + z*7168}")
        for i in range(7): rd(i)
        for i in range(7):
            A(f"s_waitcnt lgkmcnt({2*(6-i)})")
            for mt in range(4):
                A(f"v_mfma_f32_16x16x32_bf16 {acc(i, mt)}, {areg(mt, ks)}, {v(BR + 4*i, 4)}, {acc(i, mt) if ks else '0'}")
    for i in range(7):
        for z in epilogue(i, False): A(z)
    A.label(L + "_done")

def ln_body(A, L):
    srd(A, 36, 4, 0, XN_SZ)
    srd(A, 68, 78, 0, 896)
    srd(A, 72, 18, XN_OFF, XN_SZ)
    srd(A, 48, 18, XNF_OFF, XN_SZ)
    srd(A, 52, 18, R_OFF, 8192)
    srd(A, 64, 76, 0, 7168)
    A(f"""
    v_mul_u32_u24 v7, 896, v2
    v_lshl_add_u32 v7, v3, 4, v7
    v_lshlrev_b32 v5, 4, v3
    s_mul_i32 s24, s23, {16*896}
    """)
    X, W, F = 8, 64, 120
    for u in range(14): A(f"buffer_load_dwordx4 {v(X+4*u, 4)}, v7, s[36:39], s24 offen offset:{u*64}")
    for u in range(14): A(f"buffer_load_dwordx4 {v(W+4*u, 4)}, v5, s[68:71], 0 offen offset:{u*64}")
    A("v_mov_b32 v232, -1\nv_mov_b32 v233, -1\nv_mov_b32 v234, -1\nv_mov_b32 v235, -1")
    for k in range(4):
        A(f"s_lshl_b32 s25, s23, 10\ns_add_u32 s25, s25, {8192 + k*128*1024}")
        A(f"buffer_store_dwordx4 v[232:235], v4, s[40:43], s25 offen sc1")
    for k in range(5):
        A(f"s_lshl_b32 s25, s23, 10\ns_add_u32 s25, s25, {k*128*1024}")
        A(f"buffer_store_dwordx4 v[232:235], v4, s[44:47], s25 offen sc1")
    A(f"""s_cmp_lg_u32 s23, 0
    s_cbranch_scc1 {L}_nomem
    v_lshrrev_b32 v6, 1, v2
    v_mul_u32_u24 v6, 896, v6
    v_lshl_add_u32 v6, v3, 5, v6
    v_and_b32 v5, 1, v2
    v_cmp_eq_u32 vcc, 1, v5
    """)
    for t in range(7):
        A(f"buffer_load_dwordx4 {v(F+8*t, 4)}, v6, s[64:67], 0 offen offset:{t*128}")
        A(f"buffer_load_dwordx4 {v(F+8*t+4, 4)}, v6, s[64:67], 0 offen offset:{t*128+16}")
    A("s_waitcnt vmcnt(0)\ns_mov_b32 s27, 0xfffefffe")
    for t in range(7):
        for aa in range(4):
            A(f"v_cndmask_b32 v{F+56+4*t+aa}, v{F+8*t+2*aa}, v{F+8*t+2*aa+1}, vcc")
            A(f"v_pk_min_u16 v{F+56+4*t+aa}, v{F+56+4*t+aa}, s27")
        A(f"s_mov_b32 s25, {t*1024}\nbuffer_store_dwordx4 {v(F+56+4*t, 4)}, v4, s[40:43], s25 offen sc1")
    A("s_waitcnt vmcnt(0)")
    A.label(L + "_nomem")
    A("s_waitcnt vmcnt(23)")
    A("s_mov_b32 s26, 0xffff0000")
    for j in range(56):
        A(f"v_lshlrev_b32 v{F+2*j}, 16, v{X+j}\nv_and_b32 v{F+2*j+1}, s26, v{X+j}")
    inv = hex(struct.unpack('<I', struct.pack('<f', 1/448))[0])
    A(f"v_pk_add_f32 v[236:237], {v(F,2)}, {v(F+2,2)}\nv_pk_add_f32 v[238:239], {v(F+4,2)}, {v(F+6,2)}")
    for j in range(4, 56, 2):
        A(f"v_pk_add_f32 v[236:237], v[236:237], {v(F+2*j,2)}\nv_pk_add_f32 v[238:239], v[238:239], {v(F+2*j+2,2)}")
    A("v_pk_add_f32 v[236:237], v[236:237], v[238:239]\nv_add_f32 v236, v236, v237")
    xreduce(A, "v_add_f32", 236, 237)
    A(f"v_mul_f32 v236, {inv}, v236\nv_mov_b32 v237, v236")
    A("v_mov_b32 v240, 0\nv_mov_b32 v241, 0\nv_mov_b32 v242, 0\nv_mov_b32 v243, 0")
    for j in range(0, 56, 2):
        A(f"v_pk_add_f32 v[244:245], {v(F+2*j,2)}, v[236:237] neg_lo:[0,1] neg_hi:[0,1]")
        A(f"v_pk_add_f32 v[246:247], {v(F+2*j+2,2)}, v[236:237] neg_lo:[0,1] neg_hi:[0,1]")
        A(f"v_pk_fma_f32 v[240:241], v[244:245], v[244:245], v[240:241]")
        A(f"v_pk_fma_f32 v[242:243], v[246:247], v[246:247], v[242:243]")
    A("v_pk_add_f32 v[240:241], v[240:241], v[242:243]\nv_add_f32 v240, v240, v241")
    xreduce(A, "v_add_f32", 240, 241)
    A(f"""v_mul_f32 v240, {inv}, v240
    v_cvt_pk_bf16_f32 v236, v236, v240
    v_and_b32 v240, s26, v236
    v_lshlrev_b32 v236, 16, v236
    v_add_f32 v240, {hex(struct.unpack('<I', struct.pack('<f', 1e-5))[0])}, v240
    v_cvt_pk_bf16_f32 v240, v240, v240
    v_and_b32 v240, s26, v240
    v_sqrt_f32 v240, v240
    v_mov_b32 v237, v236
    v_cvt_pk_bf16_f32 v240, v240, v240
    v_and_b32 v240, s26, v240
    v_rcp_f32 v240, v240
    s_nop 0
    v_mov_b32 v241, v240
    s_mul_i32 s25, s23, {14*1024}""")
    for j in range(56):
        A(f"v_pk_add_f32 {v(F+2*j,2)}, {v(F+2*j,2)}, v[236:237] neg_lo:[0,1] neg_hi:[0,1]")
        A(f"v_cvt_pk_bf16_f32 v{X+j}, v{F+2*j}, v{F+2*j+1}")
        A(f"v_lshlrev_b32 v{F+2*j}, 16, v{X+j}\nv_and_b32 v{F+2*j+1}, s26, v{X+j}")
        A(f"v_pk_mul_f32 {v(F+2*j,2)}, {v(F+2*j,2)}, v[240:241]")
        A(f"v_cvt_pk_bf16_f32 v{X+j}, v{F+2*j}, v{F+2*j+1}")
        if j % 4 == 3:
            u = j // 4
            A(f"buffer_store_dwordx4 {v(X+4*u, 4)}, v4, s[48:51], s25 offen offset:{(u % 4)*1024} sc1")
            A(f"buffer_store_dwordx4 {v(X+4*u, 4)}, v7, s[72:75], s24 offen offset:{u*64} sc1")
            if u % 4 == 3: A("s_add_u32 s25, s25, 4096")
    A("s_waitcnt vmcnt(37)")
    A("v_mov_b32 v240, 0\nv_mov_b32 v241, 0\nv_mov_b32 v242, 0\nv_mov_b32 v243, 0")
    for j in range(56):
        t = 244 + 4*(j % 2)
        A(f"v_lshlrev_b32 v{t}, 16, v{X+j}\nv_and_b32 v{t+1}, s26, v{X+j}\nv_lshlrev_b32 v{t+2}, 16, v{W+j}\nv_and_b32 v{t+3}, s26, v{W+j}")
        A(f"v_pk_fma_f32 {v(240+2*(j%2),2)}, {v(t,2)}, {v(t+2,2)}, {v(240+2*(j%2),2)}")
    A("v_pk_add_f32 v[240:241], v[240:241], v[242:243]\nv_add_f32 v240, v240, v241")
    xreduce(A, "v_add_f32", 240, 241)
    A(f"""v_cvt_pk_bf16_f32 v240, v240, v240
    v_and_b32 v240, s26, v240
    v_lshlrev_b32 v241, 2, v2
    s_lshl_b32 s25, s23, 6
    s_mov_b64 exec, 0xffff
    buffer_store_dword v240, v241, s[52:55], s25 offen sc1
    s_mov_b64 exec, -1""")

KD = """
.section .rodata,"a"
.p2align 6
.amdhsa_kernel {name}
  .amdhsa_next_free_vgpr {nv}
  .amdhsa_next_free_sgpr 102
  .amdhsa_accum_offset 256
  .amdhsa_group_segment_fixed_size 0
  .amdhsa_kernarg_size 120
  .amdhsa_user_sgpr_count 2
  .amdhsa_user_sgpr_kernarg_segment_ptr 1
  .amdhsa_system_sgpr_workgroup_id_x 1
.end_amdhsa_kernel
"""

def build(kernels):
    out = []
    for name, fn, grid, lds in kernels:
        out.append(f"; @launch kernel={name} grid=({grid},1,1) block=(256,1,1) lds={lds}")
    out.append('.amdgcn_target "amdgcn-amd-amdhsa--gfx950"\n.text')
    for name, fn, grid, lds in kernels:
        A = Asm()
        fn(A)
        out.append(f".globl {name}\n.p2align 8\n.type {name},@function")
        out.append(A.text())
    for name, fn, grid, lds in kernels:
        out.append(KD.format(name=name, nv=256 if name in ('gemm2_kernel', 'xattn_kernel') else 512))
    return '\n'.join(out)

if __name__ == "__main__":
    import kmain
    ks = [("main_kernel", kmain.kmain, 256, 163840)]
    sys.stdout.write(build(ks))
```

```python
from asmlib import *
import gen as G
from gen import srd, lane_setup, xreduce, wreg, flag_set, flag_wait, tl, tl_dump
from kernels2 import tile_c, load_weights7, f2h
import os
SPIN_MAX = 1 << 22
NINF = "0xff800000"
STAMP = int(os.environ.get("STAMP", "0"))
HU_P_AT = int(os.environ.get("HU_P_AT", "1"))
HU_M_AT = int(os.environ.get("HU_M_AT", "0"))
A_DMA = int(os.environ.get("A_DMA", "0"))
DSP = int(os.environ.get("DSP", "3"))
DSPB = int(os.environ.get("DSPB", "4"))
NT = os.environ.get("NT", "")
DBG2_OFF = 0x5E00000
QP = "quad_perm:[1,0,3,2] row_mask:0xf bank_mask:0xf"

def stamp(A, k):
    if STAMP: A(f"{'s_memrealtime' if STAMP == 2 else 's_memtime'} s[{4+2*k}:{5+2*k}]")
def stamp_cnt(A, k):
    if STAMP: A(f"s_mov_b32 s{16+k}, s27")
def stamp_out(A, tmp, lds, nw):
    if not STAMP: return
    lab = f"STK{len(A.lines)}"
    A(f"s_waitcnt lgkmcnt(0)\ns_lshr_b32 s28, s64, 4\ns_cmp_lg_u32 s28, 1\ns_cbranch_scc1 {lab}\ns_cmp_ge_u32 s3, {nw}\ns_cbranch_scc1 {lab}")
    for k in range(6): A(f"v_mov_b32 v{tmp+k}, s{4+2*k}")
    A(f"v_mov_b32 v{tmp+6}, s16\nv_mov_b32 v{tmp+7}, s17")
    A(f"""s_lshl_b32 s28, s3, 4
    s_add_u32 s28, s28, s64
    s_lshl_b32 s28, s28, 5
    s_add_u32 s28, s28, {lds - 512}
    v_mov_b32 v{tmp+8}, s28
    ds_write_b128 v{tmp+8}, {v(tmp, 4)}
    ds_write_b128 v{tmp+8}, {v(tmp+4, 4)} offset:16""")
    A.label(lab)
def stamp_dump(A, lds):
    if not STAMP: return
    A(f"""s_lshl_b32 s28, s3, 9
    v_bfe_u32 v8, v4, 4, 4
    v_lshlrev_b32 v8, 5, v8
    v_add_u32 v9, s28, v8
    v_add_u32 v9, {lds}, v9
    v_min_u32 v9, {163840 - 32}, v9
    s_lshl_b32 s28, s3, 11
    s_add_u32 s28, s28, 512
    v_add_u32 v8, s28, v8
    s_waitcnt lgkmcnt(0)
    ds_read_b128 v[12:15], v9
    ds_read_b128 v[16:19], v9 offset:16
    s_lshl_b32 s28, s21, 13
    s_waitcnt lgkmcnt(0)
    buffer_store_dwordx4 v[12:15], v8, s[60:63], s28 offen
    buffer_store_dwordx4 v[16:19], v8, s[60:63], s28 offen offset:16""")

def team_flavor(A, bail):
    A(f"v_lshlrev_b32 v5, 2, v1\ns_mov_b32 s27, 0\ns_mov_b32 exec_hi, 0")
    L = bail + "_fl" + str(len(A.lines))
    A.label(L)
    A(f"""
    buffer_load_dword v6, v5, s[60:63], 0 offen sc1
    s_add_u32 s27, s27, 1
    s_cmp_gt_u32 s27, {SPIN_MAX}
    s_cbranch_scc1 {bail}
    s_waitcnt vmcnt(0)
    v_cmp_eq_u32 vcc, 0, v6
    s_cbranch_vccnz {L}
    v_cmp_ne_u32 vcc, s35, v6
    s_mov_b64 exec, -1
    s_cmp_lg_u64 vcc, 0
    s_cselect_b32 s65, 1, 0
    """)
    if STAMP: srd(A, 60, 18, DBG2_OFF, 32*4*64*32)

HUD = int(os.environ.get("HUD", "2"))
def hu_wait(A, L, srdn, voff, soff, hr, bail, HUD=HUD):
    ld = lambda k: f"buffer_load_dword v{hr[k]}, v{voff}, s[{srdn}:{srdn+3}], s{soff} offen sc1"
    A("s_mov_b32 s27, 0")
    for k in range(HUD - 1): A(ld(k))
    A.label(L)
    for k in range(HUD):
        A(ld((k + HUD - 1) % HUD))
        A(f"s_waitcnt vmcnt({HUD-1})\nv_cmp_eq_u32 vcc, -1, v{hr[k]}\ns_cbranch_vccz {L}_ok")
    A(f"s_add_u32 s27, s27, 1\ns_cmp_gt_u32 s27, {SPIN_MAX}\ns_cbranch_scc0 {L}\ns_branch {bail}")
    A.label(L + "_ok")

def frag_loads(A, n, reg0, srdn, voff, soffs):
    for t in range(n):
        A(f"buffer_load_dwordx4 {v(reg0+4*t, 4)}, v{voff}, s[{srdn}:{srdn+3}], s{soffs[t // 4]} offen offset:{(t % 4)*1024} sc1")

def exact_check(A, L, n, reg0, tmp, retry, back, bail):
    A.label(L); A.reset_state()
    A("s_waitcnt vmcnt(0)")
    tmp, t2 = tmp if isinstance(tmp, tuple) else (tmp, tmp + 1)
    A(f"v_pk_max_u16 v{tmp}, v{reg0}, v{reg0+1}")
    for r in range(reg0 + 2, reg0 + 4*n): A(f"v_pk_max_u16 v{tmp}, v{tmp}, v{r}")
    A(f"""v_lshlrev_b32 v{t2}, 16, v{tmp}
    v_max_u32 v{tmp}, v{tmp}, v{t2}
    v_cmp_le_u32 vcc, s26, v{tmp}
    s_cbranch_vccz {back}
    s_add_u32 s27, s27, 1
    s_cmp_gt_u32 s27, {SPIN_MAX}
    s_cbranch_scc1 {bail}
    s_branch {retry}""")

def dma_ops(n, srdn, sg, sl, fl=''):
    o = []
    for k in range(n):
        pre = ""
        if k == 0: pre = f"s_mov_b32 m0, s{sl}\n"
        elif k % 4 == 0:
            pre = "s_add_u32 m0, m0, 4096\n"
            if not isinstance(sg, tuple): pre = f"s_add_u32 s{sg}, s{sg}, 4096\n" + pre
        g = sg[k // 4] if isinstance(sg, tuple) else sg
        o.append(pre + f"buffer_load_dwordx4 v4, s[{srdn}:{srdn+3}], s{g} offen offset:{(k % 4)*1024}{fl} lds")
    return o

TL, SMX, MFLA = 0, 7168, 8192
MF, TA, XB = 8, 36, 64
VTOUCH = int(os.environ.get("VTOUCH", "1"))

def mem_fetch(A, base):
    A(f"s_mov_b32 s97, {base}")
    for z in dma_ops(7, 40, (32, 34), 97, " sc1"): A(z)
    A("s_waitcnt vmcnt(0)")

def a_xb_load(A):
    A(f"s_mul_i32 s28, s33, 28672\ns_add_u32 s28, s28, s94")
    for k in range(14):
        if k and k % 4 == 0: A("s_add_u32 s28, s28, 4096")
        A(f"buffer_load_dwordx4 {v(XB+4*k, 4)}, v4, s[52:55], s28 offen offset:{(k % 4)*1024}")

def a_loop(A, role, fl):
    L = f"K3a{role}f{fl}"
    sc = " sc1" if fl else ""
    if role == 1:
        A("s_mov_b32 s33, 0"); a_xb_load(A)
    A.label(L + "_loop"); A.reset_state()
    stamp(A, 0)
    A(f"""s_lshl_b32 s32, s64, 13
    s_add_u32 s34, s32, 4096
    s_add_u32 s33, s64, 1
    s_min_u32 s33, s33, 63""")
    zero = [f"v_mov_b32 v{r}, 0" for r in range(TA, TA + 28)]
    for z in zero: A(z)
    if VTOUCH: A(f"s_mul_i32 s30, s33, {G.SEG_SZ}\ns_add_u32 s30, s30, s93")
    if role == 0:
        A(f"v_mov_b32 v{XB+4}, {NINF}\nv_mov_b32 v{XB+5}, {NINF}\ns_mul_i32 s31, s64, {G.PF_STRIDE}")
        A(f"s_cmp_eq_u32 s64, 0\ns_cbranch_scc1 {L}_hu_ok")
        hu_wait(A, L + "_hu", 40, 111, 32, (108, 109, 107), "K3_end")
    if role == 3 and VTOUCH:
        A(f"s_lshl_b32 s28, s33, 8\ns_add_u32 s29, s28, 256\ns_waitcnt vmcnt(0)\nv_cmp_ne_u32 vcc, s96, v115\ns_cbranch_vccz {L}_wv_ok")
        flag_wait(A, L + "_wv", 56, 117, 28, 116, "K3_end", sleep=2)
    stamp(A, 1)
    A("s_mov_b32 s27, 0")
    A.label(L + "_go"); A.reset_state()
    if role == 0: mem_fetch(A, MFLA)
    A("s_barrier")
    for t in range(7): A(f"ds_read_b128 {v(MF+4*t, 4)}, v1 offset:{t*1024}")
    smf = lambda d, t, B: f"v_smfmac_f32_16x16x64_bf16 {v(d, 4)}, {v(MF+4*t, 4)}, {B}, v2"
    dm = []
    if VTOUCH and role != 1:
        for k in range(4 if role == 3 else 3):
            dm.append(f"buffer_load_dword v119, v118, s[48:51], s30 offen sc1\ns_add_u32 s30, s30, 4096")
        if role == 3: dm.append("buffer_load_dword v115, v117, s[56:59], s29 offen sc1")
    cnt = [0, 8]
    def emit(z, side=None):
        A(z); cnt[0] += 1
        if side: A(side)
        elif dm and cnt[0] >= cnt[1]: A(dm.pop(0)); cnt[1] = cnt[0] + 3
    for t in range(7):
        A(f"s_waitcnt lgkmcnt({6 - t})")
        if t == 0: stamp(A, 2)
        for d, i in ((TA+24, 6), (TA, 0), (TA+4, 1)): emit(smf(d, t, wreg(i, 2*t, 8)))
    def fin(x): return [f"v_add_f32 v{x}, v{x}, v{x+1}", f"v_add_f32 v{x+2}, v{x+2}, v{x+3}", f"v_cvt_pk_bf16_f32 v{x}, v{x}, v{x+2}"]
    def post_pair(p):
        x, y = TA + 8*p, TA + 8*p + 4
        return fin(x) + fin(y) + [f"ds_write2st64_b32 v5, v{x}, v{y} offset0:{2*p} offset1:{2*p+1}"]
    b = TA + 24
    chk = [f"v_add_f32 v{b}, v{b}, v{b+1}", f"v_add_f32 v{b+2}, v{b+2}, v{b+3}", f"v_cmp_u_f32 vcc, v{b}, v{b+2}",
           f"s_cbranch_vccnz {L}_slow\n{L}_back:", f"v_cvt_pk_bf16_f32 v{b}, v{b}, v{b+2}", f"ds_write_b32 v6, v{b}"]
    seq1 = [None]*4 + chk + post_pair(0)[:4]
    seq2 = post_pair(0)[4:] + [None]*2 + post_pair(1)
    for p, side in ((1, seq1), (2, seq2)):
        x, y = TA + 8*p, TA + 8*p + 4
        side = list(side)
        for t in range(7):
            for d, i in ((x, 2*p), (y, 2*p + 1)):
                emit(smf(d, t, wreg(i, 2*t, 8)), side.pop(0) if side else None)
    for z in post_pair(2): A(z)
    stamp(A, 3); stamp_cnt(A, 0)
    A("s_waitcnt lgkmcnt(0)\ns_barrier")
    stamp(A, 4)
    tr = lambda t: [f"ds_read_b64_tr_b16 {v(TA + 4*t + 2*z, 2)}, v0 offset:{t*1024 + z*32}" for z in range(2)]
    if role != 3:
        for t in range(7):
            for z in tr(t): A(z)
    if role == 1:
        D = MF
        for r in range(4): A(f"v_mov_b32 v{D+r}, 0")
        for t in range(7):
            A(f"s_waitcnt lgkmcnt({2*(6-t)})" + (" vmcnt(0)" if t == 0 else ""))
            A(f"v_smfmac_f32_16x16x64_bf16 {v(D, 4)}, {v(TA+4*t, 4)}, {v(XB+8*t, 8)}, v3")
        A(f"""v_permlane32_swap_b32 v{D}, v{D+1}
        v_permlane32_swap_b32 v{D+2}, v{D+3}
        v_add_f32 v{D}, v{D}, v{D+1}
        v_add_f32 v{D+2}, v{D+2}, v{D+3}
        ds_write2_b32 v7, v{D}, v{D+2} offset0:0 offset1:32
        s_waitcnt lgkmcnt(0)
        s_barrier
        s_barrier""")
        a_xb_load(A)
    if role == 3: A("s_barrier\ns_barrier")
    if role == 0:
        X, R, D = XB, XB + 4, XB + 8
        m, t1, l = XB+12, XB+13, XB+14
        for t in range(7):
            A(f"s_waitcnt lgkmcnt({2*(6-t)})")
            A(f"v_mfma_f32_16x16x32_bf16 {v(D, 4)}, {v(MF+4*t, 4)}, {v(TA+4*t, 4)}, {v(D, 4) if t else '0'}")
        def hu_pub(k):
            if HU_P_AT == k: A(f"buffer_store_dword v112, v110, s[40:43], s32 offen{sc}")
        hu_pub(0)
        A(f"v_add_f32_dpp v{R}, v{D+1}, v{D} row_ror:8 row_mask:0xf bank_mask:0x3")
        A(f"v_add_f32_dpp v{R+1}, v{D+3}, v{D+2} row_ror:8 row_mask:0xf bank_mask:0x3")
        A(f"v_max_f32 v{m}, v{R}, v{R+1}\ns_barrier")
        A(f"ds_read_b64 {v(X, 2)}, v7\nds_read_b64 {v(X+2, 2)}, v7 offset:512")
        hu_pub(1)
        A(f"""s_waitcnt lgkmcnt(1)
        v_max3_f32 v{m}, v{m}, v{X}, v{X+1}
        s_waitcnt lgkmcnt(0)
        v_max3_f32 v{m}, v{m}, v{X+2}, v{X+3}""")
        xreduce(A, "v_max_f32", m, t1, steps=(8, 16, 32))
        hu_pub(2)
        for r in (X, X+2, R): A(f"v_pk_add_f32 {v(r, 2)}, {v(r, 2)}, {v(m, 2)} op_sel_hi:[1,0] neg_lo:[0,1] neg_hi:[0,1]")
        for r in range(6): A(f"v_exp_f32 v{X+r}, v{X+r}")
        hu_pub(3)
        A(f"""v_pk_add_f32 {v(l, 2)}, {v(X, 2)}, {v(X+2, 2)}
        v_pk_add_f32 {v(l, 2)}, {v(l, 2)}, {v(R, 2)}
        v_add_f32 v{l}, v{l}, v{l+1}""")
        xreduce(A, "v_add_f32", l, t1, steps=(8, 16, 32))
        A(f"v_rcp_f32 v{l}, v{l}")
        for r in (X, X+2, R): A(f"v_pk_mul_f32 {v(r, 2)}, {v(r, 2)}, {v(l, 2)} op_sel_hi:[1,0] clamp")
        A(f"""v_cvt_pk_bf16_f32 v{X}, v{X}, v{X+1}
        v_cvt_pk_bf16_f32 v{X+1}, v{X+2}, v{X+3}
        v_cvt_pk_bf16_f32 v{R}, v{R}, v{R+1}
        buffer_store_dwordx2 {v(X, 2)}, v116, s[44:47], s31 offen{sc}
        buffer_store_dword v{R}, v117, s[44:47], s31 offen{sc}
        s_barrier""")
    stamp(A, 5)
    if role == 0: tl(A, 0, 64)
    if role == 3 and G.TLM: A("s_memtime s[100:101]\ns_min_u32 m0, s64, 59\ns_waitcnt lgkmcnt(0)\nv_writelane_b32 v113, s100, m0")
    stamp_out(A, TA + 8, MFLA + 7168, 4)
    A(f"s_add_u32 s64, s64, 1\ns_cmp_lt_u32 s64, 63")
    A.flush()
    A(f"s_cbranch_scc1 {L}_loop")
    stamp_dump(A, MFLA + 7168)
    if role != 1: tl_dump(A, 1)
    A("s_branch K3_end")
    exact_check(A, L + "_slow", 7, MF, (TA + 25, TA + 27), L + "_retry", L + "_back", "K3_end")
    A.label(L + "_retry"); A.reset_state()
    for z in zero: A(z)
    if VTOUCH: A(f"s_mul_i32 s30, s33, {G.SEG_SZ}\ns_add_u32 s30, s30, s93")
    A(f"s_barrier\ns_branch {L}_go")

def a_cu(A):
    A(f"s_mul_i32 s26, s22, {G.WF_UNIT}\ns_add_u32 s26, s26, {hex(G.WF_OFF)}")
    srd(A, 36, 18, "s26", G.WF_UNIT)
    srd(A, 48, 18, G.VOF_OFF, 64*G.SEG_SZ)
    srd(A, 52, 18, G.XNF_OFF, G.XN_SZ)
    srd(A, 56, 18, G.FLG_OFF, G.FLG_SZ)
    A(f"s_and_b32 s24, s3, 1\nv_min_u32 v5, 6, v1\nv_lshlrev_b32 v5, 2, v5\ns_mul_i32 s28, s22, 28\ns_add_u32 s28, s28, {G.FLG_PROD}")
    flag_wait(A, "K3a_wp", 56, 5, 28, 6, "K3_end", sleep=1)
    tl(A, 62)
    load_weights7(A, 36, 4, st=28)
    team_flavor(A, "K3_end")
    tile_c(A, 28, 0); tile_c(A, 30, 6)
    A(f"""
    v_lshrrev_b32 v8, 1, v3
    v_and_b32 v9, 1, v3
    v_lshlrev_b32 v7, 7, v8
    v_lshl_add_u32 v7, v2, 3, v7
    v_lshl_add_u32 v7, v9, 2, v7
    s_lshl_b32 s28, s28, 8
    v_add_u32 v5, s28, v7
    s_lshl_b32 s30, s30, 8
    v_add_u32 v6, s30, v7
    s_mov_b32 s64, 0
    s_mov_b32 s26, 0xffff0000
    v_lshrrev_b32 v10, 2, v2
    v_and_b32 v11, 3, v2
    v_lshrrev_b32 v12, 1, v10
    v_lshl_add_u32 v12, v8, 1, v12
    v_lshlrev_b32 v0, 8, v12
    v_and_b32 v12, 1, v11
    v_lshl_add_u32 v0, v12, 7, v0
    v_lshlrev_b32 v12, 3, v9
    v_and_b32 v13, 2, v11
    v_add_u32 v12, v12, v13
    v_and_b32 v13, 1, v10
    v_add_u32 v12, v12, v13
    v_lshl_add_u32 v0, v12, 3, v0
    s_sub_u32 s28, s3, 1
    s_and_b32 s28, s28, 1
    s_mul_i32 s94, s28, 14336
    s_lshl_b32 s28, s28, 9
    s_add_u32 s28, s28, {SMX}
    v_lshl_add_u32 v7, v9, 2, v8
    v_lshlrev_b32 v7, 6, v7
    v_lshl_add_u32 v7, v2, 2, v7
    v_add_u32 v7, s28, v7
    v_lshlrev_b32 v118, 6, v1
    s_mul_i32 s93, s22, 28672
    s_cmp_eq_u32 s3, 0
    s_cselect_b32 s28, 16384, 0
    s_add_u32 s93, s93, s28
    v_and_b32 v12, 7, v2
    v_lshrrev_b32 v13, 3, v2
    v_lshlrev_b32 v14, 6, v12
    v_lshl_add_u32 v14, v3, 4, v14
    v_lshl_add_u32 v14, v13, 3, v14
    v_add_u32 v14, {SMX}, v14
    s_cmp_eq_u32 s3, 0
    s_cselect_b64 vcc, -1, 0
    v_cndmask_b32 v7, v7, v14, vcc
    v_lshlrev_b32 v116, 5, v12
    v_lshl_add_u32 v116, v13, 4, v116
    v_lshl_add_u32 v116, v8, 8, v116
    v_lshl_add_u32 v116, v9, 3, v116
    s_lshl_b32 s28, s22, 9
    v_add_u32 v116, s28, v116
    v_lshlrev_b32 v117, 5, v12
    v_lshl_add_u32 v117, v8, 8, v117
    v_lshl_add_u32 v117, v9, 3, v117
    s_lshr_b32 s28, s22, 2
    s_lshl_b32 s28, s28, 9
    s_and_b32 s29, s22, 1
    s_lshl_b32 s29, s29, 4
    s_add_u32 s28, s28, s29
    s_bfe_u32 s29, s22, 0x10001
    s_lshl_b32 s29, s29, 2
    s_add_u32 s28, s28, s29
    s_add_u32 s28, s28, 8192
    v_add_u32 v117, s28, v117
    v_mov_b32 v14, 0x7ffffff0
    v_cmp_gt_u32 vcc, 8, v2
    v_cndmask_b32 v117, v14, v117, vcc
    v_min_u32 v13, 15, v1
    v_lshlrev_b32 v13, 2, v13
    v_add_u32 v13, 64, v13
    s_cmp_eq_u32 s3, 3
    s_cselect_b64 vcc, -1, 0
    v_cndmask_b32 v117, v117, v13, vcc
    v_min_u32 v111, 27, v1
    v_lshlrev_b32 v111, 2, v111
    v_add_u32 v111, 7168, v111
    v_mov_b32 v112, 0
    v_not_b32 v115, s96
    s_lshl_b32 s29, s22, 2
    s_add_u32 s29, s29, {8192 + 7296}
    v_mov_b32 v110, s29
    v_cmp_eq_u32 vcc, 0, v1
    v_cndmask_b32 v110, v14, v110, vcc
    v_mov_b32 v12, 0x4444
    v_mov_b32 v14, 0xeeee
    v_cmp_lt_u32 vcc, 7, v2
    v_cndmask_b32 v3, v12, v14, vcc
    v_and_b32 v2, 1, v2
    v_cmp_eq_u32 vcc, 1, v2
    v_cndmask_b32 v2, v12, v14, vcc
    v_add_u32 v1, {MFLA}, v4
    s_waitcnt vmcnt(0)""")
    if G.TLM: A("s_cmp_lg_u32 s3, 3\ns_cbranch_scc1 K3a_tl\ns_memrealtime s[100:101]\ns_waitcnt lgkmcnt(0)\nv_writelane_b32 v113, s100, 63\nK3a_tl:")
    A("""s_cmp_lg_u32 s65, 0
    s_cbranch_scc1 K3a_fl1""")
    for fl in (0, 1):
        if fl: A.label("K3a_fl1"); A.reset_state()
        A(f"s_cmp_eq_u32 s3, 0\ns_cbranch_scc1 K3a_r0f{fl}\ns_cmp_eq_u32 s3, 3\ns_cbranch_scc1 K3a_r3f{fl}")
        for role in (1, 0, 3):
            if role != 1: A.label(f"K3a_r{role}f{fl}"); A.reset_state()
            a_loop(A, role, fl)

WL, VOL, WZL, MFLB = 0, 114688, 147456, 155648
def wregB(i, u, n=4):
    idx = 56*i + 4*u
    if idx < 256:
        assert idx + n <= 256
        return a_(idx, n)
    return v(176 + idx - 256, n)
BA, LW, Z, PFR, PA, KEEP, KEEPM = 36, 68, 36, 116, 156, 100, 152

def b_loop(A, fl):
    L = f"K3bf{fl}"
    sc = " sc1" if fl else ""
    A.label(L + "_loop"); A.reset_state()
    zero = [f"v_mov_b32 v{r}, 0" for r in range(BA, BA + 32)]
    for z in zero: A(z)
    lw = lambda k: LW + (k % 4)*8
    def rdw(k):
        for z in range(2): A(f"ds_read_b128 {v(lw(k) + 4*z, 4)}, v5 offset:{(k // 7)*14336 + (2*(k % 7) + z)*1024}")
    for k in range(4): rdw(k)
    A(f"""s_lshl_b32 s32, s64, 13
    s_add_u32 s34, s32, 4096
    s_mul_i32 s30, s64, {G.SEG_SZ}
    s_lshl_b32 s31, s22, 15
    s_add_u32 s30, s30, s31
    s_lshl_b32 s31, s3, 13
    s_add_u32 s30, s30, s31
    s_add_u32 s29, s30, 4096
    s_add_u32 s31, s31, {VOL}
    s_lshl_b32 s28, s3, 10
    s_add_u32 s28, s28, s66
    v_add_u32 v174, s28, v4
    v_lshrrev_b32 v163, 2, v4
    v_min_u32 v163, 60, v163
    v_add_u32 v163, 64, v163""")
    stamp(A, 0)
    A(f"s_lshl_b32 s28, s64, 8\ns_add_u32 s33, s28, 256\ns_cmp_lg_u32 s3, 3\ns_cbranch_scc1 {L}_wv_ok\nv_cmp_ne_u32 vcc, s96, v0\ns_cbranch_vccz {L}_wv_ok")
    flag_wait(A, L + "_wv", 68, 163, 28, PFR, "K3_end", sleep=2)
    A(f"s_mov_b32 s27, 0\ns_waitcnt lgkmcnt(0)\ns_cmp_lg_u32 s3, 2\ns_cbranch_scc1 {L}_join\ns_cmp_eq_u32 s64, 0\ns_cbranch_scc1 {L}_hm_ok")
    hu_wait(A, L + "_hm", 40, 161, 32, (PFR, PFR+1, PFR+2), "K3_end")
    A("s_mov_b32 s27, 0")
    A.label(L + "_go"); A.reset_state()
    mem_fetch(A, MFLB)
    A.label(L + "_join")
    A("s_barrier")
    for t in range(7): A(f"ds_read_b128 {v(MF+4*t, 4)}, v162 offset:{t*1024}")
    sm0 = lambda i, t, B: f"v_smfmac_f32_16x16x64_bf16 {v(BA+4*i, 4)}, {v(MF+4*t, 4)}, {B}, v160"
    dm = dma_ops(8, 48, (30, 29), 31, ' sc1') + ["buffer_load_dword v0, v163, s[68:71], s33 offen sc1"]
    cnt = [0, 1]
    def sm(i, t, B):
        cnt[0] += 1
        z = sm0(i, t, B)
        if dm and cnt[0] >= cnt[1]: z += "\n" + dm.pop(0); cnt[1] = cnt[0] + DSPB
        return z
    for t in range(7):
        A(f"s_waitcnt lgkmcnt({6 - t})")
        if t == 0: stamp(A, 1)
        A(sm(0, t, wregB(0, 2*t, 8)))
    for t in range(7):
        A(sm(1, t, wregB(1, 2*t, 8)))
        if t == 3: A(f"v_add_f32 v{BA}, v{BA}, v{BA+1}")
        if t == 4: A(f"v_add_f32 v{BA+2}, v{BA+2}, v{BA+3}")
        if t == 5: A(f"v_cmp_u_f32 vcc, v{BA}, v{BA+2}")
        if t == 6: A(f"s_cbranch_vccnz {L}_slowm\n{L}_backm:")
    stamp_cnt(A, 0)
    for k in range(14):
        A(f"s_waitcnt lgkmcnt({2*min(3, 13-k)})")
        A(sm(6 + k // 7, k % 7, v(lw(k), 8)))
        i = 2 + k // 7
        A(sm(i, k % 7, wregB(i, 2*(k % 7), 8)))
        if k + 4 < 14: rdw(k + 4)
    def fin(i):
        x = BA + 4*i
        o = [] if i == 0 else [f"v_add_f32 v{x}, v{x}, v{x+1}", f"v_add_f32 v{x+2}, v{x+2}, v{x+3}"]
        return o + [f"v_cvt_pk_bf16_f32 v{164+i}, v{x}, v{x+2}"]
    side = fin(0) + fin(1) + fin(2) + fin(6) + fin(3) + [f"ds_write_b128 v174, v[164:167]"]
    for t in range(7):
        for i in (4, 5):
            A(sm(i, t, wregB(i, 2*t, 8)))
            if side: A(side.pop(0))
    for z in side + fin(7) + fin(4) + fin(5) + [f"ds_write_b128 v174, v[168:171] offset:4096"]: A(z)
    stamp(A, 2)
    A(f"s_waitcnt vmcnt(0) lgkmcnt(0)\ns_barrier\ns_cmp_ge_u32 s3, 2\ns_cbranch_scc1 {L}_next")
    A("s_lshl_b32 s28, s24, 12\ns_add_u32 s28, s28, s66\nv_add_u32 v163, s28, v4")
    for f in range(16):
        A(f"ds_read_b128 {v(Z + 4*f, 4)}, v6 offset:{f*1024}")
        if f == 11: A("s_waitcnt lgkmcnt(4)")
    for f in range(4): A(f"ds_read_b128 {v(Z + 64 + 4*f, 4)}, v163 offset:{f*1024}")
    for r in range(4): A(f"v_mov_b32 v{PA+r}, 0")
    A(f"""s_mul_i32 s28, s64, {G.PF_STRIDE}
    s_add_u32 s29, s28, 4096
    s_add_u32 s30, s28, 8192
    s_add_u32 s34, s32, 8192
    s_waitcnt lgkmcnt(0)""")
    stamp(A, 3)
    hu_wait(A, L + "_hp", 40, 172, 32, (PFR, PFR+1, PFR+2, PFR+3), "K3_end", HUD=int(os.environ.get("HUDP", "2")))
    stamp(A, 2)
    A("s_mov_b32 s27, 0")
    A.label(L + "_gop"); A.reset_state()
    order = [8, 9, 0, 1, 2, 3, 4, 5, 6, 7]
    for k, t in enumerate(order):
        A(f"buffer_load_dwordx4 {v(PFR+4*t, 4)}, v4, s[44:47], s{28 + t // 4} offen offset:{(t % 4)*1024} sc1")
        if HU_M_AT < 0 and k == 10 + HU_M_AT: A(f"buffer_store_dword v175, v173, s[40:43], s32 offen{sc}")
    for k, u in enumerate(order):
        A(f"s_waitcnt vmcnt({9-k + (1 if (k > HU_M_AT + 1 if HU_M_AT >= 0 else k <= 10 + HU_M_AT) else 0)})")
        if k == 0: stamp(A, 4)
        A(f"v_smfmac_f32_16x16x64_bf16 {v(PA, 4)}, {v(PFR+4*u, 4)}, {v(Z+8*u, 8)}, v160")
        if k == 0: A(f"v_max_u32 v164, v{PFR+32}, v{PFR+33}")
        if k == 1: A(f"v_max3_u32 v164, v164, v{PFR+36}, v{PFR+37}\nv_cmp_eq_u32 vcc, -1, v164\ns_cbranch_vccnz {L}_early")
        if HU_M_AT >= 0 and k == HU_M_AT + 1: A(f"buffer_store_dword v175, v173, s[40:43], s32 offen{sc}")
    A(f"""v_add_f32 v{PA}, v{PA}, v{PA+1}
    v_add_f32 v{PA+2}, v{PA+2}, v{PA+3}
    v_cmp_u_f32 vcc, v{PA}, v{PA+2}
    v_cvt_pk_bf16_f32 v{PA}, v{PA}, v{PA+2}
    s_cbranch_vccnz {L}_slowp""")
    A.label(L + "_backp")
    A(f"""buffer_store_short v{PA}, v7, s[40:43], s34 offen{sc}
    buffer_store_short_d16_hi v{PA}, v7, s[40:43], s34 offen offset:32{sc}""")
    stamp_cnt(A, 1)
    A.label(L + "_next")
    stamp(A, 5)
    tl(A, 0, 64)
    stamp_out(A, 116, MFLB + 7168, 2)
    A(f"s_add_u32 s64, s64, 1\ns_cmp_lt_u32 s64, 63")
    A.flush()
    A(f"s_cbranch_scc1 {L}_loop")
    A.label(L + "_exit"); A.reset_state()
    stamp_dump(A, MFLB + 7168)
    tl_dump(A, 1)
    A("s_branch K3_end")
    exact_check(A, L + "_slowm", 7, MF, 164, L + "_retrym", L + "_backm", "K3_end")
    A.label(L + "_retrym"); A.reset_state()
    for z in zero[:8]: A(z)
    A(f"s_barrier\ns_cmp_lg_u32 s3, 2\ns_cbranch_scc1 {L}_join\ns_branch {L}_go")
    exact_check(A, L + "_slowp", 10, PFR, 164, L + "_retryp", L + "_nanp", "K3_end")
    A.label(L + "_nanp"); A.reset_state()
    A(f"v_pk_min_u16 v{PA}, v{PA}, s25\ns_branch {L}_backp")
    A.label(L + "_early"); A.reset_state()
    A(f"s_add_u32 s27, s27, 1\ns_cmp_gt_u32 s27, {SPIN_MAX}\ns_cbranch_scc1 K3_end\ns_waitcnt vmcnt(0)\ns_nop 7")
    A.label(L + "_retryp"); A.reset_state()
    for r in range(4): A(f"v_mov_b32 v{PA+r}, 0")
    A(f"s_nop 1\ns_branch {L}_gop")

def b_cu(A):
    srd(A, 36, 18, G.WF_OFF + 16*G.WF_UNIT, 16*G.WF_UNIT)
    srd(A, 48, 18, G.VOF_OFF, 64*G.SEG_SZ)
    srd(A, 68, 18, G.FLG_OFF, G.FLG_SZ)
    A(f"v_min_u32 v5, 55, v1\nv_lshlrev_b32 v5, 2, v5\ns_mov_b32 s28, {G.FLG_PROD + 448}\ns_mov_b32 s29, {G.FLG_PROD + 448 + 224}")
    flag_wait(A, "K3b_wp0", 68, 5, 28, 6, "K3_end", sleep=1)
    flag_wait(A, "K3b_wp1", 68, 5, 29, 6, "K3_end", sleep=1)
    for i in range(8):
        ct, q = i // 4, i % 4
        A(f"""s_lshl_b32 s28, s3, 2
        s_add_u32 s28, s28, {q}
        s_mul_i32 s28, s28, {G.WF_UNIT}
        s_mul_i32 s29, s22, 28672
        s_add_u32 s28, s28, s29
        s_add_u32 s28, s28, {ct*14336}""")
        if i >= 6:
            A(f"s_mul_i32 s29, s3, 28672\ns_add_u32 s29, s29, {WL + (i-6)*14336}")
            for z in dma_ops(14, 36, 28, 29): A(z)
        else:
            for u in range(14):
                A(f"buffer_load_dwordx4 {wregB(i, u)}, v4, s[36:39], s28 offen offset:{(u % 4)*1024}")
                if u % 4 == 3: A("s_add_u32 s28, s28, 4096")
    team_flavor(A, "K3_end")
    A(f"""
    s_mul_i32 s28, s3, 28672
    v_add_u32 v5, s28, v4
    v_and_b32 v9, 1, v2
    v_cmp_eq_u32 vcc, 1, v9
    v_mov_b32 v160, 0x4444
    v_mov_b32 v161, 0xeeee
    v_cndmask_b32 v160, v160, v161, vcc
    s_mov_b32 s25, 0xfffefffe
    s_mov_b32 s26, 0xffff0000
    s_mov_b32 s64, 0
    s_mov_b32 s66, {WZL}
    s_and_b32 s24, s3, 1
    s_lshl_b32 s28, s24, 14
    s_add_u32 s28, s28, {VOL}
    v_add_u32 v6, s28, v4
    v_bfe_u32 v8, v2, 1, 1
    v_lshl_add_u32 v8, v3, 2, v8
    v_lshlrev_b32 v7, 4, v8
    v_lshrrev_b32 v8, 2, v2
    v_lshl_add_u32 v7, v8, 2, v7
    v_lshl_add_u32 v7, v9, 1, v7
    s_lshl_b32 s28, s22, 1
    s_add_u32 s28, s28, s24
    s_lshl_b32 s67, s28, 12
    s_lshl_b32 s29, s28, 8
    v_add_u32 v7, s29, v7
    v_min_u32 v161, 27, v1
    v_lshlrev_b32 v161, 2, v161
    v_add_u32 v161, 7168, v161
    v_min_u32 v172, 15, v1
    v_lshlrev_b32 v172, 2, v172
    v_add_u32 v172, {8192 + 7296}, v172
    s_lshl_b32 s28, s28, 2
    s_add_u32 s28, s28, {8192 + 7168}
    v_mov_b32 v173, s28
    v_mov_b32 v8, 0x7ffffff0
    v_cmp_eq_u32 vcc, 0, v1
    v_cndmask_b32 v173, v8, v173, vcc
    v_mov_b32 v175, 0
    v_not_b32 v0, s96
    v_add_u32 v162, {MFLB}, v4
    s_mov_b32 s97, {MFLB}
    s_mul_i32 s98, s24, 3072
    s_waitcnt vmcnt(0)
    """)
    G.TLV[0] = 3
    tl(A, 63)
    A("s_cmp_lg_u32 s65, 0\ns_cbranch_scc1 K3bf1_loop")
    b_loop(A, 0)
    b_loop(A, 1)

def warm_cu(A):
    L = "K3w"
    srd(A, 52, 18, G.XNF_OFF, G.XN_SZ)
    A(f"""v_min_u32 v5, 27, v1
    v_lshlrev_b32 v5, 2, v5
    v_add_u32 v5, 7168, v5
    s_lshl_b32 s28, s3, 10
    v_add_u32 v6, s28, v4
    s_mov_b32 s64, 0""")
    def touch(sreg):
        A(f"s_lshl_b32 s28, s{sreg}, 13\ns_add_u32 s28, s28, 8192\ns_mul_i32 s29, s{sreg}, {G.PF_STRIDE}\ns_mul_i32 s30, s{sreg}, 28672\ns_add_u32 s30, s30, {1*28672}")
        for k in range(2): A(f"buffer_load_dwordx4 v[16:19], v6, s[40:43], s28 offen sc1\ns_add_u32 s28, s28, 4096")
        for k in range(3): A(f"buffer_load_dwordx4 v[16:19], v6, s[44:47], s29 offen sc1\ns_add_u32 s29, s29, 4096")
        for k in range(7): A(f"buffer_load_dwordx4 v[16:19], v6, s[52:55], s30 offen sc1\ns_add_u32 s30, s30, 4096")
    for k in range(3):
        A(f"s_mov_b32 s33, {k}"); touch(33)
    A.label(L + "_loop")
    A(f"s_add_u32 s64, s64, 1\ns_cmp_ge_u32 s64, 61\ns_cbranch_scc1 K3_end\ns_lshl_b32 s32, s64, 13\ns_mov_b32 s27, 0")
    A.label(L + "_w")
    A(f"""s_sleep 4
    buffer_load_dword v8, v5, s[40:43], s32 offen sc1
    s_add_u32 s27, s27, 1
    s_cmp_gt_u32 s27, {SPIN_MAX}
    s_cbranch_scc1 K3_end
    s_waitcnt vmcnt(0)
    v_cmp_eq_u32 vcc, -1, v8
    s_cbranch_vccnz {L}_w
    s_add_u32 s33, s64, 2""")
    touch(33)
    A(f"s_branch {L}_loop")

def fwd_cu(A):
    L = "K3f"
    srd(A, 52, 18, G.MEMG_OFF, 64*8192)
    srd(A, 56, 18, G.FLG_OFF, G.FLG_SZ)
    A(f"""v_min_u32 v5, 27, v1
    v_lshlrev_b32 v5, 2, v5
    v_add_u32 v5, 7168, v5
    s_lshl_b32 s28, s3, 11
    s_min_u32 s28, s28, 5120
    v_add_u32 v6, s28, v4
    s_mov_b32 s26, 0xffff0000
    s_mov_b32 s64, 0""")
    A.label(L + "_loop")
    A(f"s_lshl_b32 s32, s64, 13\ns_mov_b32 s27, 0\ns_cmp_eq_u32 s64, 0\ns_cbranch_scc1 {L}_get")
    A.label(L + "_w")
    A(f"""s_sleep 2
    buffer_load_dword v8, v5, s[40:43], s32 offen sc1
    s_add_u32 s27, s27, 1
    s_cmp_gt_u32 s27, {SPIN_MAX}
    s_cbranch_scc1 K3_end
    s_waitcnt vmcnt(0)
    v_cmp_eq_u32 vcc, -1, v8
    s_cbranch_vccnz {L}_w""")
    A.label(L + "_get")
    A(f"""buffer_load_dwordx4 v[16:19], v6, s[40:43], s32 offen sc1
    buffer_load_dwordx4 v[20:23], v6, s[40:43], s32 offen offset:1024 sc1""")
    exact_check(A, L + "_chk", 2, 16, 8, L + "_get", L + "_ok", "K3_end")
    A.label(L + "_ok")
    A(f"""buffer_store_dwordx4 v[16:19], v6, s[52:55], s32 offen sc1
    buffer_store_dwordx4 v[20:23], v6, s[52:55], s32 offen offset:1024 sc1
    s_lshl_b32 s28, s64, 8
    s_add_u32 s28, s28, 192
    s_waitcnt vmcnt(0)
    s_barrier
    s_cmp_lg_u32 s3, 0
    s_cbranch_scc1 {L}_nf""")
    flag_set(A, 56, 28, 8, 9)
    A.label(L + "_nf")
    A(f"s_add_u32 s64, s64, 1\ns_cmp_lt_u32 s64, 64\ns_cbranch_scc1 {L}_loop\ns_branch K3_end")

def team(A):
    A("s_getreg_b32 s35, hwreg(HW_REG_XCC_ID, 0, 4)\ns_add_u32 s35, s35, 1")
    srd(A, 60, 16, 0, 256)
    srd(A, 40, 18, G.MEMF_OFF, 64*G.MEMF_STRIDE)
    srd(A, 44, 18, G.PF_OFF, 64*G.PF_STRIDE)
    A("s_lshl_b32 s23, s21, 2\ns_add_u32 s23, s23, s3")
    G.ln_body(A, "KL")
    srd(A, 56, 18, G.FLG_OFF, G.FLG_SZ)
    A(f"""s_waitcnt vmcnt(0)
    s_barrier
    s_lshl_b32 s28, s21, 2
    s_add_u32 s29, s28, {G.FLG_LN}
    v_mov_b32 v5, s35
    v_mov_b32 v6, s28
    v_mov_b32 v7, s96
    v_mov_b32 v8, s29
    s_mov_b64 exec, 1
    buffer_store_dword v5, v6, s[60:63], 0 offen sc1
    buffer_store_dword v7, v8, s[56:59], 0 offen sc1
    s_mov_b64 exec, -1
    """)
    if G.TLM: A("v_writelane_b32 v113, s84, 63"); tl(A, 61)
    A("s_cmp_eq_u32 s21, 31\ns_cbranch_scc1 K3_w\ns_cmp_eq_u32 s21, 30\ns_cbranch_scc1 K3_f")
    A("s_cmp_ge_u32 s21, 16\ns_cbranch_scc1 K3_b\ns_mov_b32 s22, s21")
    a_cu(A)
    A.label("K3_b"); A.reset_state()
    A("s_sub_u32 s22, s21, 16")
    b_cu(A)
    A.label("K3_w"); A.reset_state()
    warm_cu(A)
    A.label("K3_f"); A.reset_state()
    fwd_cu(A)
```

```python
import sys
from asmlib import *

NAME = "parallel_sum__memory_aug_recurrent_mem_tr__moe_arch_mod__prompt"
XN_OFF, XN_SZ = 0x0000000, 2048*896
XNF_OFF = 0x0200000
R_OFF = 0x0400000
MOEP_OFF, MOEP_SZ = 0x0410000, 28*8*448*4
IDX_OFF = 0x0480000
MEMF_OFF, MEMF_STRIDE = 0x0500000, 8192
PF_OFF, PF_STRIDE = 0x0600000, 10240
WF_OFF, WF_UNIT = 0x0800000, 28*14*1024
KQF_OFF, SEG_SZ = 0x1800000, 16*28*1024
VOF_OFF = 0x3400000
PXF_OFF, PXF_SEG = 0x5000000, 40*1024
WZ_OFF, WZ_SEG = 0x5400000, 28*4*1024
MEMG_OFF = 0x5C00000
FLG_PROD, FLG_LN, FLG_EPOCH = 16640, 17664, 17920
FLG_OFF, FLG_SZ = 0x5D00000, 18*1024
SPIN_MAX = 1 << 22
W3_SZ = 448*8192
SCALE_LOG2E = 0x3db8aa3b
import struct
assert abs(struct.unpack('<f', struct.pack('<I', SCALE_LOG2E))[0] - 1.4426950408889634/16) < 1e-8

KARG = dict(x=0, mem0=8, wq=16, wk=24, wv=32, wo=40, wr=64, wg=72, wu=80, wd=88, out=96, dbg=104, ws=112)

def srd(A, d, base, off, size):
    if off == 0:
        A(f"s_mov_b32 s{d}, s{base}\ns_mov_b32 s{d+1}, s{base+1}")
    else:
        o = off if isinstance(off, str) else hex(off)
        A(f"s_add_u32 s{d}, s{base}, {o}\ns_addc_u32 s{d+1}, s{base+1}, 0")
    A(f"s_mov_b32 s{d+2}, {hex(size)}\ns_mov_b32 s{d+3}, 0x20000")

def lane_setup(A, vlane=1, vn=2, vg=3, swave=3):
    A(f"""
    v_and_b32 v{vlane}, 63, v0
    v_lshrrev_b32 v{vg}, 6, v0
    v_and_b32 v{vn}, 15, v0
    v_readfirstlane_b32 s{swave}, v{vg}
    v_bfe_u32 v{vg}, v0, 4, 2
    """)

def xreduce(A, op, x, t, steps=(16, 32)):
    for st in steps:
        if st == 8:
            A(f"{op}_dpp v{x}, v{x}, v{x} row_ror:8 row_mask:0xf bank_mask:0xf")
        else:
            A(f"v_mov_b32 v{t}, v{x}")
            A(f"v_permlane{st}_swap_b32 v{x}, v{t}")
            A(f"{op} v{x}, v{x}, v{t}")

import os
TLM = int(os.environ.get("TLM", "0"))
def tl(A, k, sreg=None):
    if not TLM: return
    if sreg is None: A(f"s_memrealtime s[100:101]\ns_waitcnt lgkmcnt(0)\nv_writelane_b32 v{TLV[0]}, s100, {k}")
    else: A(f"s_memrealtime s[100:101]\ns_mov_b32 m0, s{sreg}\ns_waitcnt lgkmcnt(0)\nv_writelane_b32 v{TLV[0]}, s100, m0")
TLV = [15]
def tls(A, k):
    if TLM: A(f"s_memrealtime s[100:101]\ns_waitcnt lgkmcnt(0)\ns_mov_b32 s{84+k}, s100")
def tl_dump(A, kern, wsreg=18):
    if not TLM: return
    A(f"""s_add_u32 s36, s{wsreg}, {hex(0x5F00000 + kern*0x40000)}
    s_addc_u32 s37, s{wsreg+1}, 0
    s_mov_b32 s38, 0x40000
    s_mov_b32 s39, 0x20000
    v_mbcnt_lo_u32_b32 v14, -1, 0
    v_mbcnt_hi_u32_b32 v14, -1, v14
    v_lshlrev_b32 v14, 2, v14
    s_lshl_b32 s100, s2, 10
    s_lshl_b32 s101, s3, 8
    s_add_u32 s100, s100, s101
    buffer_store_dword v{TLV[0]}, v14, s[36:39], s100 offen""")

def flag_wait(A, L, srdn, voff, soff, tmp, bail, sleep=6, cnt=27):
    A(f"s_mov_b32 s{cnt}, 0")
    A.label(L)
    A(f"""buffer_load_dword v{tmp}, v{voff}, s[{srdn}:{srdn+3}], s{soff} offen sc1
    s_add_u32 s{cnt}, s{cnt}, 1
    s_cmp_gt_u32 s{cnt}, {SPIN_MAX}
    s_cbranch_scc1 {bail}
    s_waitcnt vmcnt(0)
    v_cmp_ne_u32 vcc, s96, v{tmp}
    s_cbranch_vccz {L}_ok
    s_sleep {min(127, sleep*int(os.environ.get('SLP', '1')))}
    s_branch {L}""")
    A.label(L + "_ok")

def flag_set(A, srdn, soff, t0, t1):
    A(f"""v_mov_b32 v{t0}, s96
    v_mov_b32 v{t1}, 0
    s_mov_b64 exec, 1
    buffer_store_dword v{t0}, v{t1}, s[{srdn}:{srdn+3}], s{soff} offen sc1
    s_mov_b64 exec, -1""")

def wreg(i, u, n=4):
    idx = 56*i + 4*u
    if idx < 256:
        assert idx + n <= 256
        return a_(idx, n)
    return v(120 + idx - 256, n)

def prod_body(A, L):
    A(f"""s_and_b32 s24, s22, 15
    s_lshl_b32 s25, s24, 9
    s_mul_i32 s26, s22, {WF_UNIT}
    s_add_u32 s26, s26, {hex(WF_OFF)}""")
    srd(A, 36, 18, "s26", WF_UNIT)
    VO, RA = 216, 224
    A("""v_lshrrev_b32 v5, 5, v1
    v_and_b32 v6, 31, v1
    v_xor_b32 v6, v6, v5
    v_lshlrev_b32 v6, 4, v6
    v_lshl_add_u32 v6, v5, 13, v6""")
    for k in range(8):
        A(f"v_xor_b32 v{VO+k}, {2*k << 4}, v6\nv_add_u32 v{VO+k}, {(8*(k >> 1) + 2*(k & 1))*8192}, v{VO+k}")
    A("""v_and_b32 v5, 3, v2
    v_xor_b32 v5, v5, v3
    v_and_b32 v6, 12, v2
    v_or_b32 v5, v5, v6
    v_lshlrev_b32 v5, 4, v5
    v_lshl_add_u32 v5, v2, 9, v5""")
    for ks in range(8): A(f"v_xor_b32 v{RA+ks}, {ks << 6}, v5")
    def tile_dma(srdn, soff, lds):
        A(f"s_mov_b32 m0, {lds}")
        for k in range(8):
            A(f"buffer_load_dwordx4 v{VO+k}, s[{srdn}:{srdn+3}], s{soff} offen lds")
            if k < 7: A("s_add_u32 m0, m0, 1024")
    def areg(mt, ks): return v(8 + (mt*8 + ks)*4, 4)
    def acc(i, mt): return a_((i*4 + mt)*4, 4)
    def a_tiles(srdn):
        A(f"""s_lshl_b32 s27, s23, 19
        s_add_u32 s27, s27, s25
        s_lshr_b32 s28, s3, 1
        s_lshl_b32 s28, s28, 18
        s_add_u32 s27, s27, s28
        s_and_b32 s28, s3, 1
        s_lshl_b32 s28, s28, 15
        s_add_u32 s27, s27, s28
        s_lshl_b32 s29, s3, 13""")
        tile_dma(srdn, 27, "s29")
    def a_read():
        for mt in range(4):
            for ks in range(8):
                A(f"ds_read_b128 {areg(mt, ks)}, v{RA+ks} offset:{mt*8192}")
                if ks == 7: A("s_waitcnt lgkmcnt(7)" if mt < 3 else "s_waitcnt lgkmcnt(0)")
    def epilogue(i, scale, tmp=232):
        o = []
        for up in range(2):
            for ep in range(2):
                b = (i*4 + up*2 + ep)*4
                for r in range(4): o.append(f"v_accvgpr_read_b32 v{tmp+8+r}, a{b+r}")
                if scale:
                    for r in range(4): o.append(f"v_mul_f32 v{tmp+8+r}, s30, v{tmp+8+r}")
                o.append(f"v_cvt_pk_bf16_f32 v{tmp+up*4+ep*2}, v{tmp+8}, v{tmp+9}")
                o.append(f"v_cvt_pk_bf16_f32 v{tmp+up*4+ep*2+1}, v{tmp+10}, v{tmp+11}")
            o.append(f"s_add_u32 s28, s31, {(i*14 + up)*1024}\nbuffer_store_dwordx4 {v(tmp+up*4, 4)}, v4, s[36:39], s28 offen sc1")
        return o
    A(f"s_mul_i32 s31, s3, {7*14*1024}\ns_lshl_b32 s28, s23, 11\ns_add_u32 s31, s31, s28")
    A(f"s_cmp_ge_u32 s22, 16\ns_cbranch_scc1 {L}_type1")
    srd(A, 40, 76, 0, W3_SZ)
    srd(A, 44, 78, 0, W3_SZ)
    A(f"s_mov_b32 s30, {hex(SCALE_LOG2E)}\ns_lshl_b32 s32, s3, 15\ns_add_u32 s32, s32, 32768")
    a_tiles(40)
    def b_tile(i):
        A(f"""s_mul_i32 s27, s3, 7
        s_add_u32 s27, s27, {i}
        s_lshr_b32 s28, s27, 1
        s_and_b32 s27, s27, 1
        s_lshl_b32 s28, s28, 18
        s_lshl_b32 s27, s27, 15
        s_add_u32 s27, s27, s28
        s_add_u32 s27, s27, s25
        s_add_u32 s29, s32, {(i % 4)*8192}""")
        tile_dma(44, 27, "s29")
    for i in range(4): b_tile(i)
    tls(A, 1)
    A("s_waitcnt vmcnt(32)\ns_barrier")
    tls(A, 2)
    a_read()
    for ks in range(8): A(f"v_add_u32 v{RA+ks}, s32, v{RA+ks}")
    ops = [('b', i) for i in range(4)]
    BR = 136
    for i in range(7):
        after = ops[ops.index(('b', i)) + 1:]
        A(f"s_waitcnt vmcnt({sum(8 if k == 'b' else 2 for k, _ in after)})")
        for ks in range(8): A(f"ds_read_b128 {v(BR + ((i % 2)*8 + ks)*4, 4)}, v{RA+ks} offset:{(i % 4)*8192}")
        side = epilogue(i-1, True) if i else []
        for ks in range(8):
            A(f"s_waitcnt lgkmcnt({7-ks})")
            for mt in range(4):
                A(f"v_mfma_f32_16x16x32_bf16 {acc(i, mt)}, {areg(mt, ks)}, {v(BR + ((i % 2)*8 + ks)*4, 4)}, {acc(i, mt) if ks else '0'}")
                for _ in range(2):
                    if side and ks >= 1: A(side.pop(0))
        for z in side: A(z)
        if i: ops.append(('s', i-1))
        if i + 4 < 7: b_tile(i + 4); ops.append(('b', i + 4))
    for z in epilogue(6, True): A(z)
    A(f"s_branch {L}_done")
    A.label(L + "_type1"); A.reset_state()
    srd(A, 40, 80, 0, W3_SZ)
    A(f"s_mul_i32 s27, s24, {256*896}")
    srd(A, 44, 82, "s27", 256*896)
    a_tiles(40)
    SO, TR = 136, 144
    A("s_mul_i32 s28, s3, 448")
    for k in range(7):
        A(f"""v_add_u32 v5, s28, v1
        v_add_u32 v5, {k*64}, v5
        v_mul_u32_u24 v6, 37450, v5
        v_lshrrev_b32 v6, 21, v6
        v_mul_u32_u24 v7, 56, v6
        v_sub_u32 v5, v5, v7
        v_bfe_u32 v7, v6, 1, 2
        v_lshlrev_b32 v7, 1, v7
        v_xor_b32 v5, v5, v7
        v_lshlrev_b32 v5, 4, v5
        v_and_b32 v7, 19, v6
        v_bfe_u32 v160, v6, 2, 1
        v_lshl_or_b32 v7, v160, 3, v7
        v_bfe_u32 v160, v6, 3, 1
        v_lshl_or_b32 v7, v160, 2, v7
        v_mul_u32_u24 v7, 896, v7
        v_add_u32 v{SO+k}, v7, v5""")
    def chunk(ks):
        A(f"s_mul_i32 s29, s3, 7168\ns_add_u32 m0, s29, {32768 + (ks % 4)*28672}\ns_mov_b32 s27, {ks*32*896}")
        for k in range(7):
            A(f"buffer_load_dwordx4 v{SO+k}, s[44:47], s27 offen lds")
            if k < 6: A("s_add_u32 m0, m0, 1024")
    for ks in range(4): chunk(ks)
    A("""v_lshrrev_b32 v5, 2, v2
    v_and_b32 v6, 1, v3
    v_lshl_add_u32 v6, v6, 2, v5
    v_lshrrev_b32 v160, 1, v6
    v_lshrrev_b32 v7, 1, v3
    v_lshl_add_u32 v6, v7, 4, v6
    v_mul_u32_u24 v6, 896, v6
    v_and_b32 v7, 3, v2
    v_lshl_add_u32 v6, v7, 3, v6
    v_add_u32 v6, 32768, v6""")
    for i in range(7):
        A(f"""s_mul_i32 s27, s3, 7
        s_add_u32 s27, s27, {i}
        v_xor_b32 v5, s27, v160
        v_lshl_add_u32 v{TR+i}, v5, 5, v6
        v_add_u32 v{TR+7+i}, 57344, v{TR+i}""")
    tls(A, 1)
    A("s_waitcnt vmcnt(28)\ns_barrier")
    tls(A, 2)
    a_read()
    BR = 164
    for ks in range(8):
        A(f"s_waitcnt vmcnt({7*(min(ks + 2, 7) - ks) if ks else 21})\ns_barrier")
        if 1 <= ks <= 4: chunk(ks + 3)
        def rd(i):
            for z in range(2):
                A(f"ds_read_b64_tr_b16 {v(BR + 4*i + 2*z, 2)}, v{TR + 7*((ks % 4) // 2) + i} offset:{(ks % 2)*28672 + z*7168}")
        for i in range(7): rd(i)
        for i in range(7):
            A(f"s_waitcnt lgkmcnt({2*(6-i)})")
            for mt in range(4):
                A(f"v_mfma_f32_16x16x32_bf16 {acc(i, mt)}, {areg(mt, ks)}, {v(BR + 4*i, 4)}, {acc(i, mt) if ks else '0'}")
    for i in range(7):
        for z in epilogue(i, False): A(z)
    A.label(L + "_done")

def ln_body(A, L):
    srd(A, 36, 4, 0, XN_SZ)
    srd(A, 68, 78, 0, 896)
    srd(A, 72, 18, XN_OFF, XN_SZ)
    srd(A, 48, 18, XNF_OFF, XN_SZ)
    srd(A, 52, 18, R_OFF, 8192)
    srd(A, 64, 76, 0, 7168)
    A(f"""
    v_mul_u32_u24 v7, 896, v2
    v_lshl_add_u32 v7, v3, 4, v7
    v_lshlrev_b32 v5, 4, v3
    s_mul_i32 s24, s23, {16*896}
    """)
    X, W, F = 8, 64, 120
    for u in range(14): A(f"buffer_load_dwordx4 {v(X+4*u, 4)}, v7, s[36:39], s24 offen offset:{u*64}")
    for u in range(14): A(f"buffer_load_dwordx4 {v(W+4*u, 4)}, v5, s[68:71], 0 offen offset:{u*64}")
    A("v_mov_b32 v232, -1\nv_mov_b32 v233, -1\nv_mov_b32 v234, -1\nv_mov_b32 v235, -1")
    for k in range(4):
        A(f"s_lshl_b32 s25, s23, 10\ns_add_u32 s25, s25, {8192 + k*128*1024}")
        A(f"buffer_store_dwordx4 v[232:235], v4, s[40:43], s25 offen sc1")
    for k in range(5):
        A(f"s_lshl_b32 s25, s23, 10\ns_add_u32 s25, s25, {k*128*1024}")
        A(f"buffer_store_dwordx4 v[232:235], v4, s[44:47], s25 offen sc1")
    A(f"""s_cmp_lg_u32 s23, 0
    s_cbranch_scc1 {L}_nomem
    v_lshrrev_b32 v6, 1, v2
    v_mul_u32_u24 v6, 896, v6
    v_lshl_add_u32 v6, v3, 5, v6
    v_and_b32 v5, 1, v2
    v_cmp_eq_u32 vcc, 1, v5
    """)
    for t in range(7):
        A(f"buffer_load_dwordx4 {v(F+8*t, 4)}, v6, s[64:67], 0 offen offset:{t*128}")
        A(f"buffer_load_dwordx4 {v(F+8*t+4, 4)}, v6, s[64:67], 0 offen offset:{t*128+16}")
    A("s_waitcnt vmcnt(0)\ns_mov_b32 s27, 0xfffefffe")
    for t in range(7):
        for aa in range(4):
            A(f"v_cndmask_b32 v{F+56+4*t+aa}, v{F+8*t+2*aa}, v{F+8*t+2*aa+1}, vcc")
            A(f"v_pk_min_u16 v{F+56+4*t+aa}, v{F+56+4*t+aa}, s27")
        A(f"s_mov_b32 s25, {t*1024}\nbuffer_store_dwordx4 {v(F+56+4*t, 4)}, v4, s[40:43], s25 offen sc1")
    A("s_waitcnt vmcnt(0)")
    A.label(L + "_nomem")
    A("s_waitcnt vmcnt(23)")
    A("s_mov_b32 s26, 0xffff0000")
    for j in range(56):
        A(f"v_lshlrev_b32 v{F+2*j}, 16, v{X+j}\nv_and_b32 v{F+2*j+1}, s26, v{X+j}")
    inv = hex(struct.unpack('<I', struct.pack('<f', 1/448))[0])
    A(f"v_pk_add_f32 v[236:237], {v(F,2)}, {v(F+2,2)}\nv_pk_add_f32 v[238:239], {v(F+4,2)}, {v(F+6,2)}")
    for j in range(4, 56, 2):
        A(f"v_pk_add_f32 v[236:237], v[236:237], {v(F+2*j,2)}\nv_pk_add_f32 v[238:239], v[238:239], {v(F+2*j+2,2)}")
    A("v_pk_add_f32 v[236:237], v[236:237], v[238:239]\nv_add_f32 v236, v236, v237")
    xreduce(A, "v_add_f32", 236, 237)
    A(f"v_mul_f32 v236, {inv}, v236\nv_mov_b32 v237, v236")
    A("v_mov_b32 v240, 0\nv_mov_b32 v241, 0\nv_mov_b32 v242, 0\nv_mov_b32 v243, 0")
    for j in range(0, 56, 2):
        A(f"v_pk_add_f32 v[244:245], {v(F+2*j,2)}, v[236:237] neg_lo:[0,1] neg_hi:[0,1]")
        A(f"v_pk_add_f32 v[246:247], {v(F+2*j+2,2)}, v[236:237] neg_lo:[0,1] neg_hi:[0,1]")
        A(f"v_pk_fma_f32 v[240:241], v[244:245], v[244:245], v[240:241]")
        A(f"v_pk_fma_f32 v[242:243], v[246:247], v[246:247], v[242:243]")
    A("v_pk_add_f32 v[240:241], v[240:241], v[242:243]\nv_add_f32 v240, v240, v241")
    xreduce(A, "v_add_f32", 240, 241)
    A(f"""v_mul_f32 v240, {inv}, v240
    v_cvt_pk_bf16_f32 v236, v236, v240
    v_and_b32 v240, s26, v236
    v_lshlrev_b32 v236, 16, v236
    v_add_f32 v240, {hex(struct.unpack('<I', struct.pack('<f', 1e-5))[0])}, v240
    v_cvt_pk_bf16_f32 v240, v240, v240
    v_and_b32 v240, s26, v240
    v_sqrt_f32 v240, v240
    v_mov_b32 v237, v236
    v_cvt_pk_bf16_f32 v240, v240, v240
    v_and_b32 v240, s26, v240
    v_rcp_f32 v240, v240
    s_nop 0
    v_mov_b32 v241, v240
    s_mul_i32 s25, s23, {14*1024}""")
    for j in range(56):
        A(f"v_pk_add_f32 {v(F+2*j,2)}, {v(F+2*j,2)}, v[236:237] neg_lo:[0,1] neg_hi:[0,1]")
        A(f"v_cvt_pk_bf16_f32 v{X+j}, v{F+2*j}, v{F+2*j+1}")
        A(f"v_lshlrev_b32 v{F+2*j}, 16, v{X+j}\nv_and_b32 v{F+2*j+1}, s26, v{X+j}")
        A(f"v_pk_mul_f32 {v(F+2*j,2)}, {v(F+2*j,2)}, v[240:241]")
        A(f"v_cvt_pk_bf16_f32 v{X+j}, v{F+2*j}, v{F+2*j+1}")
        if j % 4 == 3:
            u = j // 4
            A(f"buffer_store_dwordx4 {v(X+4*u, 4)}, v4, s[48:51], s25 offen offset:{(u % 4)*1024} sc1")
            A(f"buffer_store_dwordx4 {v(X+4*u, 4)}, v7, s[72:75], s24 offen offset:{u*64} sc1")
            if u % 4 == 3: A("s_add_u32 s25, s25, 4096")
    A("s_waitcnt vmcnt(37)")
    A("v_mov_b32 v240, 0\nv_mov_b32 v241, 0\nv_mov_b32 v242, 0\nv_mov_b32 v243, 0")
    for j in range(56):
        t = 244 + 4*(j % 2)
        A(f"v_lshlrev_b32 v{t}, 16, v{X+j}\nv_and_b32 v{t+1}, s26, v{X+j}\nv_lshlrev_b32 v{t+2}, 16, v{W+j}\nv_and_b32 v{t+3}, s26, v{W+j}")
        A(f"v_pk_fma_f32 {v(240+2*(j%2),2)}, {v(t,2)}, {v(t+2,2)}, {v(240+2*(j%2),2)}")
    A("v_pk_add_f32 v[240:241], v[240:241], v[242:243]\nv_add_f32 v240, v240, v241")
    xreduce(A, "v_add_f32", 240, 241)
    A(f"""v_cvt_pk_bf16_f32 v240, v240, v240
    v_and_b32 v240, s26, v240
    v_lshlrev_b32 v241, 2, v2
    s_lshl_b32 s25, s23, 6
    s_mov_b64 exec, 0xffff
    buffer_store_dword v240, v241, s[52:55], s25 offen sc1
    s_mov_b64 exec, -1""")

KD = """
.section .rodata,"a"
.p2align 6
.amdhsa_kernel {name}
  .amdhsa_next_free_vgpr {nv}
  .amdhsa_next_free_sgpr 102
  .amdhsa_accum_offset 256
  .amdhsa_group_segment_fixed_size 0
  .amdhsa_kernarg_size 120
  .amdhsa_user_sgpr_count 2
  .amdhsa_user_sgpr_kernarg_segment_ptr 1
  .amdhsa_system_sgpr_workgroup_id_x 1
.end_amdhsa_kernel
"""

def build(kernels):
    out = []
    for name, fn, grid, lds in kernels:
        out.append(f"; @launch kernel={name} grid=({grid},1,1) block=(256,1,1) lds={lds}")
    out.append('.amdgcn_target "amdgcn-amd-amdhsa--gfx950"\n.text')
    for name, fn, grid, lds in kernels:
        A = Asm()
        fn(A)
        out.append(f".globl {name}\n.p2align 8\n.type {name},@function")
        out.append(A.text())
    for name, fn, grid, lds in kernels:
        out.append(KD.format(name=name, nv=256 if name in ('gemm2_kernel', 'xattn_kernel') else 512))
    return '\n'.join(out)

if __name__ == "__main__":
    import kmain
    ks = [("main_kernel", kmain.kmain, 256, 163840)]
    sys.stdout.write(build(ks))
```

```python
import re

REG_RE = re.compile(r'^(-|abs\()?([vas])(\d+|\[(\d+):(\d+)\])\)?$')

def regs_of(op):
    op = op.strip()
    if op in ('vcc',): return {('s', 'vcc_lo'), ('s', 'vcc_hi')}
    if op in ('vcc_lo', 'vcc_hi'): return {('s', op)}
    if op == 'exec': return {('s', 'exec')}
    if op == 'm0': return {('s', 'm0')}
    m = REG_RE.match(op)
    if not m: return set()
    k = m.group(2)
    if m.group(4) is not None:
        return {(k, i) for i in range(int(m.group(4)), int(m.group(5)) + 1)}
    return {(k, int(m.group(3)))}

TRANS = ('v_exp_f32', 'v_log_f32', 'v_rcp_f32', 'v_rsq_f32', 'v_sqrt_f32', 'v_sin_f32', 'v_cos_f32', 'v_rcp_iflag_f32')

def split_ops(rest):
    rest = rest.split(';')[0].strip()
    ops, depth, cur = [], 0, ''
    for ch in rest:
        if ch in '[(': depth += 1
        if ch in '])': depth -= 1
        if ch == ',' and depth == 0:
            ops.append(cur.strip()); cur = ''
        else:
            cur += ch
    if cur.strip(): ops.append(cur.strip())
    mods = ''
    if ops:
        parts = ops[-1].split(None, 1)
        ops[-1] = parts[0]
        if len(parts) > 1: mods = parts[1]
    return ops, mods

class Asm:
    def __init__(self):
        self.lines = []
        self.pos = 0
        self.reset_state()
        self.nops_added = 0
        self.pad = None
    def reset_state(self):
        self.valu_w = {}
        self.trans_w = {}
        self.mfma_w = {}
        self.mfma_c = {}
        self.store_r = {}
        self.salu_m0 = -100
        self.dot_w = {}
        self.valu_exec = -100
    def pads_on(self, name, every=112):
        self.pad = [name, every, [], every]
    def pads_off(self, ret, parts=4):
        name, _, idx, _ = self.pad
        self.pad = None
        n = len(idx)
        starts = [n*k // parts for k in range(parts)]
        for k, li in enumerate(idx):
            tgt = ret if (k + 1 == n or (k + 1) in starts) else f"{name}_p{k+1}"
            self.lines[li] = f"{name}_p{k}:\n    s_cbranch_execz {tgt}"
        return [f"{name}_p{k}" for k in starts]
    def _size(self, mn, line):
        if mn.startswith(('buffer_', 'global_', 'ds_', 'v_mfma', 'v_smfmac', 'v_pk_', 'v_cvt_pk', 'v_dot2_', 'v_accvgpr', 's_load', 's_mem')): return 8
        if 'dpp' in mn or re.search(r'0x[0-9a-f]{3,}|\b\d{3,}\b', line.split(None, 1)[1] if ' ' in line else ''): return 8
        if mn.startswith('v_') and line.count(',') >= 3: return 8
        return 4
    def raw(self, text):
        self.lines.append(text)
    def label(self, name):
        self.lines.append(name + ':')
    def comment(self, t):
        self.lines.append('    ; ' + t)
    def nop(self, states):
        while states > 0:
            n = min(states, 16)
            self.lines.append(f'    s_nop {n-1}')
            self.pos += n; states -= n
    def flush(self, n=None):
        need = 0
        for r, p in self.valu_w.items(): need = max(need, (5 if r[0] == 's' else 2) - (self.pos - p))
        for r, (p, ps, _) in self.mfma_w.items(): need = max(need, {4: 8, 8: 12}[ps] - (self.pos - p))
        for r, p in self.dot_w.items(): need = max(need, 3 - (self.pos - p))
        for r, p in self.store_r.items(): need = max(need, 2 - (self.pos - p))
        need = max(need, 1 - (self.pos - self.salu_m0))
        if need > 0: self.nop(need)
    def __call__(self, text):
        for line in text.split('\n'):
            line = line.strip()
            if not line: continue
            if line.startswith(';'):
                self.lines.append('    ' + line); continue
            if line.endswith(':') and ' ' not in line:
                self.lines.append(line); continue
            self.inst(line)
    def inst(self, line):
        parts = line.split(None, 1)
        mn = parts[0]
        if self.pad is not None:
            if self.pad[1] >= self.pad[3]:
                self.pad[2].append(len(self.lines)); self.lines.append('; pad'); self.pad[1] = 4; self.pos += 1
            self.pad[1] += self._size(mn, line)
        ops, mods = split_ops(parts[1]) if len(parts) > 1 else ([], '')
        R = [regs_of(o) for o in ops]
        need = 0
        def req(p, n):
            nonlocal need
            need = max(need, n - (self.pos - p))
        is_mfma = mn.startswith('v_mfma') or mn.startswith('v_smfmac')
        is_valu = mn.startswith('v_') and not is_mfma
        is_ds = mn.startswith('ds_')
        is_vmem = mn.startswith('buffer_') or mn.startswith('global_')
        dst, src = set(), set()
        srcC = set()
        if is_mfma:
            passes = 8 if '32x32' in mn else 4
            dst = R[0]
            if mn.startswith('v_smfmac'):
                srcC = R[0]; ab = R[1] | R[2] | R[3]
            else:
                srcC = R[3]; ab = R[1] | R[2]
            dkey = ops[0]
            for r in ab | srcC:
                if r in self.valu_w and r[0] != 's': req(self.valu_w[r], 2)
                if r in self.dot_w: req(self.dot_w[r], 3)
            for r in ab:
                if r in self.mfma_w:
                    p, ps, _ = self.mfma_w[r]; req(p, {4: 8, 8: 12}[ps])
            for r in srcC:
                if r in self.mfma_w:
                    p, ps, k = self.mfma_w[r]
                    same = (k == (ops[0] if mn.startswith('v_smfmac') else ops[3])) and ps == passes
                    if not same: req(p, {4: 6, 8: 10}[ps])
            for r in dst - srcC:
                if r in self.mfma_w:
                    p, ps, k = self.mfma_w[r]; req(p, {4: 6, 8: 10}[ps])
            req(self.valu_exec, 4)
        elif is_valu:
            base = mn.replace('_e32', '').replace('_e64', '').replace('_dpp', '').replace('_sdwa', '')
            if base.startswith('v_cmp'):
                dst = R[0]; src = set().union(*R[1:])
                if base.startswith('v_cmpx'): dst = dst | {('s', 'exec')}
            elif base in ('v_permlane32_swap_b32', 'v_permlane16_swap_b32', 'v_swap_b32'):
                dst = R[0] | R[1]; src = R[0] | R[1]
            elif base in ('v_add_co_u32', 'v_sub_co_u32', 'v_addc_co_u32', 'v_subb_co_u32'):
                dst = R[0] | R[1]; src = set().union(*R[2:])
            else:
                dst = R[0]; src = set().union(*R[1:]) if len(R) > 1 else set()
                if base.startswith('v_fmac') or base.startswith('v_dot2c') or base.startswith('v_pk_fmac') or base == 'v_writelane_b32' or 'dpp' in mn or 'row_' in mods or 'quad_perm' in mods:
                    src = src | R[0]
                if base.startswith('v_cndmask') and len(ops) == 3: src |= regs_of('vcc')
            isdpp = ('dpp' in mn) or ('row_' in mods) or ('quad_perm' in mods)
            isperm = base.startswith('v_permlane')
            isrl = base in ('v_readlane_b32', 'v_readfirstlane_b32')
            isdot = base.startswith('v_dot')
            for r in src:
                if r[0] == 's':
                    if r in self.valu_w:
                        req(self.valu_w[r], 4 if base in ('v_readlane_b32', 'v_writelane_b32') else 2)
                else:
                    if r in self.valu_w:
                        if isdpp or isperm: req(self.valu_w[r], 2)
                        if isrl: req(self.valu_w[r], 1)
                    if r in self.trans_w and base not in TRANS: req(self.trans_w[r], 1)
                    if r in self.dot_w:
                        if not (isdot and r in R[-1] and r not in (set().union(*R[1:-1]))): req(self.dot_w[r], 3)
            for r in (src | dst):
                if r in self.mfma_w:
                    p, ps, _ = self.mfma_w[r]; req(p, {4: 8, 8: 12}[ps])
            for r in dst:
                if r in self.mfma_c:
                    p, ps = self.mfma_c[r]; req(p, {4: 3, 8: 7}[ps])
                if r in self.store_r: req(self.store_r[r], 2)
                if r in self.dot_w and not isdot: req(self.dot_w[r], 3)
            if isdpp: req(self.valu_exec, 5)
            if isrl or isperm: req(self.valu_exec, 4)
        elif is_ds or is_vmem:
            allr = set().union(*R) if R else set()
            lds_dma = is_vmem and (mods.split() and 'lds' in mods.split() or 'load_lds' in mn)
            is_load = ('load' in mn or 'read' in mn or 'bpermute' in mn or 'swizzle' in mn or 'permute' in mn) and not lds_dma
            if 'atomic' in mn and 'sc0' in mods.split(): is_load = True
            if is_load: dst = R[0]; src = set().union(*R[1:]) if len(R) > 1 else set()
            else: src = allr
            if 'atomic' in mn: src = allr
            if 'd16' in mn and is_load: src = src | dst
            for r in src:
                if r[0] == 's' and r in self.valu_w and is_vmem: req(self.valu_w[r], 5)
                if r in self.dot_w: req(self.dot_w[r], 3)
            for r in (src | dst):
                if r in self.mfma_w:
                    p, ps, _ = self.mfma_w[r]; req(p, {4: 8, 8: 12}[ps])
            for r in dst:
                if r in self.store_r: req(self.store_r[r], 1)
                if r in self.mfma_c:
                    p, ps = self.mfma_c[r]; req(p, {4: 3, 8: 7}[ps])
            if lds_dma: req(self.salu_m0, 1)
        else:
            if mn == 's_nop':
                self.lines.append('    ' + line); self.pos += int(ops[0], 0) + 1; return
            if mn.startswith('s_cbranch_vcc') or mn.startswith('s_cbranch_exec'):
                pass
        if need > 0:
            self.nops_added += 1
            self.nop(need)
        self.lines.append('    ' + line)
        p = self.pos
        self.pos += 1
        p = self.pos
        if is_mfma:
            for r in dst:
                self.mfma_w[r] = (p, passes, ops[0]); self.valu_w.pop(r, None); self.trans_w.pop(r, None)
            for r in srcC: self.mfma_c[r] = (p, passes)
        elif is_valu:
            base = mn.replace('_e32', '').replace('_e64', '').replace('_dpp', '').replace('_sdwa', '')
            for r in dst:
                self.valu_w[r] = p; self.mfma_w.pop(r, None)
                if base in TRANS: self.trans_w[r] = p
                else: self.trans_w.pop(r, None)
                if base.startswith('v_dot'): self.dot_w[r] = p
                else: self.dot_w.pop(r, None)
                if r == ('s', 'exec'): self.valu_exec = p
        elif is_ds or is_vmem:
            for r in dst:
                self.valu_w.pop(r, None); self.mfma_w.pop(r, None); self.trans_w.pop(r, None)
            if is_vmem and 'store' in mn and ('x3' in mn or 'x4' in mn):
                for r in R[0] if mn.startswith('buffer') else R[1]: self.store_r[r] = p
            if is_vmem and 'store' in mn and 'x2' in mn:
                pass
        else:
            if ops and regs_of(ops[0]) == {('s', 'm0')} and mn.startswith('s_'): self.salu_m0 = p
            if mn.startswith('s_') and ops and not mn.startswith('s_cmp') and not mn.startswith('s_cbranch') and not mn.startswith('s_waitcnt'):
                for r in regs_of(ops[0]): self.valu_w.pop(r, None)
    def text(self):
        return '\n'.join(self.lines) + '\n'

def v(a, n=1): return f'v{a}' if n == 1 else f'v[{a}:{a+n-1}]'
def a_(a, n=1): return f'a{a}' if n == 1 else f'a[{a}:{a+n-1}]'
def s(a, n=1): return f's{a}' if n == 1 else f's[{a}:{a+n-1}]'
```

```python
from asmlib import *
import gen as G
from gen import srd, lane_setup, xreduce, wreg, flag_set, flag_wait, tl
import struct
def f2h(x): return hex(struct.unpack('<I', struct.pack('<f', x))[0])
LOG2E = f2h(1.4426950408889634)

def tile_c(A, dst, i, swave=3, sodd=24):
    if i < 6:
        A(f"s_mul_i32 s{dst}, s{swave}, 7\ns_add_u32 s{dst}, s{dst}, s{sodd}\ns_add_u32 s{dst}, s{dst}, {i}")
    else:
        A(f"s_mul_i32 s{dst}, s{sodd}, 6\ns_sub_u32 s{dst}, 6, s{dst}\ns_mul_i32 s{dst+1}, s{swave}, 7\ns_add_u32 s{dst}, s{dst}, s{dst+1}")

def load_weights7(A, wsrd, vl16, st=26):
    for i in range(7):
        tile_c(A, st, i)
        A(f"s_mul_i32 s{st}, s{st}, 14336")
        for u in range(14):
            A(f"buffer_load_dwordx4 {wreg(i, u)}, v{vl16}, s[{wsrd}:{wsrd+3}], s{st} offen offset:{(u % 4)*1024} sc1")
            if u % 4 == 3: A(f"s_add_u32 s{st}, s{st}, 4096")

def gemm1_body(A, pfx):
    A(f"""
    s_and_b32 s24, s3, 1
    s_and_b32 s25, s22, 15
    v_lshlrev_b32 v4, 4, v1
    s_mul_i32 s26, s22, {G.WF_UNIT}
    s_add_u32 s26, s26, {hex(G.WF_OFF)}
    """)
    srd(A, 36, 18, "s26", G.WF_UNIT)
    srd(A, 40, 18, G.XNF_OFF, G.XN_SZ)
    srd(A, 48, 18, G.FLG_OFF, G.FLG_SZ)
    def dma(seg_sgpr, buf_sgpr):
        A(f"""s_mul_i32 s28, s{seg_sgpr}, 28672
        s_mul_i32 s29, s3, 7168
        s_add_u32 s28, s28, s29
        s_add_u32 s29, s29, s{buf_sgpr}
        s_mov_b32 m0, s29""")
        for k in range(7):
            if k == 4: A("s_add_u32 s28, s28, 4096\ns_add_u32 s29, s29, 4096\ns_mov_b32 m0, s29")
            A(f"buffer_load_dwordx4 v4, s[40:43], s28 offen offset:{(k % 4)*1024} lds")
    A(f"s_mov_b32 s30, 0\nv_min_u32 v5, 31, v1\nv_lshlrev_b32 v5, 7, v5\ns_mov_b32 s28, {G.FLG_LN}")
    flag_wait(A, pfx + "_l", 48, 5, 28, 6, "K3_end", sleep=4)
    dma(23, 30)
    A(f"s_add_u32 s34, s23, 7\ns_mov_b32 s31, 28672")
    dma(34, 31)
    A(f"v_min_u32 v5, 27, v1\nv_lshlrev_b32 v5, 7, v5\ns_mul_i32 s54, s22, 3584\ns_add_u32 s54, s54, {G.FLG_PROD}")
    def wstage(k, tag):
        G.stage_wait(A, f"{pfx}_wp{tag}{k}", 48, 5, 54, 7, k + 1, "K3_end", sleep=4)
        for i in range(7):
            tile_c(A, 28, i)
            A(f"s_mul_i32 s28, s28, 14336\ns_add_u32 s28, s28, {k*4096}")
            for u in range(4*k, min(14, 4*k + 4)):
                A(f"buffer_load_dwordx4 {wreg(i, u)}, v4, s[36:39], s28 offen offset:{(u % 4)*1024} sc1")
    A("s_cmp_ge_u32 s22, 16")
    A(f"s_cbranch_scc1 {pfx}_vo")
    for k in range(4): wstage(k, "a")
    acc = lambda tt, i: 64 + (tt*7 + i)*4
    for typ in (0, 1):
        L = f"{pfx}_{'kq' if typ == 0 else 'vo'}"
        if typ == 1: A.label(L); A.reset_state()
        if typ == 0:
            A(f"s_mul_i32 s26, s25, 28672\ns_add_u32 s26, s26, {hex(G.KQF_OFF)}")
            srd(A, 44, 18, "s26", 64*G.SEG_SZ - 15*28672)
            A("""s_mul_i32 s31, s3, 7
            s_add_u32 s31, s31, s24
            s_lshr_b32 s31, s31, 1
            s_lshl_b32 s31, s31, 10""")
            tile_c(A, 32, 6)
            A("s_lshr_b32 s32, s32, 1\ns_lshl_b32 s32, s32, 10\ns_lshl_b32 s33, s24, 3\nv_add_u32 v5, s33, v4")
        else:
            A(f"s_lshl_b32 s26, s25, 10\ns_add_u32 s26, s26, {hex(G.VOF_OFF)}")
            srd(A, 44, 18, "s26", 64*G.SEG_SZ - 15*1024)
            tile_c(A, 31, 0); A("s_lshl_b32 s31, s31, 14")
            tile_c(A, 32, 6); A("s_lshl_b32 s32, s32, 14")
        xr = lambda u, tt: 48 + ((u % 2)*2 + tt)*4
        def rd(u):
            for tt in range(2): A(f"ds_read_b128 {v(xr(u, tt), 4)}, v6 offset:{(tt*14 + u)*1024}")
        def mm(u0, u1):
            rd(u0)
            for u in range(u0, u1):
                if u + 1 < u1: rd(u + 1)
                A(f"s_waitcnt lgkmcnt({2 if u + 1 < u1 else 0})")
                for tt in range(2):
                    for i in range(7):
                        c = v(acc(tt, i), 4) if u else "0"
                        if typ == 0: A(f"v_mfma_f32_16x16x32_bf16 {v(acc(tt, i), 4)}, {wreg(i, u)}, {v(xr(u, tt), 4)}, {c}")
                        else: A(f"v_mfma_f32_16x16x32_bf16 {v(acc(tt, i), 4)}, {v(xr(u, tt), 4)}, {wreg(i, u)}, {c}")
        def top():
            A(f"""
            v_add_u32 v6, s30, v4
            s_add_u32 s52, s30, {2*28672}
            s_sub_u32 s53, s52, {3*28672}
            s_cmp_ge_u32 s52, {3*28672}
            s_cselect_b32 s52, s53, s52
            s_add_u32 s30, s30, 28672
            s_cmp_ge_u32 s30, {3*28672}
            s_cselect_b32 s30, 0, s30
            s_add_u32 s34, s23, 14
            """)
            dma(34, 52)
        if typ == 1:
            top()
            wstage(0, "b"); wstage(1, "b")
            A("s_barrier")
            mm(0, 4); wstage(2, "b"); mm(4, 8); wstage(3, "b"); mm(8, 12)
            A("s_waitcnt vmcnt(0)")
            tl(A, 1)
            mm(12, 14)
            A(f"s_branch {L}_epi")
        else:
            A("s_waitcnt vmcnt(0)\ns_barrier")
            tl(A, 1)
        A.label(L + "_loop"); A.reset_state()
        top()
        mm(0, 14)
        if typ == 1:
            A.label(L + "_epi"); A.reset_state(); A("s_nop 7")
        A(f"s_mul_i32 s35, s23, {G.SEG_SZ}")
        nst = 0
        if typ == 0:
            for tt in range(2):
                A(f"s_add_u32 s28, s35, s31\ns_add_u32 s28, s28, {tt*14336}\ns_add_u32 s29, s35, s32\ns_add_u32 s29, s29, {tt*14336}")
                for p in range(3):
                    o = 16 + (tt*4 + p)*4
                    for e in range(2):
                        b = acc(tt, 2*p + e)
                        A(f"v_cvt_pk_bf16_f32 v{o+2*e}, v{b}, v{b+1}\nv_cvt_pk_bf16_f32 v{o+2*e+1}, v{b+2}, v{b+3}")
                    A(f"buffer_store_dwordx4 {v(o, 4)}, v4, s[44:47], s28 offen offset:{p*1024} sc1"); nst += 1
                o = 16 + (tt*4 + 3)*4; b = acc(tt, 6)
                A(f"v_cvt_pk_bf16_f32 v{o}, v{b}, v{b+1}\nv_cvt_pk_bf16_f32 v{o+1}, v{b+2}, v{b+3}")
                A(f"buffer_store_dwordx2 {v(o, 2)}, v5, s[44:47], s29 offen sc1"); nst += 1
        else:
            A("s_add_u32 s28, s35, s31")
            for i in range(7):
                o = 16 + i*4
                for tt in range(2):
                    b = acc(tt, i)
                    A(f"v_cvt_pk_bf16_f32 v{o+2*tt}, v{b}, v{b+1}\nv_cvt_pk_bf16_f32 v{o+2*tt+1}, v{b+2}, v{b+3}")
                if i == 6: A("s_add_u32 s28, s35, s32")
                A(f"buffer_store_dwordx4 {v(o, 4)}, v4, s[44:47], s28 offen sc1"); nst += 1
                if i < 5: A("s_add_u32 s28, s28, 16384")
        A(f"""
        s_cmp_lt_u32 s23, 7
        s_cselect_b32 s28, 0, 14
        s_cbranch_scc1 {L}_drain
        s_waitcnt vmcnt({2*nst + 7})
        s_branch {L}_drained""")
        A.label(L + "_drain")
        A("s_waitcnt vmcnt(0)")
        A.label(L + "_drained")
        A(f"""s_barrier
        s_sub_u32 s28, s23, s28
        s_max_i32 s28, s28, s21
        s_lshl_b32 s28, s28, 13
        s_lshl_b32 s29, s22, 7
        s_add_u32 s28, s28, s29
        s_cmp_lg_u32 s3, 0
        s_cbranch_scc1 {L}_nofl""")
        flag_set(A, 48, 28, 6, 7)
        A.label(L + "_nofl")
        A(f"s_add_u32 s23, s23, 7\ns_cmp_lt_u32 s23, 64")
        A.flush()
        A(f"s_cbranch_scc1 {L}_loop")
        A(f"""s_waitcnt vmcnt(0)
        s_barrier
        s_sub_u32 s28, s23, 7
        s_lshl_b32 s28, s28, 13
        s_lshl_b32 s29, s22, 7
        s_add_u32 s28, s28, s29
        s_cmp_lg_u32 s3, 0
        s_cbranch_scc1 {pfx}_done""")
        flag_set(A, 48, 28, 6, 7)
        A(f"s_sub_u32 s28, s28, {7*8192}")
        flag_set(A, 48, 28, 6, 7)
        A(f"s_branch {pfx}_done")

def moe_body(A, pfx):
    srd(A, 36, 18, G.R_OFF, 8192)
    srd(A, 40, 18, G.XNF_OFF, G.XN_SZ)
    srd(A, 44, 8, 0, 448*3584)
    srd(A, 48, 10, 0, 448*3584)
    srd(A, 52, 12, 0, 1792*896)
    srd(A, 56, 18, G.MOEP_OFF, G.MOEP_SZ)
    srd(A, 60, 18, G.IDX_OFF, 64)
    K, WG, WU, WD, XS = 16, 48, 0, 112, 160
    A("v_lshlrev_b32 v4, 4, v1")
    for k in range(8):
        A(f"s_mov_b32 s26, {(k//4)*4096}\nbuffer_load_dwordx4 {v(K+4*k, 4)}, v4, s[36:39], s26 offen offset:{(k % 4)*1024}")
    A(f"""
    v_mul_u32_u24 v5, {8*3584}, v3
    v_lshl_add_u32 v5, v2, 1, v5
    s_lshl_b32 s26, s22, 7
    s_lshl_b32 s27, s3, 5
    s_add_u32 s26, s26, s27
    v_add_u32 v5, s26, v5
    v_mul_u32_u24 v6, {4*896}, v3
    v_lshl_add_u32 v6, v2, 1, v6
    s_mul_i32 s26, s22, {64*896}
    s_mul_i32 s27, s3, 224
    s_add_u32 s26, s26, s27
    v_add_u32 v6, s26, v6
    """)
    A("s_waitcnt vmcnt(0)\ns_mov_b32 s28, 0xffff0000\ns_mov_b32 s29, 0x80000000")
    for k in range(8):
        for j in range(4):
            r = K + 4*k + j
            A(f"""v_ashrrev_i32 v7, 31, v{r}
            v_or_b32 v7, s29, v7
            v_xor_b32 v{r}, v7, v{r}
            v_lshlrev_b32 v7, 2, v1
            v_sub_u32 v7, {2047 - k*256 - j}, v7
            v_and_or_b32 v{r}, v{r}, s28, v7""")
    for u in range(14):
        for q in range(4): A(f"v_mov_b32 v{WG + 8*u + 4 + q}, 0\nv_accvgpr_write_b32 a{WU + 8*u + 4 + q}, 0")
    for f in range(28):
        for q in range(2): A(f"v_accvgpr_write_b32 a{WD + 4*f + 2 + q}, 0")
    for u in range(14):
        for j in range(8):
            if j % 2 == 0: A(f"s_mov_b32 s26, {(32*u + j)*3584}")
            hi = "_hi" if j % 2 else ""
            off = 3584 if j % 2 else 0
            op = "buffer_load_short_d16_hi" if j % 2 else "buffer_load_ushort"
            A(f"{op} v{WG + 8*u + 4*(j % 2) + j//2}, v5, s[44:47], s26 offen offset:{off}")
            A(f"{op} a{WU + 8*u + 4*(j % 2) + j//2}, v5, s[48:51], s26 offen offset:{off}")
    for wp in range(4):
        for j in range(4):
            A(f"s_mov_b32 s26, {(16*wp + j)*896}")
            hi = "_hi" if j % 2 else ""
            for i in range(7):
                op = "buffer_load_short_d16_hi" if j % 2 else "buffer_load_ushort"
                A(f"{op} a{WD + (i*4 + wp)*4 + 2*(j % 2) + j//2}, v6, s[52:55], s26 offen offset:{i*32}")
    for rnd in range(8):
        if rnd == 0:
            A(f"v_max3_u32 v7, v{K}, v{K+1}, v{K+2}")
            for r in range(3, 31, 2): A(f"v_max3_u32 v7, v7, v{K+r}, v{K+r+1}")
            A(f"v_max_u32 v7, v7, v{K+31}")
            op = "v_max_u32"
        else:
            A(f"s_sub_u32 s30, s{63+rnd}, 1")
            A(f"v_sub_u32 v7, s30, v{K}")
            for r in range(1, 31, 2):
                A(f"v_sub_u32 v8, s30, v{K+r}\nv_sub_u32 v9, s30, v{K+r+1}\nv_min3_u32 v7, v7, v8, v9")
            A(f"v_sub_u32 v8, s30, v{K+31}\nv_min_u32 v7, v7, v8")
            op = "v_min_u32"
        for rr in (8, 4, 2, 1): A(f"{op}_dpp v7, v7, v7 row_ror:{rr} row_mask:0xf bank_mask:0xf")
        xreduce(A, op, 7, 8)
        A(f"v_readfirstlane_b32 s{64+rnd}, v7")
        if rnd: A(f"s_nop 1\ns_sub_u32 s{64+rnd}, s30, s{64+rnd}")
        else: A("s_nop 1")
    for i in range(8):
        A(f"s_and_b32 s{64+i}, s{64+i}, 0xffff\ns_sub_u32 s{64+i}, 2047, s{64+i}")
    A("v_and_b32 v7, 7, v2\nv_mov_b32 v8, 0")
    for i in range(8):
        A(f"v_mov_b32 v9, s{64+i}\nv_cmp_ne_u32 vcc, {i}, v7\nv_cndmask_b32 v8, v9, v8, vcc")
    A(f"""
    v_lshrrev_b32 v9, 4, v8
    v_mul_u32_u24 v9, 14336, v9
    v_and_b32 v10, 15, v8
    v_lshl_add_u32 v9, v10, 4, v9
    v_lshl_add_u32 v9, v3, 8, v9
    """)
    for u in range(14): A(f"s_mov_b32 s26, {(u // 4)*4096}\nbuffer_load_dwordx4 {v(XS+4*u, 4)}, v9, s[40:43], s26 offen offset:{(u % 4)*1024}")
    A(f"""
    s_or_b32 s26, s22, s3
    s_cmp_lg_u32 s26, 0
    s_cbranch_scc1 {pfx}_noidx
    v_lshlrev_b32 v10, 2, v1
    s_mov_b64 exec, 0xff
    buffer_store_dword v8, v10, s[60:63], 0 offen sc1
    s_mov_b64 exec, -1
    """)
    A.label(f"{pfx}_noidx")
    A("s_waitcnt vmcnt(0)")
    for u in range(14):
        for o in range(2):
            A(f"v_mfma_f32_16x16x32_bf16 v[16:19], {v(WG+8*u+4*o, 4)}, {v(XS+4*u, 4)}, {'v[16:19]' if (u or o) else '0'}")
            A(f"v_mfma_f32_16x16x32_bf16 v[20:23], {a_(WU+8*u+4*o, 4)}, {v(XS+4*u, 4)}, {'v[20:23]' if (u or o) else '0'}")
    A(f"s_mov_b32 s26, {LOG2E}")
    for p in range(2):
        A(f"""v_cvt_pk_bf16_f32 v24, v{16+2*p}, v{17+2*p}
        v_cvt_pk_bf16_f32 v25, v{20+2*p}, v{21+2*p}
        v_lshlrev_b32 v26, 16, v24
        v_and_b32 v27, s28, v24
        v_mul_f32 v28, s26, v26
        v_mul_f32 v29, s26, v27
        v_exp_f32 v28, -v28
        v_exp_f32 v29, -v29
        v_add_f32 v28, 1.0, v28
        v_add_f32 v29, 1.0, v29
        v_rcp_f32 v28, v28
        v_rcp_f32 v29, v29
        v_mul_f32 v26, v26, v28
        v_mul_f32 v27, v27, v29
        v_cvt_pk_bf16_f32 v24, v26, v27
        v_lshlrev_b32 v26, 16, v24
        v_and_b32 v27, s28, v24
        v_lshlrev_b32 v28, 16, v25
        v_and_b32 v29, s28, v25
        v_mul_f32 v26, v26, v28
        v_mul_f32 v27, v27, v29
        v_cvt_pk_bf16_f32 v{30+p}, v26, v27""")
    A("""v_lshlrev_b32 v10, 3, v0
    v_lshlrev_b32 v11, 3, v1
    ds_write_b64 v10, v[30:31]
    s_waitcnt lgkmcnt(0)
    s_barrier""")
    for wp in range(4): A(f"ds_read_b64 {v(32+2*wp, 2)}, v11 offset:{wp*512}")
    A(f"""s_waitcnt lgkmcnt(0)
    v_mul_u32_u24 v12, 1792, v2
    v_lshl_add_u32 v12, v3, 4, v12
    s_mul_i32 s26, s22, 14336
    s_mul_i32 s27, s3, 448
    s_add_u32 s26, s26, s27""")
    for i in range(7):
        for wp in range(4):
            d = v(WG + 4*i, 4)
            for o in range(2):
                A(f"v_mfma_f32_16x16x16_bf16 {d}, {a_(WD + (i*4 + wp)*4 + 2*o, 2)}, {v(32+2*wp, 2)}, {d if (wp or o) else '0'}")
    A("v_cmp_gt_u32 vcc, 8, v2\ns_and_saveexec_b64 s[30:31], vcc")
    for i in range(7):
        A(f"buffer_store_dwordx4 {v(WG + 4*i, 4)}, v12, s[56:59], s26 offen offset:{i*64} sc1")
    A("s_mov_b64 exec, s[30:31]")
    srd(A, 36, 18, G.FLG_OFF, G.FLG_SZ)
    A(f"s_waitcnt vmcnt(0)\ns_barrier\ns_lshl_b32 s28, s22, 7\ns_add_u32 s28, s28, {G.FLG_MOE}\ns_cmp_lg_u32 s3, 0\ns_cbranch_scc1 {pfx}_moed")
    flag_set(A, 36, 28, 6, 7)
    A.label(pfx + "_moed")


def wserve_body(A, L, bail):
    srd(A, 36, 18, G.MEMG_OFF, 64*8192)
    srd(A, 40, 18, G.WZ_OFF, 64*G.WZ_SEG)
    tile_c(A, 31, 0); tile_c(A, 32, 6)
    A(f"""s_mov_b32 s23, s21
    s_lshl_b32 s31, s31, 12
    s_lshl_b32 s32, s32, 12
    s_lshl_b32 s28, s25, 8
    v_lshlrev_b32 v5, 2, v1
    v_add_u32 v5, s28, v5
    v_and_b32 v6, 1, v1
    v_cmp_eq_u32 vcc, 1, v6
    v_mov_b32 v8, 0x4444
    v_mov_b32 v6, 0xeeee
    v_cndmask_b32 v8, v8, v6, vcc
    v_mov_b32 v9, {192*32}""")
    MF, AC = 16, 64
    A.label(L + "_loop"); A.reset_state()
    for r in range(28): A(f"v_mov_b32 v{AC+r}, 0")
    A("s_lshl_b32 s33, s23, 13")
    flag_wait(A, L + "_w", 48, 9, 33, 7, bail, sleep=1)
    A("s_lshl_b32 s28, s23, 13\ns_add_u32 s29, s28, 4096")
    G.mem_poll(A, L + "_mp", 36, (28, 29), MF, 6, 7, bail)
    for i in range(7):
        for t in range(7): A(f"v_smfmac_f32_16x16x64_bf16 {v(AC+4*i, 4)}, {v(MF+4*t, 4)}, {wreg(i, 2*t, 8)}, v8")
    A(f"s_mul_i32 s28, s23, {G.WZ_SEG}\ns_add_u32 s29, s28, s32\ns_add_u32 s28, s28, s31")
    for i in range(7):
        x = AC + 4*i
        A(f"v_add_f32 v{x}, v{x}, v{x+1}\nv_add_f32 v{x+2}, v{x+2}, v{x+3}\nv_cvt_pk_bf16_f32 v{x}, v{x}, v{x+2}")
        A(f"buffer_store_dword v{x}, v5, s[40:43], s{29 if i == 6 else 28} offen sc1")
        if i < 5: A("s_add_u32 s28, s28, 4096")
    A(f"""s_lshl_b32 s28, s25, 7
    s_add_u32 s28, s28, s33
    s_add_u32 s28, s28, 4096
    s_waitcnt vmcnt(0)
    s_barrier
    s_cmp_lg_u32 s3, 0
    s_cbranch_scc1 {L}_nf""")
    flag_set(A, 48, 28, 6, 7)
    A.label(L + "_nf")
    A(f"s_add_u32 s23, s23, 7\ns_cmp_lt_u32 s23, 64\ns_cbranch_scc1 {L}_loop\ns_branch {bail}")
```

```python
from asmlib import *
import gen as G
from gen import srd, lane_setup, xreduce, wreg, flag_set, flag_wait, tl, tl_dump
from kernels2 import tile_c, load_weights7, f2h
import os
SPIN_MAX = 1 << 22
NINF = "0xff800000"
STAMP = int(os.environ.get("STAMP", "0"))
HU_P_AT = int(os.environ.get("HU_P_AT", "2"))
HU_M_AT = int(os.environ.get("HU_M_AT", "0"))
A_DMA = int(os.environ.get("A_DMA", "0"))
DSP = int(os.environ.get("DSP", "3"))
DSPB = int(os.environ.get("DSPB", "2"))
NT = os.environ.get("NT", "")
SBLK = int(os.environ.get("SBLK", "1"))
HUI = int(os.environ.get("HUI", "13"))
F2 = 99
ONEP = int(os.environ.get("ONEP", "1"))
HB = int(os.environ.get("HB", "10"))
WD = int(os.environ.get("WD", "4"))
TMODE = int(os.environ.get("TMODE", "1"))
TWV = 3 if TMODE == 0 else 0
DBG2_OFF = 0x5E00000
QP = "quad_perm:[1,0,3,2] row_mask:0xf bank_mask:0xf"

def stamp(A, k):
    if STAMP: A(f"{'s_memrealtime' if STAMP == 2 else 's_memtime'} s[{4+2*k}:{5+2*k}]")
def stamp_cnt(A, k):
    if STAMP: A(f"s_mov_b32 s{16+k}, s27")
def stamp_out(A, tmp, lds, nw):
    if not STAMP: return
    lab = f"STK{len(A.lines)}"
    A(f"s_waitcnt lgkmcnt(0)\ns_lshr_b32 s28, s64, 4\ns_cmp_lg_u32 s28, {SBLK}\ns_cbranch_scc1 {lab}\ns_cmp_ge_u32 s3, {nw}\ns_cbranch_scc1 {lab}")
    for k in range(6): A(f"v_mov_b32 v{tmp+k}, s{4+2*k}")
    A(f"v_mov_b32 v{tmp+6}, s16\nv_mov_b32 v{tmp+7}, s17")
    A(f"""s_lshl_b32 s28, s3, 4
    s_add_u32 s28, s28, s64
    s_lshl_b32 s28, s28, 5
    s_add_u32 s28, s28, {lds - 512*SBLK}
    v_mov_b32 v{tmp+8}, s28
    ds_write_b128 v{tmp+8}, {v(tmp, 4)}
    ds_write_b128 v{tmp+8}, {v(tmp+4, 4)} offset:16""")
    A.label(lab)
def stamp_dump(A, lds):
    if not STAMP: return
    A(f"""s_lshl_b32 s28, s3, 9
    v_bfe_u32 v8, v4, 4, 4
    v_lshlrev_b32 v8, 5, v8
    v_add_u32 v9, s28, v8
    v_add_u32 v9, {lds}, v9
    v_min_u32 v9, {163840 - 32}, v9
    s_lshl_b32 s28, s3, 11
    s_add_u32 s28, s28, 512
    v_add_u32 v8, s28, v8
    s_waitcnt lgkmcnt(0)
    ds_read_b128 v[12:15], v9
    ds_read_b128 v[16:19], v9 offset:16
    s_lshl_b32 s28, s21, 13
    s_waitcnt lgkmcnt(0)
    buffer_store_dwordx4 v[12:15], v8, s[60:63], s28 offen
    buffer_store_dwordx4 v[16:19], v8, s[60:63], s28 offen offset:16""")

def team_flavor(A, bail, va=5, vb=6):
    A(f"v_lshlrev_b32 v{va}, 2, v1\ns_mov_b32 s27, 0\ns_mov_b32 exec_hi, 0")
    L = bail + "_fl" + str(len(A.lines))
    A.label(L)
    A(f"""
    buffer_load_dword v{vb}, v{va}, s[60:63], 0 offen sc1
    s_add_u32 s27, s27, 1
    s_cmp_gt_u32 s27, {SPIN_MAX}
    s_cbranch_scc1 {bail}
    s_waitcnt vmcnt(0)
    v_cmp_eq_u32 vcc, 0, v{vb}
    s_cbranch_vccnz {L}
    v_cmp_ne_u32 vcc, s35, v{vb}
    s_mov_b64 exec, -1
    s_cmp_lg_u64 vcc, 0
    s_cselect_b32 s65, 1, 0
    """)
    if STAMP: srd(A, 60, 18, DBG2_OFF, 32*4*64*32)

HUD = int(os.environ.get("HUD", "3"))
def hu_wait(A, L, srdn, voff, soff, hr, bail, HUD=HUD):
    ld = lambda k: f"buffer_load_dword v{hr[k]}, v{voff}, s[{srdn}:{srdn+3}], s{soff} offen sc1"
    A("s_mov_b32 s27, 0")
    for k in range(HUD - 1): A(ld(k))
    A.label(L)
    for k in range(HUD):
        A(ld((k + HUD - 1) % HUD))
        A(f"s_waitcnt vmcnt({HUD-1})\nv_cmp_eq_u32 vcc, -1, v{hr[k]}\ns_cbranch_vccz {L}_ok")
    A(f"s_add_u32 s27, s27, 1\ns_cmp_gt_u32 s27, {SPIN_MAX}\ns_cbranch_scc0 {L}\ns_branch {bail}")
    A.label(L + "_ok")

def frag_loads(A, n, reg0, srdn, voff, soffs):
    for t in range(n):
        A(f"buffer_load_dwordx4 {v(reg0+4*t, 4)}, v{voff}, s[{srdn}:{srdn+3}], s{soffs[t // 4]} offen offset:{(t % 4)*1024} sc1")

def exact_check(A, L, n, reg0, tmp, retry, back, bail):
    A.label(L); A.reset_state()
    A("s_waitcnt vmcnt(0)")
    tmp, t2 = tmp if isinstance(tmp, tuple) else (tmp, tmp + 1)
    A(f"v_pk_max_u16 v{tmp}, v{reg0}, v{reg0+1}")
    for r in range(reg0 + 2, reg0 + 4*n): A(f"v_pk_max_u16 v{tmp}, v{tmp}, v{r}")
    A(f"""v_lshlrev_b32 v{t2}, 16, v{tmp}
    v_max_u32 v{tmp}, v{tmp}, v{t2}
    v_cmp_le_u32 vcc, s26, v{tmp}
    s_cbranch_vccz {back}
    s_add_u32 s27, s27, 1
    s_cmp_gt_u32 s27, {SPIN_MAX}
    s_cbranch_scc1 {bail}
    s_branch {retry}""")

def dma_ops(n, srdn, sg, sl, fl=''):
    o = []
    for k in range(n):
        pre = ""
        if k == 0: pre = f"s_mov_b32 m0, s{sl}\n"
        elif k % 4 == 0:
            pre = "s_add_u32 m0, m0, 4096\n"
            if not isinstance(sg, tuple): pre = f"s_add_u32 s{sg}, s{sg}, 4096\n" + pre
        g = sg[k // 4] if isinstance(sg, tuple) else sg
        o.append(pre + f"buffer_load_dwordx4 v4, s[{srdn}:{srdn+3}], s{g} offen offset:{(k % 4)*1024}{fl} lds")
    return o

TL, SMX, MFLA, XSL = 0, 7168, 8192, 32768
MF, TA, XB = 8, 36, 64
VTOUCH = int(os.environ.get("VTOUCH", "1"))

def mem_fetch(A, base, behind=()):
    A(f"s_mov_b32 s97, {base}")
    for z in dma_ops(7, 40, (32, 34), 97, " sc1"): A(z)
    for z in behind: A(z)
    A(f"s_waitcnt vmcnt({len(behind)})")

def a_xb_load(A):
    A(f"s_mul_i32 s28, s33, 28672\ns_add_u32 s28, s28, s94")
    for k in range(14):
        if k and k % 4 == 0: A("s_add_u32 s28, s28, 4096")
        A(f"buffer_load_dwordx4 {v(XB+4*k, 4)}, v4, s[52:55], s28 offen offset:{(k % 4)*1024}")

def a_loop(A, role, fl):
    L = f"K3a{role}f{fl}"
    sc = " sc1" if fl else ""
    if role == 1:
        A("s_mov_b32 s33, 0"); a_xb_load(A)
    A.label(L + "_loop"); A.reset_state()
    stamp(A, 0)
    A(f"""s_lshl_b32 s32, s64, 13
    s_add_u32 s34, s32, 4096
    s_add_u32 s33, s64, 1
    s_min_u32 s33, s33, 63""")
    zero = [f"v_mov_b32 v{r}, 0" for r in range(TA, TA + 28)]
    for z in zero: A(z)
    if VTOUCH and role == TWV: A(f"s_mul_i32 s30, s33, {G.SEG_SZ}")
    if role == TWV and VTOUCH:
        A(f"""s_lshl_b32 s29, s33, 13
        s_add_u32 s29, s29, 8192
        s_waitcnt vmcnt(0)
        v_cmp_ne_u32 vcc, s96, v115
        s_cmp_eq_u64 vcc, 0
        s_cselect_b32 s93, s94, 0x40000000
        s_add_u32 s30, s30, s93""")
    if role == 0:
        A(f"v_mov_b32 v{XB+4}, {NINF}\nv_mov_b32 v{XB+5}, {NINF}\ns_mul_i32 s31, s64, {G.PF_STRIDE}")
        A(f"s_cmp_eq_u32 s64, 0\ns_cbranch_scc1 {L}_hu_ok")
        hu_wait(A, L + "_hu", 40, 111, 32, (108, 109, 107), "K3_end")
    stamp(A, 1)
    A("s_mov_b32 s27, 0")
    A.label(L + "_go"); A.reset_state()
    tch = [f"buffer_load_dword v119, v118, s[48:51], s30 offen sc1\ns_add_u32 s30, s30, 4096" for k in range(7)] + ["buffer_load_dword v115, v114, s[56:59], s29 offen sc1"]
    if role == 0: mem_fetch(A, MFLA, tch if (VTOUCH and TMODE == 1) else [])
    A("s_barrier")
    for t in range(7): A(f"ds_read_b128 {v(MF+4*t, 4)}, v1 offset:{t*1024}")
    smf = lambda d, t, B: f"v_smfmac_f32_16x16x64_bf16 {v(d, 4)}, {v(MF+4*t, 4)}, {B}, v2"
    dm = list(tch) if (VTOUCH and TMODE == 0 and role == 3) else []
    cnt = [0, 2]
    def emit(z, side=None):
        A(z); cnt[0] += 1
        if side: A(side)
        elif dm and cnt[0] >= cnt[1]: A(dm.pop(0)); cnt[1] = cnt[0] + 2
    for t in range(7):
        A(f"s_waitcnt lgkmcnt({6 - t})")
        if t == 0: stamp(A, 2)
        if t == F2 and role == 0: A("s_waitcnt vmcnt(%d)" % (len(tch) if (VTOUCH and TMODE == 1) else 0))
        for d, i in ((TA, 0), (TA+4, 1)): emit(smf(d, t, wreg(i, 2*t, 8)))
    def fin(x): return [f"v_add_f32 v{x}, v{x}, v{x+1}", f"v_add_f32 v{x+2}, v{x+2}, v{x+3}", f"v_cvt_pk_bf16_f32 v{x}, v{x}, v{x+2}"]
    def post_pair(p):
        x, y = TA + 8*p, TA + 8*p + 4
        return fin(x) + fin(y) + [f"ds_write2st64_b32 v5, v{x}, v{y} offset0:{2*p} offset1:{2*p+1}"]
    b = TA
    chk = [f"v_add_f32 v{b}, v{b}, v{b+1}", f"v_add_f32 v{b+2}, v{b+2}, v{b+3}", f"v_cmp_u_f32 vcc, v{b}, v{b+2}",
           f"s_cbranch_vccnz {L}_slow\n{L}_back:"]
    seq1 = [None]*4 + chk + post_pair(0)[2:]
    seq2 = [None]*4 + post_pair(1) + ([f"v_mov_b32 v{TA+r}, 0" for r in range(3)] if role == 1 else [])
    for p, side in ((1, seq1), (2, seq2)):
        x, y = TA + 8*p, TA + 8*p + 4
        side = list(side)
        for t in range(7):
            for d, i in ((x, 2*p), (y, 2*p + 1)):
                emit(smf(d, t, wreg(i, 2*t, 8)), side.pop(0) if side else None)
    side = ([f"v_mov_b32 v{TA+3}, 0"] if role == 1 else [None]) + [None]*2 + post_pair(2)[:4]
    for t in range(7): emit(smf(TA+24, t, wreg(6, 2*t, 8)), side.pop(0))
    for z in post_pair(2)[4:] + fin(TA+24) + [f"ds_write_b32 v6, v{TA+24}"]: A(z)
    stamp(A, 3); stamp_cnt(A, 0)
    A("s_waitcnt lgkmcnt(0)\ns_barrier")
    stamp(A, 4)
    treg = lambda t: MF if (role == 1 and t == 0) else TA + 4*t
    tr = lambda t: [f"ds_read_b64_tr_b16 {v(treg(t) + 2*z, 2)}, v0 offset:{t*1024 + z*32}" for z in range(2)]
    if role != 3:
        for t in range(7):
            for z in tr(t): A(z)
    if role == 1:
        D = TA
        for t in range(7):
            A(f"s_waitcnt lgkmcnt({2*(6-t)})" + (" vmcnt(0)" if t == 0 else ""))
            A(f"v_smfmac_f32_16x16x64_bf16 {v(D, 4)}, {v(treg(t), 4)}, {v(XB+8*t, 8)}, v3")
        A(f"""v_permlane32_swap_b32 v{D}, v{D+1}
        v_permlane32_swap_b32 v{D+2}, v{D+3}
        v_add_f32 v{D}, v{D}, v{D+1}
        v_add_f32 v{D+2}, v{D+2}, v{D+3}
        ds_write2_b32 v7, v{D}, v{D+2} offset0:0 offset1:32
        s_waitcnt lgkmcnt(0)
        s_barrier
        s_barrier""")
        if os.environ.get("XSLEEP"): A(f"s_sleep {os.environ['XSLEEP']}")
        if not os.environ.get("NOXB"): a_xb_load(A)
    if role == 3: A("s_barrier\ns_barrier")
    if role == 0:
        X, R, D = XB, XB + 4, XB + 8
        m, t1, l = XB+12, XB+13, XB+14
        for t in range(7):
            A(f"s_waitcnt lgkmcnt({2*(6-t)})")
            A(f"v_mfma_f32_16x16x32_bf16 {v(D, 4)}, {v(MF+4*t, 4)}, {v(TA+4*t, 4)}, {v(D, 4) if t else '0'}")
        A(f"v_add_f32_dpp v{R}, v{D+1}, v{D} row_ror:8 row_mask:0xf bank_mask:0x3")
        A(f"v_add_f32_dpp v{R+1}, v{D+3}, v{D+2} row_ror:8 row_mask:0xf bank_mask:0x3")
        A(f"v_max_f32 v{m}, v{R}, v{R+1}\ns_barrier")
        class Rec:
            def __init__(s): s.l = []
            def __call__(s, t): s.l += [x.strip() for x in t.split("\n") if x.strip()]
        Q = Rec()
        Q(f"""ds_read_b64 {v(X, 2)}, v7
        ds_read_b64 {v(X+2, 2)}, v7 offset:512
        s_waitcnt lgkmcnt(1)
        v_max3_f32 v{m}, v{m}, v{X}, v{X+1}
        s_waitcnt lgkmcnt(0)
        v_max3_f32 v{m}, v{m}, v{X+2}, v{X+3}""")
        xreduce(Q, "v_max_f32", m, t1, steps=(8, 16, 32))
        for r in (X, X+2, R): Q(f"v_pk_add_f32 {v(r, 2)}, {v(r, 2)}, {v(m, 2)} op_sel_hi:[1,0] neg_lo:[0,1] neg_hi:[0,1]")
        for r in range(6): Q(f"v_exp_f32 v{X+r}, v{X+r}")
        Q(f"""v_pk_add_f32 {v(l, 2)}, {v(X, 2)}, {v(X+2, 2)}
        v_pk_add_f32 {v(l, 2)}, {v(l, 2)}, {v(R, 2)}
        v_add_f32 v{l}, v{l}, v{l+1}""")
        xreduce(Q, "v_add_f32", l, t1, steps=(8, 16, 32))
        Q(f"v_rcp_f32 v{l}, v{l}")
        for r in (X, X+2, R): Q(f"v_pk_mul_f32 {v(r, 2)}, {v(r, 2)}, {v(l, 2)} op_sel_hi:[1,0] clamp")
        Q(f"""v_cvt_pk_bf16_f32 v{X}, v{X}, v{X+1}
        v_cvt_pk_bf16_f32 v{X+1}, v{X+2}, v{X+3}
        buffer_store_dwordx2 {v(X, 2)}, v116, s[44:47], s31 offen{sc}
        v_cvt_pk_bf16_f32 v{R}, v{R}, v{R+1}
        buffer_store_dword v{R}, v117, s[44:47], s31 offen{sc}
        s_barrier""")
        Q.l.insert(HUI, f"buffer_store_dword v112, v110, s[40:43], s32 offen{sc}")
        for z in Q.l: A(z)
    stamp(A, 5)
    if role == 0: tl(A, 0, 64)
    if role == 3 and G.TLM: A("s_memtime s[100:101]\ns_min_u32 m0, s64, 57\ns_waitcnt lgkmcnt(0)\nv_writelane_b32 v113, s100, m0")
    stamp_out(A, TA + 8, MFLA + 7168, 4)
    A(f"s_add_u32 s64, s64, 1\ns_cmp_lt_u32 s64, 63")
    A.flush()
    A(f"s_cbranch_scc1 {L}_loop")
    stamp_dump(A, MFLA + 7168)
    if role != 1: tl_dump(A, 1)
    A("s_branch K3_end")
    exact_check(A, L + "_slow", 7, MF, (TA + 1, TA + 3), L + "_retry", L + "_back", "K3_end")
    A.label(L + "_retry"); A.reset_state()
    for z in zero: A(z)
    if VTOUCH and role == TWV: A(f"s_mov_b32 s30, 0x40000000")
    A(f"s_barrier\ns_branch {L}_go")

def a_cu(A):
    A(f"s_mul_i32 s26, s22, {G.WF_UNIT}\ns_add_u32 s26, s26, {hex(G.WF_OFF)}")
    srd(A, 36, 18, "s26", G.WF_UNIT)
    srd(A, 48, 18, G.VOF_OFF, 64*G.SEG_SZ)
    srd(A, 52, 18, G.XNF_OFF, G.XN_SZ)
    srd(A, 56, 18, G.FLG_OFF, G.FLG_SZ)
    A(f"v_min_u32 v5, 27, v1\nv_lshlrev_b32 v5, 7, v5\ns_mul_i32 s29, s22, 3584\ns_add_u32 s29, s29, {G.FLG_PROD}")
    for k in range(4):
        G.stage_wait(A, f"K3a_wp{k}", 56, 5, 29, 6, k + 1, "K3_end")
        if k == 0: tl(A, 62)
        A(f"s_mul_i32 s28, s3, {7*14336}\ns_add_u32 s28, s28, {k*4096}")
        for i in range(7):
            for u in range(4*k, min(14, 4*k + 4)):
                A(f"buffer_load_dwordx4 {wreg(i, u)}, v4, s[36:39], s28 offen offset:{(u % 4)*1024} sc1")
            A("s_add_u32 s28, s28, 14336")
    team_flavor(A, "K3_end")
    A("s_mul_i32 s28, s3, 7\ns_add_u32 s30, s28, 6")
    A(f"""
    v_lshrrev_b32 v8, 1, v3
    v_and_b32 v9, 1, v3
    v_lshlrev_b32 v7, 7, v8
    v_lshl_add_u32 v7, v2, 3, v7
    v_lshl_add_u32 v7, v9, 2, v7
    s_lshl_b32 s28, s28, 8
    v_add_u32 v5, s28, v7
    s_lshl_b32 s30, s30, 8
    v_add_u32 v6, s30, v7
    s_mov_b32 s64, 0
    s_mov_b32 s26, 0xffff0000
    v_lshrrev_b32 v10, 2, v2
    v_and_b32 v11, 3, v2
    v_lshrrev_b32 v12, 1, v10
    v_lshl_add_u32 v12, v8, 1, v12
    v_lshlrev_b32 v0, 8, v12
    v_and_b32 v12, 1, v11
    v_lshl_add_u32 v0, v12, 7, v0
    v_lshlrev_b32 v12, 3, v9
    v_and_b32 v13, 2, v11
    v_add_u32 v12, v12, v13
    v_and_b32 v13, 1, v10
    v_add_u32 v12, v12, v13
    v_lshl_add_u32 v0, v12, 3, v0
    s_sub_u32 s28, s3, 1
    s_and_b32 s28, s28, 1
    s_mul_i32 s94, s28, 14336
    s_lshl_b32 s28, s28, 9
    s_add_u32 s28, s28, {SMX}
    v_lshl_add_u32 v7, v9, 2, v8
    v_lshlrev_b32 v7, 6, v7
    v_lshl_add_u32 v7, v2, 2, v7
    v_add_u32 v7, s28, v7
    v_lshlrev_b32 v118, 6, v1
    s_mul_i32 s28, s22, 28672
    s_cmp_eq_u32 s3, {TWV}
    s_cselect_b32 s94, s28, s94
    v_and_b32 v12, 7, v2
    v_lshrrev_b32 v13, 3, v2
    v_lshlrev_b32 v14, 6, v12
    v_lshl_add_u32 v14, v3, 4, v14
    v_lshl_add_u32 v14, v13, 3, v14
    v_add_u32 v14, {SMX}, v14
    s_cmp_eq_u32 s3, 0
    s_cselect_b64 vcc, -1, 0
    v_cndmask_b32 v7, v7, v14, vcc
    v_lshlrev_b32 v116, 5, v12
    v_lshl_add_u32 v116, v13, 4, v116
    v_lshl_add_u32 v116, v8, 8, v116
    v_lshl_add_u32 v116, v9, 3, v116
    s_lshl_b32 s28, s22, 9
    v_add_u32 v116, s28, v116
    v_lshlrev_b32 v117, 5, v12
    v_lshl_add_u32 v117, v8, 8, v117
    v_lshl_add_u32 v117, v9, 3, v117
    s_lshr_b32 s28, s22, 2
    s_lshl_b32 s28, s28, 9
    s_and_b32 s29, s22, 1
    s_lshl_b32 s29, s29, 4
    s_add_u32 s28, s28, s29
    s_bfe_u32 s29, s22, 0x10001
    s_lshl_b32 s29, s29, 2
    s_add_u32 s28, s28, s29
    s_add_u32 s28, s28, 8192
    v_add_u32 v117, s28, v117
    v_mov_b32 v14, 0x7ffffff0
    v_cmp_gt_u32 vcc, 8, v2
    v_cndmask_b32 v117, v14, v117, vcc
    v_min_u32 v114, 15, v1
    v_lshlrev_b32 v114, 7, v114
    v_add_u32 v114, 2048, v114
    v_min_u32 v111, 27, v1
    v_lshlrev_b32 v111, 2, v111
    v_add_u32 v111, 7168, v111
    v_mov_b32 v112, 0
    v_not_b32 v115, s96
    s_lshl_b32 s29, s22, 2
    s_add_u32 s29, s29, {8192 + 7296}
    v_mov_b32 v110, s29
    v_cmp_eq_u32 vcc, 0, v1
    v_cndmask_b32 v110, v14, v110, vcc
    v_mov_b32 v12, 0x4444
    v_mov_b32 v14, 0xeeee
    v_cmp_lt_u32 vcc, 7, v2
    v_cndmask_b32 v3, v12, v14, vcc
    v_and_b32 v2, 1, v2
    v_cmp_eq_u32 vcc, 1, v2
    v_cndmask_b32 v2, v12, v14, vcc
    v_add_u32 v1, {MFLA}, v4
    s_waitcnt vmcnt(0)""")
    if G.TLM: A("s_cmp_lg_u32 s3, 3\ns_cbranch_scc1 K3a_tl\ns_memrealtime s[100:101]\ns_waitcnt lgkmcnt(0)\nv_writelane_b32 v113, s100, 63\nK3a_tl:")
    A("""s_cmp_lg_u32 s65, 0
    s_cbranch_scc1 K3a_fl1""")
    for fl in (0, 1):
        if fl: A.label("K3a_fl1"); A.reset_state()
        A(f"s_cmp_eq_u32 s3, 0\ns_cbranch_scc1 K3a_r0f{fl}\ns_cmp_eq_u32 s3, 3\ns_cbranch_scc1 K3a_r3f{fl}")
        for role in (1, 0, 3):
            if role != 1: A.label(f"K3a_r{role}f{fl}"); A.reset_state()
            a_loop(A, role, fl)

WL, VOL, WZL, MFLB = 0, 114688, 147456, 155648
def wregB(i, u, n=4):
    idx = 56*i + 4*u
    if idx < 256:
        assert idx + n <= 256
        return a_(idx, n)
    return v(176 + idx - 256, n)
BA, LW, Z, PFR, PA, KEEP, KEEPM = 36, 68, 36, 116, 156, 100, 152

def b_loop(A, fl):
    L = f"K3bf{fl}"
    sc = " sc1" if fl else ""
    A.label(L + "_loop"); A.reset_state()
    zero = [f"v_mov_b32 v{r}, 0" for r in range(BA, BA + 32)]
    for z in zero: A(z)
    lw = lambda k: LW + (k % 4)*8
    def rdw(k):
        for z in range(2): A(f"ds_read_b128 {v(lw(k) + 4*z, 4)}, v5 offset:{(k // 7)*14336 + (2*(k % 7) + z)*1024}")
    for k in range(4): rdw(k)
    A(f"""s_lshl_b32 s32, s64, 13
    s_add_u32 s34, s32, 4096
    s_mul_i32 s30, s64, {G.SEG_SZ}
    s_lshl_b32 s31, s22, 15
    s_add_u32 s30, s30, s31
    s_lshl_b32 s31, s3, 13
    s_add_u32 s30, s30, s31
    s_add_u32 s29, s30, 4096
    s_add_u32 s31, s31, {VOL}
    s_lshl_b32 s28, s3, 10
    s_add_u32 s28, s28, s66
    v_add_u32 v174, s28, v4
    v_lshlrev_b32 v163, 3, v4
    v_min_u32 v163, 1920, v163
    v_add_u32 v163, 2048, v163""")
    stamp(A, 0)
    A(f"s_lshl_b32 s28, s64, 13\ns_add_u32 s33, s28, 8192\ns_cmp_lg_u32 s3, 3\ns_cbranch_scc1 {L}_wv_ok\nv_cmp_ne_u32 vcc, s96, v0\ns_cbranch_vccz {L}_wv_ok")
    flag_wait(A, L + "_wv", 68, 163, 28, PFR, "K3_end", sleep=2)
    A(f"s_mov_b32 s27, 0\ns_waitcnt lgkmcnt(0)\ns_cmp_lg_u32 s3, 2\ns_cbranch_scc1 {L}_join\ns_cmp_eq_u32 s64, 0\ns_cbranch_scc1 {L}_hm_ok")
    hu_wait(A, L + "_hm", 40, 161, 32, (PFR, PFR+1, PFR+2), "K3_end")
    A("s_mov_b32 s27, 0")
    A.label(L + "_go"); A.reset_state()
    mem_fetch(A, MFLB)
    A.label(L + "_join")
    A("s_barrier")
    for t in range(7): A(f"ds_read_b128 {v(MF+4*t, 4)}, v162 offset:{t*1024}")
    sm0 = lambda i, t, B: f"v_smfmac_f32_16x16x64_bf16 {v(BA+4*i, 4)}, {v(MF+4*t, 4)}, {B}, v160"
    dm = dma_ops(8, 48, (30, 29), 31, ' sc1') + ["buffer_load_dword v0, v163, s[68:71], s33 offen sc1"]
    cnt = [0, 15]
    def sm(i, t, B):
        cnt[0] += 1
        z = sm0(i, t, B)
        if dm and cnt[0] >= cnt[1]: z += "\n" + dm.pop(0); cnt[1] = cnt[0] + DSPB
        return z
    for t in range(7):
        A(f"s_waitcnt lgkmcnt({6 - t})")
        if t == 0: stamp(A, 1)
        A(sm(0, t, wregB(0, 2*t, 8)))
    for t in range(7):
        A(sm(1, t, wregB(1, 2*t, 8)))
        if t == 3: A(f"v_add_f32 v{BA}, v{BA}, v{BA+1}")
        if t == 4: A(f"v_add_f32 v{BA+2}, v{BA+2}, v{BA+3}")
        if t == 5: A(f"v_cmp_u_f32 vcc, v{BA}, v{BA+2}")
        if t == 6: A(f"s_cbranch_vccnz {L}_slowm\n{L}_backm:")
    stamp_cnt(A, 0)
    for k in range(14):
        A(f"s_waitcnt lgkmcnt({2*min(3, 13-k)})")
        A(sm(6 + k // 7, k % 7, v(lw(k), 8)))
        i = 2 + k // 7
        A(sm(i, k % 7, wregB(i, 2*(k % 7), 8)))
        if k + 4 < 14: rdw(k + 4)
    def fin(i):
        x = BA + 4*i
        o = [] if i == 0 else [f"v_add_f32 v{x}, v{x}, v{x+1}", f"v_add_f32 v{x+2}, v{x+2}, v{x+3}"]
        return o + [f"v_cvt_pk_bf16_f32 v{164+i}, v{x}, v{x+2}"]
    side = fin(0) + fin(1) + fin(2) + fin(6) + fin(3) + [f"ds_write_b128 v174, v[164:167]"]
    for t in range(7):
        for i in (4, 5):
            A(sm(i, t, wregB(i, 2*t, 8)))
            if side: A(side.pop(0))
    for z in side + fin(7) + fin(4) + fin(5) + [f"ds_write_b128 v174, v[168:171] offset:4096"]: A(z)
    stamp(A, 2)
    A(f"s_waitcnt vmcnt(0) lgkmcnt(0)\ns_barrier\ns_cmp_ge_u32 s3, 2\ns_cbranch_scc1 {L}_idle")
    A("s_lshl_b32 s28, s24, 12\ns_add_u32 s28, s28, s66\nv_add_u32 v163, s28, v4")
    for f in range(16):
        A(f"ds_read_b128 {v(Z + 4*f, 4)}, v6 offset:{f*1024}")
        if f == 11: A("s_waitcnt lgkmcnt(4)")
    for f in range(4): A(f"ds_read_b128 {v(Z + 64 + 4*f, 4)}, v163 offset:{f*1024}")
    for r in range(4): A(f"v_mov_b32 v{PA+r}, 0")
    A(f"""s_mul_i32 s28, s64, {G.PF_STRIDE}
    s_add_u32 s29, s28, 4096
    s_add_u32 s30, s28, 8192
    s_add_u32 s34, s32, 8192
    s_waitcnt lgkmcnt(0)""")
    stamp(A, 3)
    if ONEP: A(f"s_cmp_lg_u32 s3, 0\ns_cbranch_scc1 {L}_hp_ok")
    hu_wait(A, L + "_hp", 40, 172, 32, (PFR, PFR+1, PFR+2, PFR+3), "K3_end", HUD=int(os.environ.get("HUDP", "3")))
    if ONEP: A("s_barrier")
    stamp(A, 2)
    A("s_mov_b32 s27, 0")
    A.label(L + "_gop"); A.reset_state()
    order = [8, 9, 0, 1, 2, 3, 4, 5, 6, 7]
    for k, t in enumerate(order):
        A(f"buffer_load_dwordx4 {v(PFR+4*t, 4)}, v4, s[44:47], s{28 + t // 4} offen offset:{(t % 4)*1024} sc1")
        if HU_M_AT < 0 and k == 10 + HU_M_AT: A(f"buffer_store_dword v175, v173, s[40:43], s32 offen{sc}")
    for k, u in enumerate(order):
        A(f"s_waitcnt vmcnt({9-k + (1 if (k > HU_M_AT + 1 if HU_M_AT >= 0 else k <= 10 + HU_M_AT) else 0)})")
        if k == 0: stamp(A, 4)
        A(f"v_smfmac_f32_16x16x64_bf16 {v(PA, 4)}, {v(PFR+4*u, 4)}, {v(Z+8*u, 8)}, v160")
        if k == 0: A(f"v_max_u32 v164, v{PFR+32}, v{PFR+33}")
        if k == 1: A(f"v_max3_u32 v164, v164, v{PFR+36}, v{PFR+37}\nv_cmp_eq_u32 vcc, -1, v164\ns_cbranch_vccnz {L}_early")
        if HU_M_AT >= 0 and k == HU_M_AT + 1: A(f"buffer_store_dword v175, v173, s[40:43], s32 offen{sc}")
    A(f"""v_add_f32 v{PA}, v{PA}, v{PA+1}
    v_add_f32 v{PA+2}, v{PA+2}, v{PA+3}
    v_cmp_u_f32 vcc, v{PA}, v{PA+2}
    v_cvt_pk_bf16_f32 v{PA}, v{PA}, v{PA+2}
    s_cbranch_vccnz {L}_slowp""")
    A.label(L + "_backp")
    A(f"""buffer_store_short v{PA}, v7, s[40:43], s34 offen{sc}
    buffer_store_short_d16_hi v{PA}, v7, s[40:43], s34 offen offset:32{sc}""")
    stamp_cnt(A, 1)
    A.label(L + "_next")
    stamp(A, 5)
    tl(A, 0, 64)
    stamp_out(A, 116, MFLB + 7168, 2)
    A(f"s_add_u32 s64, s64, 1\ns_cmp_lt_u32 s64, 63")
    A.flush()
    A(f"s_cbranch_scc1 {L}_loop")
    A.label(L + "_exit"); A.reset_state()
    stamp_dump(A, MFLB + 7168)
    tl_dump(A, 1)
    A("s_branch K3_end")
    A.label(L + "_idle"); A.reset_state()
    if ONEP: A("s_barrier")
    A(f"s_branch {L}_next")
    exact_check(A, L + "_slowm", 7, MF, 164, L + "_retrym", L + "_backm", "K3_end")
    A.label(L + "_retrym"); A.reset_state()
    for z in zero[:8]: A(z)
    A(f"s_barrier\ns_cmp_lg_u32 s3, 2\ns_cbranch_scc1 {L}_join\ns_branch {L}_go")
    exact_check(A, L + "_slowp", 10, PFR, 164, L + "_retryp", L + "_nanp", "K3_end")
    A.label(L + "_nanp"); A.reset_state()
    A(f"v_pk_min_u16 v{PA}, v{PA}, s25\ns_branch {L}_backp")
    A.label(L + "_early"); A.reset_state()
    A(f"s_add_u32 s27, s27, 1\ns_cmp_gt_u32 s27, {SPIN_MAX}\ns_cbranch_scc1 K3_end\ns_waitcnt vmcnt(0)\ns_nop 7")
    A.label(L + "_retryp"); A.reset_state()
    for r in range(4): A(f"v_mov_b32 v{PA+r}, 0")
    A(f"s_nop 1\ns_branch {L}_gop")

def b_cu(A):
    srd(A, 36, 18, G.WF_OFF + 16*G.WF_UNIT, 16*G.WF_UNIT)
    srd(A, 48, 18, G.VOF_OFF, 64*G.SEG_SZ)
    srd(A, 68, 18, G.FLG_OFF, G.FLG_SZ)
    A(f"""v_bfe_u32 v5, v1, 2, 2
    v_mul_u32_u24 v5, 3584, v5
    v_and_b32 v6, 3, v1
    v_lshl_add_u32 v5, v6, 7, v5
    s_mul_i32 s33, s3, 14336
    s_lshr_b32 s28, s22, 1
    s_lshl_b32 s28, s28, 9
    s_add_u32 s33, s33, s28
    s_add_u32 s33, s33, {G.FLG_PROD + 16*3584}""")
    for k in range(4):
        G.stage_wait(A, f"K3b_wp{k}", 68, 5, 33, 6, k + 1, "K3_end")
        for i in range(8):
            ct, q = i // 4, i % 4
            A(f"""s_lshl_b32 s28, s3, 2
            s_add_u32 s28, s28, {q}
            s_mul_i32 s28, s28, {G.WF_UNIT}
            s_mul_i32 s29, s22, 28672
            s_add_u32 s28, s28, s29
            s_add_u32 s28, s28, {ct*14336 + k*4096}""")
            if i >= 6: A(f"s_mul_i32 s29, s3, 28672\ns_add_u32 m0, s29, {WL + (i-6)*14336 + k*4096}")
            for u in range(4*k, min(14, 4*k + 4)):
                if i < 6: A(f"buffer_load_dwordx4 {wregB(i, u)}, v4, s[36:39], s28 offen offset:{(u % 4)*1024} sc1")
                else: A(f"buffer_load_dwordx4 v4, s[36:39], s28 offen offset:{(u % 4)*1024} sc1 lds")
    team_flavor(A, "K3_end")
    A(f"""
    s_mul_i32 s28, s3, 28672
    v_add_u32 v5, s28, v4
    v_and_b32 v9, 1, v2
    v_cmp_eq_u32 vcc, 1, v9
    v_mov_b32 v160, 0x4444
    v_mov_b32 v161, 0xeeee
    v_cndmask_b32 v160, v160, v161, vcc
    s_mov_b32 s25, 0xfffefffe
    s_mov_b32 s26, 0xffff0000
    s_mov_b32 s64, 0
    s_mov_b32 s66, {WZL}
    s_and_b32 s24, s3, 1
    s_lshl_b32 s28, s24, 14
    s_add_u32 s28, s28, {VOL}
    v_add_u32 v6, s28, v4
    v_bfe_u32 v8, v2, 1, 1
    v_lshl_add_u32 v8, v3, 2, v8
    v_lshlrev_b32 v7, 4, v8
    v_lshrrev_b32 v8, 2, v2
    v_lshl_add_u32 v7, v8, 2, v7
    v_lshl_add_u32 v7, v9, 1, v7
    s_lshl_b32 s28, s22, 1
    s_add_u32 s28, s28, s24
    s_lshl_b32 s67, s28, 12
    s_lshl_b32 s29, s28, 8
    v_add_u32 v7, s29, v7
    v_min_u32 v161, 27, v1
    v_lshlrev_b32 v161, 2, v161
    v_add_u32 v161, 7168, v161
    v_min_u32 v172, 15, v1
    v_lshlrev_b32 v172, 2, v172
    v_add_u32 v172, {8192 + 7296}, v172
    s_lshl_b32 s28, s28, 2
    s_add_u32 s28, s28, {8192 + 7168}
    v_mov_b32 v173, s28
    v_mov_b32 v8, 0x7ffffff0
    v_cmp_eq_u32 vcc, 0, v1
    v_cndmask_b32 v173, v8, v173, vcc
    v_mov_b32 v175, 0
    v_not_b32 v0, s96
    v_add_u32 v162, {MFLB}, v4
    s_mov_b32 s97, {MFLB}
    s_mul_i32 s98, s24, 3072
    s_waitcnt vmcnt(0)
    """)
    G.TLV[0] = 3
    tl(A, 63)
    A("s_cmp_lg_u32 s65, 0\ns_cbranch_scc1 K3bf1_loop")
    b_loop(A, 0)
    b_loop(A, 1)

def warm_cu(A):
    L = "K3w"
    srd(A, 52, 18, G.XNF_OFF, G.XN_SZ)
    A(f"""v_min_u32 v5, 27, v1
    v_lshlrev_b32 v5, 2, v5
    v_add_u32 v5, 7168, v5
    s_lshl_b32 s28, s3, 10
    v_add_u32 v6, s28, v4
    s_mov_b32 s64, 0""")
    def touch(sreg):
        A(f"s_lshl_b32 s28, s{sreg}, 13\ns_add_u32 s28, s28, 8192\ns_mul_i32 s29, s{sreg}, {G.PF_STRIDE}\ns_mul_i32 s30, s{sreg}, 28672\ns_add_u32 s30, s30, {1*28672}")
        for k in range(2): A(f"buffer_load_dwordx4 v[16:19], v6, s[40:43], s28 offen sc1\ns_add_u32 s28, s28, 4096")
        for k in range(3): A(f"buffer_load_dwordx4 v[16:19], v6, s[44:47], s29 offen sc1\ns_add_u32 s29, s29, 4096")
        for k in range(7): A(f"buffer_load_dwordx4 v[16:19], v6, s[52:55], s30 offen sc1\ns_add_u32 s30, s30, 4096")
    A("v_mov_b32 v7, 2048\ns_mov_b32 s28, 0")
    flag_wait(A, L + "_v0", 56, 7, 28, 8, "K3_end", sleep=8)
    for k in range(WD + 1):
        A(f"s_mov_b32 s33, {k}"); touch(33)
    A.label(L + "_loop")
    A(f"s_add_u32 s64, s64, 1\ns_cmp_ge_u32 s64, {63 - WD}\ns_cbranch_scc1 K3_end\ns_lshl_b32 s32, s64, 13\ns_mov_b32 s27, 0")
    A.label(L + "_w")
    A(f"""s_sleep 4
    buffer_load_dword v8, v5, s[40:43], s32 offen sc1
    s_add_u32 s27, s27, 1
    s_cmp_gt_u32 s27, {SPIN_MAX}
    s_cbranch_scc1 K3_end
    s_waitcnt vmcnt(0)
    v_cmp_eq_u32 vcc, -1, v8
    s_cbranch_vccnz {L}_w
    s_add_u32 s33, s64, {WD}""")
    touch(33)
    A(f"s_branch {L}_loop")

def fwd_cu(A):
    L = "K3f"
    srd(A, 52, 18, G.MEMG_OFF, 64*8192)
    srd(A, 56, 18, G.FLG_OFF, G.FLG_SZ)
    A(f"""v_min_u32 v5, 27, v1
    v_lshlrev_b32 v5, 2, v5
    v_add_u32 v5, 7168, v5
    s_lshl_b32 s28, s3, 11
    s_min_u32 s28, s28, 5120
    v_add_u32 v6, s28, v4
    s_mov_b32 s26, 0xffff0000
    s_mov_b32 s64, 0""")
    team_flavor(A, "K3_end", 10, 11)
    A.label(L + "_loop")
    A(f"s_lshl_b32 s32, s64, 13\ns_mov_b32 s27, 0\ns_cmp_eq_u32 s64, 0\ns_cbranch_scc1 {L}_hu")
    A.label(L + "_w")
    A(f"""s_sleep 1
    buffer_load_dword v8, v5, s[40:43], s32 offen sc1
    s_add_u32 s27, s27, 1
    s_cmp_gt_u32 s27, {SPIN_MAX}
    s_cbranch_scc1 K3_end
    s_waitcnt vmcnt(0)
    v_cmp_eq_u32 vcc, -1, v8
    s_cbranch_vccnz {L}_w""")
    A.label(L + "_hu")
    A(f"s_lshl_b32 s28, s64, 13\ns_add_u32 s28, s28, 6144\ns_cmp_lg_u32 s3, 0\ns_cbranch_scc1 {L}_get")
    flag_set(A, 56, 28, 8, 9)
    A.label(L + "_get")
    A(f"""buffer_load_dwordx4 v[16:19], v6, s[40:43], s32 offen sc1
    buffer_load_dwordx4 v[20:23], v6, s[40:43], s32 offen offset:1024 sc1""")
    exact_check(A, L + "_chk", 2, 16, 8, L + "_get", L + "_ok", "K3_end")
    A.label(L + "_ok")
    A(f"""buffer_store_dwordx4 v[16:19], v6, s[52:55], s32 offen sc1
    buffer_store_dwordx4 v[20:23], v6, s[52:55], s32 offen offset:1024 sc1""")
    A(f"s_add_u32 s64, s64, 1\ns_cmp_lt_u32 s64, 64\ns_cbranch_scc1 {L}_loop\ns_branch K3_end")

def team_publish(A):
    A(f"""s_barrier
    s_lshl_b32 s28, s21, 2
    s_lshl_b32 s31, s21, 7
    s_add_u32 s31, s31, {G.FLG_LN}
    v_mov_b32 v8, s35
    v_mov_b32 v9, s28
    v_mov_b32 v10, s96
    v_mov_b32 v11, s31
    s_mov_b64 exec, 1
    buffer_store_dword v8, v9, s[60:63], 0 offen sc1
    buffer_store_dword v10, v11, s[56:59], 0 offen sc1
    s_mov_b64 exec, -1""")

def team(A):
    A("s_getreg_b32 s35, hwreg(HW_REG_XCC_ID, 0, 4)\ns_add_u32 s35, s35, 1")
    srd(A, 60, 16, 0, 256)
    srd(A, 40, 18, G.MEMF_OFF, 64*G.MEMF_STRIDE)
    srd(A, 44, 18, G.PF_OFF, 64*G.PF_STRIDE)
    A("s_lshl_b32 s23, s21, 2\ns_add_u32 s23, s23, s3")
    G.ln_body(A, "KL")
    srd(A, 56, 18, G.FLG_OFF, G.FLG_SZ)
    A("s_waitcnt vmcnt(0)"); team_publish(A)
    if G.TLM: A("v_writelane_b32 v113, s84, 63\nv_writelane_b32 v113, s85, 58\nv_writelane_b32 v113, s86, 59\nv_writelane_b32 v113, s87, 60"); tl(A, 61)
    A("s_cmp_eq_u32 s21, 31\ns_cbranch_scc1 K3_w\ns_cmp_eq_u32 s21, 30\ns_cbranch_scc1 K3_f")
    A("s_cmp_ge_u32 s21, 16\ns_cbranch_scc1 K3_b\ns_mov_b32 s22, s21")
    a_cu(A)
    A.label("K3_b"); A.reset_state()
    A("s_sub_u32 s22, s21, 16")
    b_cu(A)
    A.label("K3_w"); A.reset_state()
    warm_cu(A)
    A.label("K3_f"); A.reset_state()
    fwd_cu(A)
```

```python
from asmlib import *
import gen as G
from gen import srd, lane_setup, xreduce, flag_set, flag_wait
from kernels2 import f2h, LOG2E

def gemm2_task(A, L, bail):
    Z, XX, XN, UP, MP, ACC, PR = 16, 96, 100, 104, 112, 224, 232
    A(f"""s_lshl_b32 s24, s23, 2
    s_add_u32 s24, s24, s3
    s_lshl_b32 s33, s22, 13
    v_min_u32 v6, 15, v1
    v_lshlrev_b32 v6, 7, v6
    v_add_u32 v6, 2048, v6""")
    flag_wait(A, L + "_wv", 92, 6, 33, 7, bail)
    A(f"""s_mul_i32 s28, s22, {G.SEG_SZ}
    s_lshl_b32 s29, s24, 14
    s_add_u32 s28, s28, s29""")
    for f in range(16):
        if f and f % 4 == 0: A("s_add_u32 s28, s28, 4096")
        A(f"buffer_load_dwordx4 {v(Z+4*f, 4)}, v4, s[40:43], s28 offen offset:{(f % 4)*1024} sc1")
    A(f"""v_mul_u32_u24 v5, 896, v2
    v_lshl_add_u32 v5, v3, 3, v5
    s_mul_i32 s30, s22, {32*896}
    s_lshl_b32 s29, s24, 5
    s_add_u32 s30, s30, s29
    s_add_u32 s31, s30, {16*896}
    v_lshrrev_b32 v6, 1, v3
    v_lshlrev_b32 v6, 8, v6
    v_lshl_add_u32 v6, v2, 4, v6
    v_and_b32 v7, 1, v3
    v_lshl_add_u32 v6, v7, 3, v6
    s_mul_i32 s28, s22, 28672
    s_lshl_b32 s29, s24, 9
    s_add_u32 s28, s28, s29
    s_add_u32 s29, s28, 14336""")
    for qt in range(2):
        A(f"buffer_load_dwordx2 {v(XX+2*qt, 2)}, v5, s[48:51], s{30+qt} offen")
        A(f"buffer_load_dwordx2 {v(XN+2*qt, 2)}, v6, s[52:55], s{28+qt} offen")
    for r in range(8): A(f"v_mov_b32 v{UP+r}, 0")
    A(f"""v_min_u32 v6, 27, v1
    v_lshlrev_b32 v6, 7, v6
    s_mov_b32 s28, {G.FLG_MOE}""")
    flag_wait(A, L + "_wm", 92, 6, 28, 7, bail)
    A("""v_lshlrev_b32 v6, 2, v1
    buffer_load_dword v13, v6, s[60:63], 0 offen sc1
    v_min_u32 v6, 19, v1
    v_lshlrev_b32 v6, 7, v6
    v_add_u32 v7, 5632, v6
    v_add_u32 v6, 4096, v6
    v_cmp_lt_u32 vcc, 15, v1
    v_cndmask_b32 v6, v6, v7, vcc""")
    flag_wait(A, L + "_wp", 92, 6, 33, 7, bail, sleep=1)
    A(f"""s_mul_i32 s28, s22, {G.PXF_SEG}
    s_mul_i32 s29, s3, 10240
    s_add_u32 s28, s28, s29
    s_mov_b32 m0, s29""")
    for kk in range(10):
        if kk and kk % 4 == 0: A("s_add_u32 s28, s28, 4096\ns_add_u32 m0, m0, 4096")
        A(f"buffer_load_dwordx4 v4, s[36:39], s28 offen offset:{(kk % 4)*1024} sc1 lds")
    A(f"s_mul_i32 s28, s22, {G.WZ_SEG}\ns_lshl_b32 s29, s24, 12\ns_add_u32 s28, s28, s29")
    A("v_lshlrev_b32 v6, 2, v1")
    for f in range(16): A(f"buffer_load_dword v{Z+64+f}, v6, s[44:47], s28 offen offset:{f*256} sc1")
    A("s_waitcnt vmcnt(16)\ns_barrier")
    ring = lambda f: PR + (f % 3)*8
    def rd(f):
        for qt in range(2): A(f"ds_read_b128 {v(ring(f)+4*qt, 4)}, v4 offset:{qt*20480 + f*1024}")
    rd(0); rd(1)
    for f in range(20):
        if f + 2 < 20: rd(f + 2)
        A(f"s_waitcnt vmcnt({min(16, 4*(19 - f))}) lgkmcnt({2*min(2, 19-f)})")
        for qt in range(2):
            d = v(ACC+4*qt, 4)
            A(f"v_mfma_f32_16x16x32_bf16 {d}, {v(Z+4*f, 4)}, {v(ring(f)+4*qt, 4)}, {d if f else '0'}")
    A(f"""s_waitcnt vmcnt(0)
    s_mov_b32 s26, 0xffff0000
    s_mov_b32 s32, 0
    s_lshl_b32 s33, s22, 5
    v_add_u32 v8, s33, v2
    v_add_u32 v9, 16, v8
    v_lshlrev_b32 v10, 4, v3""")
    A.flush()
    A.label(L + "_moe"); A.reset_state()
    A(f"""s_nop 3
    v_readlane_b32 s34, v13, s32
    s_nop 3
    s_lshr_b32 s35, s34, 5
    s_cmp_lg_u32 s35, s22
    s_cbranch_scc1 {L}_moen
    s_mul_i32 s28, s32, 1792
    s_lshl_b32 s29, s24, 6
    s_add_u32 s28, s28, s29
    s_lshl_b32 s29, s34, 2
    v_mov_b32 v11, s29
    buffer_load_dword v12, v11, s[64:67], 0 offen""")
    for m in range(28):
        A(f"buffer_load_dwordx4 {v(MP+4*m, 4)}, v10, s[56:59], s28 offen sc1\ns_add_u32 s28, s28, 14336")
    A("s_waitcnt vmcnt(0)")
    for m in range(1, 28):
        A(f"v_pk_add_f32 {v(MP, 2)}, {v(MP, 2)}, {v(MP+4*m, 2)}\nv_pk_add_f32 {v(MP+2, 2)}, {v(MP+2, 2)}, {v(MP+4*m+2, 2)}")
    A(f"""v_mul_f32 v12, {LOG2E}, v12
    v_exp_f32 v12, -v12
    v_cvt_pk_bf16_f32 v{MP}, v{MP}, v{MP+1}
    v_add_f32 v12, 1.0, v12
    v_rcp_f32 v12, v12
    v_cvt_pk_bf16_f32 v{MP+2}, v{MP+2}, v{MP+3}
    v_cvt_pk_bf16_f32 v12, v12, v12
    v_and_b32 v12, s26, v12
    v_and_b32 v{MP+1}, s26, v{MP}
    v_lshlrev_b32 v{MP}, 16, v{MP}
    v_and_b32 v{MP+3}, s26, v{MP+2}
    v_lshlrev_b32 v{MP+2}, 16, v{MP+2}""")
    for r in range(4): A(f"v_mul_f32 v{MP+r}, v{MP+r}, v12")
    A(f"""v_cvt_pk_bf16_f32 v{MP}, v{MP}, v{MP+1}
    v_cvt_pk_bf16_f32 v{MP+2}, v{MP+2}, v{MP+3}
    v_and_b32 v{MP+1}, s26, v{MP}
    v_lshlrev_b32 v{MP}, 16, v{MP}
    v_and_b32 v{MP+3}, s26, v{MP+2}
    v_lshlrev_b32 v{MP+2}, 16, v{MP+2}""")
    for qt in range(2):
        A(f"v_cmp_eq_u32 vcc, s34, v{8+qt}")
        for r in range(4): A(f"v_cndmask_b32 v{UP+4*qt+r}, v{UP+4*qt+r}, v{MP+r}, vcc")
    A.flush()
    A.label(L + "_moen"); A.reset_state()
    A(f"s_add_u32 s32, s32, 1\ns_cmp_lt_u32 s32, 8\ns_cbranch_scc1 {L}_moe")
    T = MP
    for qt in range(2):
        for p in range(2):
            a0 = ACC + 4*qt + 2*p; u0 = UP + 4*qt + 2*p
            A(f"""v_cvt_pk_bf16_f32 v{T}, v{a0}, v{a0+1}
            v_lshlrev_b32 v{T+2}, 16, v{XX+2*qt+p}
            v_and_b32 v{T+3}, s26, v{XX+2*qt+p}
            v_and_b32 v{T+1}, s26, v{T}
            v_lshlrev_b32 v{T}, 16, v{T}
            v_lshlrev_b32 v{T+4}, 16, v{XN+2*qt+p}
            v_and_b32 v{T+5}, s26, v{XN+2*qt+p}
            v_pk_add_f32 {v(T, 2)}, {v(T, 2)}, {v(T+2, 2)}
            v_pk_add_f32 {v(T+4, 2)}, {v(T+4, 2)}, {v(u0, 2)}
            v_cvt_pk_bf16_f32 v{T}, v{T}, v{T+1}
            v_cvt_pk_bf16_f32 v{T+4}, v{T+4}, v{T+5}
            v_and_b32 v{T+1}, s26, v{T}
            v_lshlrev_b32 v{T}, 16, v{T}
            v_and_b32 v{T+5}, s26, v{T+4}
            v_lshlrev_b32 v{T+4}, 16, v{T+4}
            v_pk_add_f32 {v(T, 2)}, {v(T, 2)}, {v(T+4, 2)}
            v_cvt_pk_bf16_f32 v{T+8+2*qt+p}, v{T}, v{T+1}""")
        A(f"buffer_store_dwordx2 {v(T+8+2*qt, 2)}, v5, s[68:71], s{30+qt} offen")

NINF = "0xff800000"
def xattn_task(A, L, bail):
    TX, RG, SD, SO, SMM = 16, 128, 160, 168, 172
    A(f"""s_mul_i32 s28, s22, 28672
    s_mul_i32 s29, s3, 7168
    s_add_u32 s28, s28, s29
    s_mov_b32 m0, s29""")
    for k in range(7):
        if k == 4: A("s_add_u32 s28, s28, 4096\ns_add_u32 m0, m0, 4096")
        A(f"buffer_load_dwordx4 v4, s[76:79], s28 offen offset:{(k % 4)*1024} lds")
    A(f"""s_lshl_b32 s24, s23, 2
    s_add_u32 s24, s24, s3
    s_mul_i32 s28, s22, {G.SEG_SZ}
    s_mul_i32 s29, s24, 28672
    s_add_u32 s28, s28, s29
    s_lshl_b32 s33, s22, 13
    s_lshl_b32 s29, s24, 7
    v_mov_b32 v6, s29""")
    flag_wait(A, L + "_wt", 92, 6, 33, 7, bail)
    order = [(qt, vv) for vv in range(14) for qt in range(2)]
    for qt, vv in order:
        A(f"s_add_u32 s29, s28, {qt*14336 + (vv // 4)*4096}")
        A(f"buffer_load_dwordx4 {v(TX + (qt*14 + vv)*4, 4)}, v4, s[72:75], s29 offen offset:{(vv % 4)*1024} sc1")
    A("v_lshlrev_b32 v5, 2, v3")
    for r in range(4): A(f"v_add_u32 v6, {r}, v5\nv_cmp_le_u32 s[{84+2*r}:{85+2*r}], v6, v2")
    A("""v_and_b32 v6, 1, v2
    v_cmp_eq_u32 vcc, 1, v6
    v_mov_b32 v7, 0x4444
    v_mov_b32 v6, 0xeeee
    v_cndmask_b32 v7, v7, v6, vcc
    s_waitcnt vmcnt(28)
    s_barrier""")
    ring = lambda k: RG + (k % 4)*8
    def rd(k):
        for kt in range(2): A(f"ds_read_b128 {v(ring(k)+4*kt, 4)}, v4 offset:{kt*14336 + k*1024}")
    for k in range(3): rd(k)
    tx = lambda qt, vv, n=4: v(TX + (qt*14 + vv)*4, n)
    for k in range(14):
        if k + 3 < 14: rd(k + 3)
        A(f"s_waitcnt vmcnt({2*(13-k)}) lgkmcnt({2*min(3, 13-k)})")
        for d, kt, qt in ((SD, 0, 0), (SO, 0, 1), (SD+4, 1, 1)):
            A(f"v_mfma_f32_16x16x32_bf16 {v(d, 4)}, {v(ring(k)+4*kt, 4)}, {tx(qt, k)}, {v(d, 4) if k else '0'}")
    for r in range(8): A(f"v_mov_b32 v{SMM+r}, 0")
    A(f"v_mov_b32 v6, {NINF}")
    for q in range(2):
        for r in range(4): A(f"v_cndmask_b32 v{SD+4*q+r}, v6, v{SD+4*q+r}, s[{84+2*r}:{85+2*r}]")
    A("v_mov_b32 v6, 6144")
    flag_wait(A, L + "_wm", 92, 6, 33, 9, bail, sleep=1)
    A("s_lshl_b32 s28, s22, 13\ns_add_u32 s29, s28, 4096")
    G.mem_poll(A, L + "_mp", 80, (28, 29), RG, 9, 10, bail)
    for t in range(7):
        for qt in range(2): A(f"v_smfmac_f32_16x16x64_bf16 {v(SMM+4*qt, 4)}, {v(RG+4*t, 4)}, {tx(qt, 2*t, 8)}, v7")
    A(f"""s_mul_i32 s28, s22, {G.PXF_SEG}
    s_lshl_b32 s29, s24, 10
    s_add_u32 s29, s29, s28
    s_add_u32 s30, s23, 16
    s_lshl_b32 s30, s30, 10
    s_add_u32 s30, s30, s28
    s_lshl_b32 s31, s3, 2
    v_add_u32 v8, s31, v4""")
    m, t1, l, O = 180, 182, 184, 188
    for qt in range(2):
        M, Dg = SMM + 4*qt, SD + 4*qt
        A(f"v_add_f32 v{M}, v{M}, v{M+1}\nv_add_f32 v{M+1}, v{M+2}, v{M+3}")
        prs = [M, Dg, Dg+2] + ([SO, SO+2] if qt else [])
        A(f"v_max3_f32 v{m}, v{M}, v{M+1}, v{Dg}\nv_max3_f32 v{m}, v{m}, v{Dg+1}, v{Dg+2}\nv_max_f32 v{m}, v{m}, v{Dg+3}")
        if qt: A(f"v_max3_f32 v{m}, v{m}, v{SO}, v{SO+1}\nv_max3_f32 v{m}, v{m}, v{SO+2}, v{SO+3}")
        xreduce(A, "v_max_f32", m, t1)
        for r in prs: A(f"v_pk_add_f32 {v(r, 2)}, {v(r, 2)}, {v(m, 2)} op_sel_hi:[1,0] neg_lo:[0,1] neg_hi:[0,1]")
        for r in prs: A(f"v_exp_f32 v{r}, v{r}\nv_exp_f32 v{r+1}, v{r+1}")
        A(f"v_pk_add_f32 {v(l, 2)}, {v(prs[0], 2)}, {v(prs[1], 2)}")
        for r in prs[2:]: A(f"v_pk_add_f32 {v(l, 2)}, {v(l, 2)}, {v(r, 2)}")
        A(f"v_add_f32 v{l}, v{l}, v{l+1}")
        xreduce(A, "v_add_f32", l, t1)
        A(f"v_rcp_f32 v{l}, v{l}")
        for r in prs: A(f"v_pk_mul_f32 {v(r, 2)}, {v(r, 2)}, {v(l, 2)} op_sel_hi:[1,0]")
        o = O + 8*qt
        if qt == 0:
            A(f"v_cvt_pk_bf16_f32 v{o}, v{Dg}, v{Dg+1}\nv_cvt_pk_bf16_f32 v{o+1}, v{Dg+2}, v{Dg+3}\nv_mov_b32 v{o+2}, 0\nv_mov_b32 v{o+3}, 0")
        else:
            A(f"v_cvt_pk_bf16_f32 v{o}, v{SO}, v{SO+1}\nv_cvt_pk_bf16_f32 v{o+1}, v{SO+2}, v{SO+3}\nv_cvt_pk_bf16_f32 v{o+2}, v{Dg}, v{Dg+1}\nv_cvt_pk_bf16_f32 v{o+3}, v{Dg+2}, v{Dg+3}")
        A(f"v_cvt_pk_bf16_f32 v{o+4}, v{M}, v{M+1}")
        A(f"buffer_store_dwordx4 {v(o, 4)}, v4, s[36:39], s29 offen sc1\nbuffer_store_dword v{o+4}, v8, s[36:39], s30 offen sc1")
        if qt == 0: A("s_add_u32 s29, s29, 20480\ns_add_u32 s30, s30, 20480")

    A(f"s_waitcnt vmcnt(0)\ns_barrier\ns_lshl_b32 s28, s23, 7\ns_add_u32 s28, s28, s33\ns_add_u32 s28, s28, 7680\ns_cmp_lg_u32 s3, 0\ns_cbranch_scc1 {L}_nofl")
    flag_set(A, 92, 28, 6, 7)
    A.label(L + "_nofl")

def xattn_srds(A):
    srd(A, 36, 18, G.PXF_OFF, 64*G.PXF_SEG)
    srd(A, 72, 18, G.KQF_OFF, 64*G.SEG_SZ)
    srd(A, 76, 18, G.XNF_OFF, G.XN_SZ)
    srd(A, 80, 18, G.MEMG_OFF, 64*8192)

def gemm2_srds(A):
    srd(A, 36, 18, G.PXF_OFF, 64*G.PXF_SEG)
    srd(A, 40, 18, G.VOF_OFF, 64*G.SEG_SZ)
    srd(A, 44, 18, G.WZ_OFF, 64*G.WZ_SEG)
    srd(A, 48, 4, 0, G.XN_SZ)
    srd(A, 52, 18, G.XNF_OFF, G.XN_SZ)
    srd(A, 56, 18, G.MOEP_OFF, G.MOEP_SZ)
    srd(A, 60, 18, G.IDX_OFF, 32)
    srd(A, 64, 18, G.R_OFF, 8192)
    srd(A, 68, 6, 0, G.XN_SZ)
```

```python
from asmlib import *
import gen as G
from gen import srd, lane_setup, tl, tls, tl_dump, TLV, TLM, flag_set, flag_wait
import kernels2 as K2, kernels3 as K3, kernels4 as K4

import os
DEFER = int(os.environ.get('DEFER', '20'))
def kmain(A):
    A.label(G.NAME + "_kernel")
    A("""
    s_cmp_ge_u32 s2, 256
    s_cbranch_scc1 K3_end
    s_load_dwordx4 s[16:19], s[0:1], 104
    s_load_dwordx2 s[4:5], s[0:1], 0
    s_load_dwordx2 s[6:7], s[0:1], 96
    s_load_dwordx4 s[8:11], s[0:1], 72
    s_load_dwordx2 s[12:13], s[0:1], 88
    """)
    lane_setup(A)
    A("""v_lshlrev_b32 v4, 4, v1
    s_and_b32 s20, s2, 7
    s_lshr_b32 s21, s2, 3
    s_waitcnt lgkmcnt(0)
    s_add_u32 s14, s18, """ + hex(G.FLG_OFF + G.FLG_EPOCH) + """
    s_addc_u32 s15, s19, 0
    s_load_dword s96, s[14:15], 0
    s_cmp_lg_u32 s20, 0
    s_cbranch_scc1 KM_worker
    s_load_dwordx2 s[76:77], s[0:1], 8
    s_load_dwordx2 s[78:79], s[0:1], 64
    s_waitcnt lgkmcnt(0)
    s_add_u32 s96, s96, 1
    s_lshl_b32 s95, s96, 3""")
    TLV[0] = 113
    tls(A, 0)
    K3.team(A)
    TLV[0] = 15
    A.label("KM_worker"); A.reset_state()
    A("""s_load_dwordx4 s[76:79], s[0:1], 16
    s_load_dwordx4 s[80:83], s[0:1], 32
    s_sub_u32 s20, s20, 1
    s_lshl_b32 s20, s20, 5
    s_add_u32 s20, s20, s21
    s_mul_i32 s22, s20, 9363
    s_lshr_b32 s22, s22, 16
    s_mul_i32 s23, s22, 7
    s_sub_u32 s23, s20, s23
    s_mov_b32 s21, s23
    s_waitcnt lgkmcnt(0)
    s_add_u32 s96, s96, 1
    s_lshl_b32 s95, s96, 3""")
    tls(A, 0)
    srd(A, 48, 18, G.FLG_OFF, G.FLG_SZ)
    G.prod_body(A, "KP")
    tls(A, 4)
    A("s_cmp_ge_u32 s22, 16\ns_cbranch_scc1 KM_g1")
    G.fill_body(A, "KF")
    A("s_and_b32 s28, s20, 3\ns_cmp_lg_u32 s28, 1\ns_cbranch_scc1 KM_nomoe")
    A(f"v_min_u32 v5, 31, v1\nv_lshlrev_b32 v5, 7, v5\ns_mov_b32 s28, {G.FLG_LN}")
    flag_wait(A, "KE_l", 48, 5, 28, 6, "K3_end", sleep=8)
    A("s_mov_b32 s94, s22\ns_lshr_b32 s22, s20, 2\ns_barrier")
    K2.moe_body(A, "KE")
    srd(A, 48, 18, G.FLG_OFF, G.FLG_SZ)
    A("s_mov_b32 s22, s94\ns_barrier")
    A.label("KM_nomoe"); A.reset_state()
    A(f"s_lshl_b32 s28, s22, 7\ns_add_u32 s28, s28, {DEFER*8192 + 2048}\nv_mov_b32 v5, 0")
    flag_wait(A, "KM_df", 48, 5, 28, 6, "K3_end", sleep=16)
    A.label("KM_g1"); A.reset_state()
    A("s_barrier")
    tls(A, 5)
    if TLM:
        for k in range(6): A(f"v_writelane_b32 v15, s{84+k}, {20+k}")
    K2.gemm1_body(A, "KG")
    A.label("KG_done"); A.reset_state()
    tl(A, 2)
    A("s_cmp_lt_u32 s22, 16\ns_cbranch_scc1 KM_tasks")
    K2.wserve_body(A, "KW", "KM_end")
    A.label("KM_tasks"); A.reset_state()
    tl(A, 3)
    if TLM: A("s_mov_b32 s21, 4")
    K4.gemm2_srds(A)
    K4.xattn_srds(A)
    srd(A, 92, 18, G.FLG_OFF, G.FLG_SZ)
    A("v_lshlrev_b32 v4, 4, v1")
    A.label("KM_next"); A.reset_state()
    A("""s_mul_i32 s22, s20, 5958
    s_lshr_b32 s22, s22, 16
    s_mul_i32 s23, s22, 11
    s_sub_u32 s23, s20, s23
    s_barrier
    s_cmp_ge_u32 s23, 4
    s_cbranch_scc1 KM_g""")
    K4.xattn_task(A, "KX", "K3_end")
    A("s_branch KM_adv")
    A.label("KM_g"); A.reset_state()
    A("s_sub_u32 s23, s23, 4")
    K4.gemm2_task(A, "K4", "K3_end")
    A.label("KM_adv")
    if TLM:
        A("s_waitcnt vmcnt(0)"); tl(A, 0, 21); A("s_add_u32 s21, s21, 1")
    A(f"s_cmp_lg_u32 s20, 703\ns_cbranch_scc1 KM_ne\ns_cmp_lg_u32 s3, 0\ns_cbranch_scc1 KM_ne\ns_mov_b32 s28, {G.FLG_EPOCH}")
    flag_set(A, 92, 28, 6, 7)
    if TLM == 2:
        srd(A, 36, 16, 0, 256)
        A("s_memrealtime s[100:101]\ns_waitcnt lgkmcnt(0)\nv_mov_b32 v6, s100\nv_mov_b32 v7, 60\ns_mov_b64 exec, 1\nbuffer_store_dword v6, v7, s[36:39], 0 offen\ns_mov_b64 exec, -1")
    A.label("KM_ne")
    A("s_add_u32 s20, s20, 112\ns_cmp_lt_u32 s20, 704")
    A.flush()
    A("s_cbranch_scc1 KM_next")
    A.label("KM_end")
    tl(A, 15); tl_dump(A, 1)
    A.label("K3_end")
    A("s_endpgm")
```

```python
import sys
from asmlib import *

NAME = "parallel_sum__memory_aug_recurrent_mem_tr__moe_arch_mod__prompt"
XN_OFF, XN_SZ = 0x0000000, 2048*896
XNF_OFF = 0x0200000
R_OFF = 0x0400000
MOEP_OFF, MOEP_SZ = 0x0410000, 28*8*448*4
IDX_OFF = 0x0480000
MEMF_OFF, MEMF_STRIDE = 0x0500000, 8192
PF_OFF, PF_STRIDE = 0x0600000, 10240
WF_OFF, WF_UNIT = 0x0800000, 28*14*1024
KQF_OFF, SEG_SZ = 0x1800000, 16*28*1024
VOF_OFF = 0x3400000
PXF_OFF, PXF_SEG = 0x5000000, 40*1024
WZ_OFF, WZ_SEG = 0x5400000, 28*4*1024
MEMG_OFF = 0x5C00000
FLG_MOE, FLG_PROD, FLG_LN, FLG_EPOCH = 16384*32, 18432*32, 17664*32, 17920*32
FLG_OFF, FLG_SZ = 0x5D00000, 22*1024*32
SPIN_MAX = 1 << 22
W3_SZ = 448*8192
SCALE_LOG2E = 0x3db8aa3b
import struct
assert abs(struct.unpack('<f', struct.pack('<I', SCALE_LOG2E))[0] - 1.4426950408889634/16) < 1e-8

KARG = dict(x=0, mem0=8, wq=16, wk=24, wv=32, wo=40, wr=64, wg=72, wu=80, wd=88, out=96, dbg=104, ws=112)

def srd(A, d, base, off, size):
    if off == 0:
        A(f"s_mov_b32 s{d}, s{base}\ns_mov_b32 s{d+1}, s{base+1}")
    else:
        o = off if isinstance(off, str) else hex(off)
        A(f"s_add_u32 s{d}, s{base}, {o}\ns_addc_u32 s{d+1}, s{base+1}, 0")
    A(f"s_mov_b32 s{d+2}, {hex(size)}\ns_mov_b32 s{d+3}, 0x20000")

def lane_setup(A, vlane=1, vn=2, vg=3, swave=3):
    A(f"""
    v_and_b32 v{vlane}, 63, v0
    v_lshrrev_b32 v{vg}, 6, v0
    v_and_b32 v{vn}, 15, v0
    v_readfirstlane_b32 s{swave}, v{vg}
    v_bfe_u32 v{vg}, v0, 4, 2
    """)

def xreduce(A, op, x, t, steps=(16, 32)):
    for st in steps:
        if st == 8:
            A(f"{op}_dpp v{x}, v{x}, v{x} row_ror:8 row_mask:0xf bank_mask:0xf")
        else:
            A(f"v_mov_b32 v{t}, v{x}")
            A(f"v_permlane{st}_swap_b32 v{x}, v{t}")
            A(f"{op} v{x}, v{x}, v{t}")

import os
TLM = int(os.environ.get("TLM", "0"))
def tl(A, k, sreg=None):
    if not TLM: return
    if sreg is None: A(f"s_memrealtime s[100:101]\ns_waitcnt lgkmcnt(0)\nv_writelane_b32 v{TLV[0]}, s100, {k}")
    else: A(f"s_memrealtime s[100:101]\ns_mov_b32 m0, s{sreg}\ns_waitcnt lgkmcnt(0)\nv_writelane_b32 v{TLV[0]}, s100, m0")
TLV = [15]
def tls(A, k):
    if TLM: A(f"s_memrealtime s[100:101]\ns_waitcnt lgkmcnt(0)\ns_mov_b32 s{84+k}, s100")
def tl_dump(A, kern, wsreg=18):
    if not TLM: return
    A(f"""s_add_u32 s36, s{wsreg}, {hex(0x5F00000 + kern*0x40000)}
    s_addc_u32 s37, s{wsreg+1}, 0
    s_mov_b32 s38, 0x40000
    s_mov_b32 s39, 0x20000
    v_mbcnt_lo_u32_b32 v14, -1, 0
    v_mbcnt_hi_u32_b32 v14, -1, v14
    v_lshlrev_b32 v14, 2, v14
    s_lshl_b32 s100, s2, 10
    s_lshl_b32 s101, s3, 8
    s_add_u32 s100, s100, s101
    buffer_store_dword v{TLV[0]}, v14, s[36:39], s100 offen""")

def flag_wait(A, L, srdn, voff, soff, tmp, bail, sleep=6, cnt=27):
    A(f"s_mov_b32 s{cnt}, 0")
    A.label(L)
    A(f"""buffer_load_dword v{tmp}, v{voff}, s[{srdn}:{srdn+3}], s{soff} offen sc1
    s_add_u32 s{cnt}, s{cnt}, 1
    s_cmp_gt_u32 s{cnt}, {SPIN_MAX}
    s_cbranch_scc1 {bail}
    s_waitcnt vmcnt(0)
    v_cmp_ne_u32 vcc, s96, v{tmp}
    s_cbranch_vccz {L}_ok
    s_sleep {min(127, sleep*int(os.environ.get('SLP', '1')))}
    s_branch {L}""")
    A.label(L + "_ok")

def flag_set(A, srdn, soff, t0, t1):
    A(f"""v_mov_b32 v{t0}, s96
    v_mov_b32 v{t1}, 0
    s_mov_b64 exec, 1
    buffer_store_dword v{t0}, v{t1}, s[{srdn}:{srdn+3}], s{soff} offen sc1
    s_mov_b64 exec, -1""")

def wreg(i, u, n=4):
    idx = 56*i + 4*u
    if idx < 256:
        assert idx + n <= 256
        return a_(idx, n)
    return v(120 + idx - 256, n)

def stage_wait(A, L, srdn, voff, soff, t0, k, bail, sleep=int(os.environ.get('SLS', '6'))):
    A("s_mov_b32 s27, 0")
    A.label(L)
    A(f"""buffer_load_dword v{t0}, v{voff}, s[{srdn}:{srdn+3}], s{soff} offen sc1
    s_add_u32 s27, s27, 1
    s_cmp_gt_u32 s27, {SPIN_MAX}
    s_cbranch_scc1 {bail}
    s_waitcnt vmcnt(0)
    v_subrev_u32 v{t0}, s95, v{t0}
    v_subrev_u32 v{t0}, {k}, v{t0}
    v_cmp_lt_u32 vcc, {4 - k}, v{t0}
    s_cbranch_vccz {L}_ok
    s_sleep {sleep}
    s_branch {L}""")
    A.label(L + "_ok")

def prod_body(A, L):
    A(f"""s_and_b32 s24, s22, 15
    s_lshl_b32 s25, s24, 9
    s_mul_i32 s26, s22, {WF_UNIT}
    s_add_u32 s26, s26, {hex(WF_OFF)}""")
    srd(A, 36, 18, "s26", WF_UNIT)
    VO, RA, SR, TMP = 216, 224, 136, 232
    A("""v_lshrrev_b32 v5, 5, v1
    v_and_b32 v6, 31, v1
    v_xor_b32 v6, v6, v5
    v_lshlrev_b32 v6, 4, v6
    v_lshl_add_u32 v6, v5, 13, v6""")
    for k in range(8):
        A(f"v_xor_b32 v{VO+k}, {2*k << 4}, v6\nv_add_u32 v{VO+k}, {(8*(k >> 1) + 2*(k & 1))*8192}, v{VO+k}")
    def tile_dma(srdn, soff):
        for k in range(8):
            A(f"buffer_load_dwordx4 v{VO+k}, s[{srdn}:{srdn+3}], s{soff} offen lds\ns_add_u32 m0, m0, 1024")
    def stage_dma(k):
        A(f"""s_add_u32 s27, s3, {4*k}
        s_lshl_b32 s27, s27, 18
        s_add_u32 s27, s27, s25
        s_add_u32 m0, s32, {(k % 2)*16384}""")
        tile_dma(40, 27)
        A("s_add_u32 s27, s27, 32768")
        tile_dma(40, 27)
    rreg = lambda ct, ks: v(8 + (ct*8 + ks)*4, 4)
    A(f"""s_lshl_b32 s32, s3, 15
    s_add_u32 s32, s32, 32768
    s_mov_b32 s30, 1.0
    s_cmp_ge_u32 s22, 16
    s_cbranch_scc1 {L}_t1""")
    srd(A, 40, 76, 0, W3_SZ)
    srd(A, 44, 78, 0, W3_SZ)
    A(f"""s_mov_b32 s30, {hex(SCALE_LOG2E)}
    s_lshl_b32 s27, s23, 19
    s_lshr_b32 s28, s3, 1
    s_lshl_b32 s28, s28, 18
    s_add_u32 s27, s27, s28
    s_and_b32 s28, s3, 1
    s_lshl_b32 s28, s28, 15
    s_add_u32 s27, s27, s28
    s_add_u32 s27, s27, s25
    s_lshl_b32 m0, s3, 13""")
    tile_dma(44, 27)
    stage_dma(0)
    A(f"s_branch {L}_c0")
    A.label(L + "_t1"); A.reset_state()
    srd(A, 40, 80, 0, W3_SZ)
    A(f"s_mul_i32 s27, s24, {256*896}")
    srd(A, 44, 82, "s27", 256*896)
    A(f"""v_lshrrev_b32 v5, 3, v1
    v_and_b32 v6, 7, v1
    v_and_b32 v7, 6, v5
    v_xor_b32 v6, v6, v7
    v_lshlrev_b32 v6, 4, v6
    v_and_b32 v7, 3, v5
    v_lshrrev_b32 v5, 2, v5
    v_lshl_add_u32 v7, v5, 3, v7
    v_mul_u32_u24 v7, 896, v7
    v_add_u32 v7, v7, v6
    s_lshl_b32 s27, s23, 7
    s_mul_i32 s28, s3, {64*896}
    s_add_u32 s27, s27, s28
    s_lshl_b32 m0, s3, 13""")
    for k in range(8):
        A(f"buffer_load_dwordx4 v7, s[44:47], s27 offen lds\ns_add_u32 m0, m0, 1024\ns_add_u32 s27, s27, {(4 if k % 2 == 0 else 12)*896}")
    stage_dma(0)
    A.label(L + "_c0"); A.reset_state()
    A("""v_and_b32 v5, 3, v2
    v_xor_b32 v5, v5, v3
    v_and_b32 v6, 12, v2
    v_or_b32 v5, v5, v6
    v_lshlrev_b32 v5, 4, v5
    v_lshl_add_u32 v5, v2, 9, v5""")
    for ks in range(8): A(f"v_xor_b32 v{RA+ks}, {ks << 6}, v5")
    stage_dma(1)
    tls(A, 1)
    A(f"s_waitcnt vmcnt(32)\ns_barrier\ns_cmp_ge_u32 s22, 16\ns_cbranch_scc1 {L}_r1")
    for ct in range(4):
        for ks in range(8): A(f"ds_read_b128 {rreg(ct, ks)}, v{RA+ks} offset:{ct*8192}")
        A("s_waitcnt lgkmcnt(7)")
    A(f"s_branch {L}_c1")
    A.label(L + "_r1"); A.reset_state()
    A("""v_lshrrev_b32 v5, 2, v2
    v_and_b32 v6, 1, v3
    v_lshl_add_u32 v6, v6, 2, v5
    v_lshrrev_b32 v7, 1, v6
    v_lshrrev_b32 v5, 1, v3
    v_lshl_add_u32 v6, v5, 4, v6
    v_lshlrev_b32 v6, 7, v6
    v_and_b32 v5, 3, v2
    v_lshl_add_u32 v6, v5, 3, v6""")
    for ct in range(4):
        A(f"v_xor_b32 v5, {ct}, v7\nv_lshl_add_u32 v5, v5, 5, v6")
        for ks in range(8):
            for z in range(2): A(f"ds_read_b64_tr_b16 {v(8 + (ct*8 + ks)*4 + 2*z, 2)}, v5 offset:{ks*4096 + z*1024}")
            if ks % 4 == 3: A("s_waitcnt lgkmcnt(7)")
    A.label(L + "_c1"); A.reset_state()
    tls(A, 2)
    for ks in range(8): A(f"v_add_u32 v{RA+ks}, s32, v{RA+ks}")
    A(f"""s_mul_i32 s31, s23, {4*14*1024}
    s_lshl_b32 s28, s3, 10
    s_add_u32 s31, s31, s28
    s_lshl_b32 s33, s20, 9
    s_lshl_b32 s28, s3, 7
    s_add_u32 s33, s33, s28
    s_add_u32 s33, s33, {FLG_PROD}
    v_mov_b32 v6, 0x7ffffff0
    v_cmp_eq_u32 vcc, 0, v1
    v_cndmask_b32 v6, v6, v1, vcc""")
    acc = lambda k, ct, e: a_(((k*4 + ct)*2 + e)*4, 4)
    def epilogue(k):
        o = []
        for ct in range(4):
            t = TMP + 4*(ct % 2)
            for e in range(2):
                b = ((k*4 + ct)*2 + e)*4
                for r in range(4): o.append(f"v_accvgpr_read_b32 v{TMP+8+r}, a{b+r}")
                for r in (0, 2): o.append(f"v_pk_mul_f32 {v(TMP+8+r, 2)}, {v(TMP+8+r, 2)}, s[30:31] op_sel_hi:[1,0]")
                o.append(f"v_cvt_pk_bf16_f32 v{t+2*e}, v{TMP+8}, v{TMP+9}")
                o.append(f"v_cvt_pk_bf16_f32 v{t+2*e+1}, v{TMP+10}, v{TMP+11}")
            o.append(f"s_add_u32 s28, s31, {(ct*14 + 4*k)*1024}\nbuffer_store_dwordx4 {v(t, 4)}, v4, s[36:39], s28 offen sc1")
        return o
    flag = lambda st: f"s_add_u32 s28, s95, {st}\nv_mov_b32 v7, s28\nbuffer_store_dword v7, v6, s[48:51], s33 offen sc1"
    PORD = int(os.environ.get("PORD", "1"))
    for k in range(4):
        if k == 3: A(f"s_cmp_ge_u32 s3, 2\ns_cbranch_scc1 {L}_short")
        A(f"s_waitcnt vmcnt({([16, 16, 16, 8], [16, 16, 16, 0])[PORD][k]})")
        if PORD and k >= 2: A(flag(k - 1))
        for e in range(2):
            for ks in range(8): A(f"ds_read_b128 {v(SR + (e*8 + ks)*4, 4)}, v{RA+ks} offset:{(k % 2)*16384 + e*8192}")
            if e == 0: A("s_waitcnt lgkmcnt(7)")
        side = ({0: [], 1: [], 2: epilogue(0) + epilogue(1), 3: epilogue(2)}[k]) if not PORD else (epilogue(k - 1) if k else [])
        for e in range(2):
            for ks in range(8):
                A(f"s_waitcnt lgkmcnt({15 - 8*e - ks})")
                for ct in range(4):
                    A(f"v_mfma_f32_16x16x32_bf16 {acc(k, ct, e)}, {v(SR + (e*8 + ks)*4, 4)}, {rreg(ct, ks)}, {acc(k, ct, e) if ks else '0'}")
                    for _ in range(2):
                        if side and (e or ks): A(side.pop(0))
                if e == 1 and ks == 7 and k < 2: stage_dma(k + 2)
        for z in side: A(z)
    for z in epilogue(3): A(z)
    if not PORD:
        A("s_waitcnt vmcnt(12)"); A(flag(1))
        A("s_waitcnt vmcnt(9)"); A(flag(2))
        A("s_waitcnt vmcnt(6)"); A(flag(3))
    else:
        A("s_waitcnt vmcnt(4)"); A(flag(3))
    A(f"s_branch {L}_fin")
    A.label(L + "_short"); A.reset_state()
    for z in epilogue(2): A(z)
    if not PORD:
        A("s_waitcnt vmcnt(8)"); A(flag(1))
        A("s_waitcnt vmcnt(5)"); A(flag(2))
    else:
        A("s_waitcnt vmcnt(4)"); A(flag(2))
    A.label(L + "_fin"); A.reset_state()
    tls(A, 3)
    A("s_waitcnt vmcnt(0)")
    A(flag(4))

def ln_body(A, L):
    srd(A, 36, 4, 0, XN_SZ)
    srd(A, 68, 78, 0, 896)
    srd(A, 72, 18, XN_OFF, XN_SZ)
    srd(A, 48, 18, XNF_OFF, XN_SZ)
    srd(A, 52, 18, R_OFF, 8192)
    srd(A, 64, 76, 0, 7168)
    A(f"""
    v_mul_u32_u24 v7, 896, v2
    v_lshl_add_u32 v7, v3, 4, v7
    v_lshlrev_b32 v5, 4, v3
    s_mul_i32 s24, s23, {16*896}
    """)
    X, W, F = 8, 64, 120
    for u in range(14): A(f"buffer_load_dwordx4 {v(X+4*u, 4)}, v7, s[36:39], s24 offen offset:{u*64}")
    for u in range(14): A(f"buffer_load_dwordx4 {v(W+4*u, 4)}, v5, s[68:71], 0 offen offset:{u*64}")
    A("v_mov_b32 v232, -1\nv_mov_b32 v233, -1\nv_mov_b32 v234, -1\nv_mov_b32 v235, -1")
    for k in range(4):
        A(f"s_lshl_b32 s25, s23, 10\ns_add_u32 s25, s25, {8192 + k*128*1024}")
        A(f"buffer_store_dwordx4 v[232:235], v4, s[40:43], s25 offen sc1")
    for k in range(5):
        A(f"s_lshl_b32 s25, s23, 10\ns_add_u32 s25, s25, {k*128*1024}")
        A(f"buffer_store_dwordx4 v[232:235], v4, s[44:47], s25 offen sc1")
    A(f"""s_cmp_lg_u32 s23, 0
    s_cbranch_scc1 {L}_nomem
    v_lshrrev_b32 v6, 1, v2
    v_mul_u32_u24 v6, 896, v6
    v_lshl_add_u32 v6, v3, 5, v6
    v_and_b32 v5, 1, v2
    v_cmp_eq_u32 vcc, 1, v5
    """)
    for t in range(7):
        A(f"buffer_load_dwordx4 {v(F+8*t, 4)}, v6, s[64:67], 0 offen offset:{t*128}")
        A(f"buffer_load_dwordx4 {v(F+8*t+4, 4)}, v6, s[64:67], 0 offen offset:{t*128+16}")
    A("s_waitcnt vmcnt(0)\ns_mov_b32 s27, 0xfffefffe")
    for t in range(7):
        for aa in range(4):
            A(f"v_cndmask_b32 v{F+56+4*t+aa}, v{F+8*t+2*aa}, v{F+8*t+2*aa+1}, vcc")
            A(f"v_pk_min_u16 v{F+56+4*t+aa}, v{F+56+4*t+aa}, s27")
        A(f"s_mov_b32 s25, {t*1024}\nbuffer_store_dwordx4 {v(F+56+4*t, 4)}, v4, s[40:43], s25 offen sc1")
    A("s_waitcnt vmcnt(0)")
    A.label(L + "_nomem")
    A("s_waitcnt vmcnt(23)")
    A("s_mov_b32 s26, 0xffff0000")
    A("s_mov_b32 s27, 0x3f803f80\nv_mov_b32 v236, 0\nv_mov_b32 v237, 0")
    for j in range(56):
        A(f"v_dot2_f32_bf16 v{236 + j % 2}, v{X+j}, s27, v{236 + j % 2}\nv_lshlrev_b32 v{F+2*j}, 16, v{X+j}\nv_and_b32 v{F+2*j+1}, s26, v{X+j}")
    inv = hex(struct.unpack('<I', struct.pack('<f', 1/448))[0])
    A("v_add_f32 v236, v236, v237")
    xreduce(A, "v_add_f32", 236, 237)
    A(f"v_mul_f32 v236, {inv}, v236\nv_mov_b32 v237, v236")
    A("v_mov_b32 v240, 0\nv_mov_b32 v241, 0\nv_mov_b32 v242, 0\nv_mov_b32 v243, 0")
    for j in range(0, 56, 2):
        A(f"v_pk_add_f32 v[244:245], {v(F+2*j,2)}, v[236:237] neg_lo:[0,1] neg_hi:[0,1]")
        A(f"v_pk_add_f32 v[246:247], {v(F+2*j+2,2)}, v[236:237] neg_lo:[0,1] neg_hi:[0,1]")
        A(f"v_pk_fma_f32 v[240:241], v[244:245], v[244:245], v[240:241]")
        A(f"v_pk_fma_f32 v[242:243], v[246:247], v[246:247], v[242:243]")
    A("v_pk_add_f32 v[240:241], v[240:241], v[242:243]\nv_add_f32 v240, v240, v241")
    xreduce(A, "v_add_f32", 240, 241)
    A(f"""v_mul_f32 v240, {inv}, v240
    v_cvt_pk_bf16_f32 v236, v236, v240
    v_and_b32 v240, s26, v236
    v_lshlrev_b32 v236, 16, v236
    v_add_f32 v240, {hex(struct.unpack('<I', struct.pack('<f', 1e-5))[0])}, v240
    v_cvt_pk_bf16_f32 v240, v240, v240
    v_and_b32 v240, s26, v240
    v_sqrt_f32 v240, v240
    v_mov_b32 v237, v236
    v_cvt_pk_bf16_f32 v240, v240, v240
    v_and_b32 v240, s26, v240
    v_rcp_f32 v240, v240
    s_nop 0
    v_mov_b32 v241, v240
    s_mul_i32 s25, s23, {14*1024}""")
    for j in range(56):
        A(f"v_pk_add_f32 {v(F+2*j,2)}, {v(F+2*j,2)}, v[236:237] neg_lo:[0,1] neg_hi:[0,1]")
        A(f"v_cvt_pk_bf16_f32 v{X+j}, v{F+2*j}, v{F+2*j+1}")
        A(f"v_lshlrev_b32 v{F+2*j}, 16, v{X+j}\nv_and_b32 v{F+2*j+1}, s26, v{X+j}")
        A(f"v_pk_mul_f32 {v(F+2*j,2)}, {v(F+2*j,2)}, v[240:241]")
        A(f"v_cvt_pk_bf16_f32 v{X+j}, v{F+2*j}, v{F+2*j+1}")
        if j % 4 == 3:
            u = j // 4
            A(f"buffer_store_dwordx4 {v(X+4*u, 4)}, v4, s[48:51], s25 offen offset:{(u % 4)*1024} sc1")
            A(f"buffer_store_dwordx4 {v(X+4*u, 4)}, v7, s[72:75], s24 offen offset:{u*64} sc1")
            if u % 4 == 3: A("s_add_u32 s25, s25, 4096")
    A("s_waitcnt vmcnt(37)")
    A("v_mov_b32 v240, 0\nv_mov_b32 v241, 0")
    for j in range(56): A(f"v_dot2_f32_bf16 v{240 + j % 2}, v{X+j}, v{W+j}, v{240 + j % 2}")
    A("v_add_f32 v240, v240, v241")
    xreduce(A, "v_add_f32", 240, 241)
    A(f"""v_cvt_pk_bf16_f32 v240, v240, v240
    v_and_b32 v240, s26, v240
    v_lshlrev_b32 v241, 2, v2
    s_lshl_b32 s25, s23, 6
    s_mov_b64 exec, 0xffff
    buffer_store_dword v240, v241, s[52:55], s25 offen sc1
    s_mov_b64 exec, -1""")

KD = """
.section .rodata,"a"
.p2align 6
.amdhsa_kernel {name}
  .amdhsa_next_free_vgpr {nv}
  .amdhsa_next_free_sgpr 102
  .amdhsa_accum_offset 256
  .amdhsa_group_segment_fixed_size 0
  .amdhsa_kernarg_size 120
  .amdhsa_user_sgpr_count 2
  .amdhsa_user_sgpr_kernarg_segment_ptr 1
  .amdhsa_system_sgpr_workgroup_id_x 1
.end_amdhsa_kernel
"""

def build(kernels):
    out = []
    for name, fn, grid, lds in kernels:
        out.append(f"; @launch kernel={name} grid=({grid},1,1) block=(256,1,1) lds={lds}")
    out.append('.amdgcn_target "amdgcn-amd-amdhsa--gfx950"\n.text')
    for name, fn, grid, lds in kernels:
        A = Asm()
        fn(A)
        out.append(f".globl {name}\n.p2align 8\n.type {name},@function")
        out.append(A.text())
    for name, fn, grid, lds in kernels:
        out.append(KD.format(name=name, nv=256 if name in ('gemm2_kernel', 'xattn_kernel') else 512))
    return '\n'.join(out)

if __name__ == "__main__":
    import kmain
    ks = [("main_kernel", kmain.kmain, 256, 163840)]
    sys.stdout.write(build(ks))
```

```python
from asmlib import *
import gen as G
from gen import srd, lane_setup, xreduce, wreg, flag_set, flag_wait, tl
import struct
def f2h(x): return hex(struct.unpack('<I', struct.pack('<f', x))[0])
LOG2E = f2h(1.4426950408889634)

def tile_c(A, dst, i, swave=3, sodd=24):
    if i < 6:
        A(f"s_mul_i32 s{dst}, s{swave}, 7\ns_add_u32 s{dst}, s{dst}, s{sodd}\ns_add_u32 s{dst}, s{dst}, {i}")
    else:
        A(f"s_mul_i32 s{dst}, s{sodd}, 6\ns_sub_u32 s{dst}, 6, s{dst}\ns_mul_i32 s{dst+1}, s{swave}, 7\ns_add_u32 s{dst}, s{dst}, s{dst+1}")

def load_weights7(A, wsrd, vl16, st=26):
    for i in range(7):
        tile_c(A, st, i)
        A(f"s_mul_i32 s{st}, s{st}, 14336")
        for u in range(14):
            A(f"buffer_load_dwordx4 {wreg(i, u)}, v{vl16}, s[{wsrd}:{wsrd+3}], s{st} offen offset:{(u % 4)*1024} sc1")
            if u % 4 == 3: A(f"s_add_u32 s{st}, s{st}, 4096")

def gemm1_body(A, pfx):
    A(f"""
    s_and_b32 s24, s3, 1
    s_and_b32 s25, s22, 15
    v_lshlrev_b32 v4, 4, v1
    s_mul_i32 s26, s22, {G.WF_UNIT}
    s_add_u32 s26, s26, {hex(G.WF_OFF)}
    """)
    srd(A, 36, 18, "s26", G.WF_UNIT)
    srd(A, 40, 18, G.XNF_OFF, G.XN_SZ)
    srd(A, 48, 18, G.FLG_OFF, G.FLG_SZ)
    def dma(seg_sgpr, buf_sgpr):
        A(f"""s_mul_i32 s28, s{seg_sgpr}, 28672
        s_mul_i32 s29, s3, 7168
        s_add_u32 s28, s28, s29
        s_add_u32 s29, s29, s{buf_sgpr}
        s_mov_b32 m0, s29""")
        for k in range(7):
            if k == 4: A("s_add_u32 s28, s28, 4096\ns_add_u32 s29, s29, 4096\ns_mov_b32 m0, s29")
            A(f"buffer_load_dwordx4 v4, s[40:43], s28 offen offset:{(k % 4)*1024} lds")
    A(f"s_mov_b32 s30, 0\nv_min_u32 v5, 31, v1\nv_lshlrev_b32 v5, 7, v5\ns_mov_b32 s28, {G.FLG_LN}")
    flag_wait(A, pfx + "_l", 48, 5, 28, 6, "K3_end", sleep=4)
    dma(23, 30)
    A(f"s_add_u32 s34, s23, 7\ns_mov_b32 s31, 28672")
    dma(34, 31)
    A(f"v_min_u32 v5, 27, v1\nv_lshlrev_b32 v5, 7, v5\ns_mul_i32 s54, s22, 3584\ns_add_u32 s54, s54, {G.FLG_PROD}")
    def wstage(k, tag):
        G.stage_wait(A, f"{pfx}_wp{tag}{k}", 48, 5, 54, 7, k + 1, "K3_end", sleep=4)
        for i in range(7):
            tile_c(A, 28, i)
            A(f"s_mul_i32 s28, s28, 14336\ns_add_u32 s28, s28, {k*4096}")
            for u in range(4*k, min(14, 4*k + 4)):
                A(f"buffer_load_dwordx4 {wreg(i, u)}, v4, s[36:39], s28 offen offset:{(u % 4)*1024} sc1")
    A("s_cmp_ge_u32 s22, 16")
    A(f"s_cbranch_scc1 {pfx}_vo")
    for k in range(4): wstage(k, "a")
    acc = lambda tt, i: 64 + (tt*7 + i)*4
    for typ in (0, 1):
        L = f"{pfx}_{'kq' if typ == 0 else 'vo'}"
        if typ == 1: A.label(L); A.reset_state()
        if typ == 0:
            A(f"s_mul_i32 s26, s25, 28672\ns_add_u32 s26, s26, {hex(G.KQF_OFF)}")
            srd(A, 44, 18, "s26", 64*G.SEG_SZ - 15*28672)
            A("""s_mul_i32 s31, s3, 7
            s_add_u32 s31, s31, s24
            s_lshr_b32 s31, s31, 1
            s_lshl_b32 s31, s31, 10""")
            tile_c(A, 32, 6)
            A("s_lshr_b32 s32, s32, 1\ns_lshl_b32 s32, s32, 10\ns_lshl_b32 s33, s24, 3\nv_add_u32 v5, s33, v4")
        else:
            A(f"s_lshl_b32 s26, s25, 10\ns_add_u32 s26, s26, {hex(G.VOF_OFF)}")
            srd(A, 44, 18, "s26", 64*G.SEG_SZ - 15*1024)
            tile_c(A, 31, 0); A("s_lshl_b32 s31, s31, 14")
            tile_c(A, 32, 6); A("s_lshl_b32 s32, s32, 14")
        xr = lambda u, tt: 48 + ((u % 2)*2 + tt)*4
        def rd(u):
            for tt in range(2): A(f"ds_read_b128 {v(xr(u, tt), 4)}, v6 offset:{(tt*14 + u)*1024}")
        def mm(u0, u1):
            rd(u0)
            for u in range(u0, u1):
                if u + 1 < u1: rd(u + 1)
                A(f"s_waitcnt lgkmcnt({2 if u + 1 < u1 else 0})")
                for tt in range(2):
                    for i in range(7):
                        c = v(acc(tt, i), 4) if u else "0"
                        if typ == 0: A(f"v_mfma_f32_16x16x32_bf16 {v(acc(tt, i), 4)}, {wreg(i, u)}, {v(xr(u, tt), 4)}, {c}")
                        else: A(f"v_mfma_f32_16x16x32_bf16 {v(acc(tt, i), 4)}, {v(xr(u, tt), 4)}, {wreg(i, u)}, {c}")
        def top():
            A(f"""
            v_add_u32 v6, s30, v4
            s_add_u32 s52, s30, {2*28672}
            s_sub_u32 s53, s52, {3*28672}
            s_cmp_ge_u32 s52, {3*28672}
            s_cselect_b32 s52, s53, s52
            s_add_u32 s30, s30, 28672
            s_cmp_ge_u32 s30, {3*28672}
            s_cselect_b32 s30, 0, s30
            s_add_u32 s34, s23, 14
            """)
            dma(34, 52)
        if typ == 1:
            top()
            wstage(0, "b"); wstage(1, "b")
            A("s_barrier")
            mm(0, 4); wstage(2, "b"); mm(4, 8); wstage(3, "b"); mm(8, 12)
            A("s_waitcnt vmcnt(0)")
            tl(A, 1)
            mm(12, 14)
            A(f"s_branch {L}_epi")
        else:
            A("s_waitcnt vmcnt(0)\ns_barrier")
            tl(A, 1)
        A.label(L + "_loop"); A.reset_state()
        top()
        mm(0, 14)
        if typ == 1:
            A.label(L + "_epi"); A.reset_state(); A("s_nop 7")
        A(f"s_mul_i32 s35, s23, {G.SEG_SZ}")
        nst = 0
        if typ == 0:
            for tt in range(2):
                A(f"s_add_u32 s28, s35, s31\ns_add_u32 s28, s28, {tt*14336}\ns_add_u32 s29, s35, s32\ns_add_u32 s29, s29, {tt*14336}")
                for p in range(3):
                    o = 16 + (tt*4 + p)*4
                    for e in range(2):
                        b = acc(tt, 2*p + e)
                        A(f"v_cvt_pk_bf16_f32 v{o+2*e}, v{b}, v{b+1}\nv_cvt_pk_bf16_f32 v{o+2*e+1}, v{b+2}, v{b+3}")
                    A(f"buffer_store_dwordx4 {v(o, 4)}, v4, s[44:47], s28 offen offset:{p*1024} sc1"); nst += 1
                o = 16 + (tt*4 + 3)*4; b = acc(tt, 6)
                A(f"v_cvt_pk_bf16_f32 v{o}, v{b}, v{b+1}\nv_cvt_pk_bf16_f32 v{o+1}, v{b+2}, v{b+3}")
                A(f"buffer_store_dwordx2 {v(o, 2)}, v5, s[44:47], s29 offen sc1"); nst += 1
        else:
            A("s_add_u32 s28, s35, s31")
            for i in range(7):
                o = 16 + i*4
                for tt in range(2):
                    b = acc(tt, i)
                    A(f"v_cvt_pk_bf16_f32 v{o+2*tt}, v{b}, v{b+1}\nv_cvt_pk_bf16_f32 v{o+2*tt+1}, v{b+2}, v{b+3}")
                if i == 6: A("s_add_u32 s28, s35, s32")
                A(f"buffer_store_dwordx4 {v(o, 4)}, v4, s[44:47], s28 offen sc1"); nst += 1
                if i < 5: A("s_add_u32 s28, s28, 16384")
        A(f"""
        s_cmp_lt_u32 s23, 7
        s_cselect_b32 s28, 0, 14
        s_cbranch_scc1 {L}_drain
        s_waitcnt vmcnt({2*nst + 7})
        s_branch {L}_drained""")
        A.label(L + "_drain")
        A("s_waitcnt vmcnt(0)")
        A.label(L + "_drained")
        A(f"""s_barrier
        s_sub_u32 s28, s23, s28
        s_max_i32 s28, s28, s21
        s_lshl_b32 s28, s28, 13
        s_lshl_b32 s29, s22, 7
        s_add_u32 s28, s28, s29
        s_cmp_lg_u32 s3, 0
        s_cbranch_scc1 {L}_nofl""")
        flag_set(A, 48, 28, 6, 7)
        A.label(L + "_nofl")
        A(f"s_add_u32 s23, s23, 7\ns_cmp_lt_u32 s23, 64")
        A.flush()
        A(f"s_cbranch_scc1 {L}_loop")
        A(f"""s_waitcnt vmcnt(0)
        s_barrier
        s_sub_u32 s28, s23, 7
        s_lshl_b32 s28, s28, 13
        s_lshl_b32 s29, s22, 7
        s_add_u32 s28, s28, s29
        s_cmp_lg_u32 s3, 0
        s_cbranch_scc1 {pfx}_done""")
        flag_set(A, 48, 28, 6, 7)
        A(f"s_sub_u32 s28, s28, {7*8192}")
        flag_set(A, 48, 28, 6, 7)
        A(f"s_branch {pfx}_done")

def moe_body(A, pfx):
    srd(A, 36, 18, G.R_OFF, 8192)
    srd(A, 40, 18, G.XN_OFF, G.XN_SZ)
    srd(A, 44, 8, 0, 448*3584)
    srd(A, 48, 10, 0, 448*3584)
    srd(A, 52, 12, 0, 1792*896)
    srd(A, 56, 18, G.MOEP_OFF, G.MOEP_SZ)
    srd(A, 60, 18, G.IDX_OFF, 64)
    K, WG, WU, WD, XS = 16, 48, 0, 112, 160
    A("v_lshlrev_b32 v4, 4, v1")
    for k in range(8):
        A(f"s_mov_b32 s26, {(k//4)*4096}\nbuffer_load_dwordx4 {v(K+4*k, 4)}, v4, s[36:39], s26 offen offset:{(k % 4)*1024}")
    A(f"""
    v_mul_u32_u24 v5, {8*3584}, v3
    v_lshl_add_u32 v5, v2, 1, v5
    s_lshl_b32 s26, s22, 7
    s_lshl_b32 s27, s3, 5
    s_add_u32 s26, s26, s27
    v_add_u32 v5, s26, v5
    v_mul_u32_u24 v6, {4*896}, v3
    v_lshl_add_u32 v6, v2, 1, v6
    s_mul_i32 s26, s22, {64*896}
    s_mul_i32 s27, s3, 224
    s_add_u32 s26, s26, s27
    v_add_u32 v6, s26, v6
    """)
    A("s_waitcnt vmcnt(0)\ns_mov_b32 s28, 0xffff0000\ns_mov_b32 s29, 0x80000000")
    for k in range(8):
        for j in range(4):
            r = K + 4*k + j
            A(f"""v_ashrrev_i32 v7, 31, v{r}
            v_or_b32 v7, s29, v7
            v_xor_b32 v{r}, v7, v{r}
            v_lshlrev_b32 v7, 2, v1
            v_sub_u32 v7, {2047 - k*256 - j}, v7
            v_and_or_b32 v{r}, v{r}, s28, v7""")
    for u in range(14):
        for q in range(4): A(f"v_mov_b32 v{WG + 8*u + 4 + q}, 0\nv_accvgpr_write_b32 a{WU + 8*u + 4 + q}, 0")
    for f in range(28):
        for q in range(2): A(f"v_accvgpr_write_b32 a{WD + 4*f + 2 + q}, 0")
    for u in range(14):
        for j in range(8):
            if j % 2 == 0: A(f"s_mov_b32 s26, {(32*u + j)*3584}")
            hi = "_hi" if j % 2 else ""
            off = 3584 if j % 2 else 0
            op = "buffer_load_short_d16_hi" if j % 2 else "buffer_load_ushort"
            A(f"{op} v{WG + 8*u + 4*(j % 2) + j//2}, v5, s[44:47], s26 offen offset:{off}")
            A(f"{op} a{WU + 8*u + 4*(j % 2) + j//2}, v5, s[48:51], s26 offen offset:{off}")
    for wp in range(4):
        for j in range(4):
            A(f"s_mov_b32 s26, {(16*wp + j)*896}")
            hi = "_hi" if j % 2 else ""
            for i in range(7):
                op = "buffer_load_short_d16_hi" if j % 2 else "buffer_load_ushort"
                A(f"{op} a{WD + (i*4 + wp)*4 + 2*(j % 2) + j//2}, v6, s[52:55], s26 offen offset:{i*32}")
    for rnd in range(8):
        if rnd == 0:
            A(f"v_max3_u32 v7, v{K}, v{K+1}, v{K+2}")
            for r in range(3, 31, 2): A(f"v_max3_u32 v7, v7, v{K+r}, v{K+r+1}")
            A(f"v_max_u32 v7, v7, v{K+31}")
            op = "v_max_u32"
        else:
            A(f"s_sub_u32 s30, s{63+rnd}, 1")
            A(f"v_sub_u32 v7, s30, v{K}")
            for r in range(1, 31, 2):
                A(f"v_sub_u32 v8, s30, v{K+r}\nv_sub_u32 v9, s30, v{K+r+1}\nv_min3_u32 v7, v7, v8, v9")
            A(f"v_sub_u32 v8, s30, v{K+31}\nv_min_u32 v7, v7, v8")
            op = "v_min_u32"
        for rr in (8, 4, 2, 1): A(f"{op}_dpp v7, v7, v7 row_ror:{rr} row_mask:0xf bank_mask:0xf")
        xreduce(A, op, 7, 8)
        A(f"v_readfirstlane_b32 s{64+rnd}, v7")
        if rnd: A(f"s_nop 1\ns_sub_u32 s{64+rnd}, s30, s{64+rnd}")
        else: A("s_nop 1")
    for i in range(8):
        A(f"s_and_b32 s{64+i}, s{64+i}, 0xffff\ns_sub_u32 s{64+i}, 2047, s{64+i}")
    A("v_and_b32 v7, 7, v2\nv_mov_b32 v8, 0")
    for i in range(8):
        A(f"v_mov_b32 v9, s{64+i}\nv_cmp_ne_u32 vcc, {i}, v7\nv_cndmask_b32 v8, v9, v8, vcc")
    A(f"""
    v_mul_u32_u24 v9, 896, v8
    v_lshl_add_u32 v9, v3, 4, v9
    """)
    for u in range(14): A(f"buffer_load_dwordx4 {v(XS+4*u, 4)}, v9, s[40:43], 0 offen offset:{u*64}")
    A(f"""
    s_or_b32 s26, s22, s3
    s_cmp_lg_u32 s26, 0
    s_cbranch_scc1 {pfx}_noidx
    v_lshlrev_b32 v10, 2, v1
    s_mov_b64 exec, 0xff
    buffer_store_dword v8, v10, s[60:63], 0 offen sc1
    s_mov_b64 exec, -1
    """)
    A.label(f"{pfx}_noidx")
    A("s_waitcnt vmcnt(0)")
    for u in range(14):
        for o in range(2):
            A(f"v_mfma_f32_16x16x32_bf16 v[16:19], {v(WG+8*u+4*o, 4)}, {v(XS+4*u, 4)}, {'v[16:19]' if (u or o) else '0'}")
            A(f"v_mfma_f32_16x16x32_bf16 v[20:23], {a_(WU+8*u+4*o, 4)}, {v(XS+4*u, 4)}, {'v[20:23]' if (u or o) else '0'}")
    A(f"s_mov_b32 s26, {LOG2E}")
    for p in range(2):
        A(f"""v_cvt_pk_bf16_f32 v24, v{16+2*p}, v{17+2*p}
        v_cvt_pk_bf16_f32 v25, v{20+2*p}, v{21+2*p}
        v_lshlrev_b32 v26, 16, v24
        v_and_b32 v27, s28, v24
        v_mul_f32 v28, s26, v26
        v_mul_f32 v29, s26, v27
        v_exp_f32 v28, -v28
        v_exp_f32 v29, -v29
        v_add_f32 v28, 1.0, v28
        v_add_f32 v29, 1.0, v29
        v_rcp_f32 v28, v28
        v_rcp_f32 v29, v29
        v_mul_f32 v26, v26, v28
        v_mul_f32 v27, v27, v29
        v_cvt_pk_bf16_f32 v24, v26, v27
        v_lshlrev_b32 v26, 16, v24
        v_and_b32 v27, s28, v24
        v_lshlrev_b32 v28, 16, v25
        v_and_b32 v29, s28, v25
        v_mul_f32 v26, v26, v28
        v_mul_f32 v27, v27, v29
        v_cvt_pk_bf16_f32 v{30+p}, v26, v27""")
    A("""v_lshlrev_b32 v10, 3, v0
    v_lshlrev_b32 v11, 3, v1
    ds_write_b64 v10, v[30:31]
    s_waitcnt lgkmcnt(0)
    s_barrier""")
    for wp in range(4): A(f"ds_read_b64 {v(32+2*wp, 2)}, v11 offset:{wp*512}")
    A(f"""s_waitcnt lgkmcnt(0)
    v_mul_u32_u24 v12, 1792, v2
    v_lshl_add_u32 v12, v3, 4, v12
    s_mul_i32 s26, s22, 14336
    s_mul_i32 s27, s3, 448
    s_add_u32 s26, s26, s27""")
    for i in range(7):
        for wp in range(4):
            d = v(WG + 4*i, 4)
            for o in range(2):
                A(f"v_mfma_f32_16x16x16_bf16 {d}, {a_(WD + (i*4 + wp)*4 + 2*o, 2)}, {v(32+2*wp, 2)}, {d if (wp or o) else '0'}")
    A("v_cmp_gt_u32 vcc, 8, v2\ns_and_saveexec_b64 s[30:31], vcc")
    for i in range(7):
        A(f"buffer_store_dwordx4 {v(WG + 4*i, 4)}, v12, s[56:59], s26 offen offset:{i*64} sc1")
    A("s_mov_b64 exec, s[30:31]")
    srd(A, 36, 18, G.FLG_OFF, G.FLG_SZ)
    A(f"s_waitcnt vmcnt(0)\ns_barrier\ns_lshl_b32 s28, s22, 7\ns_add_u32 s28, s28, {G.FLG_MOE}\ns_cmp_lg_u32 s3, 0\ns_cbranch_scc1 {pfx}_moed")
    flag_set(A, 36, 28, 6, 7)
    A.label(pfx + "_moed")


def wserve_body(A, L, bail):
    srd(A, 36, 18, G.MEMG_OFF, 64*8192)
    srd(A, 40, 18, G.WZ_OFF, 64*G.WZ_SEG)
    tile_c(A, 31, 0); tile_c(A, 32, 6)
    A(f"""s_mov_b32 s23, s21
    s_lshl_b32 s31, s31, 12
    s_lshl_b32 s32, s32, 12
    s_lshl_b32 s28, s25, 8
    v_lshlrev_b32 v5, 2, v1
    v_add_u32 v5, s28, v5
    v_and_b32 v6, 1, v1
    v_cmp_eq_u32 vcc, 1, v6
    v_mov_b32 v8, 0x4444
    v_mov_b32 v6, 0xeeee
    v_cndmask_b32 v8, v8, v6, vcc
    v_mov_b32 v9, {192*32}""")
    MF, AC = 16, 64
    A.label(L + "_loop"); A.reset_state()
    for r in range(28): A(f"v_mov_b32 v{AC+r}, 0")
    A("s_lshl_b32 s33, s23, 13")
    flag_wait(A, L + "_w", 48, 9, 33, 7, bail, sleep=2)
    A("s_lshl_b32 s28, s23, 13\ns_add_u32 s29, s28, 4096")
    for t in range(7): A(f"buffer_load_dwordx4 {v(MF+4*t, 4)}, v4, s[36:39], s{28 + t // 4} offen offset:{(t % 4)*1024} sc1")
    for t in range(7):
        A(f"s_waitcnt vmcnt({6-t})")
        for i in range(7): A(f"v_smfmac_f32_16x16x64_bf16 {v(AC+4*i, 4)}, {v(MF+4*t, 4)}, {wreg(i, 2*t, 8)}, v8")
    A(f"s_mul_i32 s28, s23, {G.WZ_SEG}\ns_add_u32 s29, s28, s32\ns_add_u32 s28, s28, s31")
    for i in range(7):
        x = AC + 4*i
        A(f"v_add_f32 v{x}, v{x}, v{x+1}\nv_add_f32 v{x+2}, v{x+2}, v{x+3}\nv_cvt_pk_bf16_f32 v{x}, v{x}, v{x+2}")
        A(f"buffer_store_dword v{x}, v5, s[40:43], s{29 if i == 6 else 28} offen sc1")
        if i < 5: A("s_add_u32 s28, s28, 4096")
    A(f"""s_lshl_b32 s28, s25, 7
    s_add_u32 s28, s28, s33
    s_add_u32 s28, s28, 4096
    s_waitcnt vmcnt(0)
    s_barrier
    s_cmp_lg_u32 s3, 0
    s_cbranch_scc1 {L}_nf""")
    flag_set(A, 48, 28, 6, 7)
    A.label(L + "_nf")
    A(f"s_add_u32 s23, s23, 7\ns_cmp_lt_u32 s23, 64\ns_cbranch_scc1 {L}_loop\ns_branch {bail}")
```

```python
from asmlib import *
import gen as G
from gen import srd, lane_setup, xreduce, wreg, flag_set, flag_wait, tl, tl_dump
from kernels2 import tile_c, load_weights7, f2h
import os
SPIN_MAX = 1 << 22
NINF = "0xff800000"
STAMP = int(os.environ.get("STAMP", "0"))
HU_P_AT = int(os.environ.get("HU_P_AT", "2"))
HU_M_AT = int(os.environ.get("HU_M_AT", "0"))
A_DMA = int(os.environ.get("A_DMA", "0"))
DSP = int(os.environ.get("DSP", "3"))
DSPB = int(os.environ.get("DSPB", "2"))
NT = os.environ.get("NT", "")
SBLK = int(os.environ.get("SBLK", "1"))
WD = int(os.environ.get("WD", "4"))
TMODE = int(os.environ.get("TMODE", "1"))
TWV = 3 if TMODE == 0 else 0
DBG2_OFF = 0x5E00000
QP = "quad_perm:[1,0,3,2] row_mask:0xf bank_mask:0xf"

def stamp(A, k):
    if STAMP: A(f"{'s_memrealtime' if STAMP == 2 else 's_memtime'} s[{4+2*k}:{5+2*k}]")
def stamp_cnt(A, k):
    if STAMP: A(f"s_mov_b32 s{16+k}, s27")
def stamp_out(A, tmp, lds, nw):
    if not STAMP: return
    lab = f"STK{len(A.lines)}"
    A(f"s_waitcnt lgkmcnt(0)\ns_lshr_b32 s28, s64, 4\ns_cmp_lg_u32 s28, {SBLK}\ns_cbranch_scc1 {lab}\ns_cmp_ge_u32 s3, {nw}\ns_cbranch_scc1 {lab}")
    for k in range(6): A(f"v_mov_b32 v{tmp+k}, s{4+2*k}")
    A(f"v_mov_b32 v{tmp+6}, s16\nv_mov_b32 v{tmp+7}, s17")
    A(f"""s_lshl_b32 s28, s3, 4
    s_add_u32 s28, s28, s64
    s_lshl_b32 s28, s28, 5
    s_add_u32 s28, s28, {lds - 512*SBLK}
    v_mov_b32 v{tmp+8}, s28
    ds_write_b128 v{tmp+8}, {v(tmp, 4)}
    ds_write_b128 v{tmp+8}, {v(tmp+4, 4)} offset:16""")
    A.label(lab)
def stamp_dump(A, lds):
    if not STAMP: return
    A(f"""s_lshl_b32 s28, s3, 9
    v_bfe_u32 v8, v4, 4, 4
    v_lshlrev_b32 v8, 5, v8
    v_add_u32 v9, s28, v8
    v_add_u32 v9, {lds}, v9
    v_min_u32 v9, {163840 - 32}, v9
    s_lshl_b32 s28, s3, 11
    s_add_u32 s28, s28, 512
    v_add_u32 v8, s28, v8
    s_waitcnt lgkmcnt(0)
    ds_read_b128 v[12:15], v9
    ds_read_b128 v[16:19], v9 offset:16
    s_lshl_b32 s28, s21, 13
    s_waitcnt lgkmcnt(0)
    buffer_store_dwordx4 v[12:15], v8, s[60:63], s28 offen
    buffer_store_dwordx4 v[16:19], v8, s[60:63], s28 offen offset:16""")

def team_flavor(A, bail):
    A(f"v_lshlrev_b32 v5, 2, v1\ns_mov_b32 s27, 0\ns_mov_b32 exec_hi, 0")
    L = bail + "_fl" + str(len(A.lines))
    A.label(L)
    A(f"""
    buffer_load_dword v6, v5, s[60:63], 0 offen sc1
    s_add_u32 s27, s27, 1
    s_cmp_gt_u32 s27, {SPIN_MAX}
    s_cbranch_scc1 {bail}
    s_waitcnt vmcnt(0)
    v_cmp_eq_u32 vcc, 0, v6
    s_cbranch_vccnz {L}
    v_cmp_ne_u32 vcc, s35, v6
    s_mov_b64 exec, -1
    s_cmp_lg_u64 vcc, 0
    s_cselect_b32 s65, 1, 0
    """)
    if STAMP: srd(A, 60, 18, DBG2_OFF, 32*4*64*32)

HUD = int(os.environ.get("HUD", "3"))
def hu_wait(A, L, srdn, voff, soff, hr, bail, HUD=HUD):
    ld = lambda k: f"buffer_load_dword v{hr[k]}, v{voff}, s[{srdn}:{srdn+3}], s{soff} offen sc1"
    A("s_mov_b32 s27, 0")
    for k in range(HUD - 1): A(ld(k))
    A.label(L)
    for k in range(HUD):
        A(ld((k + HUD - 1) % HUD))
        A(f"s_waitcnt vmcnt({HUD-1})\nv_cmp_eq_u32 vcc, -1, v{hr[k]}\ns_cbranch_vccz {L}_ok")
    A(f"s_add_u32 s27, s27, 1\ns_cmp_gt_u32 s27, {SPIN_MAX}\ns_cbranch_scc0 {L}\ns_branch {bail}")
    A.label(L + "_ok")

def frag_loads(A, n, reg0, srdn, voff, soffs):
    for t in range(n):
        A(f"buffer_load_dwordx4 {v(reg0+4*t, 4)}, v{voff}, s[{srdn}:{srdn+3}], s{soffs[t // 4]} offen offset:{(t % 4)*1024} sc1")

def exact_check(A, L, n, reg0, tmp, retry, back, bail):
    A.label(L); A.reset_state()
    A("s_waitcnt vmcnt(0)")
    tmp, t2 = tmp if isinstance(tmp, tuple) else (tmp, tmp + 1)
    A(f"v_pk_max_u16 v{tmp}, v{reg0}, v{reg0+1}")
    for r in range(reg0 + 2, reg0 + 4*n): A(f"v_pk_max_u16 v{tmp}, v{tmp}, v{r}")
    A(f"""v_lshlrev_b32 v{t2}, 16, v{tmp}
    v_max_u32 v{tmp}, v{tmp}, v{t2}
    v_cmp_le_u32 vcc, s26, v{tmp}
    s_cbranch_vccz {back}
    s_add_u32 s27, s27, 1
    s_cmp_gt_u32 s27, {SPIN_MAX}
    s_cbranch_scc1 {bail}
    s_branch {retry}""")

def dma_ops(n, srdn, sg, sl, fl=''):
    o = []
    for k in range(n):
        pre = ""
        if k == 0: pre = f"s_mov_b32 m0, s{sl}\n"
        elif k % 4 == 0:
            pre = "s_add_u32 m0, m0, 4096\n"
            if not isinstance(sg, tuple): pre = f"s_add_u32 s{sg}, s{sg}, 4096\n" + pre
        g = sg[k // 4] if isinstance(sg, tuple) else sg
        o.append(pre + f"buffer_load_dwordx4 v4, s[{srdn}:{srdn+3}], s{g} offen offset:{(k % 4)*1024}{fl} lds")
    return o

TL, SMX, MFLA = 0, 7168, 8192
MF, TA, XB = 8, 36, 64
VTOUCH = int(os.environ.get("VTOUCH", "1"))

def mem_fetch(A, base, behind=()):
    A(f"s_mov_b32 s97, {base}")
    for z in dma_ops(7, 40, (32, 34), 97, " sc1"): A(z)
    for z in behind: A(z)
    A(f"s_waitcnt vmcnt({len(behind)})")

def a_xb_load(A):
    A(f"s_mul_i32 s28, s33, 28672\ns_add_u32 s28, s28, s94")
    for k in range(14):
        if k and k % 4 == 0: A("s_add_u32 s28, s28, 4096")
        A(f"buffer_load_dwordx4 {v(XB+4*k, 4)}, v4, s[52:55], s28 offen offset:{(k % 4)*1024}")

def a_loop(A, role, fl):
    L = f"K3a{role}f{fl}"
    sc = " sc1" if fl else ""
    if role == 1:
        A("s_mov_b32 s33, 0"); a_xb_load(A)
    A.label(L + "_loop"); A.reset_state()
    stamp(A, 0)
    A(f"""s_lshl_b32 s32, s64, 13
    s_add_u32 s34, s32, 4096
    s_add_u32 s33, s64, 1
    s_min_u32 s33, s33, 63""")
    zero = [f"v_mov_b32 v{r}, 0" for r in range(TA, TA + 28)]
    for z in zero: A(z)
    if VTOUCH and role == TWV: A(f"s_mul_i32 s30, s33, {G.SEG_SZ}")
    if role == TWV and VTOUCH:
        A(f"""s_lshl_b32 s29, s33, 13
        s_add_u32 s29, s29, 8192
        s_waitcnt vmcnt(0)
        v_cmp_ne_u32 vcc, s96, v115
        s_cmp_eq_u64 vcc, 0
        s_cselect_b32 s93, s94, 0x40000000
        s_add_u32 s30, s30, s93""")
    if role == 0:
        A(f"v_mov_b32 v{XB+4}, {NINF}\nv_mov_b32 v{XB+5}, {NINF}\ns_mul_i32 s31, s64, {G.PF_STRIDE}")
        A(f"s_cmp_eq_u32 s64, 0\ns_cbranch_scc1 {L}_hu_ok")
        hu_wait(A, L + "_hu", 40, 111, 32, (108, 109, 107), "K3_end")
    stamp(A, 1)
    A("s_mov_b32 s27, 0")
    A.label(L + "_go"); A.reset_state()
    tch = [f"buffer_load_dword v119, v118, s[48:51], s30 offen sc1\ns_add_u32 s30, s30, 4096" for k in range(7)] + ["buffer_load_dword v115, v114, s[56:59], s29 offen sc1"]
    if role == 0: mem_fetch(A, MFLA, tch if (VTOUCH and TMODE == 1) else [])
    A("s_barrier")
    for t in range(7): A(f"ds_read_b128 {v(MF+4*t, 4)}, v1 offset:{t*1024}")
    smf = lambda d, t, B: f"v_smfmac_f32_16x16x64_bf16 {v(d, 4)}, {v(MF+4*t, 4)}, {B}, v2"
    dm = list(tch) if (VTOUCH and TMODE == 0 and role == 3) else []
    cnt = [0, 2]
    def emit(z, side=None):
        A(z); cnt[0] += 1
        if side: A(side)
        elif dm and cnt[0] >= cnt[1]: A(dm.pop(0)); cnt[1] = cnt[0] + 2
    for t in range(7):
        A(f"s_waitcnt lgkmcnt({6 - t})")
        if t == 0: stamp(A, 2)
        for d, i in ((TA+24, 6), (TA, 0), (TA+4, 1)): emit(smf(d, t, wreg(i, 2*t, 8)))
    def fin(x): return [f"v_add_f32 v{x}, v{x}, v{x+1}", f"v_add_f32 v{x+2}, v{x+2}, v{x+3}", f"v_cvt_pk_bf16_f32 v{x}, v{x}, v{x+2}"]
    def post_pair(p):
        x, y = TA + 8*p, TA + 8*p + 4
        return fin(x) + fin(y) + [f"ds_write2st64_b32 v5, v{x}, v{y} offset0:{2*p} offset1:{2*p+1}"]
    b = TA + 24
    chk = [f"v_add_f32 v{b}, v{b}, v{b+1}", f"v_add_f32 v{b+2}, v{b+2}, v{b+3}", f"v_cmp_u_f32 vcc, v{b}, v{b+2}",
           f"s_cbranch_vccnz {L}_slow\n{L}_back:", f"v_cvt_pk_bf16_f32 v{b}, v{b}, v{b+2}", f"ds_write_b32 v6, v{b}"]
    seq1 = [None]*4 + chk + post_pair(0)[:4]
    seq2 = post_pair(0)[4:] + [None]*2 + post_pair(1)
    for p, side in ((1, seq1), (2, seq2)):
        x, y = TA + 8*p, TA + 8*p + 4
        side = list(side)
        for t in range(7):
            for d, i in ((x, 2*p), (y, 2*p + 1)):
                emit(smf(d, t, wreg(i, 2*t, 8)), side.pop(0) if side else None)
    for z in post_pair(2): A(z)
    stamp(A, 3); stamp_cnt(A, 0)
    A("s_waitcnt lgkmcnt(0)\ns_barrier")
    stamp(A, 4)
    tr = lambda t: [f"ds_read_b64_tr_b16 {v(TA + 4*t + 2*z, 2)}, v0 offset:{t*1024 + z*32}" for z in range(2)]
    if role != 3:
        for t in range(7):
            for z in tr(t): A(z)
    if role == 1:
        D = MF
        for r in range(4): A(f"v_mov_b32 v{D+r}, 0")
        for t in range(7):
            A(f"s_waitcnt lgkmcnt({2*(6-t)})" + (" vmcnt(0)" if t == 0 else ""))
            A(f"v_smfmac_f32_16x16x64_bf16 {v(D, 4)}, {v(TA+4*t, 4)}, {v(XB+8*t, 8)}, v3")
        A(f"""v_permlane32_swap_b32 v{D}, v{D+1}
        v_permlane32_swap_b32 v{D+2}, v{D+3}
        v_add_f32 v{D}, v{D}, v{D+1}
        v_add_f32 v{D+2}, v{D+2}, v{D+3}
        ds_write2_b32 v7, v{D}, v{D+2} offset0:0 offset1:32
        s_waitcnt lgkmcnt(0)
        s_barrier
        s_barrier""")
        a_xb_load(A)
    if role == 3: A("s_barrier\ns_barrier")
    if role == 0:
        X, R, D = XB, XB + 4, XB + 8
        m, t1, l = XB+12, XB+13, XB+14
        for t in range(7):
            A(f"s_waitcnt lgkmcnt({2*(6-t)})")
            A(f"v_mfma_f32_16x16x32_bf16 {v(D, 4)}, {v(MF+4*t, 4)}, {v(TA+4*t, 4)}, {v(D, 4) if t else '0'}")
        def hu_pub(k):
            if HU_P_AT == k: A(f"buffer_store_dword v112, v110, s[40:43], s32 offen{sc}")
        hu_pub(0)
        A(f"v_add_f32_dpp v{R}, v{D+1}, v{D} row_ror:8 row_mask:0xf bank_mask:0x3")
        A(f"v_add_f32_dpp v{R+1}, v{D+3}, v{D+2} row_ror:8 row_mask:0xf bank_mask:0x3")
        A(f"v_max_f32 v{m}, v{R}, v{R+1}\ns_barrier")
        A(f"ds_read_b64 {v(X, 2)}, v7\nds_read_b64 {v(X+2, 2)}, v7 offset:512")
        hu_pub(1)
        A(f"""s_waitcnt lgkmcnt(1)
        v_max3_f32 v{m}, v{m}, v{X}, v{X+1}
        s_waitcnt lgkmcnt(0)
        v_max3_f32 v{m}, v{m}, v{X+2}, v{X+3}""")
        xreduce(A, "v_max_f32", m, t1, steps=(8, 16, 32))
        hu_pub(2)
        for r in (X, X+2, R): A(f"v_pk_add_f32 {v(r, 2)}, {v(r, 2)}, {v(m, 2)} op_sel_hi:[1,0] neg_lo:[0,1] neg_hi:[0,1]")
        for r in range(6): A(f"v_exp_f32 v{X+r}, v{X+r}")
        hu_pub(3)
        A(f"""v_pk_add_f32 {v(l, 2)}, {v(X, 2)}, {v(X+2, 2)}
        v_pk_add_f32 {v(l, 2)}, {v(l, 2)}, {v(R, 2)}
        v_add_f32 v{l}, v{l}, v{l+1}""")
        xreduce(A, "v_add_f32", l, t1, steps=(8, 16, 32))
        A(f"v_rcp_f32 v{l}, v{l}")
        for r in (X, X+2, R): A(f"v_pk_mul_f32 {v(r, 2)}, {v(r, 2)}, {v(l, 2)} op_sel_hi:[1,0] clamp")
        A(f"""v_cvt_pk_bf16_f32 v{X}, v{X}, v{X+1}
        v_cvt_pk_bf16_f32 v{X+1}, v{X+2}, v{X+3}
        v_cvt_pk_bf16_f32 v{R}, v{R}, v{R+1}
        buffer_store_dwordx2 {v(X, 2)}, v116, s[44:47], s31 offen{sc}
        buffer_store_dword v{R}, v117, s[44:47], s31 offen{sc}
        s_barrier""")
    stamp(A, 5)
    if role == 0: tl(A, 0, 64)
    if role == 3 and G.TLM: A("s_memtime s[100:101]\ns_min_u32 m0, s64, 59\ns_waitcnt lgkmcnt(0)\nv_writelane_b32 v113, s100, m0")
    stamp_out(A, TA + 8, MFLA + 7168, 4)
    A(f"s_add_u32 s64, s64, 1\ns_cmp_lt_u32 s64, 63")
    A.flush()
    A(f"s_cbranch_scc1 {L}_loop")
    stamp_dump(A, MFLA + 7168)
    if role != 1: tl_dump(A, 1)
    A("s_branch K3_end")
    exact_check(A, L + "_slow", 7, MF, (TA + 25, TA + 27), L + "_retry", L + "_back", "K3_end")
    A.label(L + "_retry"); A.reset_state()
    for z in zero: A(z)
    if VTOUCH and role == TWV: A(f"s_mov_b32 s30, 0x40000000")
    A(f"s_barrier\ns_branch {L}_go")

def a_cu(A):
    A(f"s_mul_i32 s26, s22, {G.WF_UNIT}\ns_add_u32 s26, s26, {hex(G.WF_OFF)}")
    srd(A, 36, 18, "s26", G.WF_UNIT)
    srd(A, 48, 18, G.VOF_OFF, 64*G.SEG_SZ)
    srd(A, 52, 18, G.XNF_OFF, G.XN_SZ)
    srd(A, 56, 18, G.FLG_OFF, G.FLG_SZ)
    A(f"v_min_u32 v5, 27, v1\nv_lshlrev_b32 v5, 7, v5\ns_mul_i32 s29, s22, 3584\ns_add_u32 s29, s29, {G.FLG_PROD}")
    for k in range(4):
        G.stage_wait(A, f"K3a_wp{k}", 56, 5, 29, 6, k + 1, "K3_end")
        if k == 0: tl(A, 62)
        A(f"s_mul_i32 s28, s3, {7*14336}\ns_add_u32 s28, s28, {k*4096}")
        for i in range(7):
            for u in range(4*k, min(14, 4*k + 4)):
                A(f"buffer_load_dwordx4 {wreg(i, u)}, v4, s[36:39], s28 offen offset:{(u % 4)*1024} sc1")
            A("s_add_u32 s28, s28, 14336")
    team_flavor(A, "K3_end")
    A("s_mul_i32 s28, s3, 7\ns_add_u32 s30, s28, 6")
    A(f"""
    v_lshrrev_b32 v8, 1, v3
    v_and_b32 v9, 1, v3
    v_lshlrev_b32 v7, 7, v8
    v_lshl_add_u32 v7, v2, 3, v7
    v_lshl_add_u32 v7, v9, 2, v7
    s_lshl_b32 s28, s28, 8
    v_add_u32 v5, s28, v7
    s_lshl_b32 s30, s30, 8
    v_add_u32 v6, s30, v7
    s_mov_b32 s64, 0
    s_mov_b32 s26, 0xffff0000
    v_lshrrev_b32 v10, 2, v2
    v_and_b32 v11, 3, v2
    v_lshrrev_b32 v12, 1, v10
    v_lshl_add_u32 v12, v8, 1, v12
    v_lshlrev_b32 v0, 8, v12
    v_and_b32 v12, 1, v11
    v_lshl_add_u32 v0, v12, 7, v0
    v_lshlrev_b32 v12, 3, v9
    v_and_b32 v13, 2, v11
    v_add_u32 v12, v12, v13
    v_and_b32 v13, 1, v10
    v_add_u32 v12, v12, v13
    v_lshl_add_u32 v0, v12, 3, v0
    s_sub_u32 s28, s3, 1
    s_and_b32 s28, s28, 1
    s_mul_i32 s94, s28, 14336
    s_lshl_b32 s28, s28, 9
    s_add_u32 s28, s28, {SMX}
    v_lshl_add_u32 v7, v9, 2, v8
    v_lshlrev_b32 v7, 6, v7
    v_lshl_add_u32 v7, v2, 2, v7
    v_add_u32 v7, s28, v7
    v_lshlrev_b32 v118, 6, v1
    s_mul_i32 s28, s22, 28672
    s_cmp_eq_u32 s3, {TWV}
    s_cselect_b32 s94, s28, s94
    v_and_b32 v12, 7, v2
    v_lshrrev_b32 v13, 3, v2
    v_lshlrev_b32 v14, 6, v12
    v_lshl_add_u32 v14, v3, 4, v14
    v_lshl_add_u32 v14, v13, 3, v14
    v_add_u32 v14, {SMX}, v14
    s_cmp_eq_u32 s3, 0
    s_cselect_b64 vcc, -1, 0
    v_cndmask_b32 v7, v7, v14, vcc
    v_lshlrev_b32 v116, 5, v12
    v_lshl_add_u32 v116, v13, 4, v116
    v_lshl_add_u32 v116, v8, 8, v116
    v_lshl_add_u32 v116, v9, 3, v116
    s_lshl_b32 s28, s22, 9
    v_add_u32 v116, s28, v116
    v_lshlrev_b32 v117, 5, v12
    v_lshl_add_u32 v117, v8, 8, v117
    v_lshl_add_u32 v117, v9, 3, v117
    s_lshr_b32 s28, s22, 2
    s_lshl_b32 s28, s28, 9
    s_and_b32 s29, s22, 1
    s_lshl_b32 s29, s29, 4
    s_add_u32 s28, s28, s29
    s_bfe_u32 s29, s22, 0x10001
    s_lshl_b32 s29, s29, 2
    s_add_u32 s28, s28, s29
    s_add_u32 s28, s28, 8192
    v_add_u32 v117, s28, v117
    v_mov_b32 v14, 0x7ffffff0
    v_cmp_gt_u32 vcc, 8, v2
    v_cndmask_b32 v117, v14, v117, vcc
    v_min_u32 v114, 15, v1
    v_lshlrev_b32 v114, 7, v114
    v_add_u32 v114, 2048, v114
    v_min_u32 v111, 27, v1
    v_lshlrev_b32 v111, 2, v111
    v_add_u32 v111, 7168, v111
    v_mov_b32 v112, 0
    v_not_b32 v115, s96
    s_lshl_b32 s29, s22, 2
    s_add_u32 s29, s29, {8192 + 7296}
    v_mov_b32 v110, s29
    v_cmp_eq_u32 vcc, 0, v1
    v_cndmask_b32 v110, v14, v110, vcc
    v_mov_b32 v12, 0x4444
    v_mov_b32 v14, 0xeeee
    v_cmp_lt_u32 vcc, 7, v2
    v_cndmask_b32 v3, v12, v14, vcc
    v_and_b32 v2, 1, v2
    v_cmp_eq_u32 vcc, 1, v2
    v_cndmask_b32 v2, v12, v14, vcc
    v_add_u32 v1, {MFLA}, v4
    s_waitcnt vmcnt(0)""")
    if G.TLM: A("s_cmp_lg_u32 s3, 3\ns_cbranch_scc1 K3a_tl\ns_memrealtime s[100:101]\ns_waitcnt lgkmcnt(0)\nv_writelane_b32 v113, s100, 63\nK3a_tl:")
    A("""s_cmp_lg_u32 s65, 0
    s_cbranch_scc1 K3a_fl1""")
    for fl in (0, 1):
        if fl: A.label("K3a_fl1"); A.reset_state()
        A(f"s_cmp_eq_u32 s3, 0\ns_cbranch_scc1 K3a_r0f{fl}\ns_cmp_eq_u32 s3, 3\ns_cbranch_scc1 K3a_r3f{fl}")
        for role in (1, 0, 3):
            if role != 1: A.label(f"K3a_r{role}f{fl}"); A.reset_state()
            a_loop(A, role, fl)

WL, VOL, WZL, MFLB = 0, 114688, 147456, 155648
def wregB(i, u, n=4):
    idx = 56*i + 4*u
    if idx < 256:
        assert idx + n <= 256
        return a_(idx, n)
    return v(176 + idx - 256, n)
BA, LW, Z, PFR, PA, KEEP, KEEPM = 36, 68, 36, 116, 156, 100, 152

def b_loop(A, fl):
    L = f"K3bf{fl}"
    sc = " sc1" if fl else ""
    A.label(L + "_loop"); A.reset_state()
    zero = [f"v_mov_b32 v{r}, 0" for r in range(BA, BA + 32)]
    for z in zero: A(z)
    lw = lambda k: LW + (k % 4)*8
    def rdw(k):
        for z in range(2): A(f"ds_read_b128 {v(lw(k) + 4*z, 4)}, v5 offset:{(k // 7)*14336 + (2*(k % 7) + z)*1024}")
    for k in range(4): rdw(k)
    A(f"""s_lshl_b32 s32, s64, 13
    s_add_u32 s34, s32, 4096
    s_mul_i32 s30, s64, {G.SEG_SZ}
    s_lshl_b32 s31, s22, 15
    s_add_u32 s30, s30, s31
    s_lshl_b32 s31, s3, 13
    s_add_u32 s30, s30, s31
    s_add_u32 s29, s30, 4096
    s_add_u32 s31, s31, {VOL}
    s_lshl_b32 s28, s3, 10
    s_add_u32 s28, s28, s66
    v_add_u32 v174, s28, v4
    v_lshlrev_b32 v163, 3, v4
    v_min_u32 v163, 1920, v163
    v_add_u32 v163, 2048, v163""")
    stamp(A, 0)
    A(f"s_lshl_b32 s28, s64, 13\ns_add_u32 s33, s28, 8192\ns_cmp_lg_u32 s3, 3\ns_cbranch_scc1 {L}_wv_ok\nv_cmp_ne_u32 vcc, s96, v0\ns_cbranch_vccz {L}_wv_ok")
    flag_wait(A, L + "_wv", 68, 163, 28, PFR, "K3_end", sleep=2)
    A(f"s_mov_b32 s27, 0\ns_waitcnt lgkmcnt(0)\ns_cmp_lg_u32 s3, 2\ns_cbranch_scc1 {L}_join\ns_cmp_eq_u32 s64, 0\ns_cbranch_scc1 {L}_hm_ok")
    hu_wait(A, L + "_hm", 40, 161, 32, (PFR, PFR+1, PFR+2), "K3_end")
    A("s_mov_b32 s27, 0")
    A.label(L + "_go"); A.reset_state()
    mem_fetch(A, MFLB)
    A.label(L + "_join")
    A("s_barrier")
    for t in range(7): A(f"ds_read_b128 {v(MF+4*t, 4)}, v162 offset:{t*1024}")
    sm0 = lambda i, t, B: f"v_smfmac_f32_16x16x64_bf16 {v(BA+4*i, 4)}, {v(MF+4*t, 4)}, {B}, v160"
    dm = dma_ops(8, 48, (30, 29), 31, ' sc1') + ["buffer_load_dword v0, v163, s[68:71], s33 offen sc1"]
    cnt = [0, 15]
    def sm(i, t, B):
        cnt[0] += 1
        z = sm0(i, t, B)
        if dm and cnt[0] >= cnt[1]: z += "\n" + dm.pop(0); cnt[1] = cnt[0] + DSPB
        return z
    for t in range(7):
        A(f"s_waitcnt lgkmcnt({6 - t})")
        if t == 0: stamp(A, 1)
        A(sm(0, t, wregB(0, 2*t, 8)))
    for t in range(7):
        A(sm(1, t, wregB(1, 2*t, 8)))
        if t == 3: A(f"v_add_f32 v{BA}, v{BA}, v{BA+1}")
        if t == 4: A(f"v_add_f32 v{BA+2}, v{BA+2}, v{BA+3}")
        if t == 5: A(f"v_cmp_u_f32 vcc, v{BA}, v{BA+2}")
        if t == 6: A(f"s_cbranch_vccnz {L}_slowm\n{L}_backm:")
    stamp_cnt(A, 0)
    for k in range(14):
        A(f"s_waitcnt lgkmcnt({2*min(3, 13-k)})")
        A(sm(6 + k // 7, k % 7, v(lw(k), 8)))
        i = 2 + k // 7
        A(sm(i, k % 7, wregB(i, 2*(k % 7), 8)))
        if k + 4 < 14: rdw(k + 4)
    def fin(i):
        x = BA + 4*i
        o = [] if i == 0 else [f"v_add_f32 v{x}, v{x}, v{x+1}", f"v_add_f32 v{x+2}, v{x+2}, v{x+3}"]
        return o + [f"v_cvt_pk_bf16_f32 v{164+i}, v{x}, v{x+2}"]
    side = fin(0) + fin(1) + fin(2) + fin(6) + fin(3) + [f"ds_write_b128 v174, v[164:167]"]
    for t in range(7):
        for i in (4, 5):
            A(sm(i, t, wregB(i, 2*t, 8)))
            if side: A(side.pop(0))
    for z in side + fin(7) + fin(4) + fin(5) + [f"ds_write_b128 v174, v[168:171] offset:4096"]: A(z)
    stamp(A, 2)
    A(f"s_waitcnt vmcnt(0) lgkmcnt(0)\ns_barrier\ns_cmp_ge_u32 s3, 2\ns_cbranch_scc1 {L}_next")
    A("s_lshl_b32 s28, s24, 12\ns_add_u32 s28, s28, s66\nv_add_u32 v163, s28, v4")
    for f in range(16):
        A(f"ds_read_b128 {v(Z + 4*f, 4)}, v6 offset:{f*1024}")
        if f == 11: A("s_waitcnt lgkmcnt(4)")
    for f in range(4): A(f"ds_read_b128 {v(Z + 64 + 4*f, 4)}, v163 offset:{f*1024}")
    for r in range(4): A(f"v_mov_b32 v{PA+r}, 0")
    A(f"""s_mul_i32 s28, s64, {G.PF_STRIDE}
    s_add_u32 s29, s28, 4096
    s_add_u32 s30, s28, 8192
    s_add_u32 s34, s32, 8192
    s_waitcnt lgkmcnt(0)""")
    stamp(A, 3)
    hu_wait(A, L + "_hp", 40, 172, 32, (PFR, PFR+1, PFR+2, PFR+3), "K3_end", HUD=int(os.environ.get("HUDP", "4")))
    stamp(A, 2)
    A("s_mov_b32 s27, 0")
    A.label(L + "_gop"); A.reset_state()
    order = [8, 9, 0, 1, 2, 3, 4, 5, 6, 7]
    for k, t in enumerate(order):
        A(f"buffer_load_dwordx4 {v(PFR+4*t, 4)}, v4, s[44:47], s{28 + t // 4} offen offset:{(t % 4)*1024} sc1")
        if HU_M_AT < 0 and k == 10 + HU_M_AT: A(f"buffer_store_dword v175, v173, s[40:43], s32 offen{sc}")
    for k, u in enumerate(order):
        A(f"s_waitcnt vmcnt({9-k + (1 if (k > HU_M_AT + 1 if HU_M_AT >= 0 else k <= 10 + HU_M_AT) else 0)})")
        if k == 0: stamp(A, 4)
        A(f"v_smfmac_f32_16x16x64_bf16 {v(PA, 4)}, {v(PFR+4*u, 4)}, {v(Z+8*u, 8)}, v160")
        if k == 0: A(f"v_max_u32 v164, v{PFR+32}, v{PFR+33}")
        if k == 1: A(f"v_max3_u32 v164, v164, v{PFR+36}, v{PFR+37}\nv_cmp_eq_u32 vcc, -1, v164\ns_cbranch_vccnz {L}_early")
        if HU_M_AT >= 0 and k == HU_M_AT + 1: A(f"buffer_store_dword v175, v173, s[40:43], s32 offen{sc}")
    A(f"""v_add_f32 v{PA}, v{PA}, v{PA+1}
    v_add_f32 v{PA+2}, v{PA+2}, v{PA+3}
    v_cmp_u_f32 vcc, v{PA}, v{PA+2}
    v_cvt_pk_bf16_f32 v{PA}, v{PA}, v{PA+2}
    s_cbranch_vccnz {L}_slowp""")
    A.label(L + "_backp")
    A(f"""buffer_store_short v{PA}, v7, s[40:43], s34 offen{sc}
    buffer_store_short_d16_hi v{PA}, v7, s[40:43], s34 offen offset:32{sc}""")
    stamp_cnt(A, 1)
    A.label(L + "_next")
    stamp(A, 5)
    tl(A, 0, 64)
    stamp_out(A, 116, MFLB + 7168, 2)
    A(f"s_add_u32 s64, s64, 1\ns_cmp_lt_u32 s64, 63")
    A.flush()
    A(f"s_cbranch_scc1 {L}_loop")
    A.label(L + "_exit"); A.reset_state()
    stamp_dump(A, MFLB + 7168)
    tl_dump(A, 1)
    A("s_branch K3_end")
    exact_check(A, L + "_slowm", 7, MF, 164, L + "_retrym", L + "_backm", "K3_end")
    A.label(L + "_retrym"); A.reset_state()
    for z in zero[:8]: A(z)
    A(f"s_barrier\ns_cmp_lg_u32 s3, 2\ns_cbranch_scc1 {L}_join\ns_branch {L}_go")
    exact_check(A, L + "_slowp", 10, PFR, 164, L + "_retryp", L + "_nanp", "K3_end")
    A.label(L + "_nanp"); A.reset_state()
    A(f"v_pk_min_u16 v{PA}, v{PA}, s25\ns_branch {L}_backp")
    A.label(L + "_early"); A.reset_state()
    A(f"s_add_u32 s27, s27, 1\ns_cmp_gt_u32 s27, {SPIN_MAX}\ns_cbranch_scc1 K3_end\ns_waitcnt vmcnt(0)\ns_nop 7")
    A.label(L + "_retryp"); A.reset_state()
    for r in range(4): A(f"v_mov_b32 v{PA+r}, 0")
    A(f"s_nop 1\ns_branch {L}_gop")

def b_cu(A):
    srd(A, 36, 18, G.WF_OFF + 16*G.WF_UNIT, 16*G.WF_UNIT)
    srd(A, 48, 18, G.VOF_OFF, 64*G.SEG_SZ)
    srd(A, 68, 18, G.FLG_OFF, G.FLG_SZ)
    A(f"""v_bfe_u32 v5, v1, 2, 2
    v_mul_u32_u24 v5, 3584, v5
    v_and_b32 v6, 3, v1
    v_lshl_add_u32 v5, v6, 7, v5
    s_mul_i32 s33, s3, 14336
    s_lshr_b32 s28, s22, 1
    s_lshl_b32 s28, s28, 9
    s_add_u32 s33, s33, s28
    s_add_u32 s33, s33, {G.FLG_PROD + 16*3584}""")
    for k in range(4):
        G.stage_wait(A, f"K3b_wp{k}", 68, 5, 33, 6, k + 1, "K3_end")
        for i in range(8):
            ct, q = i // 4, i % 4
            A(f"""s_lshl_b32 s28, s3, 2
            s_add_u32 s28, s28, {q}
            s_mul_i32 s28, s28, {G.WF_UNIT}
            s_mul_i32 s29, s22, 28672
            s_add_u32 s28, s28, s29
            s_add_u32 s28, s28, {ct*14336 + k*4096}""")
            if i >= 6: A(f"s_mul_i32 s29, s3, 28672\ns_add_u32 m0, s29, {WL + (i-6)*14336 + k*4096}")
            for u in range(4*k, min(14, 4*k + 4)):
                if i < 6: A(f"buffer_load_dwordx4 {wregB(i, u)}, v4, s[36:39], s28 offen offset:{(u % 4)*1024} sc1")
                else: A(f"buffer_load_dwordx4 v4, s[36:39], s28 offen offset:{(u % 4)*1024} sc1 lds")
    team_flavor(A, "K3_end")
    A(f"""
    s_mul_i32 s28, s3, 28672
    v_add_u32 v5, s28, v4
    v_and_b32 v9, 1, v2
    v_cmp_eq_u32 vcc, 1, v9
    v_mov_b32 v160, 0x4444
    v_mov_b32 v161, 0xeeee
    v_cndmask_b32 v160, v160, v161, vcc
    s_mov_b32 s25, 0xfffefffe
    s_mov_b32 s26, 0xffff0000
    s_mov_b32 s64, 0
    s_mov_b32 s66, {WZL}
    s_and_b32 s24, s3, 1
    s_lshl_b32 s28, s24, 14
    s_add_u32 s28, s28, {VOL}
    v_add_u32 v6, s28, v4
    v_bfe_u32 v8, v2, 1, 1
    v_lshl_add_u32 v8, v3, 2, v8
    v_lshlrev_b32 v7, 4, v8
    v_lshrrev_b32 v8, 2, v2
    v_lshl_add_u32 v7, v8, 2, v7
    v_lshl_add_u32 v7, v9, 1, v7
    s_lshl_b32 s28, s22, 1
    s_add_u32 s28, s28, s24
    s_lshl_b32 s67, s28, 12
    s_lshl_b32 s29, s28, 8
    v_add_u32 v7, s29, v7
    v_min_u32 v161, 27, v1
    v_lshlrev_b32 v161, 2, v161
    v_add_u32 v161, 7168, v161
    v_min_u32 v172, 15, v1
    v_lshlrev_b32 v172, 2, v172
    v_add_u32 v172, {8192 + 7296}, v172
    s_lshl_b32 s28, s28, 2
    s_add_u32 s28, s28, {8192 + 7168}
    v_mov_b32 v173, s28
    v_mov_b32 v8, 0x7ffffff0
    v_cmp_eq_u32 vcc, 0, v1
    v_cndmask_b32 v173, v8, v173, vcc
    v_mov_b32 v175, 0
    v_not_b32 v0, s96
    v_add_u32 v162, {MFLB}, v4
    s_mov_b32 s97, {MFLB}
    s_mul_i32 s98, s24, 3072
    s_waitcnt vmcnt(0)
    """)
    G.TLV[0] = 3
    tl(A, 63)
    A("s_cmp_lg_u32 s65, 0\ns_cbranch_scc1 K3bf1_loop")
    b_loop(A, 0)
    b_loop(A, 1)

def warm_cu(A):
    L = "K3w"
    srd(A, 52, 18, G.XNF_OFF, G.XN_SZ)
    A(f"""v_min_u32 v5, 27, v1
    v_lshlrev_b32 v5, 2, v5
    v_add_u32 v5, 7168, v5
    s_lshl_b32 s28, s3, 10
    v_add_u32 v6, s28, v4
    s_mov_b32 s64, 0""")
    def touch(sreg):
        A(f"s_lshl_b32 s28, s{sreg}, 13\ns_add_u32 s28, s28, 8192\ns_mul_i32 s29, s{sreg}, {G.PF_STRIDE}\ns_mul_i32 s30, s{sreg}, 28672\ns_add_u32 s30, s30, {1*28672}")
        for k in range(2): A(f"buffer_load_dwordx4 v[16:19], v6, s[40:43], s28 offen sc1\ns_add_u32 s28, s28, 4096")
        for k in range(3): A(f"buffer_load_dwordx4 v[16:19], v6, s[44:47], s29 offen sc1\ns_add_u32 s29, s29, 4096")
        for k in range(7): A(f"buffer_load_dwordx4 v[16:19], v6, s[52:55], s30 offen sc1\ns_add_u32 s30, s30, 4096")
    A("v_mov_b32 v7, 2048\ns_mov_b32 s28, 0")
    flag_wait(A, L + "_v0", 56, 7, 28, 8, "K3_end", sleep=8)
    for k in range(WD + 1):
        A(f"s_mov_b32 s33, {k}"); touch(33)
    A.label(L + "_loop")
    A(f"s_add_u32 s64, s64, 1\ns_cmp_ge_u32 s64, {63 - WD}\ns_cbranch_scc1 K3_end\ns_lshl_b32 s32, s64, 13\ns_mov_b32 s27, 0")
    A.label(L + "_w")
    A(f"""s_sleep 4
    buffer_load_dword v8, v5, s[40:43], s32 offen sc1
    s_add_u32 s27, s27, 1
    s_cmp_gt_u32 s27, {SPIN_MAX}
    s_cbranch_scc1 K3_end
    s_waitcnt vmcnt(0)
    v_cmp_eq_u32 vcc, -1, v8
    s_cbranch_vccnz {L}_w
    s_add_u32 s33, s64, {WD}""")
    touch(33)
    A(f"s_branch {L}_loop")

def fwd_cu(A):
    L = "K3f"
    srd(A, 52, 18, G.MEMG_OFF, 64*8192)
    srd(A, 56, 18, G.FLG_OFF, G.FLG_SZ)
    A(f"""v_min_u32 v5, 27, v1
    v_lshlrev_b32 v5, 2, v5
    v_add_u32 v5, 7168, v5
    s_lshl_b32 s28, s3, 11
    s_min_u32 s28, s28, 5120
    v_add_u32 v6, s28, v4
    s_mov_b32 s26, 0xffff0000
    s_mov_b32 s64, 0""")
    A.label(L + "_loop")
    A(f"s_lshl_b32 s32, s64, 13\ns_mov_b32 s27, 0\ns_cmp_eq_u32 s64, 0\ns_cbranch_scc1 {L}_get")
    A.label(L + "_w")
    A(f"""s_sleep 2
    buffer_load_dword v8, v5, s[40:43], s32 offen sc1
    s_add_u32 s27, s27, 1
    s_cmp_gt_u32 s27, {SPIN_MAX}
    s_cbranch_scc1 K3_end
    s_waitcnt vmcnt(0)
    v_cmp_eq_u32 vcc, -1, v8
    s_cbranch_vccnz {L}_w""")
    A.label(L + "_get")
    A(f"""buffer_load_dwordx4 v[16:19], v6, s[40:43], s32 offen sc1
    buffer_load_dwordx4 v[20:23], v6, s[40:43], s32 offen offset:1024 sc1""")
    exact_check(A, L + "_chk", 2, 16, 8, L + "_get", L + "_ok", "K3_end")
    A.label(L + "_ok")
    A(f"""buffer_store_dwordx4 v[16:19], v6, s[52:55], s32 offen sc1
    buffer_store_dwordx4 v[20:23], v6, s[52:55], s32 offen offset:1024 sc1
    s_lshl_b32 s28, s64, 13
    s_add_u32 s28, s28, 6144
    s_waitcnt vmcnt(0)
    s_barrier
    s_cmp_lg_u32 s3, 0
    s_cbranch_scc1 {L}_nf""")
    flag_set(A, 56, 28, 8, 9)
    A.label(L + "_nf")
    A(f"s_add_u32 s64, s64, 1\ns_cmp_lt_u32 s64, 64\ns_cbranch_scc1 {L}_loop\ns_branch K3_end")

def team_publish(A):
    A(f"""s_barrier
    s_lshl_b32 s28, s21, 2
    s_lshl_b32 s31, s21, 7
    s_add_u32 s31, s31, {G.FLG_LN}
    v_mov_b32 v8, s35
    v_mov_b32 v9, s28
    v_mov_b32 v10, s96
    v_mov_b32 v11, s31
    s_mov_b64 exec, 1
    buffer_store_dword v8, v9, s[60:63], 0 offen sc1
    buffer_store_dword v10, v11, s[56:59], 0 offen sc1
    s_mov_b64 exec, -1""")

def team(A):
    A("s_getreg_b32 s35, hwreg(HW_REG_XCC_ID, 0, 4)\ns_add_u32 s35, s35, 1")
    srd(A, 60, 16, 0, 256)
    srd(A, 40, 18, G.MEMF_OFF, 64*G.MEMF_STRIDE)
    srd(A, 44, 18, G.PF_OFF, 64*G.PF_STRIDE)
    A("s_lshl_b32 s23, s21, 2\ns_add_u32 s23, s23, s3")
    G.ln_body(A, "KL")
    srd(A, 56, 18, G.FLG_OFF, G.FLG_SZ)
    A("s_waitcnt vmcnt(0)"); team_publish(A)
    if G.TLM: A("v_writelane_b32 v113, s84, 63"); tl(A, 61)
    A("s_cmp_eq_u32 s21, 31\ns_cbranch_scc1 K3_w\ns_cmp_eq_u32 s21, 30\ns_cbranch_scc1 K3_f")
    A("s_cmp_ge_u32 s21, 16\ns_cbranch_scc1 K3_b\ns_mov_b32 s22, s21")
    a_cu(A)
    A.label("K3_b"); A.reset_state()
    A("s_sub_u32 s22, s21, 16")
    b_cu(A)
    A.label("K3_w"); A.reset_state()
    warm_cu(A)
    A.label("K3_f"); A.reset_state()
    fwd_cu(A)
```

```python
from asmlib import *
import gen as G
from gen import srd, lane_setup, xreduce, flag_set, flag_wait
from kernels2 import f2h, LOG2E

def gemm2_task(A, L, bail):
    Z, XX, XN, UP, MP, ACC, PR = 16, 96, 100, 104, 112, 224, 232
    A(f"""s_lshl_b32 s24, s23, 2
    s_add_u32 s24, s24, s3
    s_lshl_b32 s33, s22, 13
    v_min_u32 v6, 15, v1
    v_lshlrev_b32 v6, 7, v6
    v_add_u32 v6, 2048, v6""")
    flag_wait(A, L + "_wv", 92, 6, 33, 7, bail)
    A(f"""s_mul_i32 s28, s22, {G.SEG_SZ}
    s_lshl_b32 s29, s24, 14
    s_add_u32 s28, s28, s29""")
    for f in range(16):
        if f and f % 4 == 0: A("s_add_u32 s28, s28, 4096")
        A(f"buffer_load_dwordx4 {v(Z+4*f, 4)}, v4, s[40:43], s28 offen offset:{(f % 4)*1024} sc1")
    A(f"""v_mul_u32_u24 v5, 896, v2
    v_lshl_add_u32 v5, v3, 3, v5
    s_mul_i32 s30, s22, {32*896}
    s_lshl_b32 s29, s24, 5
    s_add_u32 s30, s30, s29
    s_add_u32 s31, s30, {16*896}""")
    for qt in range(2):
        A(f"buffer_load_dwordx2 {v(XX+2*qt, 2)}, v5, s[48:51], s{30+qt} offen")
        A(f"buffer_load_dwordx2 {v(XN+2*qt, 2)}, v5, s[52:55], s{30+qt} offen")
    for r in range(8): A(f"v_mov_b32 v{UP+r}, 0")
    A(f"""v_min_u32 v6, 27, v1
    v_lshlrev_b32 v6, 7, v6
    s_mov_b32 s28, {G.FLG_MOE}""")
    flag_wait(A, L + "_wm", 92, 6, 28, 7, bail)
    A("""v_lshlrev_b32 v6, 2, v1
    buffer_load_dword v13, v6, s[60:63], 0 offen sc1
    v_min_u32 v6, 19, v1
    v_lshlrev_b32 v6, 7, v6
    v_add_u32 v7, 5632, v6
    v_add_u32 v6, 4096, v6
    v_cmp_lt_u32 vcc, 15, v1
    v_cndmask_b32 v6, v6, v7, vcc""")
    flag_wait(A, L + "_wp", 92, 6, 33, 7, bail, sleep=2)
    A(f"""s_mul_i32 s28, s22, {G.PXF_SEG}
    s_mul_i32 s29, s3, 10240
    s_add_u32 s28, s28, s29
    s_mov_b32 m0, s29""")
    for kk in range(10):
        if kk and kk % 4 == 0: A("s_add_u32 s28, s28, 4096\ns_add_u32 m0, m0, 4096")
        A(f"buffer_load_dwordx4 v4, s[36:39], s28 offen offset:{(kk % 4)*1024} sc1 lds")
    A(f"s_mul_i32 s28, s22, {G.WZ_SEG}\ns_lshl_b32 s29, s24, 12\ns_add_u32 s28, s28, s29")
    A("v_lshlrev_b32 v6, 2, v1")
    for f in range(16): A(f"buffer_load_dword v{Z+64+f}, v6, s[44:47], s28 offen offset:{f*256} sc1")
    A("s_waitcnt vmcnt(16)\ns_barrier")
    ring = lambda f: PR + (f % 3)*8
    def rd(f):
        for qt in range(2): A(f"ds_read_b128 {v(ring(f)+4*qt, 4)}, v4 offset:{qt*20480 + f*1024}")
    rd(0); rd(1)
    for f in range(20):
        if f + 2 < 20: rd(f + 2)
        A(f"s_waitcnt vmcnt({min(16, 4*(19 - f))}) lgkmcnt({2*min(2, 19-f)})")
        for qt in range(2):
            d = v(ACC+4*qt, 4)
            A(f"v_mfma_f32_16x16x32_bf16 {d}, {v(Z+4*f, 4)}, {v(ring(f)+4*qt, 4)}, {d if f else '0'}")
    A(f"""s_waitcnt vmcnt(0)
    s_mov_b32 s26, 0xffff0000
    s_mov_b32 s32, 0
    s_lshl_b32 s33, s22, 5
    v_add_u32 v8, s33, v2
    v_add_u32 v9, 16, v8
    v_lshlrev_b32 v10, 4, v3""")
    A.flush()
    A.label(L + "_moe"); A.reset_state()
    A(f"""s_nop 3
    v_readlane_b32 s34, v13, s32
    s_nop 3
    s_lshr_b32 s35, s34, 5
    s_cmp_lg_u32 s35, s22
    s_cbranch_scc1 {L}_moen
    s_mul_i32 s28, s32, 1792
    s_lshl_b32 s29, s24, 6
    s_add_u32 s28, s28, s29
    s_lshl_b32 s29, s34, 2
    v_mov_b32 v11, s29
    buffer_load_dword v12, v11, s[64:67], 0 offen""")
    for m in range(28):
        A(f"buffer_load_dwordx4 {v(MP+4*m, 4)}, v10, s[56:59], s28 offen sc1\ns_add_u32 s28, s28, 14336")
    A("s_waitcnt vmcnt(0)")
    for m in range(1, 28):
        A(f"v_pk_add_f32 {v(MP, 2)}, {v(MP, 2)}, {v(MP+4*m, 2)}\nv_pk_add_f32 {v(MP+2, 2)}, {v(MP+2, 2)}, {v(MP+4*m+2, 2)}")
    A(f"""v_mul_f32 v12, {LOG2E}, v12
    v_exp_f32 v12, -v12
    v_cvt_pk_bf16_f32 v{MP}, v{MP}, v{MP+1}
    v_add_f32 v12, 1.0, v12
    v_rcp_f32 v12, v12
    v_cvt_pk_bf16_f32 v{MP+2}, v{MP+2}, v{MP+3}
    v_cvt_pk_bf16_f32 v12, v12, v12
    v_and_b32 v12, s26, v12
    v_and_b32 v{MP+1}, s26, v{MP}
    v_lshlrev_b32 v{MP}, 16, v{MP}
    v_and_b32 v{MP+3}, s26, v{MP+2}
    v_lshlrev_b32 v{MP+2}, 16, v{MP+2}""")
    for r in range(4): A(f"v_mul_f32 v{MP+r}, v{MP+r}, v12")
    A(f"""v_cvt_pk_bf16_f32 v{MP}, v{MP}, v{MP+1}
    v_cvt_pk_bf16_f32 v{MP+2}, v{MP+2}, v{MP+3}
    v_and_b32 v{MP+1}, s26, v{MP}
    v_lshlrev_b32 v{MP}, 16, v{MP}
    v_and_b32 v{MP+3}, s26, v{MP+2}
    v_lshlrev_b32 v{MP+2}, 16, v{MP+2}""")
    for qt in range(2):
        A(f"v_cmp_eq_u32 vcc, s34, v{8+qt}")
        for r in range(4): A(f"v_cndmask_b32 v{UP+4*qt+r}, v{UP+4*qt+r}, v{MP+r}, vcc")
    A.flush()
    A.label(L + "_moen"); A.reset_state()
    A(f"s_add_u32 s32, s32, 1\ns_cmp_lt_u32 s32, 8\ns_cbranch_scc1 {L}_moe")
    T = MP
    for qt in range(2):
        for p in range(2):
            a0 = ACC + 4*qt + 2*p; u0 = UP + 4*qt + 2*p
            A(f"""v_cvt_pk_bf16_f32 v{T}, v{a0}, v{a0+1}
            v_lshlrev_b32 v{T+2}, 16, v{XX+2*qt+p}
            v_and_b32 v{T+3}, s26, v{XX+2*qt+p}
            v_and_b32 v{T+1}, s26, v{T}
            v_lshlrev_b32 v{T}, 16, v{T}
            v_lshlrev_b32 v{T+4}, 16, v{XN+2*qt+p}
            v_and_b32 v{T+5}, s26, v{XN+2*qt+p}
            v_pk_add_f32 {v(T, 2)}, {v(T, 2)}, {v(T+2, 2)}
            v_pk_add_f32 {v(T+4, 2)}, {v(T+4, 2)}, {v(u0, 2)}
            v_cvt_pk_bf16_f32 v{T}, v{T}, v{T+1}
            v_cvt_pk_bf16_f32 v{T+4}, v{T+4}, v{T+5}
            v_and_b32 v{T+1}, s26, v{T}
            v_lshlrev_b32 v{T}, 16, v{T}
            v_and_b32 v{T+5}, s26, v{T+4}
            v_lshlrev_b32 v{T+4}, 16, v{T+4}
            v_pk_add_f32 {v(T, 2)}, {v(T, 2)}, {v(T+4, 2)}
            v_cvt_pk_bf16_f32 v{T+8+2*qt+p}, v{T}, v{T+1}""")
        A(f"buffer_store_dwordx2 {v(T+8+2*qt, 2)}, v5, s[68:71], s{30+qt} offen")

NINF = "0xff800000"
def xattn_task(A, L, bail):
    TX, RG, SD, SO, SMM = 16, 128, 160, 168, 172
    A(f"""s_mul_i32 s28, s22, 28672
    s_mul_i32 s29, s3, 7168
    s_add_u32 s28, s28, s29
    s_mov_b32 m0, s29""")
    for k in range(7):
        if k == 4: A("s_add_u32 s28, s28, 4096\ns_add_u32 m0, m0, 4096")
        A(f"buffer_load_dwordx4 v4, s[76:79], s28 offen offset:{(k % 4)*1024} lds")
    A(f"""s_lshl_b32 s24, s23, 2
    s_add_u32 s24, s24, s3
    s_mul_i32 s28, s22, {G.SEG_SZ}
    s_mul_i32 s29, s24, 28672
    s_add_u32 s28, s28, s29
    s_lshl_b32 s33, s22, 13
    s_lshl_b32 s29, s24, 7
    v_mov_b32 v6, s29""")
    flag_wait(A, L + "_wt", 92, 6, 33, 7, bail)
    order = [(qt, vv) for vv in range(14) for qt in range(2)]
    for qt, vv in order:
        A(f"s_add_u32 s29, s28, {qt*14336 + (vv // 4)*4096}")
        A(f"buffer_load_dwordx4 {v(TX + (qt*14 + vv)*4, 4)}, v4, s[72:75], s29 offen offset:{(vv % 4)*1024} sc1")
    A("v_lshlrev_b32 v5, 2, v3")
    for r in range(4): A(f"v_add_u32 v6, {r}, v5\nv_cmp_le_u32 s[{84+2*r}:{85+2*r}], v6, v2")
    A("""v_and_b32 v6, 1, v2
    v_cmp_eq_u32 vcc, 1, v6
    v_mov_b32 v7, 0x4444
    v_mov_b32 v6, 0xeeee
    v_cndmask_b32 v7, v7, v6, vcc
    s_waitcnt vmcnt(28)
    s_barrier""")
    ring = lambda k: RG + (k % 4)*8
    def rd(k):
        for kt in range(2): A(f"ds_read_b128 {v(ring(k)+4*kt, 4)}, v4 offset:{kt*14336 + k*1024}")
    for k in range(3): rd(k)
    tx = lambda qt, vv, n=4: v(TX + (qt*14 + vv)*4, n)
    for k in range(14):
        if k + 3 < 14: rd(k + 3)
        A(f"s_waitcnt vmcnt({2*(13-k)}) lgkmcnt({2*min(3, 13-k)})")
        for d, kt, qt in ((SD, 0, 0), (SO, 0, 1), (SD+4, 1, 1)):
            A(f"v_mfma_f32_16x16x32_bf16 {v(d, 4)}, {v(ring(k)+4*kt, 4)}, {tx(qt, k)}, {v(d, 4) if k else '0'}")
    for r in range(8): A(f"v_mov_b32 v{SMM+r}, 0")
    A("v_mov_b32 v6, 6144")
    flag_wait(A, L + "_wm", 92, 6, 33, 9, bail, sleep=2)
    A(f"""s_lshl_b32 s28, s22, 13
    s_lshl_b32 s29, s3, 11
    s_add_u32 s28, s28, s29
    s_add_u32 m0, s29, 28672""")
    for kk in range(2): A(f"buffer_load_dwordx4 v4, s[80:83], s28 offen offset:{kk*1024} sc1 lds")
    A("s_waitcnt vmcnt(0)\ns_barrier")
    for t in range(7): A(f"ds_read_b128 {v(RG+4*t, 4)}, v4 offset:{28672 + t*1024}")
    A(f"v_mov_b32 v6, {NINF}")
    for q in range(2):
        for r in range(4): A(f"v_cndmask_b32 v{SD+4*q+r}, v6, v{SD+4*q+r}, s[{84+2*r}:{85+2*r}]")
    for t in range(7):
        A(f"s_waitcnt lgkmcnt({6-t})")
        for qt in range(2): A(f"v_smfmac_f32_16x16x64_bf16 {v(SMM+4*qt, 4)}, {v(RG+4*t, 4)}, {tx(qt, 2*t, 8)}, v7")
    A(f"""s_mul_i32 s28, s22, {G.PXF_SEG}
    s_lshl_b32 s29, s24, 10
    s_add_u32 s29, s29, s28
    s_add_u32 s30, s23, 16
    s_lshl_b32 s30, s30, 10
    s_add_u32 s30, s30, s28
    s_lshl_b32 s31, s3, 2
    v_add_u32 v8, s31, v4""")
    m, t1, l, O = 180, 182, 184, 188
    for qt in range(2):
        M, Dg = SMM + 4*qt, SD + 4*qt
        A(f"v_add_f32 v{M}, v{M}, v{M+1}\nv_add_f32 v{M+1}, v{M+2}, v{M+3}")
        prs = [M, Dg, Dg+2] + ([SO, SO+2] if qt else [])
        A(f"v_max3_f32 v{m}, v{M}, v{M+1}, v{Dg}\nv_max3_f32 v{m}, v{m}, v{Dg+1}, v{Dg+2}\nv_max_f32 v{m}, v{m}, v{Dg+3}")
        if qt: A(f"v_max3_f32 v{m}, v{m}, v{SO}, v{SO+1}\nv_max3_f32 v{m}, v{m}, v{SO+2}, v{SO+3}")
        xreduce(A, "v_max_f32", m, t1)
        for r in prs: A(f"v_pk_add_f32 {v(r, 2)}, {v(r, 2)}, {v(m, 2)} op_sel_hi:[1,0] neg_lo:[0,1] neg_hi:[0,1]")
        for r in prs: A(f"v_exp_f32 v{r}, v{r}\nv_exp_f32 v{r+1}, v{r+1}")
        A(f"v_pk_add_f32 {v(l, 2)}, {v(prs[0], 2)}, {v(prs[1], 2)}")
        for r in prs[2:]: A(f"v_pk_add_f32 {v(l, 2)}, {v(l, 2)}, {v(r, 2)}")
        A(f"v_add_f32 v{l}, v{l}, v{l+1}")
        xreduce(A, "v_add_f32", l, t1)
        A(f"v_rcp_f32 v{l}, v{l}")
        for r in prs: A(f"v_pk_mul_f32 {v(r, 2)}, {v(r, 2)}, {v(l, 2)} op_sel_hi:[1,0]")
        o = O + 8*qt
        if qt == 0:
            A(f"v_cvt_pk_bf16_f32 v{o}, v{Dg}, v{Dg+1}\nv_cvt_pk_bf16_f32 v{o+1}, v{Dg+2}, v{Dg+3}\nv_mov_b32 v{o+2}, 0\nv_mov_b32 v{o+3}, 0")
        else:
            A(f"v_cvt_pk_bf16_f32 v{o}, v{SO}, v{SO+1}\nv_cvt_pk_bf16_f32 v{o+1}, v{SO+2}, v{SO+3}\nv_cvt_pk_bf16_f32 v{o+2}, v{Dg}, v{Dg+1}\nv_cvt_pk_bf16_f32 v{o+3}, v{Dg+2}, v{Dg+3}")
        A(f"v_cvt_pk_bf16_f32 v{o+4}, v{M}, v{M+1}")
        A(f"buffer_store_dwordx4 {v(o, 4)}, v4, s[36:39], s29 offen sc1\nbuffer_store_dword v{o+4}, v8, s[36:39], s30 offen sc1")
        if qt == 0: A("s_add_u32 s29, s29, 20480\ns_add_u32 s30, s30, 20480")

    A(f"s_waitcnt vmcnt(0)\ns_barrier\ns_lshl_b32 s28, s23, 7\ns_add_u32 s28, s28, s33\ns_add_u32 s28, s28, 7680\ns_cmp_lg_u32 s3, 0\ns_cbranch_scc1 {L}_nofl")
    flag_set(A, 92, 28, 6, 7)
    A.label(L + "_nofl")

def xattn_srds(A):
    srd(A, 36, 18, G.PXF_OFF, 64*G.PXF_SEG)
    srd(A, 72, 18, G.KQF_OFF, 64*G.SEG_SZ)
    srd(A, 76, 18, G.XNF_OFF, G.XN_SZ)
    srd(A, 80, 18, G.MEMG_OFF, 64*8192)

def gemm2_srds(A):
    srd(A, 36, 18, G.PXF_OFF, 64*G.PXF_SEG)
    srd(A, 40, 18, G.VOF_OFF, 64*G.SEG_SZ)
    srd(A, 44, 18, G.WZ_OFF, 64*G.WZ_SEG)
    srd(A, 48, 4, 0, G.XN_SZ)
    srd(A, 52, 18, G.XN_OFF, G.XN_SZ)
    srd(A, 56, 18, G.MOEP_OFF, G.MOEP_SZ)
    srd(A, 60, 18, G.IDX_OFF, 32)
    srd(A, 64, 18, G.R_OFF, 8192)
    srd(A, 68, 6, 0, G.XN_SZ)
```

```python
import sys
from asmlib import *

NAME = "parallel_sum__memory_aug_recurrent_mem_tr__moe_arch_mod__prompt"
XN_OFF, XN_SZ = 0x0000000, 2048*896
XNF_OFF = 0x0200000
R_OFF = 0x0400000
MOEP_OFF, MOEP_SZ = 0x0410000, 28*8*448*4
IDX_OFF = 0x0480000
MEMF_OFF, MEMF_STRIDE = 0x0500000, 8192
PF_OFF, PF_STRIDE = 0x0600000, 10240
WF_OFF, WF_UNIT = 0x0800000, 28*14*1024
KQF_OFF, SEG_SZ = 0x1800000, 16*28*1024
VOF_OFF = 0x3400000
PXF_OFF, PXF_SEG = 0x5000000, 40*1024
WZ_OFF, WZ_SEG = 0x5400000, 28*4*1024
MEMG_OFF = 0x5C00000
FLG_MOE, FLG_PROD, FLG_LN, FLG_EPOCH = 16384*32, 18432*32, 17664*32, 17920*32
FLG_OFF, FLG_SZ = 0x5D00000, 22*1024*32
SPIN_MAX = 1 << 22
W3_SZ = 448*8192
SCALE_LOG2E = 0x3db8aa3b
import struct
assert abs(struct.unpack('<f', struct.pack('<I', SCALE_LOG2E))[0] - 1.4426950408889634/16) < 1e-8

KARG = dict(x=0, mem0=8, wq=16, wk=24, wv=32, wo=40, wr=64, wg=72, wu=80, wd=88, out=96, dbg=104, ws=112)

def srd(A, d, base, off, size):
    if off == 0:
        A(f"s_mov_b32 s{d}, s{base}\ns_mov_b32 s{d+1}, s{base+1}")
    else:
        o = off if isinstance(off, str) else hex(off)
        A(f"s_add_u32 s{d}, s{base}, {o}\ns_addc_u32 s{d+1}, s{base+1}, 0")
    A(f"s_mov_b32 s{d+2}, {hex(size)}\ns_mov_b32 s{d+3}, 0x20000")

def lane_setup(A, vlane=1, vn=2, vg=3, swave=3):
    A(f"""
    v_and_b32 v{vlane}, 63, v0
    v_lshrrev_b32 v{vg}, 6, v0
    v_and_b32 v{vn}, 15, v0
    v_readfirstlane_b32 s{swave}, v{vg}
    v_bfe_u32 v{vg}, v0, 4, 2
    """)

def xreduce(A, op, x, t, steps=(16, 32)):
    for st in steps:
        if st == 8:
            A(f"{op}_dpp v{x}, v{x}, v{x} row_ror:8 row_mask:0xf bank_mask:0xf")
        else:
            A(f"v_mov_b32 v{t}, v{x}")
            A(f"v_permlane{st}_swap_b32 v{x}, v{t}")
            A(f"{op} v{x}, v{x}, v{t}")

import os
TLM = int(os.environ.get("TLM", "0"))
def tl(A, k, sreg=None):
    if not TLM: return
    if sreg is None: A(f"s_memrealtime s[100:101]\ns_waitcnt lgkmcnt(0)\nv_writelane_b32 v{TLV[0]}, s100, {k}")
    else: A(f"s_memrealtime s[100:101]\ns_mov_b32 m0, s{sreg}\ns_waitcnt lgkmcnt(0)\nv_writelane_b32 v{TLV[0]}, s100, m0")
TLV = [15]
def tls(A, k):
    if TLM: A(f"s_memrealtime s[100:101]\ns_waitcnt lgkmcnt(0)\ns_mov_b32 s{84+k}, s100")
def tl_dump(A, kern, wsreg=18):
    if not TLM: return
    A(f"""s_add_u32 s36, s{wsreg}, {hex(0x5F00000 + kern*0x40000)}
    s_addc_u32 s37, s{wsreg+1}, 0
    s_mov_b32 s38, 0x40000
    s_mov_b32 s39, 0x20000
    v_mbcnt_lo_u32_b32 v14, -1, 0
    v_mbcnt_hi_u32_b32 v14, -1, v14
    v_lshlrev_b32 v14, 2, v14
    s_lshl_b32 s100, s2, 10
    s_lshl_b32 s101, s3, 8
    s_add_u32 s100, s100, s101
    buffer_store_dword v{TLV[0]}, v14, s[36:39], s100 offen""")

def flag_wait(A, L, srdn, voff, soff, tmp, bail, sleep=6, cnt=27):
    A(f"s_mov_b32 s{cnt}, 0")
    A.label(L)
    A(f"""buffer_load_dword v{tmp}, v{voff}, s[{srdn}:{srdn+3}], s{soff} offen sc1
    s_add_u32 s{cnt}, s{cnt}, 1
    s_cmp_gt_u32 s{cnt}, {SPIN_MAX}
    s_cbranch_scc1 {bail}
    s_waitcnt vmcnt(0)
    v_cmp_ne_u32 vcc, s96, v{tmp}
    s_cbranch_vccz {L}_ok
    s_sleep {min(127, sleep*int(os.environ.get('SLP', '1')))}
    s_branch {L}""")
    A.label(L + "_ok")

def flag_set(A, srdn, soff, t0, t1):
    A(f"""v_mov_b32 v{t0}, s96
    v_mov_b32 v{t1}, 0
    s_mov_b64 exec, 1
    buffer_store_dword v{t0}, v{t1}, s[{srdn}:{srdn+3}], s{soff} offen sc1
    s_mov_b64 exec, -1""")

def wreg(i, u, n=4):
    idx = 56*i + 4*u
    if idx < 256:
        assert idx + n <= 256
        return a_(idx, n)
    return v(120 + idx - 256, n)

PADS = int(os.environ.get("PADS", "1"))
class Warm:
    def __init__(self, A, name):
        self.A, self.name = A, name
        if not PADS: return
        A("s_mov_b64 exec, 0")
        self.slot = len(A.lines); A.lines.append("; warm entry")
        A.label(name + "_ret"); A.reset_state()
        A("s_mov_b64 exec, -1")
    def on(self, every=112):
        if PADS: self.A.pads_on(self.name, every)
    def off(self):
        if not PADS: return
        st = self.A.pads_off(self.name + "_ret")
        t = "".join(f"    s_cmp_eq_u32 s3, {w}\n    s_cbranch_scc1 {st[w]}\n" for w in range(3)) + f"    s_branch {st[3]}"
        self.A.lines[self.slot] = t

def stage_wait(A, L, srdn, voff, soff, t0, k, bail, sleep=int(os.environ.get('SLS', '6'))):
    A("s_mov_b32 s27, 0")
    A.label(L)
    A(f"""buffer_load_dword v{t0}, v{voff}, s[{srdn}:{srdn+3}], s{soff} offen sc1
    s_add_u32 s27, s27, 1
    s_cmp_gt_u32 s27, {SPIN_MAX}
    s_cbranch_scc1 {bail}
    s_waitcnt vmcnt(0)
    v_subrev_u32 v{t0}, s95, v{t0}
    v_subrev_u32 v{t0}, {k}, v{t0}
    v_cmp_lt_u32 vcc, {4 - k}, v{t0}
    s_cbranch_vccz {L}_ok
    s_sleep {sleep}
    s_branch {L}""")
    A.label(L + "_ok")

def prod_body(A, L):
    A(f"""s_and_b32 s24, s22, 15
    s_lshl_b32 s25, s24, 9
    s_mul_i32 s26, s22, {WF_UNIT}
    s_add_u32 s26, s26, {hex(WF_OFF)}""")
    srd(A, 36, 18, "s26", WF_UNIT)
    VO, RA, SR, TMP = 216, 224, 136, 232
    A("""v_lshrrev_b32 v5, 5, v1
    v_and_b32 v6, 31, v1
    v_xor_b32 v6, v6, v5
    v_lshlrev_b32 v6, 4, v6
    v_lshl_add_u32 v6, v5, 13, v6""")
    for k in range(8):
        A(f"v_xor_b32 v{VO+k}, {2*k << 4}, v6\nv_add_u32 v{VO+k}, {(8*(k >> 1) + 2*(k & 1))*8192}, v{VO+k}")
    def tile_dma(srdn, soff):
        for k in range(8):
            A(f"buffer_load_dwordx4 v{VO+k}, s[{srdn}:{srdn+3}], s{soff} offen lds\ns_add_u32 m0, m0, 1024")
    def coop_touch():
        if not int(os.environ.get("PTOUCH", "1")): return
        A("""v_lshrrev_b32 v250, 3, v1
        v_and_b32 v251, 7, v1
        v_lshlrev_b32 v251, 6, v251
        v_lshl_add_u32 v250, v250, 13, v251
        s_lshl_b32 s27, s23, 19
        s_lshl_b32 s28, s3, 17
        s_add_u32 s27, s27, s28
        s_add_u32 s27, s27, s25
        buffer_load_dword v251, v250, s[40:43], s27 offen
        s_add_u32 s27, s27, 65536
        buffer_load_dword v252, v250, s[40:43], s27 offen""")
    def stage_dma(k):
        A(f"""s_add_u32 s27, s3, {4*k}
        s_lshl_b32 s27, s27, 18
        s_add_u32 s27, s27, s25
        s_add_u32 m0, s32, {(k % 2)*16384}""")
        tile_dma(40, 27)
        A("s_add_u32 s27, s27, 32768")
        tile_dma(40, 27)
    rreg = lambda ct, ks: v(8 + (ct*8 + ks)*4, 4)
    A(f"""s_lshl_b32 s32, s3, 15
    s_add_u32 s32, s32, 32768
    s_mov_b32 s30, 1.0
    s_cmp_ge_u32 s22, 16
    s_cbranch_scc1 {L}_t1""")
    srd(A, 40, 76, 0, W3_SZ)
    srd(A, 44, 78, 0, W3_SZ)
    coop_touch()
    A(f"""s_mov_b32 s30, {hex(SCALE_LOG2E)}
    s_lshl_b32 s27, s23, 19
    s_lshr_b32 s28, s3, 1
    s_lshl_b32 s28, s28, 18
    s_add_u32 s27, s27, s28
    s_and_b32 s28, s3, 1
    s_lshl_b32 s28, s28, 15
    s_add_u32 s27, s27, s28
    s_add_u32 s27, s27, s25
    s_lshl_b32 m0, s3, 13""")
    tile_dma(44, 27)
    stage_dma(0)
    A(f"s_branch {L}_c0")
    A.label(L + "_t1"); A.reset_state()
    srd(A, 40, 80, 0, W3_SZ)
    coop_touch()
    A(f"s_mul_i32 s27, s24, {256*896}")
    srd(A, 44, 82, "s27", 256*896)
    A(f"""v_lshrrev_b32 v5, 3, v1
    v_and_b32 v6, 7, v1
    v_and_b32 v7, 6, v5
    v_xor_b32 v6, v6, v7
    v_lshlrev_b32 v6, 4, v6
    v_and_b32 v7, 3, v5
    v_lshrrev_b32 v5, 2, v5
    v_lshl_add_u32 v7, v5, 3, v7
    v_mul_u32_u24 v7, 896, v7
    v_add_u32 v7, v7, v6
    s_lshl_b32 s27, s23, 7
    s_mul_i32 s28, s3, {64*896}
    s_add_u32 s27, s27, s28
    s_lshl_b32 m0, s3, 13""")
    for k in range(8):
        A(f"buffer_load_dwordx4 v7, s[44:47], s27 offen lds\ns_add_u32 m0, m0, 1024\ns_add_u32 s27, s27, {(4 if k % 2 == 0 else 12)*896}")
    stage_dma(0)
    A.label(L + "_c0"); A.reset_state()
    A("""v_and_b32 v5, 3, v2
    v_xor_b32 v5, v5, v3
    v_and_b32 v6, 12, v2
    v_or_b32 v5, v5, v6
    v_lshlrev_b32 v5, 4, v5
    v_lshl_add_u32 v5, v2, 9, v5""")
    for ks in range(8): A(f"v_xor_b32 v{RA+ks}, {ks << 6}, v5")
    NT = 0
    W = Warm(A, L + "_wm")
    W.on()
    tls(A, 1)
    A(f"s_waitcnt vmcnt({16 + NT})\ns_barrier\ns_cmp_ge_u32 s22, 16\ns_cbranch_scc1 {L}_r1")
    for ct in range(4):
        for ks in range(8): A(f"ds_read_b128 {rreg(ct, ks)}, v{RA+ks} offset:{ct*8192}")
        A("s_waitcnt lgkmcnt(7)")
    A(f"s_branch {L}_c1")
    A.label(L + "_r1"); A.reset_state()
    A("""v_lshrrev_b32 v5, 2, v2
    v_and_b32 v6, 1, v3
    v_lshl_add_u32 v6, v6, 2, v5
    v_lshrrev_b32 v7, 1, v6
    v_lshrrev_b32 v5, 1, v3
    v_lshl_add_u32 v6, v5, 4, v6
    v_lshlrev_b32 v6, 7, v6
    v_and_b32 v5, 3, v2
    v_lshl_add_u32 v6, v5, 3, v6""")
    for ct in range(4):
        A(f"v_xor_b32 v5, {ct}, v7\nv_lshl_add_u32 v5, v5, 5, v6")
        for ks in range(8):
            for z in range(2): A(f"ds_read_b64_tr_b16 {v(8 + (ct*8 + ks)*4 + 2*z, 2)}, v5 offset:{ks*4096 + z*1024}")
            if ks % 4 == 3: A("s_waitcnt lgkmcnt(7)")
    A.label(L + "_c1"); A.reset_state()
    stage_dma(1)
    tls(A, 2)
    for ks in range(8): A(f"v_add_u32 v{RA+ks}, s32, v{RA+ks}")
    A(f"""s_mul_i32 s31, s23, {4*14*1024}
    s_lshl_b32 s28, s3, 10
    s_add_u32 s31, s31, s28
    s_lshl_b32 s33, s20, 9
    s_lshl_b32 s28, s3, 7
    s_add_u32 s33, s33, s28
    s_add_u32 s33, s33, {FLG_PROD}
    v_mov_b32 v6, 0x7ffffff0
    v_cmp_eq_u32 vcc, 0, v1
    v_cndmask_b32 v6, v6, v1, vcc""")
    acc = lambda k, ct, e: a_(((k*4 + ct)*2 + e)*4, 4)
    def epilogue(k):
        o = []
        for ct in range(4):
            t = TMP + 4*(ct % 2)
            for e in range(2):
                b = ((k*4 + ct)*2 + e)*4
                for r in range(4): o.append(f"v_accvgpr_read_b32 v{TMP+8+r}, a{b+r}")
                for r in (0, 2): o.append(f"v_pk_mul_f32 {v(TMP+8+r, 2)}, {v(TMP+8+r, 2)}, s[30:31] op_sel_hi:[1,0]")
                o.append(f"v_cvt_pk_bf16_f32 v{t+2*e}, v{TMP+8}, v{TMP+9}")
                o.append(f"v_cvt_pk_bf16_f32 v{t+2*e+1}, v{TMP+10}, v{TMP+11}")
            o.append(f"s_add_u32 s28, s31, {(ct*14 + 4*k)*1024}\nbuffer_store_dwordx4 {v(t, 4)}, v4, s[36:39], s28 offen sc1")
        return o
    flag = lambda st: f"s_add_u32 s28, s95, {st}\nv_mov_b32 v7, s28\nbuffer_store_dword v7, v6, s[48:51], s33 offen sc1"
    PORD = int(os.environ.get("PORD", "1"))
    for k in range(4):
        if k == 3: A(f"s_cmp_ge_u32 s3, 2\ns_cbranch_scc1 {L}_short")
        A(f"s_waitcnt vmcnt({([16 + NT, 16, 16, 8], [16 + NT, 16, 16, 0])[PORD][k]})")
        if PORD and k >= 2: A(flag(k - 1))
        for e in range(2):
            for ks in range(8): A(f"ds_read_b128 {v(SR + (e*8 + ks)*4, 4)}, v{RA+ks} offset:{(k % 2)*16384 + e*8192}")
            if e == 0: A("s_waitcnt lgkmcnt(7)")
        side = ({0: [], 1: [], 2: epilogue(0) + epilogue(1), 3: epilogue(2)}[k]) if not PORD else (epilogue(k - 1) if k else [])
        for e in range(2):
            for ks in range(8):
                A(f"s_waitcnt lgkmcnt({15 - 8*e - ks})")
                for ct in range(4):
                    A(f"v_mfma_f32_16x16x32_bf16 {acc(k, ct, e)}, {v(SR + (e*8 + ks)*4, 4)}, {rreg(ct, ks)}, {acc(k, ct, e) if ks else '0'}")
                    for _ in range(2):
                        if side and (e or ks): A(side.pop(0))
                if e == 1 and ks == 7 and k < 2: stage_dma(k + 2)
        for z in side: A(z)
    for z in epilogue(3): A(z)
    if not PORD:
        A("s_waitcnt vmcnt(12)"); A(flag(1))
        A("s_waitcnt vmcnt(9)"); A(flag(2))
        A("s_waitcnt vmcnt(6)"); A(flag(3))
    else:
        A("s_waitcnt vmcnt(4)"); A(flag(3))
    A(f"s_branch {L}_fin")
    A.label(L + "_short"); A.reset_state()
    for z in epilogue(2): A(z)
    if not PORD:
        A("s_waitcnt vmcnt(8)"); A(flag(1))
        A("s_waitcnt vmcnt(5)"); A(flag(2))
    else:
        A("s_waitcnt vmcnt(4)"); A(flag(2))
    A.label(L + "_fin"); A.reset_state()
    tls(A, 3)
    W.off()
    A("s_waitcnt vmcnt(0)")
    A(flag(4))

def ln_body(A, L):
    srd(A, 36, 4, 0, XN_SZ)
    srd(A, 68, 78, 0, 896)
    srd(A, 48, 18, XNF_OFF, XN_SZ)
    srd(A, 52, 18, R_OFF, 8192)
    srd(A, 64, 76, 0, 7168)
    A(f"""
    v_mul_u32_u24 v7, 896, v2
    v_lshl_add_u32 v7, v3, 4, v7
    v_lshlrev_b32 v5, 4, v3
    s_mul_i32 s24, s23, {16*896}
    """)
    X, W, F = 8, 64, 120
    for u in range(14): A(f"buffer_load_dwordx4 {v(X+4*u, 4)}, v7, s[36:39], s24 offen offset:{u*64}")
    WM = Warm(A, L + "_wm")
    for u in range(14): A(f"buffer_load_dwordx4 {v(W+4*u, 4)}, v5, s[68:71], 0 offen offset:{u*64}")
    A("v_mov_b32 v232, -1\nv_mov_b32 v233, -1\nv_mov_b32 v234, -1\nv_mov_b32 v235, -1")
    for k in range(4):
        A(f"s_lshl_b32 s25, s23, 10\ns_add_u32 s25, s25, {8192 + k*128*1024}")
        A(f"buffer_store_dwordx4 v[232:235], v4, s[40:43], s25 offen sc1")
    for k in range(5):
        A(f"s_lshl_b32 s25, s23, 10\ns_add_u32 s25, s25, {k*128*1024}")
        A(f"buffer_store_dwordx4 v[232:235], v4, s[44:47], s25 offen sc1")
    A(f"""s_cmp_lg_u32 s23, 0
    s_cbranch_scc1 {L}_nomem
    v_lshrrev_b32 v6, 1, v2
    v_mul_u32_u24 v6, 896, v6
    v_lshl_add_u32 v6, v3, 5, v6
    v_and_b32 v5, 1, v2
    v_cmp_eq_u32 vcc, 1, v5
    """)
    for t in range(7):
        A(f"buffer_load_dwordx4 {v(F+8*t, 4)}, v6, s[64:67], 0 offen offset:{t*128}")
        A(f"buffer_load_dwordx4 {v(F+8*t+4, 4)}, v6, s[64:67], 0 offen offset:{t*128+16}")
    A("s_waitcnt vmcnt(0)\ns_mov_b32 s27, 0xfffefffe")
    for t in range(7):
        for aa in range(4):
            A(f"v_cndmask_b32 v{F+56+4*t+aa}, v{F+8*t+2*aa}, v{F+8*t+2*aa+1}, vcc")
            A(f"v_pk_min_u16 v{F+56+4*t+aa}, v{F+56+4*t+aa}, s27")
        A(f"s_mov_b32 s25, {t*1024}\nbuffer_store_dwordx4 {v(F+56+4*t, 4)}, v4, s[40:43], s25 offen sc1")
    A("s_waitcnt vmcnt(0)")
    A.label(L + "_nomem")
    WM.on()
    tls(A, 1)
    A("s_waitcnt vmcnt(23)")
    tls(A, 2)
    A("s_mov_b32 s26, 0xffff0000")
    A("s_mov_b32 s27, 0x3f803f80\nv_mov_b32 v236, 0\nv_mov_b32 v237, 0")
    for j in range(56):
        A(f"v_dot2_f32_bf16 v{236 + j % 2}, v{X+j}, s27, v{236 + j % 2}\nv_lshlrev_b32 v{F+2*j}, 16, v{X+j}\nv_and_b32 v{F+2*j+1}, s26, v{X+j}")
    inv = hex(struct.unpack('<I', struct.pack('<f', 1/448))[0])
    A("v_add_f32 v236, v236, v237")
    xreduce(A, "v_add_f32", 236, 237)
    A(f"v_mul_f32 v236, {inv}, v236\nv_mov_b32 v237, v236")
    A("v_mov_b32 v240, 0\nv_mov_b32 v241, 0\nv_mov_b32 v242, 0\nv_mov_b32 v243, 0")
    for j in range(0, 56, 2):
        A(f"v_pk_add_f32 v[244:245], {v(F+2*j,2)}, v[236:237] neg_lo:[0,1] neg_hi:[0,1]")
        A(f"v_pk_add_f32 v[246:247], {v(F+2*j+2,2)}, v[236:237] neg_lo:[0,1] neg_hi:[0,1]")
        A(f"v_pk_fma_f32 v[240:241], v[244:245], v[244:245], v[240:241]")
        A(f"v_pk_fma_f32 v[242:243], v[246:247], v[246:247], v[242:243]")
    A("v_pk_add_f32 v[240:241], v[240:241], v[242:243]\nv_add_f32 v240, v240, v241")
    xreduce(A, "v_add_f32", 240, 241)
    A(f"""v_mul_f32 v240, {inv}, v240
    v_cvt_pk_bf16_f32 v236, v236, v240
    v_and_b32 v240, s26, v236
    v_lshlrev_b32 v236, 16, v236
    v_add_f32 v240, {hex(struct.unpack('<I', struct.pack('<f', 1e-5))[0])}, v240
    v_cvt_pk_bf16_f32 v240, v240, v240
    v_and_b32 v240, s26, v240
    v_sqrt_f32 v240, v240
    v_mov_b32 v237, v236
    v_cvt_pk_bf16_f32 v240, v240, v240
    v_and_b32 v240, s26, v240
    v_rcp_f32 v240, v240
    s_nop 0
    v_mov_b32 v241, v240
    s_mul_i32 s25, s23, {14*1024}""")
    for j in range(56):
        A(f"v_pk_add_f32 {v(F+2*j,2)}, {v(F+2*j,2)}, v[236:237] neg_lo:[0,1] neg_hi:[0,1]")
        A(f"v_cvt_pk_bf16_f32 v{X+j}, v{F+2*j}, v{F+2*j+1}")
        A(f"v_lshlrev_b32 v{F+2*j}, 16, v{X+j}\nv_and_b32 v{F+2*j+1}, s26, v{X+j}")
        A(f"v_pk_mul_f32 {v(F+2*j,2)}, {v(F+2*j,2)}, v[240:241]")
        A(f"v_cvt_pk_bf16_f32 v{X+j}, v{F+2*j}, v{F+2*j+1}")
        if j % 4 == 3:
            u = j // 4
            A(f"buffer_store_dwordx4 {v(X+4*u, 4)}, v4, s[48:51], s25 offen offset:{(u % 4)*1024} sc1")
            if u % 4 == 3: A("s_add_u32 s25, s25, 4096")
    A("s_waitcnt vmcnt(23)")
    A("v_mov_b32 v240, 0\nv_mov_b32 v241, 0")
    for j in range(56): A(f"v_dot2_f32_bf16 v{240 + j % 2}, v{X+j}, v{W+j}, v{240 + j % 2}")
    A("v_add_f32 v240, v240, v241")
    xreduce(A, "v_add_f32", 240, 241)
    A(f"""v_cvt_pk_bf16_f32 v240, v240, v240
    v_and_b32 v240, s26, v240
    v_lshlrev_b32 v241, 2, v2
    s_lshl_b32 s25, s23, 6
    s_mov_b64 exec, 0xffff
    buffer_store_dword v240, v241, s[52:55], s25 offen sc1
    s_mov_b64 exec, -1""")
    WM.off()
    tls(A, 3)

KD = """
.section .rodata,"a"
.p2align 6
.amdhsa_kernel {name}
  .amdhsa_next_free_vgpr {nv}
  .amdhsa_next_free_sgpr 102
  .amdhsa_accum_offset 256
  .amdhsa_group_segment_fixed_size 0
  .amdhsa_kernarg_size 120
  .amdhsa_user_sgpr_count 2
  .amdhsa_user_sgpr_kernarg_segment_ptr 1
  .amdhsa_system_sgpr_workgroup_id_x 1
.end_amdhsa_kernel
"""

def build(kernels):
    out = []
    for name, fn, grid, lds in kernels:
        out.append(f"; @launch kernel={name} grid=({grid},1,1) block=(256,1,1) lds={lds}")
    out.append('.amdgcn_target "amdgcn-amd-amdhsa--gfx950"\n.text')
    for name, fn, grid, lds in kernels:
        A = Asm()
        fn(A)
        out.append(f".globl {name}\n.p2align 8\n.type {name},@function")
        out.append(A.text())
    for name, fn, grid, lds in kernels:
        out.append(KD.format(name=name, nv=256 if name in ('gemm2_kernel', 'xattn_kernel') else 512))
    return '\n'.join(out)

if __name__ == "__main__":
    import kmain
    ks = [("main_kernel", kmain.kmain, 256, 163840)]
    sys.stdout.write(build(ks))
```

```python
from asmlib import *
import gen as G
from gen import srd, lane_setup, xreduce, wreg, flag_set, flag_wait, tl
import struct
def f2h(x): return hex(struct.unpack('<I', struct.pack('<f', x))[0])
LOG2E = f2h(1.4426950408889634)

def tile_c(A, dst, i, swave=3, sodd=24):
    if i < 6:
        A(f"s_mul_i32 s{dst}, s{swave}, 7\ns_add_u32 s{dst}, s{dst}, s{sodd}\ns_add_u32 s{dst}, s{dst}, {i}")
    else:
        A(f"s_mul_i32 s{dst}, s{sodd}, 6\ns_sub_u32 s{dst}, 6, s{dst}\ns_mul_i32 s{dst+1}, s{swave}, 7\ns_add_u32 s{dst}, s{dst}, s{dst+1}")

def load_weights7(A, wsrd, vl16, st=26):
    for i in range(7):
        tile_c(A, st, i)
        A(f"s_mul_i32 s{st}, s{st}, 14336")
        for u in range(14):
            A(f"buffer_load_dwordx4 {wreg(i, u)}, v{vl16}, s[{wsrd}:{wsrd+3}], s{st} offen offset:{(u % 4)*1024} sc1")
            if u % 4 == 3: A(f"s_add_u32 s{st}, s{st}, 4096")

def gemm1_body(A, pfx):
    A(f"""
    s_and_b32 s24, s3, 1
    s_and_b32 s25, s22, 15
    v_lshlrev_b32 v4, 4, v1
    s_mul_i32 s26, s22, {G.WF_UNIT}
    s_add_u32 s26, s26, {hex(G.WF_OFF)}
    """)
    srd(A, 36, 18, "s26", G.WF_UNIT)
    srd(A, 40, 18, G.XNF_OFF, G.XN_SZ)
    srd(A, 48, 18, G.FLG_OFF, G.FLG_SZ)
    def dma(seg_sgpr, buf_sgpr):
        A(f"""s_mul_i32 s28, s{seg_sgpr}, 28672
        s_mul_i32 s29, s3, 7168
        s_add_u32 s28, s28, s29
        s_add_u32 s29, s29, s{buf_sgpr}
        s_mov_b32 m0, s29""")
        for k in range(7):
            if k == 4: A("s_add_u32 s28, s28, 4096\ns_add_u32 s29, s29, 4096\ns_mov_b32 m0, s29")
            A(f"buffer_load_dwordx4 v4, s[40:43], s28 offen offset:{(k % 4)*1024} lds")
    A(f"s_mov_b32 s30, 0\nv_min_u32 v5, 31, v1\nv_lshlrev_b32 v5, 7, v5\ns_mov_b32 s28, {G.FLG_LN}")
    flag_wait(A, pfx + "_l", 48, 5, 28, 6, "K3_end", sleep=4)
    dma(23, 30)
    A(f"s_add_u32 s34, s23, 7\ns_mov_b32 s31, 28672")
    dma(34, 31)
    A(f"v_min_u32 v5, 27, v1\nv_lshlrev_b32 v5, 7, v5\ns_mul_i32 s54, s22, 3584\ns_add_u32 s54, s54, {G.FLG_PROD}")
    def wstage(k, tag):
        G.stage_wait(A, f"{pfx}_wp{tag}{k}", 48, 5, 54, 7, k + 1, "K3_end", sleep=4)
        for i in range(7):
            tile_c(A, 28, i)
            A(f"s_mul_i32 s28, s28, 14336\ns_add_u32 s28, s28, {k*4096}")
            for u in range(4*k, min(14, 4*k + 4)):
                A(f"buffer_load_dwordx4 {wreg(i, u)}, v4, s[36:39], s28 offen offset:{(u % 4)*1024} sc1")
    A("s_cmp_ge_u32 s22, 16")
    A(f"s_cbranch_scc1 {pfx}_vo")
    for k in range(4): wstage(k, "a")
    acc = lambda tt, i: 64 + (tt*7 + i)*4
    for typ in (0, 1):
        L = f"{pfx}_{'kq' if typ == 0 else 'vo'}"
        if typ == 1: A.label(L); A.reset_state()
        if typ == 0:
            A(f"s_mul_i32 s26, s25, 28672\ns_add_u32 s26, s26, {hex(G.KQF_OFF)}")
            srd(A, 44, 18, "s26", 64*G.SEG_SZ - 15*28672)
            A("""s_mul_i32 s31, s3, 7
            s_add_u32 s31, s31, s24
            s_lshr_b32 s31, s31, 1
            s_lshl_b32 s31, s31, 10""")
            tile_c(A, 32, 6)
            A("s_lshr_b32 s32, s32, 1\ns_lshl_b32 s32, s32, 10\ns_lshl_b32 s33, s24, 3\nv_add_u32 v5, s33, v4")
        else:
            A(f"s_lshl_b32 s26, s25, 10\ns_add_u32 s26, s26, {hex(G.VOF_OFF)}")
            srd(A, 44, 18, "s26", 64*G.SEG_SZ - 15*1024)
            tile_c(A, 31, 0); A("s_lshl_b32 s31, s31, 14")
            tile_c(A, 32, 6); A("s_lshl_b32 s32, s32, 14")
        xr = lambda u, tt: 48 + ((u % 2)*2 + tt)*4
        def rd(u):
            for tt in range(2): A(f"ds_read_b128 {v(xr(u, tt), 4)}, v6 offset:{(tt*14 + u)*1024}")
        def mm(u0, u1):
            rd(u0)
            for u in range(u0, u1):
                if u + 1 < u1: rd(u + 1)
                A(f"s_waitcnt lgkmcnt({2 if u + 1 < u1 else 0})")
                for tt in range(2):
                    for i in range(7):
                        c = v(acc(tt, i), 4) if u else "0"
                        if typ == 0: A(f"v_mfma_f32_16x16x32_bf16 {v(acc(tt, i), 4)}, {wreg(i, u)}, {v(xr(u, tt), 4)}, {c}")
                        else: A(f"v_mfma_f32_16x16x32_bf16 {v(acc(tt, i), 4)}, {v(xr(u, tt), 4)}, {wreg(i, u)}, {c}")
        def top():
            A(f"""
            v_add_u32 v6, s30, v4
            s_add_u32 s52, s30, {2*28672}
            s_sub_u32 s53, s52, {3*28672}
            s_cmp_ge_u32 s52, {3*28672}
            s_cselect_b32 s52, s53, s52
            s_add_u32 s30, s30, 28672
            s_cmp_ge_u32 s30, {3*28672}
            s_cselect_b32 s30, 0, s30
            s_add_u32 s34, s23, 14
            """)
            dma(34, 52)
        if typ == 1:
            top()
            wstage(0, "b"); wstage(1, "b")
            A("s_barrier")
            mm(0, 4); wstage(2, "b"); mm(4, 8); wstage(3, "b"); mm(8, 12)
            A("s_waitcnt vmcnt(0)")
            tl(A, 1)
            mm(12, 14)
            A(f"s_branch {L}_epi")
        else:
            A("s_waitcnt vmcnt(0)\ns_barrier")
            tl(A, 1)
        A.label(L + "_loop"); A.reset_state()
        top()
        mm(0, 14)
        if typ == 1:
            A.label(L + "_epi"); A.reset_state(); A("s_nop 7")
        A(f"s_mul_i32 s35, s23, {G.SEG_SZ}")
        nst = 0
        if typ == 0:
            for tt in range(2):
                A(f"s_add_u32 s28, s35, s31\ns_add_u32 s28, s28, {tt*14336}\ns_add_u32 s29, s35, s32\ns_add_u32 s29, s29, {tt*14336}")
                for p in range(3):
                    o = 16 + (tt*4 + p)*4
                    for e in range(2):
                        b = acc(tt, 2*p + e)
                        A(f"v_cvt_pk_bf16_f32 v{o+2*e}, v{b}, v{b+1}\nv_cvt_pk_bf16_f32 v{o+2*e+1}, v{b+2}, v{b+3}")
                    A(f"buffer_store_dwordx4 {v(o, 4)}, v4, s[44:47], s28 offen offset:{p*1024} sc1"); nst += 1
                o = 16 + (tt*4 + 3)*4; b = acc(tt, 6)
                A(f"v_cvt_pk_bf16_f32 v{o}, v{b}, v{b+1}\nv_cvt_pk_bf16_f32 v{o+1}, v{b+2}, v{b+3}")
                A(f"buffer_store_dwordx2 {v(o, 2)}, v5, s[44:47], s29 offen sc1"); nst += 1
        else:
            A("s_add_u32 s28, s35, s31")
            for i in range(7):
                o = 16 + i*4
                for tt in range(2):
                    b = acc(tt, i)
                    A(f"v_cvt_pk_bf16_f32 v{o+2*tt}, v{b}, v{b+1}\nv_cvt_pk_bf16_f32 v{o+2*tt+1}, v{b+2}, v{b+3}")
                if i == 6: A("s_add_u32 s28, s35, s32")
                A(f"buffer_store_dwordx4 {v(o, 4)}, v4, s[44:47], s28 offen sc1"); nst += 1
                if i < 5: A("s_add_u32 s28, s28, 16384")
        A(f"""
        s_cmp_lt_u32 s23, 7
        s_cselect_b32 s28, 0, 14
        s_cbranch_scc1 {L}_drain
        s_waitcnt vmcnt({2*nst + 7})
        s_branch {L}_drained""")
        A.label(L + "_drain")
        A("s_waitcnt vmcnt(0)")
        A.label(L + "_drained")
        A(f"""s_barrier
        s_sub_u32 s28, s23, s28
        s_max_i32 s28, s28, s21
        s_lshl_b32 s28, s28, 13
        s_lshl_b32 s29, s22, 7
        s_add_u32 s28, s28, s29
        s_cmp_lg_u32 s3, 0
        s_cbranch_scc1 {L}_nofl""")
        flag_set(A, 48, 28, 6, 7)
        A.label(L + "_nofl")
        A(f"s_add_u32 s23, s23, 7\ns_cmp_lt_u32 s23, 64")
        A.flush()
        A(f"s_cbranch_scc1 {L}_loop")
        A(f"""s_waitcnt vmcnt(0)
        s_barrier
        s_sub_u32 s28, s23, 7
        s_lshl_b32 s28, s28, 13
        s_lshl_b32 s29, s22, 7
        s_add_u32 s28, s28, s29
        s_cmp_lg_u32 s3, 0
        s_cbranch_scc1 {pfx}_done""")
        flag_set(A, 48, 28, 6, 7)
        A(f"s_sub_u32 s28, s28, {7*8192}")
        flag_set(A, 48, 28, 6, 7)
        A(f"s_branch {pfx}_done")

def moe_body(A, pfx):
    srd(A, 36, 18, G.R_OFF, 8192)
    srd(A, 40, 18, G.XNF_OFF, G.XN_SZ)
    srd(A, 44, 8, 0, 448*3584)
    srd(A, 48, 10, 0, 448*3584)
    srd(A, 52, 12, 0, 1792*896)
    srd(A, 56, 18, G.MOEP_OFF, G.MOEP_SZ)
    srd(A, 60, 18, G.IDX_OFF, 64)
    K, WG, WU, WD, XS = 16, 48, 0, 112, 160
    A("v_lshlrev_b32 v4, 4, v1")
    for k in range(8):
        A(f"s_mov_b32 s26, {(k//4)*4096}\nbuffer_load_dwordx4 {v(K+4*k, 4)}, v4, s[36:39], s26 offen offset:{(k % 4)*1024}")
    A(f"""
    v_mul_u32_u24 v5, {8*3584}, v3
    v_lshl_add_u32 v5, v2, 1, v5
    s_lshl_b32 s26, s22, 7
    s_lshl_b32 s27, s3, 5
    s_add_u32 s26, s26, s27
    v_add_u32 v5, s26, v5
    v_mul_u32_u24 v6, {4*896}, v3
    v_lshl_add_u32 v6, v2, 1, v6
    s_mul_i32 s26, s22, {64*896}
    s_mul_i32 s27, s3, 224
    s_add_u32 s26, s26, s27
    v_add_u32 v6, s26, v6
    """)
    A("s_waitcnt vmcnt(0)\ns_mov_b32 s28, 0xffff0000\ns_mov_b32 s29, 0x80000000")
    for k in range(8):
        for j in range(4):
            r = K + 4*k + j
            A(f"""v_ashrrev_i32 v7, 31, v{r}
            v_or_b32 v7, s29, v7
            v_xor_b32 v{r}, v7, v{r}
            v_lshlrev_b32 v7, 2, v1
            v_sub_u32 v7, {2047 - k*256 - j}, v7
            v_and_or_b32 v{r}, v{r}, s28, v7""")
    for u in range(14):
        for q in range(4): A(f"v_mov_b32 v{WG + 8*u + 4 + q}, 0\nv_accvgpr_write_b32 a{WU + 8*u + 4 + q}, 0")
    for f in range(28):
        for q in range(2): A(f"v_accvgpr_write_b32 a{WD + 4*f + 2 + q}, 0")
    for u in range(14):
        for j in range(8):
            if j % 2 == 0: A(f"s_mov_b32 s26, {(32*u + j)*3584}")
            hi = "_hi" if j % 2 else ""
            off = 3584 if j % 2 else 0
            op = "buffer_load_short_d16_hi" if j % 2 else "buffer_load_ushort"
            A(f"{op} v{WG + 8*u + 4*(j % 2) + j//2}, v5, s[44:47], s26 offen offset:{off}")
            A(f"{op} a{WU + 8*u + 4*(j % 2) + j//2}, v5, s[48:51], s26 offen offset:{off}")
    for wp in range(4):
        for j in range(4):
            A(f"s_mov_b32 s26, {(16*wp + j)*896}")
            hi = "_hi" if j % 2 else ""
            for i in range(7):
                op = "buffer_load_short_d16_hi" if j % 2 else "buffer_load_ushort"
                A(f"{op} a{WD + (i*4 + wp)*4 + 2*(j % 2) + j//2}, v6, s[52:55], s26 offen offset:{i*32}")
    for rnd in range(8):
        if rnd == 0:
            A(f"v_max3_u32 v7, v{K}, v{K+1}, v{K+2}")
            for r in range(3, 31, 2): A(f"v_max3_u32 v7, v7, v{K+r}, v{K+r+1}")
            A(f"v_max_u32 v7, v7, v{K+31}")
            op = "v_max_u32"
        else:
            A(f"s_sub_u32 s30, s{63+rnd}, 1")
            A(f"v_sub_u32 v7, s30, v{K}")
            for r in range(1, 31, 2):
                A(f"v_sub_u32 v8, s30, v{K+r}\nv_sub_u32 v9, s30, v{K+r+1}\nv_min3_u32 v7, v7, v8, v9")
            A(f"v_sub_u32 v8, s30, v{K+31}\nv_min_u32 v7, v7, v8")
            op = "v_min_u32"
        for rr in (8, 4, 2, 1): A(f"{op}_dpp v7, v7, v7 row_ror:{rr} row_mask:0xf bank_mask:0xf")
        xreduce(A, op, 7, 8)
        A(f"v_readfirstlane_b32 s{64+rnd}, v7")
        if rnd: A(f"s_nop 1\ns_sub_u32 s{64+rnd}, s30, s{64+rnd}")
        else: A("s_nop 1")
    for i in range(8):
        A(f"s_and_b32 s{64+i}, s{64+i}, 0xffff\ns_sub_u32 s{64+i}, 2047, s{64+i}")
    A("v_and_b32 v7, 7, v2\nv_mov_b32 v8, 0")
    for i in range(8):
        A(f"v_mov_b32 v9, s{64+i}\nv_cmp_ne_u32 vcc, {i}, v7\nv_cndmask_b32 v8, v9, v8, vcc")
    A(f"""
    v_lshrrev_b32 v9, 4, v8
    v_mul_u32_u24 v9, 14336, v9
    v_and_b32 v10, 15, v8
    v_lshl_add_u32 v9, v10, 4, v9
    v_lshl_add_u32 v9, v3, 8, v9
    """)
    for u in range(14): A(f"s_mov_b32 s26, {(u // 4)*4096}\nbuffer_load_dwordx4 {v(XS+4*u, 4)}, v9, s[40:43], s26 offen offset:{(u % 4)*1024}")
    A(f"""
    s_or_b32 s26, s22, s3
    s_cmp_lg_u32 s26, 0
    s_cbranch_scc1 {pfx}_noidx
    v_lshlrev_b32 v10, 2, v1
    s_mov_b64 exec, 0xff
    buffer_store_dword v8, v10, s[60:63], 0 offen sc1
    s_mov_b64 exec, -1
    """)
    A.label(f"{pfx}_noidx")
    A("s_waitcnt vmcnt(0)")
    for u in range(14):
        for o in range(2):
            A(f"v_mfma_f32_16x16x32_bf16 v[16:19], {v(WG+8*u+4*o, 4)}, {v(XS+4*u, 4)}, {'v[16:19]' if (u or o) else '0'}")
            A(f"v_mfma_f32_16x16x32_bf16 v[20:23], {a_(WU+8*u+4*o, 4)}, {v(XS+4*u, 4)}, {'v[20:23]' if (u or o) else '0'}")
    A(f"s_mov_b32 s26, {LOG2E}")
    for p in range(2):
        A(f"""v_cvt_pk_bf16_f32 v24, v{16+2*p}, v{17+2*p}
        v_cvt_pk_bf16_f32 v25, v{20+2*p}, v{21+2*p}
        v_lshlrev_b32 v26, 16, v24
        v_and_b32 v27, s28, v24
        v_mul_f32 v28, s26, v26
        v_mul_f32 v29, s26, v27
        v_exp_f32 v28, -v28
        v_exp_f32 v29, -v29
        v_add_f32 v28, 1.0, v28
        v_add_f32 v29, 1.0, v29
        v_rcp_f32 v28, v28
        v_rcp_f32 v29, v29
        v_mul_f32 v26, v26, v28
        v_mul_f32 v27, v27, v29
        v_cvt_pk_bf16_f32 v24, v26, v27
        v_lshlrev_b32 v26, 16, v24
        v_and_b32 v27, s28, v24
        v_lshlrev_b32 v28, 16, v25
        v_and_b32 v29, s28, v25
        v_mul_f32 v26, v26, v28
        v_mul_f32 v27, v27, v29
        v_cvt_pk_bf16_f32 v{30+p}, v26, v27""")
    A("""v_lshlrev_b32 v10, 3, v0
    v_lshlrev_b32 v11, 3, v1
    ds_write_b64 v10, v[30:31]
    s_waitcnt lgkmcnt(0)
    s_barrier""")
    for wp in range(4): A(f"ds_read_b64 {v(32+2*wp, 2)}, v11 offset:{wp*512}")
    A(f"""s_waitcnt lgkmcnt(0)
    v_mul_u32_u24 v12, 1792, v2
    v_lshl_add_u32 v12, v3, 4, v12
    s_mul_i32 s26, s22, 14336
    s_mul_i32 s27, s3, 448
    s_add_u32 s26, s26, s27""")
    for i in range(7):
        for wp in range(4):
            d = v(WG + 4*i, 4)
            for o in range(2):
                A(f"v_mfma_f32_16x16x16_bf16 {d}, {a_(WD + (i*4 + wp)*4 + 2*o, 2)}, {v(32+2*wp, 2)}, {d if (wp or o) else '0'}")
    A("v_cmp_gt_u32 vcc, 8, v2\ns_and_saveexec_b64 s[30:31], vcc")
    for i in range(7):
        A(f"buffer_store_dwordx4 {v(WG + 4*i, 4)}, v12, s[56:59], s26 offen offset:{i*64} sc1")
    A("s_mov_b64 exec, s[30:31]")
    srd(A, 36, 18, G.FLG_OFF, G.FLG_SZ)
    A(f"s_waitcnt vmcnt(0)\ns_barrier\ns_lshl_b32 s28, s22, 7\ns_add_u32 s28, s28, {G.FLG_MOE}\ns_cmp_lg_u32 s3, 0\ns_cbranch_scc1 {pfx}_moed")
    flag_set(A, 36, 28, 6, 7)
    A.label(pfx + "_moed")


def wserve_body(A, L, bail):
    srd(A, 36, 18, G.MEMG_OFF, 64*8192)
    srd(A, 40, 18, G.WZ_OFF, 64*G.WZ_SEG)
    tile_c(A, 31, 0); tile_c(A, 32, 6)
    A(f"""s_mov_b32 s23, s21
    s_lshl_b32 s31, s31, 12
    s_lshl_b32 s32, s32, 12
    s_lshl_b32 s28, s25, 8
    v_lshlrev_b32 v5, 2, v1
    v_add_u32 v5, s28, v5
    v_and_b32 v6, 1, v1
    v_cmp_eq_u32 vcc, 1, v6
    v_mov_b32 v8, 0x4444
    v_mov_b32 v6, 0xeeee
    v_cndmask_b32 v8, v8, v6, vcc
    v_mov_b32 v9, {192*32}""")
    MF, AC = 16, 64
    A.label(L + "_loop"); A.reset_state()
    for r in range(28): A(f"v_mov_b32 v{AC+r}, 0")
    A("s_lshl_b32 s33, s23, 13")
    flag_wait(A, L + "_w", 48, 9, 33, 7, bail, sleep=2)
    A("s_lshl_b32 s28, s23, 13\ns_add_u32 s29, s28, 4096")
    for t in range(7): A(f"buffer_load_dwordx4 {v(MF+4*t, 4)}, v4, s[36:39], s{28 + t // 4} offen offset:{(t % 4)*1024} sc1")
    for t in range(7):
        A(f"s_waitcnt vmcnt({6-t})")
        for i in range(7): A(f"v_smfmac_f32_16x16x64_bf16 {v(AC+4*i, 4)}, {v(MF+4*t, 4)}, {wreg(i, 2*t, 8)}, v8")
    A(f"s_mul_i32 s28, s23, {G.WZ_SEG}\ns_add_u32 s29, s28, s32\ns_add_u32 s28, s28, s31")
    for i in range(7):
        x = AC + 4*i
        A(f"v_add_f32 v{x}, v{x}, v{x+1}\nv_add_f32 v{x+2}, v{x+2}, v{x+3}\nv_cvt_pk_bf16_f32 v{x}, v{x}, v{x+2}")
        A(f"buffer_store_dword v{x}, v5, s[40:43], s{29 if i == 6 else 28} offen sc1")
        if i < 5: A("s_add_u32 s28, s28, 4096")
    A(f"""s_lshl_b32 s28, s25, 7
    s_add_u32 s28, s28, s33
    s_add_u32 s28, s28, 4096
    s_waitcnt vmcnt(0)
    s_barrier
    s_cmp_lg_u32 s3, 0
    s_cbranch_scc1 {L}_nf""")
    flag_set(A, 48, 28, 6, 7)
    A.label(L + "_nf")
    A(f"s_add_u32 s23, s23, 7\ns_cmp_lt_u32 s23, 64\ns_cbranch_scc1 {L}_loop\ns_branch {bail}")
```

```python
from asmlib import *
import gen as G
from gen import srd, lane_setup, xreduce, wreg, flag_set, flag_wait, tl, tl_dump
from kernels2 import tile_c, load_weights7, f2h
import os
SPIN_MAX = 1 << 22
NINF = "0xff800000"
STAMP = int(os.environ.get("STAMP", "0"))
HU_P_AT = int(os.environ.get("HU_P_AT", "2"))
HU_M_AT = int(os.environ.get("HU_M_AT", "0"))
A_DMA = int(os.environ.get("A_DMA", "0"))
DSP = int(os.environ.get("DSP", "3"))
DSPB = int(os.environ.get("DSPB", "2"))
NT = os.environ.get("NT", "")
SBLK = int(os.environ.get("SBLK", "1"))
HUI = int(os.environ.get("HUI", "13"))
F2 = 99
ONEP = int(os.environ.get("ONEP", "1"))
WD = int(os.environ.get("WD", "4"))
TMODE = int(os.environ.get("TMODE", "1"))
TWV = 3 if TMODE == 0 else 0
DBG2_OFF = 0x5E00000
QP = "quad_perm:[1,0,3,2] row_mask:0xf bank_mask:0xf"

def stamp(A, k):
    if STAMP: A(f"{'s_memrealtime' if STAMP == 2 else 's_memtime'} s[{4+2*k}:{5+2*k}]")
def stamp_cnt(A, k):
    if STAMP: A(f"s_mov_b32 s{16+k}, s27")
def stamp_out(A, tmp, lds, nw):
    if not STAMP: return
    lab = f"STK{len(A.lines)}"
    A(f"s_waitcnt lgkmcnt(0)\ns_lshr_b32 s28, s64, 4\ns_cmp_lg_u32 s28, {SBLK}\ns_cbranch_scc1 {lab}\ns_cmp_ge_u32 s3, {nw}\ns_cbranch_scc1 {lab}")
    for k in range(6): A(f"v_mov_b32 v{tmp+k}, s{4+2*k}")
    A(f"v_mov_b32 v{tmp+6}, s16\nv_mov_b32 v{tmp+7}, s17")
    A(f"""s_lshl_b32 s28, s3, 4
    s_add_u32 s28, s28, s64
    s_lshl_b32 s28, s28, 5
    s_add_u32 s28, s28, {lds - 512*SBLK}
    v_mov_b32 v{tmp+8}, s28
    ds_write_b128 v{tmp+8}, {v(tmp, 4)}
    ds_write_b128 v{tmp+8}, {v(tmp+4, 4)} offset:16""")
    A.label(lab)
def stamp_dump(A, lds):
    if not STAMP: return
    A(f"""s_lshl_b32 s28, s3, 9
    v_bfe_u32 v8, v4, 4, 4
    v_lshlrev_b32 v8, 5, v8
    v_add_u32 v9, s28, v8
    v_add_u32 v9, {lds}, v9
    v_min_u32 v9, {163840 - 32}, v9
    s_lshl_b32 s28, s3, 11
    s_add_u32 s28, s28, 512
    v_add_u32 v8, s28, v8
    s_waitcnt lgkmcnt(0)
    ds_read_b128 v[12:15], v9
    ds_read_b128 v[16:19], v9 offset:16
    s_lshl_b32 s28, s21, 13
    s_waitcnt lgkmcnt(0)
    buffer_store_dwordx4 v[12:15], v8, s[60:63], s28 offen
    buffer_store_dwordx4 v[16:19], v8, s[60:63], s28 offen offset:16""")

def team_flavor(A, bail):
    A(f"v_lshlrev_b32 v5, 2, v1\ns_mov_b32 s27, 0\ns_mov_b32 exec_hi, 0")
    L = bail + "_fl" + str(len(A.lines))
    A.label(L)
    A(f"""
    buffer_load_dword v6, v5, s[60:63], 0 offen sc1
    s_add_u32 s27, s27, 1
    s_cmp_gt_u32 s27, {SPIN_MAX}
    s_cbranch_scc1 {bail}
    s_waitcnt vmcnt(0)
    v_cmp_eq_u32 vcc, 0, v6
    s_cbranch_vccnz {L}
    v_cmp_ne_u32 vcc, s35, v6
    s_mov_b64 exec, -1
    s_cmp_lg_u64 vcc, 0
    s_cselect_b32 s65, 1, 0
    """)
    if STAMP: srd(A, 60, 18, DBG2_OFF, 32*4*64*32)

HUD = int(os.environ.get("HUD", "3"))
def hu_wait(A, L, srdn, voff, soff, hr, bail, HUD=HUD):
    ld = lambda k: f"buffer_load_dword v{hr[k]}, v{voff}, s[{srdn}:{srdn+3}], s{soff} offen sc1"
    A("s_mov_b32 s27, 0")
    for k in range(HUD - 1): A(ld(k))
    A.label(L)
    for k in range(HUD):
        A(ld((k + HUD - 1) % HUD))
        A(f"s_waitcnt vmcnt({HUD-1})\nv_cmp_eq_u32 vcc, -1, v{hr[k]}\ns_cbranch_vccz {L}_ok")
    A(f"s_add_u32 s27, s27, 1\ns_cmp_gt_u32 s27, {SPIN_MAX}\ns_cbranch_scc0 {L}\ns_branch {bail}")
    A.label(L + "_ok")

def frag_loads(A, n, reg0, srdn, voff, soffs):
    for t in range(n):
        A(f"buffer_load_dwordx4 {v(reg0+4*t, 4)}, v{voff}, s[{srdn}:{srdn+3}], s{soffs[t // 4]} offen offset:{(t % 4)*1024} sc1")

def exact_check(A, L, n, reg0, tmp, retry, back, bail):
    A.label(L); A.reset_state()
    A("s_waitcnt vmcnt(0)")
    tmp, t2 = tmp if isinstance(tmp, tuple) else (tmp, tmp + 1)
    A(f"v_pk_max_u16 v{tmp}, v{reg0}, v{reg0+1}")
    for r in range(reg0 + 2, reg0 + 4*n): A(f"v_pk_max_u16 v{tmp}, v{tmp}, v{r}")
    A(f"""v_lshlrev_b32 v{t2}, 16, v{tmp}
    v_max_u32 v{tmp}, v{tmp}, v{t2}
    v_cmp_le_u32 vcc, s26, v{tmp}
    s_cbranch_vccz {back}
    s_add_u32 s27, s27, 1
    s_cmp_gt_u32 s27, {SPIN_MAX}
    s_cbranch_scc1 {bail}
    s_branch {retry}""")

def dma_ops(n, srdn, sg, sl, fl=''):
    o = []
    for k in range(n):
        pre = ""
        if k == 0: pre = f"s_mov_b32 m0, s{sl}\n"
        elif k % 4 == 0:
            pre = "s_add_u32 m0, m0, 4096\n"
            if not isinstance(sg, tuple): pre = f"s_add_u32 s{sg}, s{sg}, 4096\n" + pre
        g = sg[k // 4] if isinstance(sg, tuple) else sg
        o.append(pre + f"buffer_load_dwordx4 v4, s[{srdn}:{srdn+3}], s{g} offen offset:{(k % 4)*1024}{fl} lds")
    return o

TL, SMX, MFLA = 0, 7168, 8192
MF, TA, XB = 8, 36, 64
VTOUCH = int(os.environ.get("VTOUCH", "1"))

def mem_fetch(A, base, behind=()):
    A(f"s_mov_b32 s97, {base}")
    for z in dma_ops(7, 40, (32, 34), 97, " sc1"): A(z)
    for z in behind: A(z)
    A(f"s_waitcnt vmcnt({len(behind)})")

def a_xb_load(A):
    A(f"s_mul_i32 s28, s33, 28672\ns_add_u32 s28, s28, s94")
    for k in range(14):
        if k and k % 4 == 0: A("s_add_u32 s28, s28, 4096")
        A(f"buffer_load_dwordx4 {v(XB+4*k, 4)}, v4, s[52:55], s28 offen offset:{(k % 4)*1024}")

def a_loop(A, role, fl):
    L = f"K3a{role}f{fl}"
    sc = " sc1" if fl else ""
    if role == 1:
        A("s_mov_b32 s33, 0"); a_xb_load(A)
    A.label(L + "_loop"); A.reset_state()
    stamp(A, 0)
    A(f"""s_lshl_b32 s32, s64, 13
    s_add_u32 s34, s32, 4096
    s_add_u32 s33, s64, 1
    s_min_u32 s33, s33, 63""")
    zero = [f"v_mov_b32 v{r}, 0" for r in range(TA, TA + 28)]
    for z in zero: A(z)
    if VTOUCH and role == TWV: A(f"s_mul_i32 s30, s33, {G.SEG_SZ}")
    if role == TWV and VTOUCH:
        A(f"""s_lshl_b32 s29, s33, 13
        s_add_u32 s29, s29, 8192
        s_waitcnt vmcnt(0)
        v_cmp_ne_u32 vcc, s96, v115
        s_cmp_eq_u64 vcc, 0
        s_cselect_b32 s93, s94, 0x40000000
        s_add_u32 s30, s30, s93""")
    if role == 0:
        A(f"v_mov_b32 v{XB+4}, {NINF}\nv_mov_b32 v{XB+5}, {NINF}\ns_mul_i32 s31, s64, {G.PF_STRIDE}")
        A(f"s_cmp_eq_u32 s64, 0\ns_cbranch_scc1 {L}_hu_ok")
        hu_wait(A, L + "_hu", 40, 111, 32, (108, 109, 107), "K3_end")
    stamp(A, 1)
    A("s_mov_b32 s27, 0")
    A.label(L + "_go"); A.reset_state()
    tch = [f"buffer_load_dword v119, v118, s[48:51], s30 offen sc1\ns_add_u32 s30, s30, 4096" for k in range(7)] + ["buffer_load_dword v115, v114, s[56:59], s29 offen sc1"]
    if role == 0: mem_fetch(A, MFLA, tch if (VTOUCH and TMODE == 1) else [])
    A("s_barrier")
    for t in range(7): A(f"ds_read_b128 {v(MF+4*t, 4)}, v1 offset:{t*1024}")
    smf = lambda d, t, B: f"v_smfmac_f32_16x16x64_bf16 {v(d, 4)}, {v(MF+4*t, 4)}, {B}, v2"
    dm = list(tch) if (VTOUCH and TMODE == 0 and role == 3) else []
    cnt = [0, 2]
    def emit(z, side=None):
        A(z); cnt[0] += 1
        if side: A(side)
        elif dm and cnt[0] >= cnt[1]: A(dm.pop(0)); cnt[1] = cnt[0] + 2
    for t in range(7):
        A(f"s_waitcnt lgkmcnt({6 - t})")
        if t == 0: stamp(A, 2)
        if t == F2 and role == 0: A("s_waitcnt vmcnt(%d)" % (len(tch) if (VTOUCH and TMODE == 1) else 0))
        for d, i in ((TA, 0), (TA+4, 1)): emit(smf(d, t, wreg(i, 2*t, 8)))
    def fin(x): return [f"v_add_f32 v{x}, v{x}, v{x+1}", f"v_add_f32 v{x+2}, v{x+2}, v{x+3}", f"v_cvt_pk_bf16_f32 v{x}, v{x}, v{x+2}"]
    def post_pair(p):
        x, y = TA + 8*p, TA + 8*p + 4
        return fin(x) + fin(y) + [f"ds_write2st64_b32 v5, v{x}, v{y} offset0:{2*p} offset1:{2*p+1}"]
    b = TA
    chk = [f"v_add_f32 v{b}, v{b}, v{b+1}", f"v_add_f32 v{b+2}, v{b+2}, v{b+3}", f"v_cmp_u_f32 vcc, v{b}, v{b+2}",
           f"s_cbranch_vccnz {L}_slow\n{L}_back:"]
    seq1 = [None]*4 + chk + post_pair(0)[2:]
    seq2 = [None]*4 + post_pair(1) + ([f"v_mov_b32 v{TA+r}, 0" for r in range(3)] if role == 1 else [])
    for p, side in ((1, seq1), (2, seq2)):
        x, y = TA + 8*p, TA + 8*p + 4
        side = list(side)
        for t in range(7):
            for d, i in ((x, 2*p), (y, 2*p + 1)):
                emit(smf(d, t, wreg(i, 2*t, 8)), side.pop(0) if side else None)
    side = ([f"v_mov_b32 v{TA+3}, 0"] if role == 1 else [None]) + [None]*2 + post_pair(2)[:4]
    for t in range(7): emit(smf(TA+24, t, wreg(6, 2*t, 8)), side.pop(0))
    for z in post_pair(2)[4:] + fin(TA+24) + [f"ds_write_b32 v6, v{TA+24}"]: A(z)
    stamp(A, 3); stamp_cnt(A, 0)
    A("s_waitcnt lgkmcnt(0)\ns_barrier")
    stamp(A, 4)
    treg = lambda t: MF if (role == 1 and t == 0) else TA + 4*t
    tr = lambda t: [f"ds_read_b64_tr_b16 {v(treg(t) + 2*z, 2)}, v0 offset:{t*1024 + z*32}" for z in range(2)]
    if role != 3:
        for t in range(7):
            for z in tr(t): A(z)
    if role == 1:
        D = TA
        for t in range(7):
            A(f"s_waitcnt lgkmcnt({2*(6-t)})" + (" vmcnt(0)" if t == 0 else ""))
            A(f"v_smfmac_f32_16x16x64_bf16 {v(D, 4)}, {v(treg(t), 4)}, {v(XB+8*t, 8)}, v3")
        A(f"""v_permlane32_swap_b32 v{D}, v{D+1}
        v_permlane32_swap_b32 v{D+2}, v{D+3}
        v_add_f32 v{D}, v{D}, v{D+1}
        v_add_f32 v{D+2}, v{D+2}, v{D+3}
        ds_write2_b32 v7, v{D}, v{D+2} offset0:0 offset1:32
        s_waitcnt lgkmcnt(0)
        s_barrier
        s_barrier""")
        if os.environ.get("XSLEEP"): A(f"s_sleep {os.environ['XSLEEP']}")
        if not os.environ.get("NOXB"): a_xb_load(A)
    if role == 3: A("s_barrier\ns_barrier")
    if role == 0:
        X, R, D = XB, XB + 4, XB + 8
        m, t1, l = XB+12, XB+13, XB+14
        for t in range(7):
            A(f"s_waitcnt lgkmcnt({2*(6-t)})")
            A(f"v_mfma_f32_16x16x32_bf16 {v(D, 4)}, {v(MF+4*t, 4)}, {v(TA+4*t, 4)}, {v(D, 4) if t else '0'}")
        A(f"v_add_f32_dpp v{R}, v{D+1}, v{D} row_ror:8 row_mask:0xf bank_mask:0x3")
        A(f"v_add_f32_dpp v{R+1}, v{D+3}, v{D+2} row_ror:8 row_mask:0xf bank_mask:0x3")
        A(f"v_max_f32 v{m}, v{R}, v{R+1}\ns_barrier")
        class Rec:
            def __init__(s): s.l = []
            def __call__(s, t): s.l += [x.strip() for x in t.split("\n") if x.strip()]
        Q = Rec()
        Q(f"""ds_read_b64 {v(X, 2)}, v7
        ds_read_b64 {v(X+2, 2)}, v7 offset:512
        s_waitcnt lgkmcnt(1)
        v_max3_f32 v{m}, v{m}, v{X}, v{X+1}
        s_waitcnt lgkmcnt(0)
        v_max3_f32 v{m}, v{m}, v{X+2}, v{X+3}""")
        xreduce(Q, "v_max_f32", m, t1, steps=(8, 16, 32))
        for r in (X, X+2, R): Q(f"v_pk_add_f32 {v(r, 2)}, {v(r, 2)}, {v(m, 2)} op_sel_hi:[1,0] neg_lo:[0,1] neg_hi:[0,1]")
        for r in range(6): Q(f"v_exp_f32 v{X+r}, v{X+r}")
        Q(f"""v_pk_add_f32 {v(l, 2)}, {v(X, 2)}, {v(X+2, 2)}
        v_pk_add_f32 {v(l, 2)}, {v(l, 2)}, {v(R, 2)}
        v_add_f32 v{l}, v{l}, v{l+1}""")
        xreduce(Q, "v_add_f32", l, t1, steps=(8, 16, 32))
        Q(f"v_rcp_f32 v{l}, v{l}")
        for r in (X, X+2, R): Q(f"v_pk_mul_f32 {v(r, 2)}, {v(r, 2)}, {v(l, 2)} op_sel_hi:[1,0] clamp")
        Q(f"""v_cvt_pk_bf16_f32 v{X}, v{X}, v{X+1}
        v_cvt_pk_bf16_f32 v{X+1}, v{X+2}, v{X+3}
        buffer_store_dwordx2 {v(X, 2)}, v116, s[44:47], s31 offen{sc}
        v_cvt_pk_bf16_f32 v{R}, v{R}, v{R+1}
        buffer_store_dword v{R}, v117, s[44:47], s31 offen{sc}
        s_barrier""")
        Q.l.insert(HUI, f"buffer_store_dword v112, v110, s[40:43], s32 offen{sc}")
        for z in Q.l: A(z)
    stamp(A, 5)
    if role == 0: tl(A, 0, 64)
    if role == 3 and G.TLM: A("s_memtime s[100:101]\ns_min_u32 m0, s64, 57\ns_waitcnt lgkmcnt(0)\nv_writelane_b32 v113, s100, m0")
    stamp_out(A, TA + 8, MFLA + 7168, 4)
    A(f"s_add_u32 s64, s64, 1\ns_cmp_lt_u32 s64, 63")
    A.flush()
    A(f"s_cbranch_scc1 {L}_loop")
    stamp_dump(A, MFLA + 7168)
    if role != 1: tl_dump(A, 1)
    A("s_branch K3_end")
    exact_check(A, L + "_slow", 7, MF, (TA + 1, TA + 3), L + "_retry", L + "_back", "K3_end")
    A.label(L + "_retry"); A.reset_state()
    for z in zero: A(z)
    if VTOUCH and role == TWV: A(f"s_mov_b32 s30, 0x40000000")
    A(f"s_barrier\ns_branch {L}_go")

def a_cu(A):
    A(f"s_mul_i32 s26, s22, {G.WF_UNIT}\ns_add_u32 s26, s26, {hex(G.WF_OFF)}")
    srd(A, 36, 18, "s26", G.WF_UNIT)
    srd(A, 48, 18, G.VOF_OFF, 64*G.SEG_SZ)
    srd(A, 52, 18, G.XNF_OFF, G.XN_SZ)
    srd(A, 56, 18, G.FLG_OFF, G.FLG_SZ)
    A(f"v_min_u32 v5, 27, v1\nv_lshlrev_b32 v5, 7, v5\ns_mul_i32 s29, s22, 3584\ns_add_u32 s29, s29, {G.FLG_PROD}")
    for k in range(4):
        G.stage_wait(A, f"K3a_wp{k}", 56, 5, 29, 6, k + 1, "K3_end")
        if k == 0: tl(A, 62)
        A(f"s_mul_i32 s28, s3, {7*14336}\ns_add_u32 s28, s28, {k*4096}")
        for i in range(7):
            for u in range(4*k, min(14, 4*k + 4)):
                A(f"buffer_load_dwordx4 {wreg(i, u)}, v4, s[36:39], s28 offen offset:{(u % 4)*1024} sc1")
            A("s_add_u32 s28, s28, 14336")
    team_flavor(A, "K3_end")
    A("s_mul_i32 s28, s3, 7\ns_add_u32 s30, s28, 6")
    A(f"""
    v_lshrrev_b32 v8, 1, v3
    v_and_b32 v9, 1, v3
    v_lshlrev_b32 v7, 7, v8
    v_lshl_add_u32 v7, v2, 3, v7
    v_lshl_add_u32 v7, v9, 2, v7
    s_lshl_b32 s28, s28, 8
    v_add_u32 v5, s28, v7
    s_lshl_b32 s30, s30, 8
    v_add_u32 v6, s30, v7
    s_mov_b32 s64, 0
    s_mov_b32 s26, 0xffff0000
    v_lshrrev_b32 v10, 2, v2
    v_and_b32 v11, 3, v2
    v_lshrrev_b32 v12, 1, v10
    v_lshl_add_u32 v12, v8, 1, v12
    v_lshlrev_b32 v0, 8, v12
    v_and_b32 v12, 1, v11
    v_lshl_add_u32 v0, v12, 7, v0
    v_lshlrev_b32 v12, 3, v9
    v_and_b32 v13, 2, v11
    v_add_u32 v12, v12, v13
    v_and_b32 v13, 1, v10
    v_add_u32 v12, v12, v13
    v_lshl_add_u32 v0, v12, 3, v0
    s_sub_u32 s28, s3, 1
    s_and_b32 s28, s28, 1
    s_mul_i32 s94, s28, 14336
    s_lshl_b32 s28, s28, 9
    s_add_u32 s28, s28, {SMX}
    v_lshl_add_u32 v7, v9, 2, v8
    v_lshlrev_b32 v7, 6, v7
    v_lshl_add_u32 v7, v2, 2, v7
    v_add_u32 v7, s28, v7
    v_lshlrev_b32 v118, 6, v1
    s_mul_i32 s28, s22, 28672
    s_cmp_eq_u32 s3, {TWV}
    s_cselect_b32 s94, s28, s94
    v_and_b32 v12, 7, v2
    v_lshrrev_b32 v13, 3, v2
    v_lshlrev_b32 v14, 6, v12
    v_lshl_add_u32 v14, v3, 4, v14
    v_lshl_add_u32 v14, v13, 3, v14
    v_add_u32 v14, {SMX}, v14
    s_cmp_eq_u32 s3, 0
    s_cselect_b64 vcc, -1, 0
    v_cndmask_b32 v7, v7, v14, vcc
    v_lshlrev_b32 v116, 5, v12
    v_lshl_add_u32 v116, v13, 4, v116
    v_lshl_add_u32 v116, v8, 8, v116
    v_lshl_add_u32 v116, v9, 3, v116
    s_lshl_b32 s28, s22, 9
    v_add_u32 v116, s28, v116
    v_lshlrev_b32 v117, 5, v12
    v_lshl_add_u32 v117, v8, 8, v117
    v_lshl_add_u32 v117, v9, 3, v117
    s_lshr_b32 s28, s22, 2
    s_lshl_b32 s28, s28, 9
    s_and_b32 s29, s22, 1
    s_lshl_b32 s29, s29, 4
    s_add_u32 s28, s28, s29
    s_bfe_u32 s29, s22, 0x10001
    s_lshl_b32 s29, s29, 2
    s_add_u32 s28, s28, s29
    s_add_u32 s28, s28, 8192
    v_add_u32 v117, s28, v117
    v_mov_b32 v14, 0x7ffffff0
    v_cmp_gt_u32 vcc, 8, v2
    v_cndmask_b32 v117, v14, v117, vcc
    v_min_u32 v114, 15, v1
    v_lshlrev_b32 v114, 7, v114
    v_add_u32 v114, 2048, v114
    v_min_u32 v111, 27, v1
    v_lshlrev_b32 v111, 2, v111
    v_add_u32 v111, 7168, v111
    v_mov_b32 v112, 0
    v_not_b32 v115, s96
    s_lshl_b32 s29, s22, 2
    s_add_u32 s29, s29, {8192 + 7296}
    v_mov_b32 v110, s29
    v_cmp_eq_u32 vcc, 0, v1
    v_cndmask_b32 v110, v14, v110, vcc
    v_mov_b32 v12, 0x4444
    v_mov_b32 v14, 0xeeee
    v_cmp_lt_u32 vcc, 7, v2
    v_cndmask_b32 v3, v12, v14, vcc
    v_and_b32 v2, 1, v2
    v_cmp_eq_u32 vcc, 1, v2
    v_cndmask_b32 v2, v12, v14, vcc
    v_add_u32 v1, {MFLA}, v4
    s_waitcnt vmcnt(0)""")
    if G.TLM: A("s_cmp_lg_u32 s3, 3\ns_cbranch_scc1 K3a_tl\ns_memrealtime s[100:101]\ns_waitcnt lgkmcnt(0)\nv_writelane_b32 v113, s100, 63\nK3a_tl:")
    A("""s_cmp_lg_u32 s65, 0
    s_cbranch_scc1 K3a_fl1""")
    for fl in (0, 1):
        if fl: A.label("K3a_fl1"); A.reset_state()
        A(f"s_cmp_eq_u32 s3, 0\ns_cbranch_scc1 K3a_r0f{fl}\ns_cmp_eq_u32 s3, 3\ns_cbranch_scc1 K3a_r3f{fl}")
        for role in (1, 0, 3):
            if role != 1: A.label(f"K3a_r{role}f{fl}"); A.reset_state()
            a_loop(A, role, fl)

WL, VOL, WZL, MFLB = 0, 114688, 147456, 155648
def wregB(i, u, n=4):
    idx = 56*i + 4*u
    if idx < 256:
        assert idx + n <= 256
        return a_(idx, n)
    return v(176 + idx - 256, n)
BA, LW, Z, PFR, PA, KEEP, KEEPM = 36, 68, 36, 116, 156, 100, 152

def b_loop(A, fl):
    L = f"K3bf{fl}"
    sc = " sc1" if fl else ""
    A.label(L + "_loop"); A.reset_state()
    zero = [f"v_mov_b32 v{r}, 0" for r in range(BA, BA + 32)]
    for z in zero: A(z)
    lw = lambda k: LW + (k % 4)*8
    def rdw(k):
        for z in range(2): A(f"ds_read_b128 {v(lw(k) + 4*z, 4)}, v5 offset:{(k // 7)*14336 + (2*(k % 7) + z)*1024}")
    for k in range(4): rdw(k)
    A(f"""s_lshl_b32 s32, s64, 13
    s_add_u32 s34, s32, 4096
    s_mul_i32 s30, s64, {G.SEG_SZ}
    s_lshl_b32 s31, s22, 15
    s_add_u32 s30, s30, s31
    s_lshl_b32 s31, s3, 13
    s_add_u32 s30, s30, s31
    s_add_u32 s29, s30, 4096
    s_add_u32 s31, s31, {VOL}
    s_lshl_b32 s28, s3, 10
    s_add_u32 s28, s28, s66
    v_add_u32 v174, s28, v4
    v_lshlrev_b32 v163, 3, v4
    v_min_u32 v163, 1920, v163
    v_add_u32 v163, 2048, v163""")
    stamp(A, 0)
    A(f"s_lshl_b32 s28, s64, 13\ns_add_u32 s33, s28, 8192\ns_cmp_lg_u32 s3, 3\ns_cbranch_scc1 {L}_wv_ok\nv_cmp_ne_u32 vcc, s96, v0\ns_cbranch_vccz {L}_wv_ok")
    flag_wait(A, L + "_wv", 68, 163, 28, PFR, "K3_end", sleep=2)
    A(f"s_mov_b32 s27, 0\ns_waitcnt lgkmcnt(0)\ns_cmp_lg_u32 s3, 2\ns_cbranch_scc1 {L}_join\ns_cmp_eq_u32 s64, 0\ns_cbranch_scc1 {L}_hm_ok")
    hu_wait(A, L + "_hm", 40, 161, 32, (PFR, PFR+1, PFR+2), "K3_end")
    A("s_mov_b32 s27, 0")
    A.label(L + "_go"); A.reset_state()
    mem_fetch(A, MFLB)
    A.label(L + "_join")
    A("s_barrier")
    for t in range(7): A(f"ds_read_b128 {v(MF+4*t, 4)}, v162 offset:{t*1024}")
    sm0 = lambda i, t, B: f"v_smfmac_f32_16x16x64_bf16 {v(BA+4*i, 4)}, {v(MF+4*t, 4)}, {B}, v160"
    dm = dma_ops(8, 48, (30, 29), 31, ' sc1') + ["buffer_load_dword v0, v163, s[68:71], s33 offen sc1"]
    cnt = [0, 15]
    def sm(i, t, B):
        cnt[0] += 1
        z = sm0(i, t, B)
        if dm and cnt[0] >= cnt[1]: z += "\n" + dm.pop(0); cnt[1] = cnt[0] + DSPB
        return z
    for t in range(7):
        A(f"s_waitcnt lgkmcnt({6 - t})")
        if t == 0: stamp(A, 1)
        A(sm(0, t, wregB(0, 2*t, 8)))
    for t in range(7):
        A(sm(1, t, wregB(1, 2*t, 8)))
        if t == 3: A(f"v_add_f32 v{BA}, v{BA}, v{BA+1}")
        if t == 4: A(f"v_add_f32 v{BA+2}, v{BA+2}, v{BA+3}")
        if t == 5: A(f"v_cmp_u_f32 vcc, v{BA}, v{BA+2}")
        if t == 6: A(f"s_cbranch_vccnz {L}_slowm\n{L}_backm:")
    stamp_cnt(A, 0)
    for k in range(14):
        A(f"s_waitcnt lgkmcnt({2*min(3, 13-k)})")
        A(sm(6 + k // 7, k % 7, v(lw(k), 8)))
        i = 2 + k // 7
        A(sm(i, k % 7, wregB(i, 2*(k % 7), 8)))
        if k + 4 < 14: rdw(k + 4)
    def fin(i):
        x = BA + 4*i
        o = [] if i == 0 else [f"v_add_f32 v{x}, v{x}, v{x+1}", f"v_add_f32 v{x+2}, v{x+2}, v{x+3}"]
        return o + [f"v_cvt_pk_bf16_f32 v{164+i}, v{x}, v{x+2}"]
    side = fin(0) + fin(1) + fin(2) + fin(6) + fin(3) + [f"ds_write_b128 v174, v[164:167]"]
    for t in range(7):
        for i in (4, 5):
            A(sm(i, t, wregB(i, 2*t, 8)))
            if side: A(side.pop(0))
    for z in side + fin(7) + fin(4) + fin(5) + [f"ds_write_b128 v174, v[168:171] offset:4096"]: A(z)
    stamp(A, 2)
    A(f"s_waitcnt vmcnt(0) lgkmcnt(0)\ns_barrier\ns_cmp_ge_u32 s3, 2\ns_cbranch_scc1 {L}_idle")
    A("s_lshl_b32 s28, s24, 12\ns_add_u32 s28, s28, s66\nv_add_u32 v163, s28, v4")
    for f in range(16):
        A(f"ds_read_b128 {v(Z + 4*f, 4)}, v6 offset:{f*1024}")
        if f == 11: A("s_waitcnt lgkmcnt(4)")
    for f in range(4): A(f"ds_read_b128 {v(Z + 64 + 4*f, 4)}, v163 offset:{f*1024}")
    for r in range(4): A(f"v_mov_b32 v{PA+r}, 0")
    A(f"""s_mul_i32 s28, s64, {G.PF_STRIDE}
    s_add_u32 s29, s28, 4096
    s_add_u32 s30, s28, 8192
    s_add_u32 s34, s32, 8192
    s_waitcnt lgkmcnt(0)""")
    stamp(A, 3)
    if ONEP: A(f"s_cmp_lg_u32 s3, 0\ns_cbranch_scc1 {L}_hp_ok")
    hu_wait(A, L + "_hp", 40, 172, 32, (PFR, PFR+1, PFR+2, PFR+3), "K3_end", HUD=int(os.environ.get("HUDP", "3")))
    if ONEP: A("s_barrier")
    stamp(A, 2)
    A("s_mov_b32 s27, 0")
    A.label(L + "_gop"); A.reset_state()
    order = [8, 9, 0, 1, 2, 3, 4, 5, 6, 7]
    for k, t in enumerate(order):
        A(f"buffer_load_dwordx4 {v(PFR+4*t, 4)}, v4, s[44:47], s{28 + t // 4} offen offset:{(t % 4)*1024} sc1")
        if HU_M_AT < 0 and k == 10 + HU_M_AT: A(f"buffer_store_dword v175, v173, s[40:43], s32 offen{sc}")
    for k, u in enumerate(order):
        A(f"s_waitcnt vmcnt({9-k + (1 if (k > HU_M_AT + 1 if HU_M_AT >= 0 else k <= 10 + HU_M_AT) else 0)})")
        if k == 0: stamp(A, 4)
        A(f"v_smfmac_f32_16x16x64_bf16 {v(PA, 4)}, {v(PFR+4*u, 4)}, {v(Z+8*u, 8)}, v160")
        if k == 0: A(f"v_max_u32 v164, v{PFR+32}, v{PFR+33}")
        if k == 1: A(f"v_max3_u32 v164, v164, v{PFR+36}, v{PFR+37}\nv_cmp_eq_u32 vcc, -1, v164\ns_cbranch_vccnz {L}_early")
        if HU_M_AT >= 0 and k == HU_M_AT + 1: A(f"buffer_store_dword v175, v173, s[40:43], s32 offen{sc}")
    A(f"""v_add_f32 v{PA}, v{PA}, v{PA+1}
    v_add_f32 v{PA+2}, v{PA+2}, v{PA+3}
    v_cmp_u_f32 vcc, v{PA}, v{PA+2}
    v_cvt_pk_bf16_f32 v{PA}, v{PA}, v{PA+2}
    s_cbranch_vccnz {L}_slowp""")
    A.label(L + "_backp")
    A(f"""buffer_store_short v{PA}, v7, s[40:43], s34 offen{sc}
    buffer_store_short_d16_hi v{PA}, v7, s[40:43], s34 offen offset:32{sc}""")
    stamp_cnt(A, 1)
    A.label(L + "_next")
    stamp(A, 5)
    tl(A, 0, 64)
    stamp_out(A, 116, MFLB + 7168, 2)
    A(f"s_add_u32 s64, s64, 1\ns_cmp_lt_u32 s64, 63")
    A.flush()
    A(f"s_cbranch_scc1 {L}_loop")
    A.label(L + "_exit"); A.reset_state()
    stamp_dump(A, MFLB + 7168)
    tl_dump(A, 1)
    A("s_branch K3_end")
    A.label(L + "_idle"); A.reset_state()
    if ONEP: A("s_barrier")
    A(f"s_branch {L}_next")
    exact_check(A, L + "_slowm", 7, MF, 164, L + "_retrym", L + "_backm", "K3_end")
    A.label(L + "_retrym"); A.reset_state()
    for z in zero[:8]: A(z)
    A(f"s_barrier\ns_cmp_lg_u32 s3, 2\ns_cbranch_scc1 {L}_join\ns_branch {L}_go")
    exact_check(A, L + "_slowp", 10, PFR, 164, L + "_retryp", L + "_nanp", "K3_end")
    A.label(L + "_nanp"); A.reset_state()
    A(f"v_pk_min_u16 v{PA}, v{PA}, s25\ns_branch {L}_backp")
    A.label(L + "_early"); A.reset_state()
    A(f"s_add_u32 s27, s27, 1\ns_cmp_gt_u32 s27, {SPIN_MAX}\ns_cbranch_scc1 K3_end\ns_waitcnt vmcnt(0)\ns_nop 7")
    A.label(L + "_retryp"); A.reset_state()
    for r in range(4): A(f"v_mov_b32 v{PA+r}, 0")
    A(f"s_nop 1\ns_branch {L}_gop")

def b_cu(A):
    srd(A, 36, 18, G.WF_OFF + 16*G.WF_UNIT, 16*G.WF_UNIT)
    srd(A, 48, 18, G.VOF_OFF, 64*G.SEG_SZ)
    srd(A, 68, 18, G.FLG_OFF, G.FLG_SZ)
    A(f"""v_bfe_u32 v5, v1, 2, 2
    v_mul_u32_u24 v5, 3584, v5
    v_and_b32 v6, 3, v1
    v_lshl_add_u32 v5, v6, 7, v5
    s_mul_i32 s33, s3, 14336
    s_lshr_b32 s28, s22, 1
    s_lshl_b32 s28, s28, 9
    s_add_u32 s33, s33, s28
    s_add_u32 s33, s33, {G.FLG_PROD + 16*3584}""")
    for k in range(4):
        G.stage_wait(A, f"K3b_wp{k}", 68, 5, 33, 6, k + 1, "K3_end")
        for i in range(8):
            ct, q = i // 4, i % 4
            A(f"""s_lshl_b32 s28, s3, 2
            s_add_u32 s28, s28, {q}
            s_mul_i32 s28, s28, {G.WF_UNIT}
            s_mul_i32 s29, s22, 28672
            s_add_u32 s28, s28, s29
            s_add_u32 s28, s28, {ct*14336 + k*4096}""")
            if i >= 6: A(f"s_mul_i32 s29, s3, 28672\ns_add_u32 m0, s29, {WL + (i-6)*14336 + k*4096}")
            for u in range(4*k, min(14, 4*k + 4)):
                if i < 6: A(f"buffer_load_dwordx4 {wregB(i, u)}, v4, s[36:39], s28 offen offset:{(u % 4)*1024} sc1")
                else: A(f"buffer_load_dwordx4 v4, s[36:39], s28 offen offset:{(u % 4)*1024} sc1 lds")
    team_flavor(A, "K3_end")
    A(f"""
    s_mul_i32 s28, s3, 28672
    v_add_u32 v5, s28, v4
    v_and_b32 v9, 1, v2
    v_cmp_eq_u32 vcc, 1, v9
    v_mov_b32 v160, 0x4444
    v_mov_b32 v161, 0xeeee
    v_cndmask_b32 v160, v160, v161, vcc
    s_mov_b32 s25, 0xfffefffe
    s_mov_b32 s26, 0xffff0000
    s_mov_b32 s64, 0
    s_mov_b32 s66, {WZL}
    s_and_b32 s24, s3, 1
    s_lshl_b32 s28, s24, 14
    s_add_u32 s28, s28, {VOL}
    v_add_u32 v6, s28, v4
    v_bfe_u32 v8, v2, 1, 1
    v_lshl_add_u32 v8, v3, 2, v8
    v_lshlrev_b32 v7, 4, v8
    v_lshrrev_b32 v8, 2, v2
    v_lshl_add_u32 v7, v8, 2, v7
    v_lshl_add_u32 v7, v9, 1, v7
    s_lshl_b32 s28, s22, 1
    s_add_u32 s28, s28, s24
    s_lshl_b32 s67, s28, 12
    s_lshl_b32 s29, s28, 8
    v_add_u32 v7, s29, v7
    v_min_u32 v161, 27, v1
    v_lshlrev_b32 v161, 2, v161
    v_add_u32 v161, 7168, v161
    v_min_u32 v172, 15, v1
    v_lshlrev_b32 v172, 2, v172
    v_add_u32 v172, {8192 + 7296}, v172
    s_lshl_b32 s28, s28, 2
    s_add_u32 s28, s28, {8192 + 7168}
    v_mov_b32 v173, s28
    v_mov_b32 v8, 0x7ffffff0
    v_cmp_eq_u32 vcc, 0, v1
    v_cndmask_b32 v173, v8, v173, vcc
    v_mov_b32 v175, 0
    v_not_b32 v0, s96
    v_add_u32 v162, {MFLB}, v4
    s_mov_b32 s97, {MFLB}
    s_mul_i32 s98, s24, 3072
    s_waitcnt vmcnt(0)
    """)
    G.TLV[0] = 3
    tl(A, 63)
    A("s_cmp_lg_u32 s65, 0\ns_cbranch_scc1 K3bf1_loop")
    b_loop(A, 0)
    b_loop(A, 1)

def warm_cu(A):
    L = "K3w"
    srd(A, 52, 18, G.XNF_OFF, G.XN_SZ)
    A(f"""v_min_u32 v5, 27, v1
    v_lshlrev_b32 v5, 2, v5
    v_add_u32 v5, 7168, v5
    s_lshl_b32 s28, s3, 10
    v_add_u32 v6, s28, v4
    s_mov_b32 s64, 0""")
    def touch(sreg):
        A(f"s_lshl_b32 s28, s{sreg}, 13\ns_add_u32 s28, s28, 8192\ns_mul_i32 s29, s{sreg}, {G.PF_STRIDE}\ns_mul_i32 s30, s{sreg}, 28672\ns_add_u32 s30, s30, {1*28672}")
        for k in range(2): A(f"buffer_load_dwordx4 v[16:19], v6, s[40:43], s28 offen sc1\ns_add_u32 s28, s28, 4096")
        for k in range(3): A(f"buffer_load_dwordx4 v[16:19], v6, s[44:47], s29 offen sc1\ns_add_u32 s29, s29, 4096")
        for k in range(7): A(f"buffer_load_dwordx4 v[16:19], v6, s[52:55], s30 offen sc1\ns_add_u32 s30, s30, 4096")
    A("v_mov_b32 v7, 2048\ns_mov_b32 s28, 0")
    flag_wait(A, L + "_v0", 56, 7, 28, 8, "K3_end", sleep=8)
    for k in range(WD + 1):
        A(f"s_mov_b32 s33, {k}"); touch(33)
    A.label(L + "_loop")
    A(f"s_add_u32 s64, s64, 1\ns_cmp_ge_u32 s64, {63 - WD}\ns_cbranch_scc1 K3_end\ns_lshl_b32 s32, s64, 13\ns_mov_b32 s27, 0")
    A.label(L + "_w")
    A(f"""s_sleep 4
    buffer_load_dword v8, v5, s[40:43], s32 offen sc1
    s_add_u32 s27, s27, 1
    s_cmp_gt_u32 s27, {SPIN_MAX}
    s_cbranch_scc1 K3_end
    s_waitcnt vmcnt(0)
    v_cmp_eq_u32 vcc, -1, v8
    s_cbranch_vccnz {L}_w
    s_add_u32 s33, s64, {WD}""")
    touch(33)
    A(f"s_branch {L}_loop")

def fwd_cu(A):
    L = "K3f"
    srd(A, 52, 18, G.MEMG_OFF, 64*8192)
    srd(A, 56, 18, G.FLG_OFF, G.FLG_SZ)
    A(f"""v_min_u32 v5, 27, v1
    v_lshlrev_b32 v5, 2, v5
    v_add_u32 v5, 7168, v5
    s_lshl_b32 s28, s3, 11
    s_min_u32 s28, s28, 5120
    v_add_u32 v6, s28, v4
    s_mov_b32 s26, 0xffff0000
    s_mov_b32 s64, 0""")
    A.label(L + "_loop")
    A(f"s_lshl_b32 s32, s64, 13\ns_mov_b32 s27, 0\ns_cmp_eq_u32 s64, 0\ns_cbranch_scc1 {L}_get")
    A.label(L + "_w")
    A(f"""s_sleep 2
    buffer_load_dword v8, v5, s[40:43], s32 offen sc1
    s_add_u32 s27, s27, 1
    s_cmp_gt_u32 s27, {SPIN_MAX}
    s_cbranch_scc1 K3_end
    s_waitcnt vmcnt(0)
    v_cmp_eq_u32 vcc, -1, v8
    s_cbranch_vccnz {L}_w""")
    A.label(L + "_get")
    A(f"""buffer_load_dwordx4 v[16:19], v6, s[40:43], s32 offen sc1
    buffer_load_dwordx4 v[20:23], v6, s[40:43], s32 offen offset:1024 sc1""")
    exact_check(A, L + "_chk", 2, 16, 8, L + "_get", L + "_ok", "K3_end")
    A.label(L + "_ok")
    A(f"""buffer_store_dwordx4 v[16:19], v6, s[52:55], s32 offen sc1
    buffer_store_dwordx4 v[20:23], v6, s[52:55], s32 offen offset:1024 sc1
    s_lshl_b32 s28, s64, 13
    s_add_u32 s28, s28, 6144
    s_waitcnt vmcnt(0)
    s_barrier
    s_cmp_lg_u32 s3, 0
    s_cbranch_scc1 {L}_nf""")
    flag_set(A, 56, 28, 8, 9)
    A.label(L + "_nf")
    A(f"s_add_u32 s64, s64, 1\ns_cmp_lt_u32 s64, 64\ns_cbranch_scc1 {L}_loop\ns_branch K3_end")

def team_publish(A):
    A(f"""s_barrier
    s_lshl_b32 s28, s21, 2
    s_lshl_b32 s31, s21, 7
    s_add_u32 s31, s31, {G.FLG_LN}
    v_mov_b32 v8, s35
    v_mov_b32 v9, s28
    v_mov_b32 v10, s96
    v_mov_b32 v11, s31
    s_mov_b64 exec, 1
    buffer_store_dword v8, v9, s[60:63], 0 offen sc1
    buffer_store_dword v10, v11, s[56:59], 0 offen sc1
    s_mov_b64 exec, -1""")

def team(A):
    A("s_getreg_b32 s35, hwreg(HW_REG_XCC_ID, 0, 4)\ns_add_u32 s35, s35, 1")
    srd(A, 60, 16, 0, 256)
    srd(A, 40, 18, G.MEMF_OFF, 64*G.MEMF_STRIDE)
    srd(A, 44, 18, G.PF_OFF, 64*G.PF_STRIDE)
    A("s_lshl_b32 s23, s21, 2\ns_add_u32 s23, s23, s3")
    G.ln_body(A, "KL")
    srd(A, 56, 18, G.FLG_OFF, G.FLG_SZ)
    A("s_waitcnt vmcnt(0)"); team_publish(A)
    if G.TLM: A("v_writelane_b32 v113, s84, 63\nv_writelane_b32 v113, s85, 58\nv_writelane_b32 v113, s86, 59\nv_writelane_b32 v113, s87, 60"); tl(A, 61)
    A("s_cmp_eq_u32 s21, 31\ns_cbranch_scc1 K3_w\ns_cmp_eq_u32 s21, 30\ns_cbranch_scc1 K3_f")
    A("s_cmp_ge_u32 s21, 16\ns_cbranch_scc1 K3_b\ns_mov_b32 s22, s21")
    a_cu(A)
    A.label("K3_b"); A.reset_state()
    A("s_sub_u32 s22, s21, 16")
    b_cu(A)
    A.label("K3_w"); A.reset_state()
    warm_cu(A)
    A.label("K3_f"); A.reset_state()
    fwd_cu(A)
```

```python
from asmlib import *
import gen as G
from gen import srd, lane_setup, xreduce, flag_set, flag_wait
from kernels2 import f2h, LOG2E

def gemm2_task(A, L, bail):
    Z, XX, XN, UP, MP, ACC, PR = 16, 96, 100, 104, 112, 224, 232
    A(f"""s_lshl_b32 s24, s23, 2
    s_add_u32 s24, s24, s3
    s_lshl_b32 s33, s22, 13
    v_min_u32 v6, 15, v1
    v_lshlrev_b32 v6, 7, v6
    v_add_u32 v6, 2048, v6""")
    flag_wait(A, L + "_wv", 92, 6, 33, 7, bail)
    A(f"""s_mul_i32 s28, s22, {G.SEG_SZ}
    s_lshl_b32 s29, s24, 14
    s_add_u32 s28, s28, s29""")
    for f in range(16):
        if f and f % 4 == 0: A("s_add_u32 s28, s28, 4096")
        A(f"buffer_load_dwordx4 {v(Z+4*f, 4)}, v4, s[40:43], s28 offen offset:{(f % 4)*1024} sc1")
    A(f"""v_mul_u32_u24 v5, 896, v2
    v_lshl_add_u32 v5, v3, 3, v5
    s_mul_i32 s30, s22, {32*896}
    s_lshl_b32 s29, s24, 5
    s_add_u32 s30, s30, s29
    s_add_u32 s31, s30, {16*896}
    v_lshrrev_b32 v6, 1, v3
    v_lshlrev_b32 v6, 8, v6
    v_lshl_add_u32 v6, v2, 4, v6
    v_and_b32 v7, 1, v3
    v_lshl_add_u32 v6, v7, 3, v6
    s_mul_i32 s28, s22, 28672
    s_lshl_b32 s29, s24, 9
    s_add_u32 s28, s28, s29
    s_add_u32 s29, s28, 14336""")
    for qt in range(2):
        A(f"buffer_load_dwordx2 {v(XX+2*qt, 2)}, v5, s[48:51], s{30+qt} offen")
        A(f"buffer_load_dwordx2 {v(XN+2*qt, 2)}, v6, s[52:55], s{28+qt} offen")
    for r in range(8): A(f"v_mov_b32 v{UP+r}, 0")
    A(f"""v_min_u32 v6, 27, v1
    v_lshlrev_b32 v6, 7, v6
    s_mov_b32 s28, {G.FLG_MOE}""")
    flag_wait(A, L + "_wm", 92, 6, 28, 7, bail)
    A("""v_lshlrev_b32 v6, 2, v1
    buffer_load_dword v13, v6, s[60:63], 0 offen sc1
    v_min_u32 v6, 19, v1
    v_lshlrev_b32 v6, 7, v6
    v_add_u32 v7, 5632, v6
    v_add_u32 v6, 4096, v6
    v_cmp_lt_u32 vcc, 15, v1
    v_cndmask_b32 v6, v6, v7, vcc""")
    flag_wait(A, L + "_wp", 92, 6, 33, 7, bail, sleep=2)
    A(f"""s_mul_i32 s28, s22, {G.PXF_SEG}
    s_mul_i32 s29, s3, 10240
    s_add_u32 s28, s28, s29
    s_mov_b32 m0, s29""")
    for kk in range(10):
        if kk and kk % 4 == 0: A("s_add_u32 s28, s28, 4096\ns_add_u32 m0, m0, 4096")
        A(f"buffer_load_dwordx4 v4, s[36:39], s28 offen offset:{(kk % 4)*1024} sc1 lds")
    A(f"s_mul_i32 s28, s22, {G.WZ_SEG}\ns_lshl_b32 s29, s24, 12\ns_add_u32 s28, s28, s29")
    A("v_lshlrev_b32 v6, 2, v1")
    for f in range(16): A(f"buffer_load_dword v{Z+64+f}, v6, s[44:47], s28 offen offset:{f*256} sc1")
    A("s_waitcnt vmcnt(16)\ns_barrier")
    ring = lambda f: PR + (f % 3)*8
    def rd(f):
        for qt in range(2): A(f"ds_read_b128 {v(ring(f)+4*qt, 4)}, v4 offset:{qt*20480 + f*1024}")
    rd(0); rd(1)
    for f in range(20):
        if f + 2 < 20: rd(f + 2)
        A(f"s_waitcnt vmcnt({min(16, 4*(19 - f))}) lgkmcnt({2*min(2, 19-f)})")
        for qt in range(2):
            d = v(ACC+4*qt, 4)
            A(f"v_mfma_f32_16x16x32_bf16 {d}, {v(Z+4*f, 4)}, {v(ring(f)+4*qt, 4)}, {d if f else '0'}")
    A(f"""s_waitcnt vmcnt(0)
    s_mov_b32 s26, 0xffff0000
    s_mov_b32 s32, 0
    s_lshl_b32 s33, s22, 5
    v_add_u32 v8, s33, v2
    v_add_u32 v9, 16, v8
    v_lshlrev_b32 v10, 4, v3""")
    A.flush()
    A.label(L + "_moe"); A.reset_state()
    A(f"""s_nop 3
    v_readlane_b32 s34, v13, s32
    s_nop 3
    s_lshr_b32 s35, s34, 5
    s_cmp_lg_u32 s35, s22
    s_cbranch_scc1 {L}_moen
    s_mul_i32 s28, s32, 1792
    s_lshl_b32 s29, s24, 6
    s_add_u32 s28, s28, s29
    s_lshl_b32 s29, s34, 2
    v_mov_b32 v11, s29
    buffer_load_dword v12, v11, s[64:67], 0 offen""")
    for m in range(28):
        A(f"buffer_load_dwordx4 {v(MP+4*m, 4)}, v10, s[56:59], s28 offen sc1\ns_add_u32 s28, s28, 14336")
    A("s_waitcnt vmcnt(0)")
    for m in range(1, 28):
        A(f"v_pk_add_f32 {v(MP, 2)}, {v(MP, 2)}, {v(MP+4*m, 2)}\nv_pk_add_f32 {v(MP+2, 2)}, {v(MP+2, 2)}, {v(MP+4*m+2, 2)}")
    A(f"""v_mul_f32 v12, {LOG2E}, v12
    v_exp_f32 v12, -v12
    v_cvt_pk_bf16_f32 v{MP}, v{MP}, v{MP+1}
    v_add_f32 v12, 1.0, v12
    v_rcp_f32 v12, v12
    v_cvt_pk_bf16_f32 v{MP+2}, v{MP+2}, v{MP+3}
    v_cvt_pk_bf16_f32 v12, v12, v12
    v_and_b32 v12, s26, v12
    v_and_b32 v{MP+1}, s26, v{MP}
    v_lshlrev_b32 v{MP}, 16, v{MP}
    v_and_b32 v{MP+3}, s26, v{MP+2}
    v_lshlrev_b32 v{MP+2}, 16, v{MP+2}""")
    for r in range(4): A(f"v_mul_f32 v{MP+r}, v{MP+r}, v12")
    A(f"""v_cvt_pk_bf16_f32 v{MP}, v{MP}, v{MP+1}
    v_cvt_pk_bf16_f32 v{MP+2}, v{MP+2}, v{MP+3}
    v_and_b32 v{MP+1}, s26, v{MP}
    v_lshlrev_b32 v{MP}, 16, v{MP}
    v_and_b32 v{MP+3}, s26, v{MP+2}
    v_lshlrev_b32 v{MP+2}, 16, v{MP+2}""")
    for qt in range(2):
        A(f"v_cmp_eq_u32 vcc, s34, v{8+qt}")
        for r in range(4): A(f"v_cndmask_b32 v{UP+4*qt+r}, v{UP+4*qt+r}, v{MP+r}, vcc")
    A.flush()
    A.label(L + "_moen"); A.reset_state()
    A(f"s_add_u32 s32, s32, 1\ns_cmp_lt_u32 s32, 8\ns_cbranch_scc1 {L}_moe")
    T = MP
    for qt in range(2):
        for p in range(2):
            a0 = ACC + 4*qt + 2*p; u0 = UP + 4*qt + 2*p
            A(f"""v_cvt_pk_bf16_f32 v{T}, v{a0}, v{a0+1}
            v_lshlrev_b32 v{T+2}, 16, v{XX+2*qt+p}
            v_and_b32 v{T+3}, s26, v{XX+2*qt+p}
            v_and_b32 v{T+1}, s26, v{T}
            v_lshlrev_b32 v{T}, 16, v{T}
            v_lshlrev_b32 v{T+4}, 16, v{XN+2*qt+p}
            v_and_b32 v{T+5}, s26, v{XN+2*qt+p}
            v_pk_add_f32 {v(T, 2)}, {v(T, 2)}, {v(T+2, 2)}
            v_pk_add_f32 {v(T+4, 2)}, {v(T+4, 2)}, {v(u0, 2)}
            v_cvt_pk_bf16_f32 v{T}, v{T}, v{T+1}
            v_cvt_pk_bf16_f32 v{T+4}, v{T+4}, v{T+5}
            v_and_b32 v{T+1}, s26, v{T}
            v_lshlrev_b32 v{T}, 16, v{T}
            v_and_b32 v{T+5}, s26, v{T+4}
            v_lshlrev_b32 v{T+4}, 16, v{T+4}
            v_pk_add_f32 {v(T, 2)}, {v(T, 2)}, {v(T+4, 2)}
            v_cvt_pk_bf16_f32 v{T+8+2*qt+p}, v{T}, v{T+1}""")
        A(f"buffer_store_dwordx2 {v(T+8+2*qt, 2)}, v5, s[68:71], s{30+qt} offen")

NINF = "0xff800000"
def xattn_task(A, L, bail):
    TX, RG, SD, SO, SMM = 16, 128, 160, 168, 172
    A(f"""s_mul_i32 s28, s22, 28672
    s_mul_i32 s29, s3, 7168
    s_add_u32 s28, s28, s29
    s_mov_b32 m0, s29""")
    for k in range(7):
        if k == 4: A("s_add_u32 s28, s28, 4096\ns_add_u32 m0, m0, 4096")
        A(f"buffer_load_dwordx4 v4, s[76:79], s28 offen offset:{(k % 4)*1024} lds")
    A(f"""s_lshl_b32 s24, s23, 2
    s_add_u32 s24, s24, s3
    s_mul_i32 s28, s22, {G.SEG_SZ}
    s_mul_i32 s29, s24, 28672
    s_add_u32 s28, s28, s29
    s_lshl_b32 s33, s22, 13
    s_lshl_b32 s29, s24, 7
    v_mov_b32 v6, s29""")
    flag_wait(A, L + "_wt", 92, 6, 33, 7, bail)
    order = [(qt, vv) for vv in range(14) for qt in range(2)]
    for qt, vv in order:
        A(f"s_add_u32 s29, s28, {qt*14336 + (vv // 4)*4096}")
        A(f"buffer_load_dwordx4 {v(TX + (qt*14 + vv)*4, 4)}, v4, s[72:75], s29 offen offset:{(vv % 4)*1024} sc1")
    A("v_lshlrev_b32 v5, 2, v3")
    for r in range(4): A(f"v_add_u32 v6, {r}, v5\nv_cmp_le_u32 s[{84+2*r}:{85+2*r}], v6, v2")
    A("""v_and_b32 v6, 1, v2
    v_cmp_eq_u32 vcc, 1, v6
    v_mov_b32 v7, 0x4444
    v_mov_b32 v6, 0xeeee
    v_cndmask_b32 v7, v7, v6, vcc
    s_waitcnt vmcnt(28)
    s_barrier""")
    ring = lambda k: RG + (k % 4)*8
    def rd(k):
        for kt in range(2): A(f"ds_read_b128 {v(ring(k)+4*kt, 4)}, v4 offset:{kt*14336 + k*1024}")
    for k in range(3): rd(k)
    tx = lambda qt, vv, n=4: v(TX + (qt*14 + vv)*4, n)
    for k in range(14):
        if k + 3 < 14: rd(k + 3)
        A(f"s_waitcnt vmcnt({2*(13-k)}) lgkmcnt({2*min(3, 13-k)})")
        for d, kt, qt in ((SD, 0, 0), (SO, 0, 1), (SD+4, 1, 1)):
            A(f"v_mfma_f32_16x16x32_bf16 {v(d, 4)}, {v(ring(k)+4*kt, 4)}, {tx(qt, k)}, {v(d, 4) if k else '0'}")
    for r in range(8): A(f"v_mov_b32 v{SMM+r}, 0")
    A("v_mov_b32 v6, 6144")
    flag_wait(A, L + "_wm", 92, 6, 33, 9, bail, sleep=2)
    A(f"""s_lshl_b32 s28, s22, 13
    s_lshl_b32 s29, s3, 11
    s_add_u32 s28, s28, s29
    s_add_u32 m0, s29, 28672""")
    for kk in range(2): A(f"buffer_load_dwordx4 v4, s[80:83], s28 offen offset:{kk*1024} sc1 lds")
    A("s_waitcnt vmcnt(0)\ns_barrier")
    for t in range(7): A(f"ds_read_b128 {v(RG+4*t, 4)}, v4 offset:{28672 + t*1024}")
    A(f"v_mov_b32 v6, {NINF}")
    for q in range(2):
        for r in range(4): A(f"v_cndmask_b32 v{SD+4*q+r}, v6, v{SD+4*q+r}, s[{84+2*r}:{85+2*r}]")
    for t in range(7):
        A(f"s_waitcnt lgkmcnt({6-t})")
        for qt in range(2): A(f"v_smfmac_f32_16x16x64_bf16 {v(SMM+4*qt, 4)}, {v(RG+4*t, 4)}, {tx(qt, 2*t, 8)}, v7")
    A(f"""s_mul_i32 s28, s22, {G.PXF_SEG}
    s_lshl_b32 s29, s24, 10
    s_add_u32 s29, s29, s28
    s_add_u32 s30, s23, 16
    s_lshl_b32 s30, s30, 10
    s_add_u32 s30, s30, s28
    s_lshl_b32 s31, s3, 2
    v_add_u32 v8, s31, v4""")
    m, t1, l, O = 180, 182, 184, 188
    for qt in range(2):
        M, Dg = SMM + 4*qt, SD + 4*qt
        A(f"v_add_f32 v{M}, v{M}, v{M+1}\nv_add_f32 v{M+1}, v{M+2}, v{M+3}")
        prs = [M, Dg, Dg+2] + ([SO, SO+2] if qt else [])
        A(f"v_max3_f32 v{m}, v{M}, v{M+1}, v{Dg}\nv_max3_f32 v{m}, v{m}, v{Dg+1}, v{Dg+2}\nv_max_f32 v{m}, v{m}, v{Dg+3}")
        if qt: A(f"v_max3_f32 v{m}, v{m}, v{SO}, v{SO+1}\nv_max3_f32 v{m}, v{m}, v{SO+2}, v{SO+3}")
        xreduce(A, "v_max_f32", m, t1)
        for r in prs: A(f"v_pk_add_f32 {v(r, 2)}, {v(r, 2)}, {v(m, 2)} op_sel_hi:[1,0] neg_lo:[0,1] neg_hi:[0,1]")
        for r in prs: A(f"v_exp_f32 v{r}, v{r}\nv_exp_f32 v{r+1}, v{r+1}")
        A(f"v_pk_add_f32 {v(l, 2)}, {v(prs[0], 2)}, {v(prs[1], 2)}")
        for r in prs[2:]: A(f"v_pk_add_f32 {v(l, 2)}, {v(l, 2)}, {v(r, 2)}")
        A(f"v_add_f32 v{l}, v{l}, v{l+1}")
        xreduce(A, "v_add_f32", l, t1)
        A(f"v_rcp_f32 v{l}, v{l}")
        for r in prs: A(f"v_pk_mul_f32 {v(r, 2)}, {v(r, 2)}, {v(l, 2)} op_sel_hi:[1,0]")
        o = O + 8*qt
        if qt == 0:
            A(f"v_cvt_pk_bf16_f32 v{o}, v{Dg}, v{Dg+1}\nv_cvt_pk_bf16_f32 v{o+1}, v{Dg+2}, v{Dg+3}\nv_mov_b32 v{o+2}, 0\nv_mov_b32 v{o+3}, 0")
        else:
            A(f"v_cvt_pk_bf16_f32 v{o}, v{SO}, v{SO+1}\nv_cvt_pk_bf16_f32 v{o+1}, v{SO+2}, v{SO+3}\nv_cvt_pk_bf16_f32 v{o+2}, v{Dg}, v{Dg+1}\nv_cvt_pk_bf16_f32 v{o+3}, v{Dg+2}, v{Dg+3}")
        A(f"v_cvt_pk_bf16_f32 v{o+4}, v{M}, v{M+1}")
        A(f"buffer_store_dwordx4 {v(o, 4)}, v4, s[36:39], s29 offen sc1\nbuffer_store_dword v{o+4}, v8, s[36:39], s30 offen sc1")
        if qt == 0: A("s_add_u32 s29, s29, 20480\ns_add_u32 s30, s30, 20480")

    A(f"s_waitcnt vmcnt(0)\ns_barrier\ns_lshl_b32 s28, s23, 7\ns_add_u32 s28, s28, s33\ns_add_u32 s28, s28, 7680\ns_cmp_lg_u32 s3, 0\ns_cbranch_scc1 {L}_nofl")
    flag_set(A, 92, 28, 6, 7)
    A.label(L + "_nofl")

def xattn_srds(A):
    srd(A, 36, 18, G.PXF_OFF, 64*G.PXF_SEG)
    srd(A, 72, 18, G.KQF_OFF, 64*G.SEG_SZ)
    srd(A, 76, 18, G.XNF_OFF, G.XN_SZ)
    srd(A, 80, 18, G.MEMG_OFF, 64*8192)

def gemm2_srds(A):
    srd(A, 36, 18, G.PXF_OFF, 64*G.PXF_SEG)
    srd(A, 40, 18, G.VOF_OFF, 64*G.SEG_SZ)
    srd(A, 44, 18, G.WZ_OFF, 64*G.WZ_SEG)
    srd(A, 48, 4, 0, G.XN_SZ)
    srd(A, 52, 18, G.XNF_OFF, G.XN_SZ)
    srd(A, 56, 18, G.MOEP_OFF, G.MOEP_SZ)
    srd(A, 60, 18, G.IDX_OFF, 32)
    srd(A, 64, 18, G.R_OFF, 8192)
    srd(A, 68, 6, 0, G.XN_SZ)
```

```python
import sys
from asmlib import *

NAME = "parallel_sum__memory_aug_recurrent_mem_tr__moe_arch_mod__prompt"
XN_OFF, XN_SZ = 0x0000000, 2048*896
XNF_OFF = 0x0200000
R_OFF = 0x0400000
MOEP_OFF, MOEP_SZ = 0x0410000, 28*8*448*4
IDX_OFF = 0x0480000
MEMF_OFF, MEMF_STRIDE = 0x0500000, 8192
PF_OFF, PF_STRIDE = 0x0600000, 10240
WF_OFF, WF_UNIT = 0x0800000, 28*14*1024
KQF_OFF, SEG_SZ = 0x1800000, 16*28*1024
VOF_OFF = 0x3400000
PXF_OFF, PXF_SEG = 0x5000000, 40*1024
WZ_OFF, WZ_SEG = 0x5400000, 28*4*1024
MEMG_OFF = 0x5C00000
FLG_MOE, FLG_PROD, FLG_LN, FLG_EPOCH = 16384*32, 18432*32, 17664*32, 17920*32
FLG_OFF, FLG_SZ = 0x5D00000, 22*1024*32
SPIN_MAX = 1 << 22
W3_SZ = 448*8192
SCALE_LOG2E = 0x3db8aa3b
import struct
assert abs(struct.unpack('<f', struct.pack('<I', SCALE_LOG2E))[0] - 1.4426950408889634/16) < 1e-8

KARG = dict(x=0, mem0=8, wq=16, wk=24, wv=32, wo=40, wr=64, wg=72, wu=80, wd=88, out=96, dbg=104, ws=112)

def srd(A, d, base, off, size):
    if off == 0:
        A(f"s_mov_b32 s{d}, s{base}\ns_mov_b32 s{d+1}, s{base+1}")
    else:
        o = off if isinstance(off, str) else hex(off)
        A(f"s_add_u32 s{d}, s{base}, {o}\ns_addc_u32 s{d+1}, s{base+1}, 0")
    A(f"s_mov_b32 s{d+2}, {hex(size)}\ns_mov_b32 s{d+3}, 0x20000")

def lane_setup(A, vlane=1, vn=2, vg=3, swave=3):
    A(f"""
    v_and_b32 v{vlane}, 63, v0
    v_lshrrev_b32 v{vg}, 6, v0
    v_and_b32 v{vn}, 15, v0
    v_readfirstlane_b32 s{swave}, v{vg}
    v_bfe_u32 v{vg}, v0, 4, 2
    """)

def xreduce(A, op, x, t, steps=(16, 32)):
    for st in steps:
        if st == 8:
            A(f"{op}_dpp v{x}, v{x}, v{x} row_ror:8 row_mask:0xf bank_mask:0xf")
        else:
            A(f"v_mov_b32 v{t}, v{x}")
            A(f"v_permlane{st}_swap_b32 v{x}, v{t}")
            A(f"{op} v{x}, v{x}, v{t}")

import os
TLM = int(os.environ.get("TLM", "0"))
def tl(A, k, sreg=None):
    if not TLM: return
    if sreg is None: A(f"s_memrealtime s[100:101]\ns_waitcnt lgkmcnt(0)\nv_writelane_b32 v{TLV[0]}, s100, {k}")
    else: A(f"s_memrealtime s[100:101]\ns_mov_b32 m0, s{sreg}\ns_waitcnt lgkmcnt(0)\nv_writelane_b32 v{TLV[0]}, s100, m0")
TLV = [15]
def tls(A, k):
    if TLM: A(f"s_memrealtime s[100:101]\ns_waitcnt lgkmcnt(0)\ns_mov_b32 s{84+k}, s100")
def tl_dump(A, kern, wsreg=18):
    if not TLM: return
    A(f"""s_add_u32 s36, s{wsreg}, {hex(0x5F00000 + kern*0x40000)}
    s_addc_u32 s37, s{wsreg+1}, 0
    s_mov_b32 s38, 0x40000
    s_mov_b32 s39, 0x20000
    v_mbcnt_lo_u32_b32 v14, -1, 0
    v_mbcnt_hi_u32_b32 v14, -1, v14
    v_lshlrev_b32 v14, 2, v14
    s_lshl_b32 s100, s2, 10
    s_lshl_b32 s101, s3, 8
    s_add_u32 s100, s100, s101
    buffer_store_dword v{TLV[0]}, v14, s[36:39], s100 offen""")

def flag_wait(A, L, srdn, voff, soff, tmp, bail, sleep=6, cnt=27):
    A(f"s_mov_b32 s{cnt}, 0")
    A.label(L)
    A(f"""buffer_load_dword v{tmp}, v{voff}, s[{srdn}:{srdn+3}], s{soff} offen sc1
    s_add_u32 s{cnt}, s{cnt}, 1
    s_cmp_gt_u32 s{cnt}, {SPIN_MAX}
    s_cbranch_scc1 {bail}
    s_waitcnt vmcnt(0)
    v_cmp_ne_u32 vcc, s96, v{tmp}
    s_cbranch_vccz {L}_ok
    s_sleep {min(127, sleep*int(os.environ.get('SLP', '1')))}
    s_branch {L}""")
    A.label(L + "_ok")

def mem_poll(A, L, srdn, soffs, reg0, t0, t1, bail):
    A("s_mov_b32 s27, 0\ns_mov_b32 s26, 0xffff0000")
    A.label(L); A.reset_state()
    for t in range(7): A(f"buffer_load_dwordx4 {v(reg0+4*t, 4)}, v4, s[{srdn}:{srdn+3}], s{soffs[t // 4]} offen offset:{(t % 4)*1024} sc1")
    A(f"s_add_u32 s27, s27, 1\ns_cmp_gt_u32 s27, {SPIN_MAX}\ns_cbranch_scc1 {bail}")
    for t in range(7):
        r = reg0 + 4*t
        A(f"s_waitcnt vmcnt({6-t})")
        A(f"v_pk_max_u16 v{t0}, v{r}, v{r+1}" if t == 0 else f"v_pk_max_u16 v{t0}, v{t0}, v{r}\nv_pk_max_u16 v{t0}, v{t0}, v{r+1}")
        A(f"v_pk_max_u16 v{t0}, v{t0}, v{r+2}\nv_pk_max_u16 v{t0}, v{t0}, v{r+3}")
    A(f"v_lshlrev_b32 v{t1}, 16, v{t0}\nv_max_u32 v{t0}, v{t0}, v{t1}\nv_cmp_le_u32 vcc, s26, v{t0}\ns_cbranch_vccnz {L}")

def flag_set(A, srdn, soff, t0, t1):
    A(f"""v_mov_b32 v{t0}, s96
    v_mov_b32 v{t1}, 0
    s_mov_b64 exec, 1
    buffer_store_dword v{t0}, v{t1}, s[{srdn}:{srdn+3}], s{soff} offen sc1
    s_mov_b64 exec, -1""")

def wreg(i, u, n=4):
    idx = 56*i + 4*u
    if idx < 256:
        assert idx + n <= 256
        return a_(idx, n)
    return v(120 + idx - 256, n)

PADS = int(os.environ.get("PADS", "1"))
class Warm:
    def __init__(self, A, name):
        self.A, self.name = A, name
        if not PADS: return
        A("s_mov_b64 exec, 0")
        self.slot = len(A.lines); A.lines.append("; warm entry")
        A.label(name + "_ret"); A.reset_state()
        A("s_mov_b64 exec, -1")
    def on(self, every=112):
        if PADS: self.A.pads_on(self.name, every)
    def off(self):
        if not PADS: return
        st = self.A.pads_off(self.name + "_ret")
        t = "".join(f"    s_cmp_eq_u32 s3, {w}\n    s_cbranch_scc1 {st[w]}\n" for w in range(3)) + f"    s_branch {st[3]}"
        self.A.lines[self.slot] = t

def stage_wait(A, L, srdn, voff, soff, t0, k, bail, sleep=int(os.environ.get('SLS', '6'))):
    A("s_mov_b32 s27, 0")
    A.label(L)
    A(f"""buffer_load_dword v{t0}, v{voff}, s[{srdn}:{srdn+3}], s{soff} offen sc1
    s_add_u32 s27, s27, 1
    s_cmp_gt_u32 s27, {SPIN_MAX}
    s_cbranch_scc1 {bail}
    s_waitcnt vmcnt(0)
    v_subrev_u32 v{t0}, s95, v{t0}
    v_subrev_u32 v{t0}, {k}, v{t0}
    v_cmp_lt_u32 vcc, {4 - k}, v{t0}
    s_cbranch_vccz {L}_ok
    s_sleep {sleep}
    s_branch {L}""")
    A.label(L + "_ok")

def prod_body(A, L):
    A(f"""s_and_b32 s24, s22, 15
    s_lshl_b32 s25, s24, 9
    s_mul_i32 s26, s22, {WF_UNIT}
    s_add_u32 s26, s26, {hex(WF_OFF)}""")
    srd(A, 36, 18, "s26", WF_UNIT)
    VO, RA, SR, TMP = 216, 224, 136, 232
    A("""v_lshrrev_b32 v5, 5, v1
    v_and_b32 v6, 31, v1
    v_xor_b32 v6, v6, v5
    v_lshlrev_b32 v6, 4, v6
    v_lshl_add_u32 v6, v5, 13, v6""")
    for k in range(8):
        A(f"v_xor_b32 v{VO+k}, {2*k << 4}, v6\nv_add_u32 v{VO+k}, {(8*(k >> 1) + 2*(k & 1))*8192}, v{VO+k}")
    def tile_dma(srdn, soff):
        for k in range(8):
            A(f"buffer_load_dwordx4 v{VO+k}, s[{srdn}:{srdn+3}], s{soff} offen lds\ns_add_u32 m0, m0, 1024")
    def coop_touch():
        if not int(os.environ.get("PTOUCH", "1")): return
        A("""v_lshrrev_b32 v250, 3, v1
        v_and_b32 v251, 7, v1
        v_lshlrev_b32 v251, 6, v251
        v_lshl_add_u32 v250, v250, 13, v251
        s_lshl_b32 s27, s23, 19
        s_lshl_b32 s28, s3, 17
        s_add_u32 s27, s27, s28
        s_add_u32 s27, s27, s25
        buffer_load_dword v251, v250, s[40:43], s27 offen
        s_add_u32 s27, s27, 65536
        buffer_load_dword v252, v250, s[40:43], s27 offen""")
    def stage_dma(k):
        A(f"""s_add_u32 s27, s3, {4*k}
        s_lshl_b32 s27, s27, 18
        s_add_u32 s27, s27, s25
        s_add_u32 m0, s32, {(k % 2)*16384}""")
        tile_dma(40, 27)
        A("s_add_u32 s27, s27, 32768")
        tile_dma(40, 27)
    rreg = lambda ct, ks: v(8 + (ct*8 + ks)*4, 4)
    A(f"""s_lshl_b32 s32, s3, 15
    s_add_u32 s32, s32, 32768
    s_mov_b32 s30, 1.0
    s_cmp_ge_u32 s22, 16
    s_cbranch_scc1 {L}_t1""")
    srd(A, 40, 76, 0, W3_SZ)
    srd(A, 44, 78, 0, W3_SZ)
    coop_touch()
    A(f"""s_mov_b32 s30, {hex(SCALE_LOG2E)}
    s_lshl_b32 s27, s23, 19
    s_lshr_b32 s28, s3, 1
    s_lshl_b32 s28, s28, 18
    s_add_u32 s27, s27, s28
    s_and_b32 s28, s3, 1
    s_lshl_b32 s28, s28, 15
    s_add_u32 s27, s27, s28
    s_add_u32 s27, s27, s25
    s_lshl_b32 m0, s3, 13""")
    tile_dma(44, 27)
    stage_dma(0)
    A(f"s_branch {L}_c0")
    A.label(L + "_t1"); A.reset_state()
    srd(A, 40, 80, 0, W3_SZ)
    coop_touch()
    A(f"s_mul_i32 s27, s24, {256*896}")
    srd(A, 44, 82, "s27", 256*896)
    A(f"""v_lshrrev_b32 v5, 3, v1
    v_and_b32 v6, 7, v1
    v_and_b32 v7, 6, v5
    v_xor_b32 v6, v6, v7
    v_lshlrev_b32 v6, 4, v6
    v_and_b32 v7, 3, v5
    v_lshrrev_b32 v5, 2, v5
    v_lshl_add_u32 v7, v5, 3, v7
    v_mul_u32_u24 v7, 896, v7
    v_add_u32 v7, v7, v6
    s_lshl_b32 s27, s23, 7
    s_mul_i32 s28, s3, {64*896}
    s_add_u32 s27, s27, s28
    s_lshl_b32 m0, s3, 13""")
    for k in range(8):
        A(f"buffer_load_dwordx4 v7, s[44:47], s27 offen lds\ns_add_u32 m0, m0, 1024\ns_add_u32 s27, s27, {(4 if k % 2 == 0 else 12)*896}")
    stage_dma(0)
    A.label(L + "_c0"); A.reset_state()
    A("""v_and_b32 v5, 3, v2
    v_xor_b32 v5, v5, v3
    v_and_b32 v6, 12, v2
    v_or_b32 v5, v5, v6
    v_lshlrev_b32 v5, 4, v5
    v_lshl_add_u32 v5, v2, 9, v5""")
    for ks in range(8): A(f"v_xor_b32 v{RA+ks}, {ks << 6}, v5")
    NT = 0
    W = Warm(A, L + "_wm")
    W.on()
    tls(A, 1)
    A(f"s_waitcnt vmcnt({16 + NT})\ns_barrier\ns_cmp_ge_u32 s22, 16\ns_cbranch_scc1 {L}_r1")
    for ct in range(4):
        for ks in range(8): A(f"ds_read_b128 {rreg(ct, ks)}, v{RA+ks} offset:{ct*8192}")
        A("s_waitcnt lgkmcnt(7)")
    A(f"s_branch {L}_c1")
    A.label(L + "_r1"); A.reset_state()
    A("""v_lshrrev_b32 v5, 2, v2
    v_and_b32 v6, 1, v3
    v_lshl_add_u32 v6, v6, 2, v5
    v_lshrrev_b32 v7, 1, v6
    v_lshrrev_b32 v5, 1, v3
    v_lshl_add_u32 v6, v5, 4, v6
    v_lshlrev_b32 v6, 7, v6
    v_and_b32 v5, 3, v2
    v_lshl_add_u32 v6, v5, 3, v6""")
    for ct in range(4):
        A(f"v_xor_b32 v5, {ct}, v7\nv_lshl_add_u32 v5, v5, 5, v6")
        for ks in range(8):
            for z in range(2): A(f"ds_read_b64_tr_b16 {v(8 + (ct*8 + ks)*4 + 2*z, 2)}, v5 offset:{ks*4096 + z*1024}")
            if ks % 4 == 3: A("s_waitcnt lgkmcnt(7)")
    A.label(L + "_c1"); A.reset_state()
    stage_dma(1)
    tls(A, 2)
    for ks in range(8): A(f"v_add_u32 v{RA+ks}, s32, v{RA+ks}")
    A(f"""s_mul_i32 s31, s23, {4*14*1024}
    s_lshl_b32 s28, s3, 10
    s_add_u32 s31, s31, s28
    s_lshl_b32 s33, s20, 9
    s_lshl_b32 s28, s3, 7
    s_add_u32 s33, s33, s28
    s_add_u32 s33, s33, {FLG_PROD}
    v_mov_b32 v6, 0x7ffffff0
    v_cmp_eq_u32 vcc, 0, v1
    v_cndmask_b32 v6, v6, v1, vcc""")
    acc = lambda k, ct, e: a_(((k*4 + ct)*2 + e)*4, 4)
    def epilogue(k):
        o = []
        for ct in range(4):
            t = TMP + 4*(ct % 2)
            for e in range(2):
                b = ((k*4 + ct)*2 + e)*4
                for r in range(4): o.append(f"v_accvgpr_read_b32 v{TMP+8+r}, a{b+r}")
                for r in (0, 2): o.append(f"v_pk_mul_f32 {v(TMP+8+r, 2)}, {v(TMP+8+r, 2)}, s[30:31] op_sel_hi:[1,0]")
                o.append(f"v_cvt_pk_bf16_f32 v{t+2*e}, v{TMP+8}, v{TMP+9}")
                o.append(f"v_cvt_pk_bf16_f32 v{t+2*e+1}, v{TMP+10}, v{TMP+11}")
            o.append(f"s_add_u32 s28, s31, {(ct*14 + 4*k)*1024}\nbuffer_store_dwordx4 {v(t, 4)}, v4, s[36:39], s28 offen sc1")
        return o
    flag = lambda st: f"s_add_u32 s28, s95, {st}\nv_mov_b32 v7, s28\nbuffer_store_dword v7, v6, s[48:51], s33 offen sc1"
    PORD = int(os.environ.get("PORD", "1"))
    for k in range(4):
        if k == 3: A(f"s_cmp_ge_u32 s3, 2\ns_cbranch_scc1 {L}_short")
        A(f"s_waitcnt vmcnt({([16 + NT, 16, 16, 8], [16 + NT, 16, 16, 0])[PORD][k]})")
        if PORD and k >= 2: A(flag(k - 1))
        for e in range(2):
            for ks in range(8): A(f"ds_read_b128 {v(SR + (e*8 + ks)*4, 4)}, v{RA+ks} offset:{(k % 2)*16384 + e*8192}")
            if e == 0: A("s_waitcnt lgkmcnt(7)")
        side = ({0: [], 1: [], 2: epilogue(0) + epilogue(1), 3: epilogue(2)}[k]) if not PORD else (epilogue(k - 1) if k else [])
        for e in range(2):
            for ks in range(8):
                A(f"s_waitcnt lgkmcnt({15 - 8*e - ks})")
                for ct in range(4):
                    A(f"v_mfma_f32_16x16x32_bf16 {acc(k, ct, e)}, {v(SR + (e*8 + ks)*4, 4)}, {rreg(ct, ks)}, {acc(k, ct, e) if ks else '0'}")
                    for _ in range(2):
                        if side and (e or ks): A(side.pop(0))
                if e == 1 and ks == 7 and k < 2: stage_dma(k + 2)
        for z in side: A(z)
    for z in epilogue(3): A(z)
    if not PORD:
        A("s_waitcnt vmcnt(12)"); A(flag(1))
        A("s_waitcnt vmcnt(9)"); A(flag(2))
        A("s_waitcnt vmcnt(6)"); A(flag(3))
    else:
        A("s_waitcnt vmcnt(4)"); A(flag(3))
    A(f"s_branch {L}_fin")
    A.label(L + "_short"); A.reset_state()
    for z in epilogue(2): A(z)
    if not PORD:
        A("s_waitcnt vmcnt(8)"); A(flag(1))
        A("s_waitcnt vmcnt(5)"); A(flag(2))
    else:
        A("s_waitcnt vmcnt(4)"); A(flag(2))
    A.label(L + "_fin"); A.reset_state()
    tls(A, 3)
    W.off()
    A("s_waitcnt vmcnt(0)")
    A(flag(4))

def ln_body(A, L):
    srd(A, 36, 4, 0, XN_SZ)
    srd(A, 68, 78, 0, 896)
    srd(A, 48, 18, XNF_OFF, XN_SZ)
    srd(A, 52, 18, R_OFF, 8192)
    srd(A, 64, 76, 0, 7168)
    A(f"""
    v_mul_u32_u24 v7, 896, v2
    v_lshl_add_u32 v7, v3, 4, v7
    v_lshlrev_b32 v5, 4, v3
    s_mul_i32 s24, s23, {16*896}
    """)
    X, W, F = 8, 64, 120
    for u in range(14): A(f"buffer_load_dwordx4 {v(X+4*u, 4)}, v7, s[36:39], s24 offen offset:{u*64}")
    WM = Warm(A, L + "_wm")
    for u in range(14): A(f"buffer_load_dwordx4 {v(W+4*u, 4)}, v5, s[68:71], 0 offen offset:{u*64}")
    A("v_mov_b32 v232, -1\nv_mov_b32 v233, -1\nv_mov_b32 v234, -1\nv_mov_b32 v235, -1")
    for k in range(4):
        A(f"s_lshl_b32 s25, s23, 10\ns_add_u32 s25, s25, {8192 + k*128*1024}")
        A(f"buffer_store_dwordx4 v[232:235], v4, s[40:43], s25 offen sc1")
    for k in range(5):
        A(f"s_lshl_b32 s25, s23, 10\ns_add_u32 s25, s25, {k*128*1024}")
        A(f"buffer_store_dwordx4 v[232:235], v4, s[44:47], s25 offen sc1")
    srd(A, 72, 18, MEMG_OFF, 64*8192)
    for k in range(4):
        A(f"s_lshl_b32 s25, s23, 10\ns_add_u32 s25, s25, {k*128*1024}")
        A(f"buffer_store_dwordx4 v[232:235], v4, s[72:75], s25 offen sc1")
    A(f"""s_cmp_lg_u32 s23, 120
    s_cbranch_scc1 {L}_nomem
    v_lshrrev_b32 v6, 1, v2
    v_mul_u32_u24 v6, 896, v6
    v_lshl_add_u32 v6, v3, 5, v6
    v_and_b32 v5, 1, v2
    v_cmp_eq_u32 vcc, 1, v5
    """)
    for t in range(7):
        A(f"buffer_load_dwordx4 {v(F+8*t, 4)}, v6, s[64:67], 0 offen offset:{t*128}")
        A(f"buffer_load_dwordx4 {v(F+8*t+4, 4)}, v6, s[64:67], 0 offen offset:{t*128+16}")
    A("s_waitcnt vmcnt(0)\ns_mov_b32 s27, 0xfffefffe")
    for t in range(7):
        for aa in range(4):
            A(f"v_cndmask_b32 v{F+56+4*t+aa}, v{F+8*t+2*aa}, v{F+8*t+2*aa+1}, vcc")
            A(f"v_pk_min_u16 v{F+56+4*t+aa}, v{F+56+4*t+aa}, s27")
        A(f"s_mov_b32 s25, {t*1024}\nbuffer_store_dwordx4 {v(F+56+4*t, 4)}, v4, s[40:43], s25 offen sc1")
    A("s_waitcnt vmcnt(0)")
    A.label(L + "_nomem")
    WM.on()
    tls(A, 1)
    A("s_waitcnt vmcnt(27)")
    tls(A, 2)
    A("s_mov_b32 s26, 0xffff0000")
    A("s_mov_b32 s27, 0x3f803f80\nv_mov_b32 v236, 0\nv_mov_b32 v237, 0")
    for j in range(56):
        A(f"v_dot2_f32_bf16 v{236 + j % 2}, v{X+j}, s27, v{236 + j % 2}\nv_lshlrev_b32 v{F+2*j}, 16, v{X+j}\nv_and_b32 v{F+2*j+1}, s26, v{X+j}")
    inv = hex(struct.unpack('<I', struct.pack('<f', 1/448))[0])
    A("v_add_f32 v236, v236, v237")
    xreduce(A, "v_add_f32", 236, 237)
    A(f"v_mul_f32 v236, {inv}, v236\nv_mov_b32 v237, v236")
    A("v_mov_b32 v240, 0\nv_mov_b32 v241, 0\nv_mov_b32 v242, 0\nv_mov_b32 v243, 0")
    for j in range(0, 56, 2):
        A(f"v_pk_add_f32 v[244:245], {v(F+2*j,2)}, v[236:237] neg_lo:[0,1] neg_hi:[0,1]")
        A(f"v_pk_add_f32 v[246:247], {v(F+2*j+2,2)}, v[236:237] neg_lo:[0,1] neg_hi:[0,1]")
        A(f"v_pk_fma_f32 v[240:241], v[244:245], v[244:245], v[240:241]")
        A(f"v_pk_fma_f32 v[242:243], v[246:247], v[246:247], v[242:243]")
    A("v_pk_add_f32 v[240:241], v[240:241], v[242:243]\nv_add_f32 v240, v240, v241")
    xreduce(A, "v_add_f32", 240, 241)
    A(f"""v_mul_f32 v240, {inv}, v240
    v_cvt_pk_bf16_f32 v236, v236, v240
    v_and_b32 v240, s26, v236
    v_lshlrev_b32 v236, 16, v236
    v_add_f32 v240, {hex(struct.unpack('<I', struct.pack('<f', 1e-5))[0])}, v240
    v_cvt_pk_bf16_f32 v240, v240, v240
    v_and_b32 v240, s26, v240
    v_sqrt_f32 v240, v240
    v_mov_b32 v237, v236
    v_cvt_pk_bf16_f32 v240, v240, v240
    v_and_b32 v240, s26, v240
    v_rcp_f32 v240, v240
    s_nop 0
    v_mov_b32 v241, v240
    s_mul_i32 s25, s23, {14*1024}""")
    for j in range(56):
        A(f"v_pk_add_f32 {v(F+2*j,2)}, {v(F+2*j,2)}, v[236:237] neg_lo:[0,1] neg_hi:[0,1]")
        A(f"v_cvt_pk_bf16_f32 v{X+j}, v{F+2*j}, v{F+2*j+1}")
        A(f"v_lshlrev_b32 v{F+2*j}, 16, v{X+j}\nv_and_b32 v{F+2*j+1}, s26, v{X+j}")
        A(f"v_pk_mul_f32 {v(F+2*j,2)}, {v(F+2*j,2)}, v[240:241]")
        A(f"v_cvt_pk_bf16_f32 v{X+j}, v{F+2*j}, v{F+2*j+1}")
        if j % 4 == 3:
            u = j // 4
            A(f"buffer_store_dwordx4 {v(X+4*u, 4)}, v4, s[48:51], s25 offen offset:{(u % 4)*1024} sc1")
            if u % 4 == 3: A("s_add_u32 s25, s25, 4096")
    A("s_waitcnt vmcnt(27)")
    A("v_mov_b32 v240, 0\nv_mov_b32 v241, 0")
    for j in range(56): A(f"v_dot2_f32_bf16 v{240 + j % 2}, v{X+j}, v{W+j}, v{240 + j % 2}")
    A("v_add_f32 v240, v240, v241")
    xreduce(A, "v_add_f32", 240, 241)
    A(f"""v_cvt_pk_bf16_f32 v240, v240, v240
    v_and_b32 v240, s26, v240
    v_lshlrev_b32 v241, 2, v2
    s_lshl_b32 s25, s23, 6
    s_mov_b64 exec, 0xffff
    buffer_store_dword v240, v241, s[52:55], s25 offen sc1
    s_mov_b64 exec, -1""")
    WM.off()
    tls(A, 3)

KD = """
.section .rodata,"a"
.p2align 6
.amdhsa_kernel {name}
  .amdhsa_next_free_vgpr {nv}
  .amdhsa_next_free_sgpr 102
  .amdhsa_accum_offset 256
  .amdhsa_group_segment_fixed_size 0
  .amdhsa_kernarg_size 120
  .amdhsa_user_sgpr_count 2
  .amdhsa_user_sgpr_kernarg_segment_ptr 1
  .amdhsa_system_sgpr_workgroup_id_x 1
.end_amdhsa_kernel
"""

def build(kernels):
    out = []
    for name, fn, grid, lds in kernels:
        if len(kernels) == 1 and not os.environ.get("ASLIST"): out.append(f"; @launch grid=({grid},1,1) block=(256,1,1) lds={lds}")
        else: out.append(f"; @launch kernel={name} grid=({grid},1,1) block=(256,1,1) lds={lds}")
    out.append('.amdgcn_target "amdgcn-amd-amdhsa--gfx950"\n.text')
    for name, fn, grid, lds in kernels:
        A = Asm()
        fn(A)
        out.append(f".globl {name}\n.p2align 8\n.type {name},@function")
        out.append(A.text())
    for name, fn, grid, lds in kernels:
        out.append(KD.format(name=name, nv=256 if name in ('gemm2_kernel', 'xattn_kernel') else 512))
    return '\n'.join(out)

if __name__ == "__main__":
    import kmain
    ks = [(NAME + "_kernel", kmain.kmain, 256, 163840)]
    sys.stdout.write(build(ks))
```

```python
from asmlib import *
import gen as G
from gen import srd, lane_setup, xreduce, wreg, flag_set, flag_wait, tl, tl_dump
from kernels2 import tile_c, load_weights7, f2h
import os
SPIN_MAX = 1 << 22
NINF = "0xff800000"
STAMP = int(os.environ.get("STAMP", "0"))
HU_P_AT = int(os.environ.get("HU_P_AT", "2"))
HU_M_AT = int(os.environ.get("HU_M_AT", "0"))
A_DMA = int(os.environ.get("A_DMA", "0"))
DSP = int(os.environ.get("DSP", "3"))
DSPB = int(os.environ.get("DSPB", "2"))
NT = os.environ.get("NT", "")
SBLK = int(os.environ.get("SBLK", "1"))
HUI = int(os.environ.get("HUI", "13"))
F2 = 99
ONEP = int(os.environ.get("ONEP", "1"))
HB = int(os.environ.get("HB", "3"))
DWST = int(os.environ.get("DWST", "0"))
WD = int(os.environ.get("WD", "4"))
TMODE = int(os.environ.get("TMODE", "1"))
TWV = 3 if TMODE == 0 else 0
DBG2_OFF = 0x5E00000
QP = "quad_perm:[1,0,3,2] row_mask:0xf bank_mask:0xf"

def stamp(A, k):
    if STAMP: A(f"{'s_memrealtime' if STAMP == 2 else 's_memtime'} s[{4+2*k}:{5+2*k}]")
def stamp_cnt(A, k):
    if STAMP: A(f"s_mov_b32 s{16+k}, s27")
def stamp_out(A, tmp, lds, nw):
    if not STAMP: return
    lab = f"STK{len(A.lines)}"
    A(f"s_waitcnt lgkmcnt(0)\ns_lshr_b32 s28, s64, 4\ns_cmp_lg_u32 s28, {SBLK}\ns_cbranch_scc1 {lab}\ns_cmp_ge_u32 s3, {nw}\ns_cbranch_scc1 {lab}")
    for k in range(6): A(f"v_mov_b32 v{tmp+k}, s{4+2*k}")
    A(f"v_mov_b32 v{tmp+6}, s16\nv_mov_b32 v{tmp+7}, s17")
    A(f"""s_lshl_b32 s28, s3, 4
    s_add_u32 s28, s28, s64
    s_lshl_b32 s28, s28, 5
    s_add_u32 s28, s28, {lds - 512*SBLK}
    v_mov_b32 v{tmp+8}, s28
    ds_write_b128 v{tmp+8}, {v(tmp, 4)}
    ds_write_b128 v{tmp+8}, {v(tmp+4, 4)} offset:16""")
    A.label(lab)
def stamp_dump(A, lds):
    if not STAMP: return
    A(f"""s_lshl_b32 s28, s3, 9
    v_bfe_u32 v8, v4, 4, 4
    v_lshlrev_b32 v8, 5, v8
    v_add_u32 v9, s28, v8
    v_add_u32 v9, {lds}, v9
    v_min_u32 v9, {163840 - 32}, v9
    s_lshl_b32 s28, s3, 11
    s_add_u32 s28, s28, 512
    v_add_u32 v8, s28, v8
    s_waitcnt lgkmcnt(0)
    ds_read_b128 v[12:15], v9
    ds_read_b128 v[16:19], v9 offset:16
    s_lshl_b32 s28, s21, 13
    s_waitcnt lgkmcnt(0)
    buffer_store_dwordx4 v[12:15], v8, s[60:63], s28 offen
    buffer_store_dwordx4 v[16:19], v8, s[60:63], s28 offen offset:16""")

def team_flavor(A, bail, va=5, vb=6):
    A(f"v_lshlrev_b32 v{va}, 2, v1\ns_mov_b32 s27, 0\ns_mov_b32 exec_hi, 0")
    L = bail + "_fl" + str(len(A.lines))
    A.label(L)
    A(f"""
    buffer_load_dword v{vb}, v{va}, s[60:63], 0 offen sc1
    s_add_u32 s27, s27, 1
    s_cmp_gt_u32 s27, {SPIN_MAX}
    s_cbranch_scc1 {bail}
    s_waitcnt vmcnt(0)
    v_cmp_eq_u32 vcc, 0, v{vb}
    s_cbranch_vccnz {L}
    v_cmp_ne_u32 vcc, s35, v{vb}
    s_mov_b64 exec, -1
    s_cmp_lg_u64 vcc, 0
    s_cselect_b32 s65, 1, 0
    """)
    if STAMP: srd(A, 60, 18, DBG2_OFF, 32*4*64*32)

HUD = int(os.environ.get("HUD", "3"))
def hu_wait(A, L, srdn, voff, soff, hr, bail, HUD=HUD):
    ld = lambda k: f"buffer_load_dword v{hr[k]}, v{voff}, s[{srdn}:{srdn+3}], s{soff} offen sc1"
    A("s_mov_b32 s27, 0")
    for k in range(HUD - 1): A(ld(k))
    A.label(L)
    for k in range(HUD):
        A(ld((k + HUD - 1) % HUD))
        A(f"s_waitcnt vmcnt({HUD-1})\nv_cmp_eq_u32 vcc, -1, v{hr[k]}\ns_cbranch_vccz {L}_ok")
    A(f"s_add_u32 s27, s27, 1\ns_cmp_gt_u32 s27, {SPIN_MAX}\ns_cbranch_scc0 {L}\ns_branch {bail}")
    A.label(L + "_ok")

def frag_loads(A, n, reg0, srdn, voff, soffs):
    for t in range(n):
        A(f"buffer_load_dwordx4 {v(reg0+4*t, 4)}, v{voff}, s[{srdn}:{srdn+3}], s{soffs[t // 4]} offen offset:{(t % 4)*1024} sc1")

def exact_check(A, L, n, reg0, tmp, retry, back, bail):
    A.label(L); A.reset_state()
    A("s_waitcnt vmcnt(0)")
    tmp, t2 = tmp if isinstance(tmp, tuple) else (tmp, tmp + 1)
    A(f"v_pk_max_u16 v{tmp}, v{reg0}, v{reg0+1}")
    for r in range(reg0 + 2, reg0 + 4*n): A(f"v_pk_max_u16 v{tmp}, v{tmp}, v{r}")
    A(f"""v_lshlrev_b32 v{t2}, 16, v{tmp}
    v_max_u32 v{tmp}, v{tmp}, v{t2}
    v_cmp_le_u32 vcc, s26, v{tmp}
    s_cbranch_vccz {back}
    s_add_u32 s27, s27, 1
    s_cmp_gt_u32 s27, {SPIN_MAX}
    s_cbranch_scc1 {bail}
    s_branch {retry}""")

def dma_ops(n, srdn, sg, sl, fl=''):
    o = []
    for k in range(n):
        pre = ""
        if k == 0: pre = f"s_mov_b32 m0, s{sl}\n"
        elif k % 4 == 0:
            pre = "s_add_u32 m0, m0, 4096\n"
            if not isinstance(sg, tuple): pre = f"s_add_u32 s{sg}, s{sg}, 4096\n" + pre
        g = sg[k // 4] if isinstance(sg, tuple) else sg
        o.append(pre + f"buffer_load_dwordx4 v4, s[{srdn}:{srdn+3}], s{g} offen offset:{(k % 4)*1024}{fl} lds")
    return o

TL, SMX, MFLA, XSL = 0, 7168, 8192, 32768
MF, TA, XB = 8, 36, 64
VTOUCH = int(os.environ.get("VTOUCH", "1"))

def mem_fetch(A, base, behind=()):
    A(f"s_mov_b32 s97, {base}")
    for z in dma_ops(7, 40, (32, 34), 97, " sc1"): A(z)
    for z in behind: A(z)
    A(f"s_waitcnt vmcnt({len(behind)})")

def a_xb_load(A):
    A(f"s_mul_i32 s28, s33, 28672\ns_add_u32 s28, s28, s94")
    for k in range(14):
        if k and k % 4 == 0: A("s_add_u32 s28, s28, 4096")
        A(f"buffer_load_dwordx4 {v(XB+4*k, 4)}, v4, s[52:55], s28 offen offset:{(k % 4)*1024}")

def a_loop(A, role, fl):
    L = f"K3a{role}f{fl}"
    sc = " sc1" if fl else ""
    if role == 1:
        A("s_mov_b32 s33, 0"); a_xb_load(A)
    A.label(L + "_loop"); A.reset_state()
    stamp(A, 0)
    A(f"""s_lshl_b32 s32, s64, 13
    s_add_u32 s34, s32, 4096
    s_add_u32 s33, s64, 1
    s_min_u32 s33, s33, 63""")
    zero = [f"v_mov_b32 v{r}, 0" for r in range(TA, TA + 28)]
    for z in zero: A(z)
    if VTOUCH and role == TWV: A(f"s_mul_i32 s30, s33, {G.SEG_SZ}")
    if role == TWV and VTOUCH:
        A(f"""s_lshl_b32 s29, s33, 13
        s_add_u32 s29, s29, 8192
        s_waitcnt vmcnt(0)
        v_cmp_ne_u32 vcc, s96, v115
        s_cmp_eq_u64 vcc, 0
        s_cselect_b32 s93, s94, 0x40000000
        s_add_u32 s30, s30, s93""")
    if role == 0:
        A(f"v_mov_b32 v{XB+4}, {NINF}\nv_mov_b32 v{XB+5}, {NINF}\ns_mul_i32 s31, s64, {G.PF_STRIDE}")
        A(f"s_cmp_eq_u32 s64, 0\ns_cbranch_scc1 {L}_hu_ok")
        hu_wait(A, L + "_hu", 40, 111, 32, (108, 109, 107), "K3_end")
    stamp(A, 1)
    A("s_mov_b32 s27, 0")
    A.label(L + "_go"); A.reset_state()
    tch = [f"buffer_load_dword v119, v118, s[48:51], s30 offen sc1\ns_add_u32 s30, s30, 4096" for k in range(7)] + ["buffer_load_dword v115, v114, s[56:59], s29 offen sc1"]
    nb = len(tch) if (VTOUCH and TMODE == 1) else 0
    if role == 0:
        A(f"s_mov_b32 s97, {MFLA}")
        for z in dma_ops(7, 40, (32, 34), 97, " sc1") + (tch if nb else []): A(z)
        A(f"s_waitcnt vmcnt({5 + nb})")
    A("s_barrier")
    for t in range(2): A(f"ds_read_b128 {v(MF+4*t, 4)}, v1 offset:{t*1024}")
    smf = lambda d, t, B: f"v_smfmac_f32_16x16x64_bf16 {v(d, 4)}, {v(MF+4*t, 4)}, {B}, v2"
    def emit(z, side=None):
        A(z)
        if side: A(side)
    for t in range(2):
        if t == 0 or HB < 7: A(f"s_waitcnt lgkmcnt({(1 - t) if t == 0 else 5})")
        else: A("s_waitcnt lgkmcnt(0)")
        if t == 0: stamp(A, 2)
        for i in range(7):
            A(smf(TA + 4*i, t, wreg(i, 2*t, 8)))
            if 7*t + i == HB:
                A((f"s_waitcnt vmcnt({nb})\n" if role == 0 else "") + "s_barrier")
                for tt in range(2, 7): A(f"ds_read_b128 {v(MF+4*tt, 4)}, v1 offset:{tt*1024}")
    for t in range(2, 7):
        A(f"s_waitcnt lgkmcnt({6 - t})")
        for d, i in ((TA, 0), (TA+4, 1)): A(smf(d, t, wreg(i, 2*t, 8)))
    def fin(x): return [f"v_add_f32 v{x}, v{x}, v{x+1}", f"v_add_f32 v{x+2}, v{x+2}, v{x+3}", f"v_cvt_pk_bf16_f32 v{x}, v{x}, v{x+2}"]
    def post_pair(p):
        x, y = TA + 8*p, TA + 8*p + 4
        return fin(x) + fin(y) + [f"ds_write2st64_b32 v5, v{x}, v{y} offset0:{2*p} offset1:{2*p+1}"]
    b = TA
    chk = [f"v_add_f32 v{b}, v{b}, v{b+1}", f"v_add_f32 v{b+2}, v{b+2}, v{b+3}", f"v_cmp_u_f32 vcc, v{b}, v{b+2}",
           f"s_cbranch_vccnz {L}_slow\n{L}_back:"]
    zs = [f"v_mov_b32 v{TA+r}, 0" for r in range(4)] if role == 1 else []
    main = [smf(TA + 8*p + 4*e, t, wreg(2*p + e, 2*t, 8)) for p in (1, 2) for t in range(2, 7) for e in range(2)] + [smf(TA+24, t, wreg(6, 2*t, 8)) for t in range(2, 7)]
    side = [None]*3 + chk + post_pair(0)[2:] + [None] + post_pair(1) + [zs[0] if zs else None]*1
    rest = zs[1:] + post_pair(2)
    for k, z in enumerate(main):
        emit(z, side[k] if k < len(side) else None)
        if k >= 22 and rest: A(rest.pop(0)); A(rest.pop(0))
    for z in rest + fin(TA+24) + [f"ds_write_b32 v6, v{TA+24}"]: A(z)
    stamp(A, 3); stamp_cnt(A, 0)
    A("s_waitcnt lgkmcnt(0)\ns_barrier")
    stamp(A, 4)
    treg = lambda t: MF if (role == 1 and t == 0) else TA + 4*t
    tr = lambda t: [f"ds_read_b64_tr_b16 {v(treg(t) + 2*z, 2)}, v0 offset:{t*1024 + z*32}" for z in range(2)]
    if role != 3:
        for t in range(7):
            for z in tr(t): A(z)
    if role == 1:
        D = TA
        for t in range(7):
            A(f"s_waitcnt lgkmcnt({2*(6-t)})" + (" vmcnt(0)" if t == 0 else ""))
            A(f"v_smfmac_f32_16x16x64_bf16 {v(D, 4)}, {v(treg(t), 4)}, {v(XB+8*t, 8)}, v3")
        A(f"""v_permlane32_swap_b32 v{D}, v{D+1}
        v_permlane32_swap_b32 v{D+2}, v{D+3}
        v_add_f32 v{D}, v{D}, v{D+1}
        v_add_f32 v{D+2}, v{D+2}, v{D+3}
        ds_write2_b32 v7, v{D}, v{D+2} offset0:0 offset1:32
        s_waitcnt lgkmcnt(0)
        s_barrier
        s_barrier""")
        if os.environ.get("XSLEEP"): A(f"s_sleep {os.environ['XSLEEP']}")
        if not os.environ.get("NOXB"): a_xb_load(A)
    if role == 3: A("s_barrier\ns_barrier")
    if role == 0:
        X, R, D = XB, XB + 4, XB + 8
        m, t1, l = XB+12, XB+13, XB+14
        for t in range(7):
            A(f"s_waitcnt lgkmcnt({2*(6-t)})")
            A(f"v_mfma_f32_16x16x32_bf16 {v(D, 4)}, {v(MF+4*t, 4)}, {v(TA+4*t, 4)}, {v(D, 4) if t else '0'}")
        A(f"v_add_f32_dpp v{R}, v{D+1}, v{D} row_ror:8 row_mask:0xf bank_mask:0x3")
        A(f"v_add_f32_dpp v{R+1}, v{D+3}, v{D+2} row_ror:8 row_mask:0xf bank_mask:0x3")
        A(f"v_max_f32 v{m}, v{R}, v{R+1}\ns_barrier")
        class Rec:
            def __init__(s): s.l = []
            def __call__(s, t): s.l += [x.strip() for x in t.split("\n") if x.strip()]
        Q = Rec()
        Q(f"""ds_read_b64 {v(X, 2)}, v7
        ds_read_b64 {v(X+2, 2)}, v7 offset:512
        s_waitcnt lgkmcnt(1)
        v_max3_f32 v{m}, v{m}, v{X}, v{X+1}
        s_waitcnt lgkmcnt(0)
        v_max3_f32 v{m}, v{m}, v{X+2}, v{X+3}""")
        xreduce(Q, "v_max_f32", m, t1, steps=(8, 16, 32))
        for r in (X, X+2, R): Q(f"v_pk_add_f32 {v(r, 2)}, {v(r, 2)}, {v(m, 2)} op_sel_hi:[1,0] neg_lo:[0,1] neg_hi:[0,1]")
        for r in range(6): Q(f"v_exp_f32 v{X+r}, v{X+r}")
        Q(f"""v_pk_add_f32 {v(l, 2)}, {v(X, 2)}, {v(X+2, 2)}
        v_pk_add_f32 {v(l, 2)}, {v(l, 2)}, {v(R, 2)}
        v_add_f32 v{l}, v{l}, v{l+1}""")
        xreduce(Q, "v_add_f32", l, t1, steps=(8, 16, 32))
        Q(f"v_rcp_f32 v{l}, v{l}")
        for r in (X, X+2, R): Q(f"v_pk_mul_f32 {v(r, 2)}, {v(r, 2)}, {v(l, 2)} op_sel_hi:[1,0] clamp")
        Q(f"""v_cvt_pk_bf16_f32 v{X}, v{X}, v{X+1}
        v_cvt_pk_bf16_f32 v{X+1}, v{X+2}, v{X+3}
        buffer_store_dwordx2 {v(X, 2)}, v116, s[44:47], s31 offen{sc}
        v_cvt_pk_bf16_f32 v{R}, v{R}, v{R+1}
        buffer_store_dword v{R}, v117, s[44:47], s31 offen{sc}
        s_barrier""")
        Q.l.insert(HUI, f"buffer_store_dword v112, v110, s[40:43], s32 offen{sc}")
        for z in Q.l: A(z)
    stamp(A, 5)
    if role == 0: tl(A, 0, 64)
    if role == 3 and G.TLM: A("s_memtime s[100:101]\ns_min_u32 m0, s64, 57\ns_waitcnt lgkmcnt(0)\nv_writelane_b32 v113, s100, m0")
    stamp_out(A, TA + 8, MFLA + 7168, 4)
    A(f"s_add_u32 s64, s64, 1\ns_cmp_lt_u32 s64, 63")
    A.flush()
    A(f"s_cbranch_scc1 {L}_loop")
    stamp_dump(A, MFLA + 7168)
    if role != 1: tl_dump(A, 1)
    A("s_branch K3_end")
    exact_check(A, L + "_slow", 7, MF, (TA + 1, TA + 3), L + "_retry", L + "_back", "K3_end")
    A.label(L + "_retry"); A.reset_state()
    for z in zero: A(z)
    if VTOUCH and role == TWV: A(f"s_mov_b32 s30, 0x40000000")
    A(f"s_barrier\ns_branch {L}_go")

def a_cu(A):
    A(f"s_mul_i32 s26, s22, {G.WF_UNIT}\ns_add_u32 s26, s26, {hex(G.WF_OFF)}")
    srd(A, 36, 18, "s26", G.WF_UNIT)
    srd(A, 48, 18, G.VOF_OFF, 64*G.SEG_SZ)
    srd(A, 52, 18, G.XNF_OFF, G.XN_SZ)
    srd(A, 56, 18, G.FLG_OFF, G.FLG_SZ)
    A(f"v_min_u32 v5, 27, v1\nv_lshlrev_b32 v5, 7, v5\ns_mul_i32 s29, s22, 3584\ns_add_u32 s29, s29, {G.FLG_PROD}")
    for k in range(4):
        G.stage_wait(A, f"K3a_wp{k}", 56, 5, 29, 6, k + 1, "K3_end")
        if k == 0: tl(A, 62)
        A(f"s_mul_i32 s28, s3, {7*14336}\ns_add_u32 s28, s28, {k*4096}")
        for i in range(7):
            for u in range(4*k, min(14, 4*k + 4)):
                A(f"buffer_load_dwordx4 {wreg(i, u)}, v4, s[36:39], s28 offen offset:{(u % 4)*1024} sc1")
            A("s_add_u32 s28, s28, 14336")
    team_flavor(A, "K3_end")
    A("s_mul_i32 s28, s3, 7\ns_add_u32 s30, s28, 6")
    A(f"""
    v_lshrrev_b32 v8, 1, v3
    v_and_b32 v9, 1, v3
    v_lshlrev_b32 v7, 7, v8
    v_lshl_add_u32 v7, v2, 3, v7
    v_lshl_add_u32 v7, v9, 2, v7
    s_lshl_b32 s28, s28, 8
    v_add_u32 v5, s28, v7
    s_lshl_b32 s30, s30, 8
    v_add_u32 v6, s30, v7
    s_mov_b32 s64, 0
    s_mov_b32 s26, 0xffff0000
    v_lshrrev_b32 v10, 2, v2
    v_and_b32 v11, 3, v2
    v_lshrrev_b32 v12, 1, v10
    v_lshl_add_u32 v12, v8, 1, v12
    v_lshlrev_b32 v0, 8, v12
    v_and_b32 v12, 1, v11
    v_lshl_add_u32 v0, v12, 7, v0
    v_lshlrev_b32 v12, 3, v9
    v_and_b32 v13, 2, v11
    v_add_u32 v12, v12, v13
    v_and_b32 v13, 1, v10
    v_add_u32 v12, v12, v13
    v_lshl_add_u32 v0, v12, 3, v0
    s_sub_u32 s28, s3, 1
    s_and_b32 s28, s28, 1
    s_mul_i32 s94, s28, 14336
    s_lshl_b32 s28, s28, 9
    s_add_u32 s28, s28, {SMX}
    v_lshl_add_u32 v7, v9, 2, v8
    v_lshlrev_b32 v7, 6, v7
    v_lshl_add_u32 v7, v2, 2, v7
    v_add_u32 v7, s28, v7
    v_lshlrev_b32 v118, 6, v1
    s_mul_i32 s28, s22, 28672
    s_cmp_eq_u32 s3, {TWV}
    s_cselect_b32 s94, s28, s94
    v_and_b32 v12, 7, v2
    v_lshrrev_b32 v13, 3, v2
    v_lshlrev_b32 v14, 6, v12
    v_lshl_add_u32 v14, v3, 4, v14
    v_lshl_add_u32 v14, v13, 3, v14
    v_add_u32 v14, {SMX}, v14
    s_cmp_eq_u32 s3, 0
    s_cselect_b64 vcc, -1, 0
    v_cndmask_b32 v7, v7, v14, vcc
    v_lshlrev_b32 v116, 5, v12
    v_lshl_add_u32 v116, v13, 4, v116
    v_lshl_add_u32 v116, v8, 8, v116
    v_lshl_add_u32 v116, v9, 3, v116
    s_lshl_b32 s28, s22, 9
    v_add_u32 v116, s28, v116
    v_lshlrev_b32 v117, 5, v12
    v_lshl_add_u32 v117, v8, 8, v117
    v_lshl_add_u32 v117, v9, 3, v117
    s_lshr_b32 s28, s22, 2
    s_lshl_b32 s28, s28, 9
    s_and_b32 s29, s22, 1
    s_lshl_b32 s29, s29, 4
    s_add_u32 s28, s28, s29
    s_bfe_u32 s29, s22, 0x10001
    s_lshl_b32 s29, s29, 2
    s_add_u32 s28, s28, s29
    s_add_u32 s28, s28, 8192
    v_add_u32 v117, s28, v117
    v_mov_b32 v14, 0x7ffffff0
    v_cmp_gt_u32 vcc, 8, v2
    v_cndmask_b32 v117, v14, v117, vcc
    v_min_u32 v114, 15, v1
    v_lshlrev_b32 v114, 7, v114
    v_add_u32 v114, 2048, v114
    v_min_u32 v111, 27, v1
    v_lshlrev_b32 v111, 2, v111
    v_add_u32 v111, 7168, v111
    v_mov_b32 v112, 0
    v_not_b32 v115, s96
    s_lshl_b32 s29, s22, 2
    s_add_u32 s29, s29, {8192 + 7296}
    v_mov_b32 v110, s29
    v_cmp_eq_u32 vcc, 0, v1
    v_cndmask_b32 v110, v14, v110, vcc
    v_mov_b32 v12, 0x4444
    v_mov_b32 v14, 0xeeee
    v_cmp_lt_u32 vcc, 7, v2
    v_cndmask_b32 v3, v12, v14, vcc
    v_and_b32 v2, 1, v2
    v_cmp_eq_u32 vcc, 1, v2
    v_cndmask_b32 v2, v12, v14, vcc
    v_add_u32 v1, {MFLA}, v4
    s_waitcnt vmcnt(0)""")
    if G.TLM: A("s_cmp_lg_u32 s3, 3\ns_cbranch_scc1 K3a_tl\ns_memrealtime s[100:101]\ns_waitcnt lgkmcnt(0)\nv_writelane_b32 v113, s100, 63\nK3a_tl:")
    A("""s_cmp_lg_u32 s65, 0
    s_cbranch_scc1 K3a_fl1""")
    for fl in (0, 1):
        if fl: A.label("K3a_fl1"); A.reset_state()
        A(f"s_cmp_eq_u32 s3, 0\ns_cbranch_scc1 K3a_r0f{fl}\ns_cmp_eq_u32 s3, 3\ns_cbranch_scc1 K3a_r3f{fl}")
        for role in (1, 0, 3):
            if role != 1: A.label(f"K3a_r{role}f{fl}"); A.reset_state()
            a_loop(A, role, fl)

WL, VOL, WZL, MFLB = 0, 114688, 147456, 155648
def wregB(i, u, n=4):
    idx = 56*i + 4*u
    if idx < 256:
        assert idx + n <= 256
        return a_(idx, n)
    return v(176 + idx - 256, n)
BA, LW, Z, PFR, PA, KEEP, KEEPM = 36, 68, 36, 116, 156, 100, 152

def b_loop(A, fl):
    L = f"K3bf{fl}"
    sc = " sc1" if fl else ""
    A.label(L + "_loop"); A.reset_state()
    zero = [f"v_mov_b32 v{r}, 0" for r in range(BA, BA + 32)]
    for z in zero: A(z)
    lw = lambda k: LW + (k % 4)*8
    def rdw(k):
        for z in range(2): A(f"ds_read_b128 {v(lw(k) + 4*z, 4)}, v5 offset:{(k // 7)*14336 + (2*(k % 7) + z)*1024}")
    for k in range(4): rdw(k)
    A(f"""s_lshl_b32 s32, s64, 13
    s_add_u32 s34, s32, 4096
    s_mul_i32 s30, s64, {G.SEG_SZ}
    s_lshl_b32 s31, s22, 15
    s_add_u32 s30, s30, s31
    s_lshl_b32 s31, s3, 13
    s_add_u32 s30, s30, s31
    s_add_u32 s29, s30, 4096
    s_add_u32 s31, s31, {VOL}
    s_lshl_b32 s28, s3, 10
    s_add_u32 s28, s28, s66
    v_add_u32 v174, s28, v4
    v_lshlrev_b32 v163, 3, v4
    v_min_u32 v163, 1920, v163
    v_add_u32 v163, 2048, v163""")
    stamp(A, 0)
    A(f"s_lshl_b32 s28, s64, 13\ns_add_u32 s33, s28, 8192\ns_cmp_lg_u32 s3, 3\ns_cbranch_scc1 {L}_wv_ok\nv_cmp_ne_u32 vcc, s96, v0\ns_cbranch_vccz {L}_wv_ok")
    flag_wait(A, L + "_wv", 68, 163, 28, PFR, "K3_end", sleep=2)
    A(f"s_mov_b32 s27, 0\ns_waitcnt lgkmcnt(0)\ns_cmp_lg_u32 s3, 2\ns_cbranch_scc1 {L}_join\ns_cmp_eq_u32 s64, 0\ns_cbranch_scc1 {L}_hm_ok")
    hu_wait(A, L + "_hm", 40, 161, 32, (PFR, PFR+1, PFR+2), "K3_end")
    A("s_mov_b32 s27, 0")
    A.label(L + "_go"); A.reset_state()
    mem_fetch(A, MFLB)
    A.label(L + "_join")
    A("s_barrier")
    for t in range(7): A(f"ds_read_b128 {v(MF+4*t, 4)}, v162 offset:{t*1024}")
    sm0 = lambda i, t, B: f"v_smfmac_f32_16x16x64_bf16 {v(BA+4*i, 4)}, {v(MF+4*t, 4)}, {B}, v160"
    dm = dma_ops(8, 48, (30, 29), 31, ' sc1') + ["buffer_load_dword v0, v163, s[68:71], s33 offen sc1"]
    cnt = [0, 15]
    def sm(i, t, B):
        cnt[0] += 1
        z = sm0(i, t, B)
        if dm and cnt[0] >= cnt[1]: z += "\n" + dm.pop(0); cnt[1] = cnt[0] + DSPB
        return z
    for t in range(7):
        A(f"s_waitcnt lgkmcnt({6 - t})")
        if t == 0: stamp(A, 1)
        A(sm(0, t, wregB(0, 2*t, 8)))
    for t in range(7):
        A(sm(1, t, wregB(1, 2*t, 8)))
        if t == 3: A(f"v_add_f32 v{BA}, v{BA}, v{BA+1}")
        if t == 4: A(f"v_add_f32 v{BA+2}, v{BA+2}, v{BA+3}")
        if t == 5: A(f"v_cmp_u_f32 vcc, v{BA}, v{BA+2}")
        if t == 6: A(f"s_cbranch_vccnz {L}_slowm\n{L}_backm:")
    stamp_cnt(A, 0)
    for k in range(14):
        A(f"s_waitcnt lgkmcnt({2*min(3, 13-k)})")
        A(sm(6 + k // 7, k % 7, v(lw(k), 8)))
        i = 2 + k // 7
        A(sm(i, k % 7, wregB(i, 2*(k % 7), 8)))
        if k + 4 < 14: rdw(k + 4)
    def fin(i):
        x = BA + 4*i
        o = [] if i == 0 else [f"v_add_f32 v{x}, v{x}, v{x+1}", f"v_add_f32 v{x+2}, v{x+2}, v{x+3}"]
        return o + [f"v_cvt_pk_bf16_f32 v{164+i}, v{x}, v{x+2}"]
    side = fin(0) + fin(1) + fin(2) + fin(6) + fin(3) + [f"ds_write_b128 v174, v[164:167]"]
    for t in range(7):
        for i in (4, 5):
            A(sm(i, t, wregB(i, 2*t, 8)))
            if side: A(side.pop(0))
    for z in side + fin(7) + fin(4) + fin(5) + [f"ds_write_b128 v174, v[168:171] offset:4096"]: A(z)
    stamp(A, 2)
    A(f"s_waitcnt vmcnt(0) lgkmcnt(0)\ns_barrier\ns_cmp_ge_u32 s3, 2\ns_cbranch_scc1 {L}_idle")
    PO, PB = PA, 136
    zr = lambda c, k: Z + (c*5 + k)*8
    n = 0
    for c, (vb, wb) in enumerate(((141, 143), (140, 142))):
        for z in range(2): A(f"ds_read_b128 {v(zr(c, 0) + 4*z, 4)}, v{wb} offset:{z*1024}")
        for f in range(8): A(f"ds_read_b128 {v(zr(c, 1) + 4*f, 4)}, v{vb} offset:{f*1024}")
        if c == 0: A("s_waitcnt lgkmcnt(4)")
    zp = [f"v_mov_b32 v{r}, 0" for r in list(range(PO, PO + 4)) + list(range(PB, PB + 4))]
    for z in zp: A(z)
    A(f"""v_mov_b32 v146, -1
    v_mov_b32 v147, -1
    s_mul_i32 s28, s64, {G.PF_STRIDE}
    s_lshl_b32 s29, s24, 10
    s_add_u32 s29, s29, s28
    s_add_u32 s29, s29, 8192
    s_lshl_b32 s30, s24, 12
    s_add_u32 s28, s28, s30
    s_add_u32 s34, s32, 8192
    s_waitcnt lgkmcnt(0)
    ds_write_b64 v145, v[146:147]
    s_waitcnt lgkmcnt(0)""")
    stamp(A, 3)
    A(f"s_cmp_lg_u32 s3, 0\ns_cbranch_scc1 {L}_hp_ok")
    hu_wait(A, L + "_hp", 40, 172, 32, (PFR, PFR+1, PFR+2, PFR+3), "K3_end", HUD=int(os.environ.get("HUDP", "3")))
    A("s_barrier")
    stamp(A, 2)
    A("s_mov_b32 s27, 0")
    A.label(L + "_gop"); A.reset_state()
    A(f"buffer_load_dwordx4 {v(PFR, 4)}, v4, s[44:47], s29 offen sc1")
    for k in range(1, 5): A(f"buffer_load_dwordx4 {v(PFR+4*k, 4)}, v4, s[44:47], s28 offen offset:{(k-1)*1024} sc1")
    for k in range(5):
        A(f"s_waitcnt vmcnt({4-k + (1 if k > HU_M_AT else 0)})")
        if k == 0: stamp(A, 4)
        A(f"v_smfmac_f32_16x16x64_bf16 {v(PO, 4)}, {v(PFR+4*k, 4)}, {v(zr(0, k), 8)}, v160")
        if k == 0: A(f"v_max_u32 v164, v{PFR}, v{PFR+1}")
        A(f"v_smfmac_f32_16x16x64_bf16 {v(PB, 4)}, {v(PFR+4*k, 4)}, {v(zr(1, k), 8)}, v160")
        if k == 0: A(f"v_cmp_eq_u32 vcc, -1, v164\ns_cbranch_vccnz {L}_early")
        if k == HU_M_AT: A(f"buffer_store_dword v175, v173, s[40:43], s32 offen{sc}")
    A(f"""v_add_f32 v{PO}, v{PO}, v{PO+1}
    v_add_f32 v{PO+1}, v{PO+2}, v{PO+3}
    v_cmp_u_f32 vcc, v{PO}, v{PO+1}
    s_cbranch_vccnz {L}_slowp""")
    A.label(L + "_backp")
    A(f"ds_write_b64 v144, {v(PO, 2)}")
    if HU_M_AT == 5: A(f"buffer_store_dword v175, v173, s[40:43], s32 offen{sc}")
    A(f"""v_add_f32 v{PB}, v{PB}, v{PB+1}
    v_add_f32 v{PB+1}, v{PB+2}, v{PB+3}""")
    A.label(L + "_xch")
    A(f"""ds_read_b64 v[146:147], v145
    s_waitcnt lgkmcnt(0)
    v_cmp_eq_u32 vcc, -1, v146
    s_cbranch_vccnz {L}_xw
    v_pk_add_f32 {v(PB, 2)}, {v(PB, 2)}, v[146:147]
    v_cvt_pk_bf16_f32 v{PB}, v{PB}, v{PB+1}
    v_pk_min_u16 v{PB}, v{PB}, s25
    buffer_store_short v{PB}, v7, s[40:43], s34 offen{sc}
    buffer_store_short_d16_hi v{PB}, v7, s[40:43], s34 offen offset:32{sc}""")
    stamp_cnt(A, 1)
    A.label(L + "_next")
    stamp(A, 5)
    tl(A, 0, 64)
    stamp_out(A, 116, MFLB + 7168, 2)
    A(f"s_add_u32 s64, s64, 1\ns_cmp_lt_u32 s64, 63")
    A.flush()
    A(f"s_cbranch_scc1 {L}_loop")
    A.label(L + "_exit"); A.reset_state()
    stamp_dump(A, MFLB + 7168)
    tl_dump(A, 1)
    A("s_branch K3_end")
    A.label(L + "_idle"); A.reset_state()
    A(f"s_barrier\ns_branch {L}_next")
    exact_check(A, L + "_slowm", 7, MF, 164, L + "_retrym", L + "_backm", "K3_end")
    A.label(L + "_retrym"); A.reset_state()
    for z in zero[:8]: A(z)
    A(f"s_barrier\ns_cmp_lg_u32 s3, 2\ns_cbranch_scc1 {L}_join\ns_branch {L}_go")
    exact_check(A, L + "_slowp", 5, PFR, 164, L + "_retryp", L + "_nanp", "K3_end")
    A.label(L + "_nanp"); A.reset_state()
    A(f"v_min_u32 v{PO}, -2, v{PO}\ns_branch {L}_backp")
    A.label(L + "_xw"); A.reset_state()
    A(f"s_add_u32 s27, s27, 1\ns_cmp_gt_u32 s27, {SPIN_MAX*8}\ns_cbranch_scc0 {L}_xch\ns_branch K3_end")
    A.label(L + "_early"); A.reset_state()
    A(f"s_add_u32 s27, s27, 1\ns_cmp_gt_u32 s27, {SPIN_MAX}\ns_cbranch_scc1 K3_end\ns_waitcnt vmcnt(0)\ns_nop 7")
    A.label(L + "_retryp"); A.reset_state()
    for z in zp: A(z)
    A(f"s_nop 1\ns_branch {L}_gop")

def b_cu(A):
    srd(A, 36, 18, G.WF_OFF + 16*G.WF_UNIT, 16*G.WF_UNIT)
    srd(A, 48, 18, G.VOF_OFF, 64*G.SEG_SZ)
    srd(A, 68, 18, G.FLG_OFF, G.FLG_SZ)
    A(f"""v_bfe_u32 v5, v1, 2, 2
    v_mul_u32_u24 v5, 3584, v5
    v_and_b32 v6, 3, v1
    v_lshl_add_u32 v5, v6, 7, v5
    s_mul_i32 s33, s3, 14336
    s_lshr_b32 s28, s22, 1
    s_lshl_b32 s28, s28, 9
    s_add_u32 s33, s33, s28
    s_add_u32 s33, s33, {G.FLG_PROD + 16*3584}""")
    for k in range(4):
        G.stage_wait(A, f"K3b_wp{k}", 68, 5, 33, 6, k + 1, "K3_end")
        for i in range(8):
            ct, q = i // 4, i % 4
            A(f"""s_lshl_b32 s28, s3, 2
            s_add_u32 s28, s28, {q}
            s_mul_i32 s28, s28, {G.WF_UNIT}
            s_mul_i32 s29, s22, 28672
            s_add_u32 s28, s28, s29
            s_add_u32 s28, s28, {ct*14336 + k*4096}""")
            if i >= 6: A(f"s_mul_i32 s29, s3, 28672\ns_add_u32 m0, s29, {WL + (i-6)*14336 + k*4096}")
            for u in range(4*k, min(14, 4*k + 4)):
                if i < 6: A(f"buffer_load_dwordx4 {wregB(i, u)}, v4, s[36:39], s28 offen offset:{(u % 4)*1024} sc1")
                else: A(f"buffer_load_dwordx4 v4, s[36:39], s28 offen offset:{(u % 4)*1024} sc1 lds")
    team_flavor(A, "K3_end")
    A(f"""
    s_mul_i32 s28, s3, 28672
    v_add_u32 v5, s28, v4
    v_and_b32 v9, 1, v2
    v_cmp_eq_u32 vcc, 1, v9
    v_mov_b32 v160, 0x4444
    v_mov_b32 v161, 0xeeee
    v_cndmask_b32 v160, v160, v161, vcc
    s_mov_b32 s25, 0xfffefffe
    s_mov_b32 s26, 0xffff0000
    s_mov_b32 s64, 0
    s_mov_b32 s66, {WZL}
    s_and_b32 s24, s3, 1
    s_lshl_b32 s28, s24, 14
    s_add_u32 s28, s28, {VOL}
    v_add_u32 v6, s28, v4
    v_bfe_u32 v8, v2, 1, 1
    v_lshl_add_u32 v8, v3, 2, v8
    v_lshlrev_b32 v7, 4, v8
    v_lshrrev_b32 v8, 2, v2
    v_lshl_add_u32 v7, v8, 2, v7
    v_lshl_add_u32 v7, v9, 1, v7
    s_lshl_b32 s28, s22, 1
    s_add_u32 s28, s28, s24
    s_lshl_b32 s67, s28, 12
    s_lshl_b32 s29, s28, 8
    v_add_u32 v7, s29, v7
    v_min_u32 v161, 27, v1
    v_lshlrev_b32 v161, 2, v161
    v_add_u32 v161, 7168, v161
    v_min_u32 v172, 15, v1
    v_lshlrev_b32 v172, 2, v172
    v_add_u32 v172, {8192 + 7296}, v172
    s_lshl_b32 s28, s28, 2
    s_add_u32 s28, s28, {8192 + 7168}
    v_mov_b32 v173, s28
    v_mov_b32 v8, 0x7ffffff0
    v_cmp_eq_u32 vcc, 0, v1
    v_cndmask_b32 v173, v8, v173, vcc
    v_mov_b32 v175, 0
    v_not_b32 v0, s96
    s_mul_i32 s28, s24, {16384 + 8192}
    s_add_u32 s28, s28, {VOL}
    v_add_u32 v140, s28, v4
    s_xor_b32 s29, s24, 1
    s_lshl_b32 s28, s29, 14
    s_lshl_b32 s30, s24, 13
    s_add_u32 s28, s28, s30
    s_add_u32 s28, s28, {VOL}
    v_add_u32 v141, s28, v4
    s_mul_i32 s28, s24, {4096 + 2048}
    s_add_u32 s28, s28, {WZL}
    v_add_u32 v142, s28, v4
    s_lshl_b32 s28, s29, 12
    s_lshl_b32 s30, s24, 11
    s_add_u32 s28, s28, s30
    s_add_u32 s28, s28, {WZL}
    v_add_u32 v143, s28, v4
    v_lshrrev_b32 v9, 1, v4
    s_lshl_b32 s28, s29, 11
    s_add_u32 s28, s28, {WZL}
    v_add_u32 v144, s28, v9
    s_add_u32 s30, s30, {WZL}
    v_add_u32 v145, s30, v9
    v_add_u32 v162, {MFLB}, v4
    s_mov_b32 s97, {MFLB}
    s_mul_i32 s98, s24, 3072
    s_waitcnt vmcnt(0)
    """)
    G.TLV[0] = 3
    tl(A, 63)
    A("s_cmp_lg_u32 s65, 0\ns_cbranch_scc1 K3bf1_loop")
    b_loop(A, 0)
    b_loop(A, 1)

def warm_cu(A):
    L = "K3w"
    srd(A, 52, 18, G.XNF_OFF, G.XN_SZ)
    A(f"""v_min_u32 v5, 27, v1
    v_lshlrev_b32 v5, 2, v5
    v_add_u32 v5, 7168, v5
    s_lshl_b32 s28, s3, 10
    v_add_u32 v6, s28, v4
    s_mov_b32 s64, 0""")
    def touch(sreg):
        A(f"s_lshl_b32 s28, s{sreg}, 13\ns_add_u32 s28, s28, 8192\ns_mul_i32 s29, s{sreg}, {G.PF_STRIDE}\ns_mul_i32 s30, s{sreg}, 28672\ns_add_u32 s30, s30, {1*28672}")
        for k in range(2): A(f"buffer_load_dwordx4 v[16:19], v6, s[40:43], s28 offen sc1\ns_add_u32 s28, s28, 4096")
        for k in range(3): A(f"buffer_load_dwordx4 v[16:19], v6, s[44:47], s29 offen sc1\ns_add_u32 s29, s29, 4096")
        for k in range(7): A(f"buffer_load_dwordx4 v[16:19], v6, s[52:55], s30 offen sc1\ns_add_u32 s30, s30, 4096")
    A("v_mov_b32 v7, 2048\ns_mov_b32 s28, 0")
    flag_wait(A, L + "_v0", 56, 7, 28, 8, "K3_end", sleep=8)
    for k in range(WD + 1):
        A(f"s_mov_b32 s33, {k}"); touch(33)
    A.label(L + "_loop")
    A(f"s_add_u32 s64, s64, 1\ns_cmp_ge_u32 s64, {63 - WD}\ns_cbranch_scc1 K3_end\ns_lshl_b32 s32, s64, 13\ns_mov_b32 s27, 0")
    A.label(L + "_w")
    A(f"""s_sleep 4
    buffer_load_dword v8, v5, s[40:43], s32 offen sc1
    s_add_u32 s27, s27, 1
    s_cmp_gt_u32 s27, {SPIN_MAX}
    s_cbranch_scc1 K3_end
    s_waitcnt vmcnt(0)
    v_cmp_eq_u32 vcc, -1, v8
    s_cbranch_vccnz {L}_w
    s_add_u32 s33, s64, {WD}""")
    touch(33)
    A(f"s_branch {L}_loop")

def fwd_cu(A):
    L = "K3f"
    srd(A, 52, 18, G.MEMG_OFF, 64*8192)
    srd(A, 56, 18, G.FLG_OFF, G.FLG_SZ)
    A(f"""v_min_u32 v5, 27, v1
    v_lshlrev_b32 v5, 2, v5
    v_add_u32 v5, 7168, v5
    s_lshl_b32 s28, s3, 11
    s_min_u32 s28, s28, 5120
    v_add_u32 v6, s28, v4
    s_mov_b32 s26, 0xffff0000
    s_mov_b32 s64, 0""")
    team_flavor(A, "K3_end", 10, 11)
    A.label(L + "_loop")
    A(f"s_lshl_b32 s32, s64, 13\ns_mov_b32 s27, 0\ns_cmp_eq_u32 s64, 0\ns_cbranch_scc1 {L}_hu")
    A.label(L + "_w")
    A(f"""s_sleep 1
    buffer_load_dword v8, v5, s[40:43], s32 offen sc1
    s_add_u32 s27, s27, 1
    s_cmp_gt_u32 s27, {SPIN_MAX}
    s_cbranch_scc1 K3_end
    s_waitcnt vmcnt(0)
    v_cmp_eq_u32 vcc, -1, v8
    s_cbranch_vccnz {L}_w""")
    A.label(L + "_hu")
    A(f"s_lshl_b32 s28, s64, 13\ns_add_u32 s28, s28, 6144\ns_cmp_lg_u32 s3, 0\ns_cbranch_scc1 {L}_get")
    flag_set(A, 56, 28, 8, 9)
    A.label(L + "_get")
    A(f"""buffer_load_dwordx4 v[16:19], v6, s[40:43], s32 offen sc1
    buffer_load_dwordx4 v[20:23], v6, s[40:43], s32 offen offset:1024 sc1""")
    exact_check(A, L + "_chk", 2, 16, 8, L + "_get", L + "_ok", "K3_end")
    A.label(L + "_ok")
    A(f"""buffer_store_dwordx4 v[16:19], v6, s[52:55], s32 offen sc1
    buffer_store_dwordx4 v[20:23], v6, s[52:55], s32 offen offset:1024 sc1""")
    A(f"s_add_u32 s64, s64, 1\ns_cmp_lt_u32 s64, 64\ns_cbranch_scc1 {L}_loop\ns_branch K3_end")

def team_publish(A):
    A(f"""s_barrier
    s_lshl_b32 s28, s21, 2
    s_lshl_b32 s31, s21, 7
    s_add_u32 s31, s31, {G.FLG_LN}
    v_mov_b32 v8, s35
    v_mov_b32 v9, s28
    v_mov_b32 v10, s96
    v_mov_b32 v11, s31
    s_mov_b64 exec, 1
    buffer_store_dword v8, v9, s[60:63], 0 offen sc1
    buffer_store_dword v10, v11, s[56:59], 0 offen sc1
    s_mov_b64 exec, -1""")

def team(A):
    A("s_getreg_b32 s35, hwreg(HW_REG_XCC_ID, 0, 4)\ns_add_u32 s35, s35, 1")
    srd(A, 60, 16, 0, 256)
    srd(A, 40, 18, G.MEMF_OFF, 64*G.MEMF_STRIDE)
    srd(A, 44, 18, G.PF_OFF, 64*G.PF_STRIDE)
    A("s_lshl_b32 s23, s21, 2\ns_add_u32 s23, s23, s3")
    G.ln_body(A, "KL")
    srd(A, 56, 18, G.FLG_OFF, G.FLG_SZ)
    A("s_waitcnt vmcnt(0)"); team_publish(A)
    if G.TLM: A("v_writelane_b32 v113, s84, 63\nv_writelane_b32 v113, s85, 58\nv_writelane_b32 v113, s86, 59\nv_writelane_b32 v113, s87, 60"); tl(A, 61)
    A("s_cmp_eq_u32 s21, 31\ns_cbranch_scc1 K3_w\ns_cmp_eq_u32 s21, 30\ns_cbranch_scc1 K3_f")
    A("s_cmp_ge_u32 s21, 16\ns_cbranch_scc1 K3_b\ns_mov_b32 s22, s21")
    a_cu(A)
    A.label("K3_b"); A.reset_state()
    A("s_sub_u32 s22, s21, 16")
    b_cu(A)
    A.label("K3_w"); A.reset_state()
    warm_cu(A)
    A.label("K3_f"); A.reset_state()
    fwd_cu(A)
```

```python
from asmlib import *
import gen as G
from gen import srd, lane_setup, xreduce, wreg, flag_set, flag_wait, tl, tl_dump
from kernels2 import tile_c, load_weights7, f2h
import os
SPIN_MAX = 1 << 22
NINF = "0xff800000"
STAMP = int(os.environ.get("STAMP", "0"))
HU_P_AT = int(os.environ.get("HU_P_AT", "2"))
HU_M_AT = int(os.environ.get("HU_M_AT", "0"))
A_DMA = int(os.environ.get("A_DMA", "0"))
DSP = int(os.environ.get("DSP", "3"))
DSPB = int(os.environ.get("DSPB", "2"))
NT = os.environ.get("NT", "")
SBLK = int(os.environ.get("SBLK", "1"))
HUI = int(os.environ.get("HUI", "13"))
F2 = 99
ONEP = int(os.environ.get("ONEP", "1"))
HB = int(os.environ.get("HB", "3"))
DWST = int(os.environ.get("DWST", "0"))
WD = int(os.environ.get("WD", "4"))
TMODE = int(os.environ.get("TMODE", "1"))
TWV = 3 if TMODE == 0 else 0
DBG2_OFF = 0x5E00000
QP = "quad_perm:[1,0,3,2] row_mask:0xf bank_mask:0xf"

def stamp(A, k):
    if STAMP: A(f"{'s_memrealtime' if STAMP == 2 else 's_memtime'} s[{4+2*k}:{5+2*k}]")
def stamp_cnt(A, k):
    if STAMP: A(f"s_mov_b32 s{16+k}, s27")
def stamp_out(A, tmp, lds, nw):
    if not STAMP: return
    lab = f"STK{len(A.lines)}"
    A(f"s_waitcnt lgkmcnt(0)\ns_lshr_b32 s28, s64, 4\ns_cmp_lg_u32 s28, {SBLK}\ns_cbranch_scc1 {lab}\ns_cmp_ge_u32 s3, {nw}\ns_cbranch_scc1 {lab}")
    for k in range(6): A(f"v_mov_b32 v{tmp+k}, s{4+2*k}")
    A(f"v_mov_b32 v{tmp+6}, s16\nv_mov_b32 v{tmp+7}, s17")
    A(f"""s_lshl_b32 s28, s3, 4
    s_add_u32 s28, s28, s64
    s_lshl_b32 s28, s28, 5
    s_add_u32 s28, s28, {lds - 512*SBLK}
    v_mov_b32 v{tmp+8}, s28
    ds_write_b128 v{tmp+8}, {v(tmp, 4)}
    ds_write_b128 v{tmp+8}, {v(tmp+4, 4)} offset:16""")
    A.label(lab)
def stamp_dump(A, lds):
    if not STAMP: return
    A(f"""s_lshl_b32 s28, s3, 9
    v_bfe_u32 v8, v4, 4, 4
    v_lshlrev_b32 v8, 5, v8
    v_add_u32 v9, s28, v8
    v_add_u32 v9, {lds}, v9
    v_min_u32 v9, {163840 - 32}, v9
    s_lshl_b32 s28, s3, 11
    s_add_u32 s28, s28, 512
    v_add_u32 v8, s28, v8
    s_waitcnt lgkmcnt(0)
    ds_read_b128 v[12:15], v9
    ds_read_b128 v[16:19], v9 offset:16
    s_lshl_b32 s28, s21, 13
    s_waitcnt lgkmcnt(0)
    buffer_store_dwordx4 v[12:15], v8, s[60:63], s28 offen
    buffer_store_dwordx4 v[16:19], v8, s[60:63], s28 offen offset:16""")

def team_flavor(A, bail, va=5, vb=6):
    A(f"v_lshlrev_b32 v{va}, 2, v1\ns_mov_b32 s27, 0\ns_mov_b32 exec_hi, 0")
    L = bail + "_fl" + str(len(A.lines))
    A.label(L)
    A(f"""
    buffer_load_dword v{vb}, v{va}, s[60:63], 0 offen sc1
    s_add_u32 s27, s27, 1
    s_cmp_gt_u32 s27, {SPIN_MAX}
    s_cbranch_scc1 {bail}
    s_waitcnt vmcnt(0)
    v_cmp_eq_u32 vcc, 0, v{vb}
    s_cbranch_vccnz {L}
    v_cmp_ne_u32 vcc, s35, v{vb}
    s_mov_b64 exec, -1
    s_cmp_lg_u64 vcc, 0
    s_cselect_b32 s65, 1, 0
    """)
    if STAMP: srd(A, 60, 18, DBG2_OFF, 32*4*64*32)

HUD = int(os.environ.get("HUD", "3"))
def hu_wait(A, L, srdn, voff, soff, hr, bail, HUD=HUD):
    ld = lambda k: f"buffer_load_dword v{hr[k]}, v{voff}, s[{srdn}:{srdn+3}], s{soff} offen sc1"
    A("s_mov_b32 s27, 0")
    for k in range(HUD - 1): A(ld(k))
    A.label(L)
    for k in range(HUD):
        A(ld((k + HUD - 1) % HUD))
        A(f"s_waitcnt vmcnt({HUD-1})\nv_cmp_eq_u32 vcc, -1, v{hr[k]}\ns_cbranch_vccz {L}_ok")
    A(f"s_add_u32 s27, s27, 1\ns_cmp_gt_u32 s27, {SPIN_MAX}\ns_cbranch_scc0 {L}\ns_branch {bail}")
    A.label(L + "_ok")

def frag_loads(A, n, reg0, srdn, voff, soffs):
    for t in range(n):
        A(f"buffer_load_dwordx4 {v(reg0+4*t, 4)}, v{voff}, s[{srdn}:{srdn+3}], s{soffs[t // 4]} offen offset:{(t % 4)*1024} sc1")

def exact_check(A, L, n, reg0, tmp, retry, back, bail):
    A.label(L); A.reset_state()
    A("s_waitcnt vmcnt(0)")
    tmp, t2 = tmp if isinstance(tmp, tuple) else (tmp, tmp + 1)
    A(f"v_pk_max_u16 v{tmp}, v{reg0}, v{reg0+1}")
    for r in range(reg0 + 2, reg0 + 4*n): A(f"v_pk_max_u16 v{tmp}, v{tmp}, v{r}")
    A(f"""v_lshlrev_b32 v{t2}, 16, v{tmp}
    v_max_u32 v{tmp}, v{tmp}, v{t2}
    v_cmp_le_u32 vcc, s26, v{tmp}
    s_cbranch_vccz {back}
    s_add_u32 s27, s27, 1
    s_cmp_gt_u32 s27, {SPIN_MAX}
    s_cbranch_scc1 {bail}
    s_branch {retry}""")

def dma_ops(n, srdn, sg, sl, fl=''):
    o = []
    for k in range(n):
        pre = ""
        if k == 0: pre = f"s_mov_b32 m0, s{sl}\n"
        elif k % 4 == 0:
            pre = "s_add_u32 m0, m0, 4096\n"
            if not isinstance(sg, tuple): pre = f"s_add_u32 s{sg}, s{sg}, 4096\n" + pre
        g = sg[k // 4] if isinstance(sg, tuple) else sg
        o.append(pre + f"buffer_load_dwordx4 v4, s[{srdn}:{srdn+3}], s{g} offen offset:{(k % 4)*1024}{fl} lds")
    return o

TL, SMX, MFLA, XSL = 0, 7168, 8192, 32768
MF, TA, XB = 8, 36, 64
VTOUCH = int(os.environ.get("VTOUCH", "1"))

def mem_fetch(A, base, behind=()):
    A(f"s_mov_b32 s97, {base}")
    for z in dma_ops(7, 40, (32, 34), 97, " sc1"): A(z)
    for z in behind: A(z)
    A(f"s_waitcnt vmcnt({len(behind)})")

def a_xb_load(A):
    A(f"s_mul_i32 s28, s33, 28672\ns_add_u32 s28, s28, s94")
    for k in range(14):
        if k and k % 4 == 0: A("s_add_u32 s28, s28, 4096")
        A(f"buffer_load_dwordx4 {v(XB+4*k, 4)}, v4, s[52:55], s28 offen offset:{(k % 4)*1024}")

def a_loop(A, role, fl):
    L = f"K3a{role}f{fl}"
    sc = " sc1" if fl else ""
    if role == 1:
        A("s_mov_b32 s33, 0"); a_xb_load(A)
    A.label(L + "_loop"); A.reset_state()
    stamp(A, 0)
    A(f"""s_lshl_b32 s32, s64, 13
    s_add_u32 s34, s32, 4096
    s_add_u32 s33, s64, 1
    s_min_u32 s33, s33, 63""")
    zero = [f"v_mov_b32 v{r}, 0" for r in range(TA, TA + 28)]
    for z in zero: A(z)
    if VTOUCH and role == TWV: A(f"s_mul_i32 s30, s33, {G.SEG_SZ}")
    if role == TWV and VTOUCH:
        A(f"""s_lshl_b32 s29, s33, 13
        s_add_u32 s29, s29, 8192
        s_waitcnt vmcnt(0)
        v_cmp_ne_u32 vcc, s96, v115
        s_cmp_eq_u64 vcc, 0
        s_cselect_b32 s93, s94, 0x40000000
        s_add_u32 s30, s30, s93""")
    if role == 0:
        A(f"v_mov_b32 v{XB+4}, {NINF}\nv_mov_b32 v{XB+5}, {NINF}\ns_mul_i32 s31, s64, {G.PF_STRIDE}")
        A(f"s_cmp_eq_u32 s64, 0\ns_cbranch_scc1 {L}_hu_ok")
        hu_wait(A, L + "_hu", 40, 111, 32, (108, 109, 107), "K3_end")
    stamp(A, 1)
    A("s_mov_b32 s27, 0")
    A.label(L + "_go"); A.reset_state()
    tch = [f"buffer_load_dword v119, v118, s[48:51], s30 offen sc1\ns_add_u32 s30, s30, 4096" for k in range(7)] + ["buffer_load_dword v115, v114, s[56:59], s29 offen sc1"]
    nb = len(tch) if (VTOUCH and TMODE == 1) else 0
    if role == 0:
        A(f"s_mov_b32 s97, {MFLA}")
        for z in dma_ops(7, 40, (32, 34), 97, " sc1") + (tch if nb else []): A(z)
        A(f"s_waitcnt vmcnt({5 + nb})")
    A("s_barrier")
    for t in range(2): A(f"ds_read_b128 {v(MF+4*t, 4)}, v1 offset:{t*1024}")
    smf = lambda d, t, B: f"v_smfmac_f32_16x16x64_bf16 {v(d, 4)}, {v(MF+4*t, 4)}, {B}, v2"
    def emit(z, side=None):
        A(z)
        if side: A(side)
    for t in range(2):
        if t == 0 or HB < 7: A(f"s_waitcnt lgkmcnt({(1 - t) if t == 0 else 5})")
        else: A("s_waitcnt lgkmcnt(0)")
        if t == 0: stamp(A, 2)
        for i in range(7):
            A(smf(TA + 4*i, t, wreg(i, 2*t, 8)))
            if 7*t + i == HB:
                A((f"s_waitcnt vmcnt({nb})\n" if role == 0 else "") + "s_barrier")
                for tt in range(2, 7): A(f"ds_read_b128 {v(MF+4*tt, 4)}, v1 offset:{tt*1024}")
    for t in range(2, 7):
        A(f"s_waitcnt lgkmcnt({6 - t})")
        for d, i in ((TA, 0), (TA+4, 1)): A(smf(d, t, wreg(i, 2*t, 8)))
    def fin(x): return [f"v_add_f32 v{x}, v{x}, v{x+1}", f"v_add_f32 v{x+2}, v{x+2}, v{x+3}", f"v_cvt_pk_bf16_f32 v{x}, v{x}, v{x+2}"]
    def post_pair(p):
        x, y = TA + 8*p, TA + 8*p + 4
        return fin(x) + fin(y) + [f"ds_write2st64_b32 v5, v{x}, v{y} offset0:{2*p} offset1:{2*p+1}"]
    b = TA
    chk = [f"v_add_f32 v{b}, v{b}, v{b+1}", f"v_add_f32 v{b+2}, v{b+2}, v{b+3}", f"v_cmp_u_f32 vcc, v{b}, v{b+2}",
           f"s_cbranch_vccnz {L}_slow\n{L}_back:"]
    zs = [f"v_mov_b32 v{TA+r}, 0" for r in range(4)] if role == 1 else []
    main = [smf(TA + 8*p + 4*e, t, wreg(2*p + e, 2*t, 8)) for p in (1, 2) for t in range(2, 7) for e in range(2)] + [smf(TA+24, t, wreg(6, 2*t, 8)) for t in range(2, 7)]
    side = [None]*3 + chk + post_pair(0)[2:] + [None] + post_pair(1) + [zs[0] if zs else None]*1
    rest = zs[1:] + post_pair(2)
    for k, z in enumerate(main):
        emit(z, side[k] if k < len(side) else None)
        if k >= 22 and rest: A(rest.pop(0)); A(rest.pop(0))
    for z in rest + fin(TA+24) + [f"ds_write_b32 v6, v{TA+24}"]: A(z)
    stamp(A, 3); stamp_cnt(A, 0)
    A("s_waitcnt lgkmcnt(0)\ns_barrier")
    stamp(A, 4)
    treg = lambda t: MF if (role == 1 and t == 0) else TA + 4*t
    tr = lambda t: [f"ds_read_b64_tr_b16 {v(treg(t) + 2*z, 2)}, v0 offset:{t*1024 + z*32}" for z in range(2)]
    if role != 3:
        for t in range(7):
            for z in tr(t): A(z)
    if role == 1:
        D = TA
        for t in range(7):
            A(f"s_waitcnt lgkmcnt({2*(6-t)})" + (" vmcnt(0)" if t == 0 else ""))
            A(f"v_smfmac_f32_16x16x64_bf16 {v(D, 4)}, {v(treg(t), 4)}, {v(XB+8*t, 8)}, v3")
        A(f"""v_permlane32_swap_b32 v{D}, v{D+1}
        v_permlane32_swap_b32 v{D+2}, v{D+3}
        v_add_f32 v{D}, v{D}, v{D+1}
        v_add_f32 v{D+2}, v{D+2}, v{D+3}
        ds_write2_b32 v7, v{D}, v{D+2} offset0:0 offset1:32
        s_waitcnt lgkmcnt(0)
        s_barrier
        s_barrier""")
        if os.environ.get("XSLEEP"): A(f"s_sleep {os.environ['XSLEEP']}")
        if not os.environ.get("NOXB"): a_xb_load(A)
    if role == 3: A("s_barrier\ns_barrier")
    if role == 0:
        X, R, D = XB, XB + 4, XB + 8
        m, t1, l = XB+12, XB+13, XB+14
        for t in range(7):
            A(f"s_waitcnt lgkmcnt({2*(6-t)})")
            A(f"v_mfma_f32_16x16x32_bf16 {v(D, 4)}, {v(MF+4*t, 4)}, {v(TA+4*t, 4)}, {v(D, 4) if t else '0'}")
        A(f"v_add_f32_dpp v{R}, v{D+1}, v{D} row_ror:8 row_mask:0xf bank_mask:0x3")
        A(f"v_add_f32_dpp v{R+1}, v{D+3}, v{D+2} row_ror:8 row_mask:0xf bank_mask:0x3")
        A(f"v_max_f32 v{m}, v{R}, v{R+1}\ns_barrier")
        class Rec:
            def __init__(s): s.l = []
            def __call__(s, t): s.l += [x.strip() for x in t.split("\n") if x.strip()]
        Q = Rec()
        Q(f"""ds_read_b64 {v(X, 2)}, v7
        ds_read_b64 {v(X+2, 2)}, v7 offset:512
        s_waitcnt lgkmcnt(1)
        v_max3_f32 v{m}, v{m}, v{X}, v{X+1}
        s_waitcnt lgkmcnt(0)
        v_max3_f32 v{m}, v{m}, v{X+2}, v{X+3}""")
        xreduce(Q, "v_max_f32", m, t1, steps=(8, 16, 32))
        for r in (X, X+2, R): Q(f"v_pk_add_f32 {v(r, 2)}, {v(r, 2)}, {v(m, 2)} op_sel_hi:[1,0] neg_lo:[0,1] neg_hi:[0,1]")
        for r in range(6): Q(f"v_exp_f32 v{X+r}, v{X+r}")
        Q(f"""v_pk_add_f32 {v(l, 2)}, {v(X, 2)}, {v(X+2, 2)}
        v_pk_add_f32 {v(l, 2)}, {v(l, 2)}, {v(R, 2)}
        v_add_f32 v{l}, v{l}, v{l+1}""")
        xreduce(Q, "v_add_f32", l, t1, steps=(8, 16, 32))
        Q(f"v_rcp_f32 v{l}, v{l}")
        for r in (X, X+2, R): Q(f"v_pk_mul_f32 {v(r, 2)}, {v(r, 2)}, {v(l, 2)} op_sel_hi:[1,0] clamp")
        Q(f"""v_cvt_pk_bf16_f32 v{X}, v{X}, v{X+1}
        v_cvt_pk_bf16_f32 v{X+1}, v{X+2}, v{X+3}
        buffer_store_dwordx2 {v(X, 2)}, v116, s[44:47], s31 offen{sc}
        v_cvt_pk_bf16_f32 v{R}, v{R}, v{R+1}
        buffer_store_dword v{R}, v117, s[44:47], s31 offen{sc}
        s_barrier""")
        Q.l.insert(HUI, f"buffer_store_dword v112, v110, s[40:43], s32 offen{sc}")
        for z in Q.l: A(z)
    stamp(A, 5)
    if role == 0: tl(A, 0, 64)
    if role == 3 and G.TLM: A("s_memtime s[100:101]\ns_min_u32 m0, s64, 57\ns_waitcnt lgkmcnt(0)\nv_writelane_b32 v113, s100, m0")
    stamp_out(A, TA + 8, MFLA + 7168, 4)
    A(f"s_add_u32 s64, s64, 1\ns_cmp_lt_u32 s64, 63")
    A.flush()
    A(f"s_cbranch_scc1 {L}_loop")
    stamp_dump(A, MFLA + 7168)
    if role != 1: tl_dump(A, 1)
    A("s_branch K3_end")
    exact_check(A, L + "_slow", 7, MF, (TA + 1, TA + 3), L + "_retry", L + "_back", "K3_end")
    A.label(L + "_retry"); A.reset_state()
    for z in zero: A(z)
    if VTOUCH and role == TWV: A(f"s_mov_b32 s30, 0x40000000")
    A(f"s_barrier\ns_branch {L}_go")

def a_cu(A):
    A(f"s_mul_i32 s26, s22, {G.WF_UNIT}\ns_add_u32 s26, s26, {hex(G.WF_OFF)}")
    srd(A, 36, 18, "s26", G.WF_UNIT)
    srd(A, 48, 18, G.VOF_OFF, 64*G.SEG_SZ)
    srd(A, 52, 18, G.XNF_OFF, G.XN_SZ)
    srd(A, 56, 18, G.FLG_OFF, G.FLG_SZ)
    A(f"v_min_u32 v5, 27, v1\nv_lshlrev_b32 v5, 7, v5\ns_mul_i32 s29, s22, 3584\ns_add_u32 s29, s29, {G.FLG_PROD}")
    for k in range(4):
        G.stage_wait(A, f"K3a_wp{k}", 56, 5, 29, 6, k + 1, "K3_end")
        if k == 0: tl(A, 62)
        A(f"s_mul_i32 s28, s3, {7*14336}\ns_add_u32 s28, s28, {k*4096}")
        for i in range(7):
            for u in range(4*k, min(14, 4*k + 4)):
                A(f"buffer_load_dwordx4 {wreg(i, u)}, v4, s[36:39], s28 offen offset:{(u % 4)*1024} sc1")
            A("s_add_u32 s28, s28, 14336")
    team_flavor(A, "K3_end")
    A("s_mul_i32 s28, s3, 7\ns_add_u32 s30, s28, 6")
    A(f"""
    v_lshrrev_b32 v8, 1, v3
    v_and_b32 v9, 1, v3
    v_lshlrev_b32 v7, 7, v8
    v_lshl_add_u32 v7, v2, 3, v7
    v_lshl_add_u32 v7, v9, 2, v7
    s_lshl_b32 s28, s28, 8
    v_add_u32 v5, s28, v7
    s_lshl_b32 s30, s30, 8
    v_add_u32 v6, s30, v7
    s_mov_b32 s64, 0
    s_mov_b32 s26, 0xffff0000
    v_lshrrev_b32 v10, 2, v2
    v_and_b32 v11, 3, v2
    v_lshrrev_b32 v12, 1, v10
    v_lshl_add_u32 v12, v8, 1, v12
    v_lshlrev_b32 v0, 8, v12
    v_and_b32 v12, 1, v11
    v_lshl_add_u32 v0, v12, 7, v0
    v_lshlrev_b32 v12, 3, v9
    v_and_b32 v13, 2, v11
    v_add_u32 v12, v12, v13
    v_and_b32 v13, 1, v10
    v_add_u32 v12, v12, v13
    v_lshl_add_u32 v0, v12, 3, v0
    s_sub_u32 s28, s3, 1
    s_and_b32 s28, s28, 1
    s_mul_i32 s94, s28, 14336
    s_lshl_b32 s28, s28, 9
    s_add_u32 s28, s28, {SMX}
    v_lshl_add_u32 v7, v9, 2, v8
    v_lshlrev_b32 v7, 6, v7
    v_lshl_add_u32 v7, v2, 2, v7
    v_add_u32 v7, s28, v7
    v_lshlrev_b32 v118, 6, v1
    s_mul_i32 s28, s22, 28672
    s_cmp_eq_u32 s3, {TWV}
    s_cselect_b32 s94, s28, s94
    v_and_b32 v12, 7, v2
    v_lshrrev_b32 v13, 3, v2
    v_lshlrev_b32 v14, 6, v12
    v_lshl_add_u32 v14, v3, 4, v14
    v_lshl_add_u32 v14, v13, 3, v14
    v_add_u32 v14, {SMX}, v14
    s_cmp_eq_u32 s3, 0
    s_cselect_b64 vcc, -1, 0
    v_cndmask_b32 v7, v7, v14, vcc
    v_lshlrev_b32 v116, 5, v12
    v_lshl_add_u32 v116, v13, 4, v116
    v_lshl_add_u32 v116, v8, 8, v116
    v_lshl_add_u32 v116, v9, 3, v116
    s_lshl_b32 s28, s22, 9
    v_add_u32 v116, s28, v116
    v_lshlrev_b32 v117, 5, v12
    v_lshl_add_u32 v117, v8, 8, v117
    v_lshl_add_u32 v117, v9, 3, v117
    s_lshr_b32 s28, s22, 2
    s_lshl_b32 s28, s28, 9
    s_and_b32 s29, s22, 1
    s_lshl_b32 s29, s29, 4
    s_add_u32 s28, s28, s29
    s_bfe_u32 s29, s22, 0x10001
    s_lshl_b32 s29, s29, 2
    s_add_u32 s28, s28, s29
    s_add_u32 s28, s28, 8192
    v_add_u32 v117, s28, v117
    v_mov_b32 v14, 0x7ffffff0
    v_cmp_gt_u32 vcc, 8, v2
    v_cndmask_b32 v117, v14, v117, vcc
    v_min_u32 v114, 15, v1
    v_lshlrev_b32 v114, 7, v114
    v_add_u32 v114, 2048, v114
    v_min_u32 v111, 27, v1
    v_lshlrev_b32 v111, 2, v111
    v_add_u32 v111, 7168, v111
    v_mov_b32 v112, 0
    v_not_b32 v115, s96
    s_lshl_b32 s29, s22, 2
    s_add_u32 s29, s29, {8192 + 7296}
    v_mov_b32 v110, s29
    v_cmp_eq_u32 vcc, 0, v1
    v_cndmask_b32 v110, v14, v110, vcc
    v_mov_b32 v12, 0x4444
    v_mov_b32 v14, 0xeeee
    v_cmp_lt_u32 vcc, 7, v2
    v_cndmask_b32 v3, v12, v14, vcc
    v_and_b32 v2, 1, v2
    v_cmp_eq_u32 vcc, 1, v2
    v_cndmask_b32 v2, v12, v14, vcc
    v_add_u32 v1, {MFLA}, v4
    s_waitcnt vmcnt(0)""")
    if G.TLM: A("s_cmp_lg_u32 s3, 3\ns_cbranch_scc1 K3a_tl\ns_memrealtime s[100:101]\ns_waitcnt lgkmcnt(0)\nv_writelane_b32 v113, s100, 63\nK3a_tl:")
    A("""s_cmp_lg_u32 s65, 0
    s_cbranch_scc1 K3a_fl1""")
    for fl in (0, 1):
        if fl: A.label("K3a_fl1"); A.reset_state()
        A(f"s_cmp_eq_u32 s3, 0\ns_cbranch_scc1 K3a_r0f{fl}\ns_cmp_eq_u32 s3, 3\ns_cbranch_scc1 K3a_r3f{fl}")
        for role in (1, 0, 3):
            if role != 1: A.label(f"K3a_r{role}f{fl}"); A.reset_state()
            a_loop(A, role, fl)

WL, VOL, WZL, MFLB = 0, 114688, 147456, 155648
def wregB(i, u, n=4):
    idx = 56*i + 4*u
    if idx < 256:
        assert idx + n <= 256
        return a_(idx, n)
    return v(176 + idx - 256, n)
BA, LW, Z, PFR, PA, KEEP, KEEPM = 36, 68, 36, 116, 156, 100, 152

def b_loop(A, fl):
    L = f"K3bf{fl}"
    sc = " sc1" if fl else ""
    A.label(L + "_loop"); A.reset_state()
    zero = [f"v_mov_b32 v{r}, 0" for r in range(BA, BA + 32)]
    for z in zero: A(z)
    lw = lambda k: LW + (k % 4)*8
    def rdw(k):
        for z in range(2): A(f"ds_read_b128 {v(lw(k) + 4*z, 4)}, v5 offset:{(k // 7)*14336 + (2*(k % 7) + z)*1024}")
    for k in range(4): rdw(k)
    A(f"""s_lshl_b32 s32, s64, 13
    s_add_u32 s34, s32, 4096
    s_mul_i32 s30, s64, {G.SEG_SZ}
    s_lshl_b32 s31, s22, 15
    s_add_u32 s30, s30, s31
    s_lshl_b32 s31, s3, 13
    s_add_u32 s30, s30, s31
    s_add_u32 s29, s30, 4096
    s_add_u32 s31, s31, {VOL}
    s_lshl_b32 s28, s3, 10
    s_add_u32 s28, s28, s66
    v_add_u32 v174, s28, v4
    v_lshlrev_b32 v163, 3, v4
    v_min_u32 v163, 1920, v163
    v_add_u32 v163, 2048, v163""")
    stamp(A, 0)
    A(f"s_lshl_b32 s28, s64, 13\ns_add_u32 s33, s28, 8192\ns_cmp_lg_u32 s3, 3\ns_cbranch_scc1 {L}_wv_ok\nv_cmp_ne_u32 vcc, s96, v0\ns_cbranch_vccz {L}_wv_ok")
    flag_wait(A, L + "_wv", 68, 163, 28, PFR, "K3_end", sleep=2)
    A(f"s_mov_b32 s27, 0\ns_waitcnt lgkmcnt(0)\ns_cmp_lg_u32 s3, 2\ns_cbranch_scc1 {L}_join\ns_cmp_eq_u32 s64, 0\ns_cbranch_scc1 {L}_hm_ok")
    hu_wait(A, L + "_hm", 40, 161, 32, (PFR, PFR+1, PFR+2), "K3_end")
    A("s_mov_b32 s27, 0")
    A.label(L + "_go"); A.reset_state()
    mem_fetch(A, MFLB)
    A.label(L + "_join")
    A("s_barrier")
    for t in range(7): A(f"ds_read_b128 {v(MF+4*t, 4)}, v162 offset:{t*1024}")
    sm0 = lambda i, t, B: f"v_smfmac_f32_16x16x64_bf16 {v(BA+4*i, 4)}, {v(MF+4*t, 4)}, {B}, v160"
    dm = dma_ops(8, 48, (30, 29), 31, ' sc1') + ["buffer_load_dword v0, v163, s[68:71], s33 offen sc1"]
    cnt = [0, 15]
    def sm(i, t, B):
        cnt[0] += 1
        z = sm0(i, t, B)
        if dm and cnt[0] >= cnt[1]: z += "\n" + dm.pop(0); cnt[1] = cnt[0] + DSPB
        return z
    for t in range(7):
        A(f"s_waitcnt lgkmcnt({6 - t})")
        if t == 0: stamp(A, 1)
        A(sm(0, t, wregB(0, 2*t, 8)))
    for t in range(7):
        A(sm(1, t, wregB(1, 2*t, 8)))
        if t == 3: A(f"v_add_f32 v{BA}, v{BA}, v{BA+1}")
        if t == 4: A(f"v_add_f32 v{BA+2}, v{BA+2}, v{BA+3}")
        if t == 5: A(f"v_cmp_u_f32 vcc, v{BA}, v{BA+2}")
        if t == 6: A(f"s_cbranch_vccnz {L}_slowm\n{L}_backm:")
    stamp_cnt(A, 0)
    for k in range(14):
        A(f"s_waitcnt lgkmcnt({2*min(3, 13-k)})")
        A(sm(6 + k // 7, k % 7, v(lw(k), 8)))
        i = 2 + k // 7
        A(sm(i, k % 7, wregB(i, 2*(k % 7), 8)))
        if k + 4 < 14: rdw(k + 4)
    def fin(i):
        x = BA + 4*i
        o = [] if i == 0 else [f"v_add_f32 v{x}, v{x}, v{x+1}", f"v_add_f32 v{x+2}, v{x+2}, v{x+3}"]
        return o + [f"v_cvt_pk_bf16_f32 v{164+i}, v{x}, v{x+2}"]
    side = fin(0) + fin(1) + fin(2) + fin(6) + fin(3) + [f"ds_write_b128 v174, v[164:167]"]
    for t in range(7):
        for i in (4, 5):
            A(sm(i, t, wregB(i, 2*t, 8)))
            if side: A(side.pop(0))
    for z in side + fin(7) + fin(4) + fin(5) + [f"ds_write_b128 v174, v[168:171] offset:4096"]: A(z)
    stamp(A, 2)
    A(f"s_waitcnt vmcnt(0) lgkmcnt(0)\ns_barrier\ns_cmp_ge_u32 s3, 2\ns_cbranch_scc1 {L}_idle")
    A("s_lshl_b32 s28, s24, 12\ns_add_u32 s28, s28, s66\nv_add_u32 v163, s28, v4")
    for f in range(16):
        A(f"ds_read_b128 {v(Z + 4*f, 4)}, v6 offset:{f*1024}")
        if f == 11: A("s_waitcnt lgkmcnt(4)")
    for f in range(4): A(f"ds_read_b128 {v(Z + 64 + 4*f, 4)}, v163 offset:{f*1024}")
    for r in range(4): A(f"v_mov_b32 v{PA+r}, 0")
    A(f"""s_mul_i32 s28, s64, {G.PF_STRIDE}
    s_add_u32 s29, s28, 4096
    s_add_u32 s30, s28, 8192
    s_add_u32 s34, s32, 8192
    s_waitcnt lgkmcnt(0)""")
    stamp(A, 3)
    if ONEP: A(f"s_cmp_lg_u32 s3, 0\ns_cbranch_scc1 {L}_hp_ok")
    hu_wait(A, L + "_hp", 40, 172, 32, (PFR, PFR+1, PFR+2, PFR+3), "K3_end", HUD=int(os.environ.get("HUDP", "3")))
    if ONEP: A("s_barrier")
    stamp(A, 2)
    A("s_mov_b32 s27, 0")
    A.label(L + "_gop"); A.reset_state()
    order = [8, 9, 0, 1, 2, 3, 4, 5, 6, 7]
    for k, t in enumerate(order):
        A(f"buffer_load_dwordx4 {v(PFR+4*t, 4)}, v4, s[44:47], s{28 + t // 4} offen offset:{(t % 4)*1024} sc1")
        if HU_M_AT < 0 and k == 10 + HU_M_AT: A(f"buffer_store_dword v175, v173, s[40:43], s32 offen{sc}")
    for k, u in enumerate(order):
        A(f"s_waitcnt vmcnt({9-k + (1 if (k > HU_M_AT + 1 if HU_M_AT >= 0 else k <= 10 + HU_M_AT) else 0)})")
        if k == 0: stamp(A, 4)
        A(f"v_smfmac_f32_16x16x64_bf16 {v(PA, 4)}, {v(PFR+4*u, 4)}, {v(Z+8*u, 8)}, v160")
        if k == 0: A(f"v_max_u32 v164, v{PFR+32}, v{PFR+33}")
        if k == 1: A(f"v_max3_u32 v164, v164, v{PFR+36}, v{PFR+37}\nv_cmp_eq_u32 vcc, -1, v164\ns_cbranch_vccnz {L}_early")
        if HU_M_AT >= 0 and k == HU_M_AT + 1: A(f"buffer_store_dword v175, v173, s[40:43], s32 offen{sc}")
    if not DWST:
        A(f"""v_add_f32 v{PA}, v{PA}, v{PA+1}
        v_add_f32 v{PA+2}, v{PA+2}, v{PA+3}
        v_cmp_u_f32 vcc, v{PA}, v{PA+2}
        v_cvt_pk_bf16_f32 v{PA}, v{PA}, v{PA+2}
        s_cbranch_vccnz {L}_slowp""")
        A.label(L + "_backp")
        A(f"""buffer_store_short v{PA}, v7, s[40:43], s34 offen{sc}
        buffer_store_short_d16_hi v{PA}, v7, s[40:43], s34 offen offset:32{sc}""")
    else:
        A(f"""v_add_f32 v{PA}, v{PA}, v{PA+1}
        v_add_f32 v{PA+2}, v{PA+2}, v{PA+3}
        v_cmp_u_f32 vcc, v{PA}, v{PA+2}
        v_cvt_pk_bf16_f32 v{PA}, v{PA}, v{PA+2}
        s_cbranch_vccnz {L}_slowp""")
        A.label(L + "_backp")
        A(f"""v_mov_b32_dpp v{PA+1}, v{PA} {QP}
        v_perm_b32 v{PA}, v{PA+1}, v{PA}, v2
        buffer_store_dword v{PA}, v7, s[40:43], s34 offen{sc}""")
    stamp_cnt(A, 1)
    A.label(L + "_next")
    stamp(A, 5)
    tl(A, 0, 64)
    stamp_out(A, 116, MFLB + 7168, 2)
    A(f"s_add_u32 s64, s64, 1\ns_cmp_lt_u32 s64, 63")
    A.flush()
    A(f"s_cbranch_scc1 {L}_loop")
    A.label(L + "_exit"); A.reset_state()
    stamp_dump(A, MFLB + 7168)
    tl_dump(A, 1)
    A("s_branch K3_end")
    A.label(L + "_idle"); A.reset_state()
    if ONEP: A("s_barrier")
    A(f"s_branch {L}_next")
    exact_check(A, L + "_slowm", 7, MF, 164, L + "_retrym", L + "_backm", "K3_end")
    A.label(L + "_retrym"); A.reset_state()
    for z in zero[:8]: A(z)
    A(f"s_barrier\ns_cmp_lg_u32 s3, 2\ns_cbranch_scc1 {L}_join\ns_branch {L}_go")
    exact_check(A, L + "_slowp", 10, PFR, 164, L + "_retryp", L + "_nanp", "K3_end")
    A.label(L + "_nanp"); A.reset_state()
    A(f"v_pk_min_u16 v{PA}, v{PA}, s25\ns_branch {L}_backp")
    A.label(L + "_early"); A.reset_state()
    A(f"s_add_u32 s27, s27, 1\ns_cmp_gt_u32 s27, {SPIN_MAX}\ns_cbranch_scc1 K3_end\ns_waitcnt vmcnt(0)\ns_nop 7")
    A.label(L + "_retryp"); A.reset_state()
    for r in range(4): A(f"v_mov_b32 v{PA+r}, 0")
    A(f"s_nop 1\ns_branch {L}_gop")

def b_cu(A):
    srd(A, 36, 18, G.WF_OFF + 16*G.WF_UNIT, 16*G.WF_UNIT)
    srd(A, 48, 18, G.VOF_OFF, 64*G.SEG_SZ)
    srd(A, 68, 18, G.FLG_OFF, G.FLG_SZ)
    A(f"""v_bfe_u32 v5, v1, 2, 2
    v_mul_u32_u24 v5, 3584, v5
    v_and_b32 v6, 3, v1
    v_lshl_add_u32 v5, v6, 7, v5
    s_mul_i32 s33, s3, 14336
    s_lshr_b32 s28, s22, 1
    s_lshl_b32 s28, s28, 9
    s_add_u32 s33, s33, s28
    s_add_u32 s33, s33, {G.FLG_PROD + 16*3584}""")
    for k in range(4):
        G.stage_wait(A, f"K3b_wp{k}", 68, 5, 33, 6, k + 1, "K3_end")
        for i in range(8):
            ct, q = i // 4, i % 4
            A(f"""s_lshl_b32 s28, s3, 2
            s_add_u32 s28, s28, {q}
            s_mul_i32 s28, s28, {G.WF_UNIT}
            s_mul_i32 s29, s22, 28672
            s_add_u32 s28, s28, s29
            s_add_u32 s28, s28, {ct*14336 + k*4096}""")
            if i >= 6: A(f"s_mul_i32 s29, s3, 28672\ns_add_u32 m0, s29, {WL + (i-6)*14336 + k*4096}")
            for u in range(4*k, min(14, 4*k + 4)):
                if i < 6: A(f"buffer_load_dwordx4 {wregB(i, u)}, v4, s[36:39], s28 offen offset:{(u % 4)*1024} sc1")
                else: A(f"buffer_load_dwordx4 v4, s[36:39], s28 offen offset:{(u % 4)*1024} sc1 lds")
    team_flavor(A, "K3_end")
    A(f"""
    s_mul_i32 s28, s3, 28672
    v_add_u32 v5, s28, v4
    v_and_b32 v9, 1, v2
    v_cmp_eq_u32 vcc, 1, v9
    v_mov_b32 v160, 0x4444
    v_mov_b32 v161, 0xeeee
    v_cndmask_b32 v160, v160, v161, vcc
    s_mov_b32 s25, 0xfffefffe
    s_mov_b32 s26, 0xffff0000
    s_mov_b32 s64, 0
    s_mov_b32 s66, {WZL}
    s_and_b32 s24, s3, 1
    s_lshl_b32 s28, s24, 14
    s_add_u32 s28, s28, {VOL}
    v_add_u32 v6, s28, v4
    v_bfe_u32 v8, v2, 1, 1
    v_lshl_add_u32 v8, v3, 2, v8
    v_lshlrev_b32 v7, 4, v8
    v_lshrrev_b32 v8, 2, v2
    v_lshl_add_u32 v7, v8, 2, v7
    v_lshl_add_u32 v7, v9, 1, v7
    s_lshl_b32 s28, s22, 1
    s_add_u32 s28, s28, s24
    s_lshl_b32 s67, s28, 12
    s_lshl_b32 s29, s28, 8
    v_add_u32 v7, s29, v7
    v_min_u32 v161, 27, v1
    v_lshlrev_b32 v161, 2, v161
    v_add_u32 v161, 7168, v161
    v_min_u32 v172, 15, v1
    v_lshlrev_b32 v172, 2, v172
    v_add_u32 v172, {8192 + 7296}, v172
    s_lshl_b32 s28, s28, 2
    s_add_u32 s28, s28, {8192 + 7168}
    v_mov_b32 v173, s28
    v_mov_b32 v8, 0x7ffffff0
    v_cmp_eq_u32 vcc, 0, v1
    v_cndmask_b32 v173, v8, v173, vcc
    v_mov_b32 v175, 0
    v_not_b32 v0, s96
    v_and_b32 v9, 1, v1
    v_cmp_eq_u32 vcc, 1, v9
    v_mov_b32 v2, 0x05040100
    v_mov_b32 v8, 0x03020706
    v_cndmask_b32 v2, v2, v8, vcc
    v_mul_u32_u24 v9, {30 if DWST else 0}, v9
    v_add_u32 v7, v7, v9
    v_add_u32 v162, {MFLB}, v4
    s_mov_b32 s97, {MFLB}
    s_mul_i32 s98, s24, 3072
    s_waitcnt vmcnt(0)
    """)
    G.TLV[0] = 3
    tl(A, 63)
    A("s_cmp_lg_u32 s65, 0\ns_cbranch_scc1 K3bf1_loop")
    b_loop(A, 0)
    b_loop(A, 1)

def warm_cu(A):
    L = "K3w"
    srd(A, 52, 18, G.XNF_OFF, G.XN_SZ)
    A(f"""v_min_u32 v5, 27, v1
    v_lshlrev_b32 v5, 2, v5
    v_add_u32 v5, 7168, v5
    s_lshl_b32 s28, s3, 10
    v_add_u32 v6, s28, v4
    s_mov_b32 s64, 0""")
    def touch(sreg):
        A(f"s_lshl_b32 s28, s{sreg}, 13\ns_add_u32 s28, s28, 8192\ns_mul_i32 s29, s{sreg}, {G.PF_STRIDE}\ns_mul_i32 s30, s{sreg}, 28672\ns_add_u32 s30, s30, {1*28672}")
        for k in range(2): A(f"buffer_load_dwordx4 v[16:19], v6, s[40:43], s28 offen sc1\ns_add_u32 s28, s28, 4096")
        for k in range(3): A(f"buffer_load_dwordx4 v[16:19], v6, s[44:47], s29 offen sc1\ns_add_u32 s29, s29, 4096")
        for k in range(7): A(f"buffer_load_dwordx4 v[16:19], v6, s[52:55], s30 offen sc1\ns_add_u32 s30, s30, 4096")
    A("v_mov_b32 v7, 2048\ns_mov_b32 s28, 0")
    flag_wait(A, L + "_v0", 56, 7, 28, 8, "K3_end", sleep=8)
    for k in range(WD + 1):
        A(f"s_mov_b32 s33, {k}"); touch(33)
    A.label(L + "_loop")
    A(f"s_add_u32 s64, s64, 1\ns_cmp_ge_u32 s64, {63 - WD}\ns_cbranch_scc1 K3_end\ns_lshl_b32 s32, s64, 13\ns_mov_b32 s27, 0")
    A.label(L + "_w")
    A(f"""s_sleep 4
    buffer_load_dword v8, v5, s[40:43], s32 offen sc1
    s_add_u32 s27, s27, 1
    s_cmp_gt_u32 s27, {SPIN_MAX}
    s_cbranch_scc1 K3_end
    s_waitcnt vmcnt(0)
    v_cmp_eq_u32 vcc, -1, v8
    s_cbranch_vccnz {L}_w
    s_add_u32 s33, s64, {WD}""")
    touch(33)
    A(f"s_branch {L}_loop")

def fwd_cu(A):
    L = "K3f"
    srd(A, 52, 18, G.MEMG_OFF, 64*8192)
    srd(A, 56, 18, G.FLG_OFF, G.FLG_SZ)
    A(f"""v_min_u32 v5, 27, v1
    v_lshlrev_b32 v5, 2, v5
    v_add_u32 v5, 7168, v5
    s_lshl_b32 s28, s3, 11
    s_min_u32 s28, s28, 5120
    v_add_u32 v6, s28, v4
    s_mov_b32 s26, 0xffff0000
    s_mov_b32 s64, 0""")
    team_flavor(A, "K3_end", 10, 11)
    A.label(L + "_loop")
    A(f"s_lshl_b32 s32, s64, 13\ns_mov_b32 s27, 0\ns_cmp_eq_u32 s64, 0\ns_cbranch_scc1 {L}_hu")
    A.label(L + "_w")
    A(f"""s_sleep 1
    buffer_load_dword v8, v5, s[40:43], s32 offen sc1
    s_add_u32 s27, s27, 1
    s_cmp_gt_u32 s27, {SPIN_MAX}
    s_cbranch_scc1 K3_end
    s_waitcnt vmcnt(0)
    v_cmp_eq_u32 vcc, -1, v8
    s_cbranch_vccnz {L}_w""")
    A.label(L + "_hu")
    A(f"s_lshl_b32 s28, s64, 13\ns_add_u32 s28, s28, 6144\ns_cmp_lg_u32 s3, 0\ns_cbranch_scc1 {L}_get")
    flag_set(A, 56, 28, 8, 9)
    A.label(L + "_get")
    A(f"""buffer_load_dwordx4 v[16:19], v6, s[40:43], s32 offen sc1
    buffer_load_dwordx4 v[20:23], v6, s[40:43], s32 offen offset:1024 sc1""")
    exact_check(A, L + "_chk", 2, 16, 8, L + "_get", L + "_ok", "K3_end")
    A.label(L + "_ok")
    A(f"""buffer_store_dwordx4 v[16:19], v6, s[52:55], s32 offen sc1
    buffer_store_dwordx4 v[20:23], v6, s[52:55], s32 offen offset:1024 sc1""")
    A(f"s_add_u32 s64, s64, 1\ns_cmp_lt_u32 s64, 64\ns_cbranch_scc1 {L}_loop\ns_branch K3_end")

def team_publish(A):
    A(f"""s_barrier
    s_lshl_b32 s28, s21, 2
    s_lshl_b32 s31, s21, 7
    s_add_u32 s31, s31, {G.FLG_LN}
    v_mov_b32 v8, s35
    v_mov_b32 v9, s28
    v_mov_b32 v10, s96
    v_mov_b32 v11, s31
    s_mov_b64 exec, 1
    buffer_store_dword v8, v9, s[60:63], 0 offen sc1
    buffer_store_dword v10, v11, s[56:59], 0 offen sc1
    s_mov_b64 exec, -1""")

def team(A):
    A("s_getreg_b32 s35, hwreg(HW_REG_XCC_ID, 0, 4)\ns_add_u32 s35, s35, 1")
    srd(A, 60, 16, 0, 256)
    srd(A, 40, 18, G.MEMF_OFF, 64*G.MEMF_STRIDE)
    srd(A, 44, 18, G.PF_OFF, 64*G.PF_STRIDE)
    A("s_lshl_b32 s23, s21, 2\ns_add_u32 s23, s23, s3")
    G.ln_body(A, "KL")
    srd(A, 56, 18, G.FLG_OFF, G.FLG_SZ)
    A("s_waitcnt vmcnt(0)"); team_publish(A)
    if G.TLM: A("v_writelane_b32 v113, s84, 63\nv_writelane_b32 v113, s85, 58\nv_writelane_b32 v113, s86, 59\nv_writelane_b32 v113, s87, 60"); tl(A, 61)
    A("s_cmp_eq_u32 s21, 31\ns_cbranch_scc1 K3_w\ns_cmp_eq_u32 s21, 30\ns_cbranch_scc1 K3_f")
    A("s_cmp_ge_u32 s21, 16\ns_cbranch_scc1 K3_b\ns_mov_b32 s22, s21")
    a_cu(A)
    A.label("K3_b"); A.reset_state()
    A("s_sub_u32 s22, s21, 16")
    b_cu(A)
    A.label("K3_w"); A.reset_state()
    warm_cu(A)
    A.label("K3_f"); A.reset_state()
    fwd_cu(A)
```

```python
from asmlib import *
import gen as G
from gen import srd, lane_setup, xreduce, wreg, flag_set, flag_wait, tl, tl_dump
from kernels2 import tile_c, load_weights7, f2h
import os
SPIN_MAX = 1 << 22
NINF = "0xff800000"
STAMP = int(os.environ.get("STAMP", "0"))
HU_P_AT = int(os.environ.get("HU_P_AT", "2"))
HU_M_AT = int(os.environ.get("HU_M_AT", "2"))
A_DMA = int(os.environ.get("A_DMA", "0"))
DSP = int(os.environ.get("DSP", "3"))
DSPB = int(os.environ.get("DSPB", "2"))
NT = os.environ.get("NT", "")
SBLK = int(os.environ.get("SBLK", "1"))
HUI = int(os.environ.get("HUI", "14"))
F2 = 99
ONEP = int(os.environ.get("ONEP", "1"))
HB = int(os.environ.get("HB", "3"))
DWST = int(os.environ.get("DWST", "0"))
WD = int(os.environ.get("WD", "4"))
TMODE = int(os.environ.get("TMODE", "1"))
TWV = 3 if TMODE == 0 else 0
DBG2_OFF = 0x5E00000
QP = "quad_perm:[1,0,3,2] row_mask:0xf bank_mask:0xf"

def stamp(A, k):
    if STAMP: A(f"{'s_memrealtime' if STAMP == 2 else 's_memtime'} s[{4+2*k}:{5+2*k}]")
def stamp_cnt(A, k):
    if STAMP: A(f"s_mov_b32 s{16+k}, s27")
def stamp_out(A, tmp, lds, nw):
    if not STAMP: return
    lab = f"STK{len(A.lines)}"
    A(f"s_waitcnt lgkmcnt(0)\ns_lshr_b32 s28, s64, 4\ns_cmp_lg_u32 s28, {SBLK}\ns_cbranch_scc1 {lab}\ns_cmp_ge_u32 s3, {nw}\ns_cbranch_scc1 {lab}")
    for k in range(6): A(f"v_mov_b32 v{tmp+k}, s{4+2*k}")
    A(f"v_mov_b32 v{tmp+6}, s16\nv_mov_b32 v{tmp+7}, s17")
    A(f"""s_lshl_b32 s28, s3, 4
    s_add_u32 s28, s28, s64
    s_lshl_b32 s28, s28, 5
    s_add_u32 s28, s28, {lds - 512*SBLK}
    v_mov_b32 v{tmp+8}, s28
    ds_write_b128 v{tmp+8}, {v(tmp, 4)}
    ds_write_b128 v{tmp+8}, {v(tmp+4, 4)} offset:16""")
    A.label(lab)
def stamp_dump(A, lds):
    if not STAMP: return
    A(f"""s_lshl_b32 s28, s3, 9
    v_bfe_u32 v8, v4, 4, 4
    v_lshlrev_b32 v8, 5, v8
    v_add_u32 v9, s28, v8
    v_add_u32 v9, {lds}, v9
    v_min_u32 v9, {163840 - 32}, v9
    s_lshl_b32 s28, s3, 11
    s_add_u32 s28, s28, 512
    v_add_u32 v8, s28, v8
    s_waitcnt lgkmcnt(0)
    ds_read_b128 v[12:15], v9
    ds_read_b128 v[16:19], v9 offset:16
    s_lshl_b32 s28, s21, 13
    s_waitcnt lgkmcnt(0)
    buffer_store_dwordx4 v[12:15], v8, s[60:63], s28 offen
    buffer_store_dwordx4 v[16:19], v8, s[60:63], s28 offen offset:16""")

def team_flavor(A, bail, va=5, vb=6):
    A(f"v_lshlrev_b32 v{va}, 2, v1\ns_mov_b32 s27, 0\ns_mov_b32 exec_hi, 0")
    L = bail + "_fl" + str(len(A.lines))
    A.label(L)
    A(f"""
    buffer_load_dword v{vb}, v{va}, s[60:63], 0 offen offset:128 sc1
    s_add_u32 s27, s27, 1
    s_cmp_gt_u32 s27, {SPIN_MAX}
    s_cbranch_scc1 {bail}
    s_waitcnt vmcnt(0)
    v_cmp_eq_u32 vcc, 0, v{vb}
    s_cbranch_vccnz {L}
    v_cmp_ne_u32 vcc, s35, v{vb}
    s_mov_b64 exec, -1
    s_cmp_lg_u64 vcc, 0
    s_cselect_b32 s65, 1, 0
    """)
    if STAMP: srd(A, 60, 18, DBG2_OFF, 32*4*64*32)

HUD = int(os.environ.get("HUD", "3"))
def hu_wait(A, L, srdn, voff, soff, hr, bail, HUD=HUD):
    ld = lambda k: f"buffer_load_dword v{hr[k]}, v{voff}, s[{srdn}:{srdn+3}], s{soff} offen sc1"
    A("s_mov_b32 s27, 0")
    for k in range(HUD - 1): A(ld(k))
    A.label(L)
    for k in range(HUD):
        A(ld((k + HUD - 1) % HUD))
        A(f"s_waitcnt vmcnt({HUD-1})\nv_cmp_eq_u32 vcc, -1, v{hr[k]}\ns_cbranch_vccz {L}_ok")
    A(f"s_add_u32 s27, s27, 1\ns_cmp_gt_u32 s27, {SPIN_MAX}\ns_cbranch_scc0 {L}\ns_branch {bail}")
    A.label(L + "_ok")

def frag_loads(A, n, reg0, srdn, voff, soffs):
    for t in range(n):
        A(f"buffer_load_dwordx4 {v(reg0+4*t, 4)}, v{voff}, s[{srdn}:{srdn+3}], s{soffs[t // 4]} offen offset:{(t % 4)*1024} sc1")

def exact_check(A, L, n, reg0, tmp, retry, back, bail):
    A.label(L); A.reset_state()
    A("s_waitcnt vmcnt(0)")
    tmp, t2 = tmp if isinstance(tmp, tuple) else (tmp, tmp + 1)
    A(f"v_pk_max_u16 v{tmp}, v{reg0}, v{reg0+1}")
    for r in range(reg0 + 2, reg0 + 4*n): A(f"v_pk_max_u16 v{tmp}, v{tmp}, v{r}")
    A(f"""v_lshlrev_b32 v{t2}, 16, v{tmp}
    v_max_u32 v{tmp}, v{tmp}, v{t2}
    v_cmp_le_u32 vcc, s26, v{tmp}
    s_cbranch_vccz {back}
    s_add_u32 s27, s27, 1
    s_cmp_gt_u32 s27, {SPIN_MAX}
    s_cbranch_scc1 {bail}
    s_branch {retry}""")

def dma_ops(n, srdn, sg, sl, fl=''):
    o = []
    for k in range(n):
        pre = ""
        if k == 0: pre = f"s_mov_b32 m0, s{sl}\n"
        elif k % 4 == 0:
            pre = "s_add_u32 m0, m0, 4096\n"
            if not isinstance(sg, tuple): pre = f"s_add_u32 s{sg}, s{sg}, 4096\n" + pre
        g = sg[k // 4] if isinstance(sg, tuple) else sg
        o.append(pre + f"buffer_load_dwordx4 v4, s[{srdn}:{srdn+3}], s{g} offen offset:{(k % 4)*1024}{fl} lds")
    return o

TL, SMX, MFLA, XSL = 0, 7168, 8192, 32768
MF, TA, XB = 8, 36, 64
VTOUCH = int(os.environ.get("VTOUCH", "1"))

def mem_fetch(A, base, behind=()):
    A(f"s_mov_b32 s97, {base}")
    for z in dma_ops(7, 40, (32, 34), 97, " sc1"): A(z)
    for z in behind: A(z)
    A(f"s_waitcnt vmcnt({len(behind)})")

def a_xb_load(A):
    A(f"s_mul_i32 s28, s33, 28672\ns_add_u32 s28, s28, s94")
    for k in range(14):
        if k and k % 4 == 0: A("s_add_u32 s28, s28, 4096")
        A(f"buffer_load_dwordx4 {v(XB+4*k, 4)}, v4, s[52:55], s28 offen offset:{(k % 4)*1024}")

def a_loop(A, role, fl):
    L = f"K3a{role}f{fl}"
    sc = " sc1" if fl else ""
    if role == 1:
        A("s_mov_b32 s33, 0"); a_xb_load(A)
    A.label(L + "_loop"); A.reset_state()
    stamp(A, 0)
    A(f"""s_lshl_b32 s32, s64, 13
    s_add_u32 s34, s32, 4096
    s_add_u32 s33, s64, 1
    s_min_u32 s33, s33, 63""")
    zero = [f"v_mov_b32 v{r}, 0" for r in range(TA, TA + 28)]
    for z in zero: A(z)
    if VTOUCH and role == TWV: A(f"s_mul_i32 s30, s33, {G.SEG_SZ}")
    if role == TWV and VTOUCH:
        A(f"""s_lshl_b32 s29, s33, 13
        s_add_u32 s29, s29, 8192
        s_waitcnt vmcnt(0)
        v_cmp_ne_u32 vcc, s96, v115
        s_cmp_eq_u64 vcc, 0
        s_cselect_b32 s93, s94, 0x40000000
        s_add_u32 s30, s30, s93""")
    if role == 0:
        A(f"v_mov_b32 v{XB+4}, {NINF}\nv_mov_b32 v{XB+5}, {NINF}\ns_mul_i32 s31, s64, {G.PF_STRIDE}")
        A(f"s_cmp_eq_u32 s64, 0\ns_cbranch_scc1 {L}_hu_ok")
        hu_wait(A, L + "_hu", 40, 111, 32, (108, 109, 107), "K3_end")
    stamp(A, 1)
    A("s_mov_b32 s27, 0")
    A.label(L + "_go"); A.reset_state()
    tch = [f"buffer_load_dword v119, v118, s[48:51], s30 offen sc1\ns_add_u32 s30, s30, 4096" for k in range(7)] + ["buffer_load_dword v115, v114, s[56:59], s29 offen sc1"]
    nb = len(tch) if (VTOUCH and TMODE == 1) else 0
    if role == 0:
        A(f"s_mov_b32 s97, {MFLA}")
        for z in dma_ops(7, 40, (32, 34), 97, " sc1") + (tch if nb else []): A(z)
        A(f"s_waitcnt vmcnt({5 + nb})")
    A("s_barrier")
    for t in range(2): A(f"ds_read_b128 {v(MF+4*t, 4)}, v1 offset:{t*1024}")
    smf = lambda d, t, B: f"v_smfmac_f32_16x16x64_bf16 {v(d, 4)}, {v(MF+4*t, 4)}, {B}, v2"
    def emit(z, side=None):
        A(z)
        if side: A(side)
    for t in range(2):
        if t == 0 or HB < 7: A(f"s_waitcnt lgkmcnt({(1 - t) if t == 0 else 5})")
        else: A("s_waitcnt lgkmcnt(0)")
        if t == 0: stamp(A, 2)
        for i in range(7):
            A(smf(TA + 4*i, t, wreg(i, 2*t, 8)))
            if 7*t + i == HB:
                A((f"s_waitcnt vmcnt({nb})\n" if role == 0 else "") + "s_barrier")
                for tt in range(2, 7): A(f"ds_read_b128 {v(MF+4*tt, 4)}, v1 offset:{tt*1024}")
    for t in range(2, 7):
        A(f"s_waitcnt lgkmcnt({6 - t})")
        for d, i in ((TA, 0), (TA+4, 1)): A(smf(d, t, wreg(i, 2*t, 8)))
    def fin(x): return [f"v_add_f32 v{x}, v{x}, v{x+1}", f"v_add_f32 v{x+2}, v{x+2}, v{x+3}", f"v_cvt_pk_bf16_f32 v{x}, v{x}, v{x+2}"]
    def post_pair(p):
        x, y = TA + 8*p, TA + 8*p + 4
        return fin(x) + fin(y) + [f"ds_write2st64_b32 v5, v{x}, v{y} offset0:{2*p} offset1:{2*p+1}"]
    b = TA
    chk = [f"v_add_f32 v{b}, v{b}, v{b+1}", f"v_add_f32 v{b+2}, v{b+2}, v{b+3}", f"v_cmp_u_f32 vcc, v{b}, v{b+2}",
           f"s_cbranch_vccnz {L}_slow\n{L}_back:"]
    zs = [f"v_mov_b32 v{TA+r}, 0" for r in range(4)] if role == 1 else []
    main = [smf(TA + 8*p + 4*e, t, wreg(2*p + e, 2*t, 8)) for p in (1, 2) for t in range(2, 7) for e in range(2)] + [smf(TA+24, t, wreg(6, 2*t, 8)) for t in range(2, 7)]
    side = [None]*3 + chk + post_pair(0)[2:] + [None] + post_pair(1) + [zs[0] if zs else None]*1
    rest = zs[1:] + post_pair(2)
    for k, z in enumerate(main):
        emit(z, side[k] if k < len(side) else None)
        if k >= 22 and rest: A(rest.pop(0)); A(rest.pop(0))
    for z in rest + fin(TA+24) + [f"ds_write_b32 v6, v{TA+24}"]: A(z)
    stamp(A, 3); stamp_cnt(A, 0)
    A("s_waitcnt lgkmcnt(0)\ns_barrier")
    stamp(A, 4)
    treg = lambda t: MF if (role == 1 and t == 0) else TA + 4*t
    tr = lambda t: [f"ds_read_b64_tr_b16 {v(treg(t) + 2*z, 2)}, v0 offset:{t*1024 + z*32}" for z in range(2)]
    if role != 3:
        for t in range(7):
            for z in tr(t): A(z)
    if role == 1:
        D = TA
        for t in range(7):
            A(f"s_waitcnt lgkmcnt({2*(6-t)})" + (" vmcnt(0)" if t == 0 else ""))
            A(f"v_smfmac_f32_16x16x64_bf16 {v(D, 4)}, {v(treg(t), 4)}, {v(XB+8*t, 8)}, v3")
        A(f"""v_permlane32_swap_b32 v{D}, v{D+1}
        v_permlane32_swap_b32 v{D+2}, v{D+3}
        v_add_f32 v{D}, v{D}, v{D+1}
        v_add_f32 v{D+2}, v{D+2}, v{D+3}
        ds_write2_b32 v7, v{D}, v{D+2} offset0:0 offset1:32
        s_waitcnt lgkmcnt(0)
        s_barrier
        s_barrier""")
        if os.environ.get("XSLEEP"): A(f"s_sleep {os.environ['XSLEEP']}")
        if not os.environ.get("NOXB"): a_xb_load(A)
    if role == 3: A("s_barrier\ns_barrier")
    if role == 0:
        X, R, D = XB, XB + 4, XB + 8
        m, t1, l = XB+12, XB+13, XB+14
        for t in range(7):
            A(f"s_waitcnt lgkmcnt({2*(6-t)})")
            A(f"v_mfma_f32_16x16x32_bf16 {v(D, 4)}, {v(MF+4*t, 4)}, {v(TA+4*t, 4)}, {v(D, 4) if t else '0'}")
        A(f"v_add_f32_dpp v{R}, v{D+1}, v{D} row_ror:8 row_mask:0xf bank_mask:0x3")
        A(f"v_add_f32_dpp v{R+1}, v{D+3}, v{D+2} row_ror:8 row_mask:0xf bank_mask:0x3")
        A(f"v_max_f32 v{m}, v{R}, v{R+1}\ns_barrier")
        class Rec:
            def __init__(s): s.l = []
            def __call__(s, t): s.l += [x.strip() for x in t.split("\n") if x.strip()]
        Q = Rec()
        Q(f"""ds_read_b64 {v(X, 2)}, v7
        ds_read_b64 {v(X+2, 2)}, v7 offset:512
        s_waitcnt lgkmcnt(1)
        v_max3_f32 v{m}, v{m}, v{X}, v{X+1}
        s_waitcnt lgkmcnt(0)
        v_max3_f32 v{m}, v{m}, v{X+2}, v{X+3}""")
        xreduce(Q, "v_max_f32", m, t1, steps=(8, 16, 32))
        for r in (X, X+2, R): Q(f"v_pk_add_f32 {v(r, 2)}, {v(r, 2)}, {v(m, 2)} op_sel_hi:[1,0] neg_lo:[0,1] neg_hi:[0,1]")
        for r in range(6): Q(f"v_exp_f32 v{X+r}, v{X+r}")
        Q(f"""v_pk_add_f32 {v(l, 2)}, {v(X, 2)}, {v(X+2, 2)}
        v_pk_add_f32 {v(l, 2)}, {v(l, 2)}, {v(R, 2)}
        v_add_f32 v{l}, v{l}, v{l+1}""")
        xreduce(Q, "v_add_f32", l, t1, steps=(8, 16, 32))
        Q(f"v_rcp_f32 v{l}, v{l}")
        for r in (X, X+2, R): Q(f"v_pk_mul_f32 {v(r, 2)}, {v(r, 2)}, {v(l, 2)} op_sel_hi:[1,0] clamp")
        Q(f"""v_cvt_pk_bf16_f32 v{X}, v{X}, v{X+1}
        v_cvt_pk_bf16_f32 v{X+1}, v{X+2}, v{X+3}
        buffer_store_dwordx2 {v(X, 2)}, v116, s[44:47], s31 offen{sc}
        v_cvt_pk_bf16_f32 v{R}, v{R}, v{R+1}
        buffer_store_dword v{R}, v117, s[44:47], s31 offen{sc}
        s_barrier""")
        Q.l.insert(HUI, f"buffer_store_dword v112, v110, s[40:43], s32 offen{sc}")
        for z in Q.l: A(z)
    stamp(A, 5)
    if role == 0: tl(A, 0, 64)
    if role == 3 and G.TLM: A("s_memtime s[100:101]\ns_min_u32 m0, s64, 57\ns_waitcnt lgkmcnt(0)\nv_writelane_b32 v113, s100, m0")
    stamp_out(A, TA + 8, MFLA + 7168, 4)
    A(f"s_add_u32 s64, s64, 1\ns_cmp_lt_u32 s64, 63")
    A.flush()
    A(f"s_cbranch_scc1 {L}_loop")
    stamp_dump(A, MFLA + 7168)
    if role != 1: tl_dump(A, 1)
    if G.TLM == 2 and role != 1:
        lanes = [63, 0, 1, 2, 4, 8, 16, 32, 62] if role == 0 else [58, 59, 60, 61, 62, 63]
        A(f"s_cmp_lg_u32 s21, 0\ns_cbranch_scc1 K3_end")
        srd(A, 60, 16, 0, 256)
        for k, ln in enumerate(lanes):
            A(f"v_readlane_b32 s28, v113, {ln}\ns_nop 3\nv_mov_b32 v8, s28\nv_mov_b32 v9, {4*(k + (0 if role == 0 else 9))}\ns_mov_b64 exec, 1\nbuffer_store_dword v8, v9, s[60:63], 0 offen\ns_mov_b64 exec, -1")
    A("s_branch K3_end")
    exact_check(A, L + "_slow", 7, MF, (TA + 1, TA + 3), L + "_retry", L + "_back", "K3_end")
    A.label(L + "_retry"); A.reset_state()
    for z in zero: A(z)
    if VTOUCH and role == TWV: A(f"s_mov_b32 s30, 0x40000000")
    A(f"s_barrier\ns_branch {L}_go")

def a_cu(A):
    A(f"s_mul_i32 s26, s22, {G.WF_UNIT}\ns_add_u32 s26, s26, {hex(G.WF_OFF)}")
    srd(A, 36, 18, "s26", G.WF_UNIT)
    srd(A, 48, 18, G.VOF_OFF, 64*G.SEG_SZ)
    srd(A, 52, 18, G.XNF_OFF, G.XN_SZ)
    srd(A, 56, 18, G.FLG_OFF, G.FLG_SZ)
    A(f"v_min_u32 v5, 27, v1\nv_lshlrev_b32 v5, 7, v5\ns_mul_i32 s29, s22, 3584\ns_add_u32 s29, s29, {G.FLG_PROD}")
    for k in range(4):
        G.stage_wait(A, f"K3a_wp{k}", 56, 5, 29, 6, k + 1, "K3_end")
        if k == 0: tl(A, 62)
        A(f"s_mul_i32 s28, s3, {7*14336}\ns_add_u32 s28, s28, {k*4096}")
        for i in range(7):
            for u in range(4*k, min(14, 4*k + 4)):
                A(f"buffer_load_dwordx4 {wreg(i, u)}, v4, s[36:39], s28 offen offset:{(u % 4)*1024} sc1")
            A("s_add_u32 s28, s28, 14336")
    team_flavor(A, "K3_end")
    A("s_mul_i32 s28, s3, 7\ns_add_u32 s30, s28, 6")
    A(f"""
    v_lshrrev_b32 v8, 1, v3
    v_and_b32 v9, 1, v3
    v_lshlrev_b32 v7, 7, v8
    v_lshl_add_u32 v7, v2, 3, v7
    v_lshl_add_u32 v7, v9, 2, v7
    s_lshl_b32 s28, s28, 8
    v_add_u32 v5, s28, v7
    s_lshl_b32 s30, s30, 8
    v_add_u32 v6, s30, v7
    s_mov_b32 s64, 0
    s_mov_b32 s26, 0xffff0000
    v_lshrrev_b32 v10, 2, v2
    v_and_b32 v11, 3, v2
    v_lshrrev_b32 v12, 1, v10
    v_lshl_add_u32 v12, v8, 1, v12
    v_lshlrev_b32 v0, 8, v12
    v_and_b32 v12, 1, v11
    v_lshl_add_u32 v0, v12, 7, v0
    v_lshlrev_b32 v12, 3, v9
    v_and_b32 v13, 2, v11
    v_add_u32 v12, v12, v13
    v_and_b32 v13, 1, v10
    v_add_u32 v12, v12, v13
    v_lshl_add_u32 v0, v12, 3, v0
    s_sub_u32 s28, s3, 1
    s_and_b32 s28, s28, 1
    s_mul_i32 s94, s28, 14336
    s_lshl_b32 s28, s28, 9
    s_add_u32 s28, s28, {SMX}
    v_lshl_add_u32 v7, v9, 2, v8
    v_lshlrev_b32 v7, 6, v7
    v_lshl_add_u32 v7, v2, 2, v7
    v_add_u32 v7, s28, v7
    v_lshlrev_b32 v118, 6, v1
    s_mul_i32 s28, s22, 28672
    s_cmp_eq_u32 s3, {TWV}
    s_cselect_b32 s94, s28, s94
    v_and_b32 v12, 7, v2
    v_lshrrev_b32 v13, 3, v2
    v_lshlrev_b32 v14, 6, v12
    v_lshl_add_u32 v14, v3, 4, v14
    v_lshl_add_u32 v14, v13, 3, v14
    v_add_u32 v14, {SMX}, v14
    s_cmp_eq_u32 s3, 0
    s_cselect_b64 vcc, -1, 0
    v_cndmask_b32 v7, v7, v14, vcc
    v_lshlrev_b32 v116, 5, v12
    v_lshl_add_u32 v116, v13, 4, v116
    v_lshl_add_u32 v116, v8, 8, v116
    v_lshl_add_u32 v116, v9, 3, v116
    s_lshl_b32 s28, s22, 9
    v_add_u32 v116, s28, v116
    v_lshlrev_b32 v117, 5, v12
    v_lshl_add_u32 v117, v8, 8, v117
    v_lshl_add_u32 v117, v9, 3, v117
    s_lshr_b32 s28, s22, 2
    s_lshl_b32 s28, s28, 9
    s_and_b32 s29, s22, 1
    s_lshl_b32 s29, s29, 4
    s_add_u32 s28, s28, s29
    s_bfe_u32 s29, s22, 0x10001
    s_lshl_b32 s29, s29, 2
    s_add_u32 s28, s28, s29
    s_add_u32 s28, s28, 8192
    v_add_u32 v117, s28, v117
    v_mov_b32 v14, 0x7ffffff0
    v_cmp_gt_u32 vcc, 8, v2
    v_cndmask_b32 v117, v14, v117, vcc
    v_min_u32 v114, 15, v1
    v_lshlrev_b32 v114, 7, v114
    v_add_u32 v114, 2048, v114
    v_min_u32 v111, 27, v1
    v_lshlrev_b32 v111, 2, v111
    v_add_u32 v111, 7168, v111
    v_mov_b32 v112, 0
    v_not_b32 v115, s96
    s_lshl_b32 s29, s22, 2
    s_add_u32 s29, s29, {8192 + 7296}
    v_mov_b32 v110, s29
    v_cmp_eq_u32 vcc, 0, v1
    v_cndmask_b32 v110, v14, v110, vcc
    v_mov_b32 v12, 0x4444
    v_mov_b32 v14, 0xeeee
    v_cmp_lt_u32 vcc, 7, v2
    v_cndmask_b32 v3, v12, v14, vcc
    v_and_b32 v2, 1, v2
    v_cmp_eq_u32 vcc, 1, v2
    v_cndmask_b32 v2, v12, v14, vcc
    v_add_u32 v1, {MFLA}, v4
    s_waitcnt vmcnt(0)""")
    if G.TLM: A("s_cmp_lg_u32 s3, 3\ns_cbranch_scc1 K3a_tl\ns_memrealtime s[100:101]\ns_waitcnt lgkmcnt(0)\nv_writelane_b32 v113, s100, 63\nK3a_tl:")
    A("""s_cmp_lg_u32 s65, 0
    s_cbranch_scc1 K3a_fl1""")
    for fl in (0, 1):
        if fl: A.label("K3a_fl1"); A.reset_state()
        A(f"s_cmp_eq_u32 s3, 0\ns_cbranch_scc1 K3a_r0f{fl}\ns_cmp_eq_u32 s3, 3\ns_cbranch_scc1 K3a_r3f{fl}")
        for role in (1, 0, 3):
            if role != 1: A.label(f"K3a_r{role}f{fl}"); A.reset_state()
            a_loop(A, role, fl)

WL, VOL, WZL, MFLB = 0, 114688, 147456, 155648
def wregB(i, u, n=4):
    idx = 56*i + 4*u
    if idx < 256:
        assert idx + n <= 256
        return a_(idx, n)
    return v(176 + idx - 256, n)
BA, LW, Z, PFR, PA, KEEP, KEEPM = 36, 68, 36, 116, 156, 100, 152

def b_loop(A, fl):
    L = f"K3bf{fl}"
    sc = " sc1" if fl else ""
    A.label(L + "_loop"); A.reset_state()
    zero = [f"v_mov_b32 v{r}, 0" for r in range(BA, BA + 32)]
    for z in zero: A(z)
    lw = lambda k: LW + (k % 4)*8
    def rdw(k):
        for z in range(2): A(f"ds_read_b128 {v(lw(k) + 4*z, 4)}, v5 offset:{(k // 7)*14336 + (2*(k % 7) + z)*1024}")
    for k in range(4): rdw(k)
    A(f"""s_lshl_b32 s32, s64, 13
    s_add_u32 s34, s32, 4096
    s_mul_i32 s30, s64, {G.SEG_SZ}
    s_lshl_b32 s31, s22, 15
    s_add_u32 s30, s30, s31
    s_lshl_b32 s31, s3, 13
    s_add_u32 s30, s30, s31
    s_add_u32 s29, s30, 4096
    s_add_u32 s31, s31, {VOL}
    s_lshl_b32 s28, s3, 10
    s_add_u32 s28, s28, s66
    v_add_u32 v174, s28, v4
    v_lshlrev_b32 v163, 3, v4
    v_min_u32 v163, 1920, v163
    v_add_u32 v163, 2048, v163""")
    stamp(A, 0)
    A(f"s_lshl_b32 s28, s64, 13\ns_add_u32 s33, s28, 8192\ns_cmp_lg_u32 s3, 3\ns_cbranch_scc1 {L}_wv_ok\nv_cmp_ne_u32 vcc, s96, v0\ns_cbranch_vccz {L}_wv_ok")
    flag_wait(A, L + "_wv", 68, 163, 28, PFR, "K3_end", sleep=2)
    A(f"s_mov_b32 s27, 0\ns_waitcnt lgkmcnt(0)\ns_cmp_lg_u32 s3, 2\ns_cbranch_scc1 {L}_join\ns_cmp_eq_u32 s64, 0\ns_cbranch_scc1 {L}_hm_ok")
    hu_wait(A, L + "_hm", 40, 161, 32, (PFR, PFR+1, PFR+2), "K3_end")
    A("s_mov_b32 s27, 0")
    A.label(L + "_go"); A.reset_state()
    mem_fetch(A, MFLB)
    A.label(L + "_join")
    A("s_barrier")
    for t in range(7): A(f"ds_read_b128 {v(MF+4*t, 4)}, v162 offset:{t*1024}")
    sm0 = lambda i, t, B: f"v_smfmac_f32_16x16x64_bf16 {v(BA+4*i, 4)}, {v(MF+4*t, 4)}, {B}, v160"
    dm = dma_ops(8, 48, (30, 29), 31, ' sc1') + ["buffer_load_dword v0, v163, s[68:71], s33 offen sc1"]
    cnt = [0, 15]
    def sm(i, t, B):
        cnt[0] += 1
        z = sm0(i, t, B)
        if dm and cnt[0] >= cnt[1]: z += "\n" + dm.pop(0); cnt[1] = cnt[0] + DSPB
        return z
    for t in range(7):
        A(f"s_waitcnt lgkmcnt({6 - t})")
        if t == 0: stamp(A, 1)
        A(sm(0, t, wregB(0, 2*t, 8)))
    for t in range(7):
        A(sm(1, t, wregB(1, 2*t, 8)))
        if t == 3: A(f"v_add_f32 v{BA}, v{BA}, v{BA+1}")
        if t == 4: A(f"v_add_f32 v{BA+2}, v{BA+2}, v{BA+3}")
        if t == 5: A(f"v_cmp_u_f32 vcc, v{BA}, v{BA+2}")
        if t == 6: A(f"s_cbranch_vccnz {L}_slowm\n{L}_backm:")
    stamp_cnt(A, 0)
    for k in range(14):
        A(f"s_waitcnt lgkmcnt({2*min(3, 13-k)})")
        A(sm(6 + k // 7, k % 7, v(lw(k), 8)))
        i = 2 + k // 7
        A(sm(i, k % 7, wregB(i, 2*(k % 7), 8)))
        if k + 4 < 14: rdw(k + 4)
    def fin(i):
        x = BA + 4*i
        o = [] if i == 0 else [f"v_add_f32 v{x}, v{x}, v{x+1}", f"v_add_f32 v{x+2}, v{x+2}, v{x+3}"]
        return o + [f"v_cvt_pk_bf16_f32 v{164+i}, v{x}, v{x+2}"]
    side = fin(0) + fin(1) + fin(2) + fin(6) + fin(3) + [f"ds_write_b128 v174, v[164:167]"]
    for t in range(7):
        for i in (4, 5):
            A(sm(i, t, wregB(i, 2*t, 8)))
            if side: A(side.pop(0))
    for z in side + fin(7) + fin(4) + fin(5) + [f"ds_write_b128 v174, v[168:171] offset:4096"]: A(z)
    stamp(A, 2)
    A(f"s_waitcnt vmcnt(0) lgkmcnt(0)\ns_barrier\ns_cmp_ge_u32 s3, 2\ns_cbranch_scc1 {L}_idle")
    A("s_lshl_b32 s28, s24, 12\ns_add_u32 s28, s28, s66\nv_add_u32 v163, s28, v4")
    for f in range(16):
        A(f"ds_read_b128 {v(Z + 4*f, 4)}, v6 offset:{f*1024}")
        if f == 11: A("s_waitcnt lgkmcnt(4)")
    for f in range(4): A(f"ds_read_b128 {v(Z + 64 + 4*f, 4)}, v163 offset:{f*1024}")
    for r in range(4): A(f"v_mov_b32 v{PA+r}, 0")
    A(f"""s_mul_i32 s28, s64, {G.PF_STRIDE}
    s_add_u32 s29, s28, 4096
    s_add_u32 s30, s28, 8192
    s_add_u32 s34, s32, 8192
    s_waitcnt lgkmcnt(0)""")
    stamp(A, 3)
    if ONEP: A(f"s_cmp_lg_u32 s3, 0\ns_cbranch_scc1 {L}_hp_ok")
    hu_wait(A, L + "_hp", 40, 172, 32, (PFR, PFR+1, PFR+2, PFR+3), "K3_end", HUD=int(os.environ.get("HUDP", "3")))
    if ONEP: A("s_barrier")
    stamp(A, 2)
    A("s_mov_b32 s27, 0")
    A.label(L + "_gop"); A.reset_state()
    order = [8, 9, 0, 1, 2, 3, 4, 5, 6, 7]
    for k, t in enumerate(order):
        A(f"buffer_load_dwordx4 {v(PFR+4*t, 4)}, v4, s[44:47], s{28 + t // 4} offen offset:{(t % 4)*1024} sc1")
        if HU_M_AT < 0 and k == 10 + HU_M_AT: A(f"buffer_store_dword v175, v173, s[40:43], s32 offen{sc}")
    for k, u in enumerate(order):
        A(f"s_waitcnt vmcnt({9-k + (1 if (k > HU_M_AT + 1 if HU_M_AT >= 0 else k <= 10 + HU_M_AT) else 0)})")
        if k == 0: stamp(A, 4)
        A(f"v_smfmac_f32_16x16x64_bf16 {v(PA, 4)}, {v(PFR+4*u, 4)}, {v(Z+8*u, 8)}, v160")
        if k == 0: A(f"v_max_u32 v164, v{PFR+32}, v{PFR+33}")
        if k == 1: A(f"v_max3_u32 v164, v164, v{PFR+36}, v{PFR+37}\nv_cmp_eq_u32 vcc, -1, v164\ns_cbranch_vccnz {L}_early")
        if HU_M_AT >= 0 and k == HU_M_AT + 1: A(f"buffer_store_dword v175, v173, s[40:43], s32 offen{sc}")
    if not DWST:
        A(f"""v_add_f32 v{PA}, v{PA}, v{PA+1}
        v_add_f32 v{PA+2}, v{PA+2}, v{PA+3}
        v_cmp_u_f32 vcc, v{PA}, v{PA+2}
        v_cvt_pk_bf16_f32 v{PA}, v{PA}, v{PA+2}
        s_cbranch_vccnz {L}_slowp""")
        A.label(L + "_backp")
        A(f"""buffer_store_short v{PA}, v7, s[40:43], s34 offen{sc}
        buffer_store_short_d16_hi v{PA}, v7, s[40:43], s34 offen offset:32{sc}""")
    else:
        A(f"""v_add_f32 v{PA}, v{PA}, v{PA+1}
        v_add_f32 v{PA+2}, v{PA+2}, v{PA+3}
        v_cmp_u_f32 vcc, v{PA}, v{PA+2}
        v_cvt_pk_bf16_f32 v{PA}, v{PA}, v{PA+2}
        s_cbranch_vccnz {L}_slowp""")
        A.label(L + "_backp")
        A(f"""v_mov_b32_dpp v{PA+1}, v{PA} {QP}
        v_perm_b32 v{PA}, v{PA+1}, v{PA}, v2
        buffer_store_dword v{PA}, v7, s[40:43], s34 offen{sc}""")
    stamp_cnt(A, 1)
    A.label(L + "_next")
    stamp(A, 5)
    tl(A, 0, 64)
    stamp_out(A, 116, MFLB + 7168, 2)
    A(f"s_add_u32 s64, s64, 1\ns_cmp_lt_u32 s64, 63")
    A.flush()
    A(f"s_cbranch_scc1 {L}_loop")
    A.label(L + "_exit"); A.reset_state()
    stamp_dump(A, MFLB + 7168)
    tl_dump(A, 1)
    A("s_branch K3_end")
    A.label(L + "_idle"); A.reset_state()
    if ONEP: A("s_barrier")
    A(f"s_branch {L}_next")
    exact_check(A, L + "_slowm", 7, MF, 164, L + "_retrym", L + "_backm", "K3_end")
    A.label(L + "_retrym"); A.reset_state()
    for z in zero[:8]: A(z)
    A(f"s_barrier\ns_cmp_lg_u32 s3, 2\ns_cbranch_scc1 {L}_join\ns_branch {L}_go")
    exact_check(A, L + "_slowp", 10, PFR, 164, L + "_retryp", L + "_nanp", "K3_end")
    A.label(L + "_nanp"); A.reset_state()
    A(f"v_pk_min_u16 v{PA}, v{PA}, s25\ns_branch {L}_backp")
    A.label(L + "_early"); A.reset_state()
    A(f"s_add_u32 s27, s27, 1\ns_cmp_gt_u32 s27, {SPIN_MAX}\ns_cbranch_scc1 K3_end\ns_waitcnt vmcnt(0)\ns_nop 7")
    A.label(L + "_retryp"); A.reset_state()
    for r in range(4): A(f"v_mov_b32 v{PA+r}, 0")
    A(f"s_nop 1\ns_branch {L}_gop")

def b_cu(A):
    srd(A, 36, 18, G.WF_OFF + 16*G.WF_UNIT, 16*G.WF_UNIT)
    srd(A, 48, 18, G.VOF_OFF, 64*G.SEG_SZ)
    srd(A, 68, 18, G.FLG_OFF, G.FLG_SZ)
    A(f"""v_bfe_u32 v5, v1, 2, 2
    v_mul_u32_u24 v5, 3584, v5
    v_and_b32 v6, 3, v1
    v_lshl_add_u32 v5, v6, 7, v5
    s_mul_i32 s33, s3, 14336
    s_lshr_b32 s28, s22, 1
    s_lshl_b32 s28, s28, 9
    s_add_u32 s33, s33, s28
    s_add_u32 s33, s33, {G.FLG_PROD + 16*3584}""")
    for k in range(4):
        G.stage_wait(A, f"K3b_wp{k}", 68, 5, 33, 6, k + 1, "K3_end")
        for i in range(8):
            ct, q = i // 4, i % 4
            A(f"""s_lshl_b32 s28, s3, 2
            s_add_u32 s28, s28, {q}
            s_mul_i32 s28, s28, {G.WF_UNIT}
            s_mul_i32 s29, s22, 28672
            s_add_u32 s28, s28, s29
            s_add_u32 s28, s28, {ct*14336 + k*4096}""")
            if i >= 6: A(f"s_mul_i32 s29, s3, 28672\ns_add_u32 m0, s29, {WL + (i-6)*14336 + k*4096}")
            for u in range(4*k, min(14, 4*k + 4)):
                if i < 6: A(f"buffer_load_dwordx4 {wregB(i, u)}, v4, s[36:39], s28 offen offset:{(u % 4)*1024} sc1")
                else: A(f"buffer_load_dwordx4 v4, s[36:39], s28 offen offset:{(u % 4)*1024} sc1 lds")
    team_flavor(A, "K3_end")
    A(f"""
    s_mul_i32 s28, s3, 28672
    v_add_u32 v5, s28, v4
    v_and_b32 v9, 1, v2
    v_cmp_eq_u32 vcc, 1, v9
    v_mov_b32 v160, 0x4444
    v_mov_b32 v161, 0xeeee
    v_cndmask_b32 v160, v160, v161, vcc
    s_mov_b32 s25, 0xfffefffe
    s_mov_b32 s26, 0xffff0000
    s_mov_b32 s64, 0
    s_mov_b32 s66, {WZL}
    s_and_b32 s24, s3, 1
    s_lshl_b32 s28, s24, 14
    s_add_u32 s28, s28, {VOL}
    v_add_u32 v6, s28, v4
    v_bfe_u32 v8, v2, 1, 1
    v_lshl_add_u32 v8, v3, 2, v8
    v_lshlrev_b32 v7, 4, v8
    v_lshrrev_b32 v8, 2, v2
    v_lshl_add_u32 v7, v8, 2, v7
    v_lshl_add_u32 v7, v9, 1, v7
    s_lshl_b32 s28, s22, 1
    s_add_u32 s28, s28, s24
    s_lshl_b32 s67, s28, 12
    s_lshl_b32 s29, s28, 8
    v_add_u32 v7, s29, v7
    v_min_u32 v161, 27, v1
    v_lshlrev_b32 v161, 2, v161
    v_add_u32 v161, 7168, v161
    v_min_u32 v172, 15, v1
    v_lshlrev_b32 v172, 2, v172
    v_add_u32 v172, {8192 + 7296}, v172
    s_lshl_b32 s28, s28, 2
    s_add_u32 s28, s28, {8192 + 7168}
    v_mov_b32 v173, s28
    v_mov_b32 v8, 0x7ffffff0
    v_cmp_eq_u32 vcc, 0, v1
    v_cndmask_b32 v173, v8, v173, vcc
    v_mov_b32 v175, 0
    v_not_b32 v0, s96
    v_and_b32 v9, 1, v1
    v_cmp_eq_u32 vcc, 1, v9
    v_mov_b32 v2, 0x05040100
    v_mov_b32 v8, 0x03020706
    v_cndmask_b32 v2, v2, v8, vcc
    v_mul_u32_u24 v9, {30 if DWST else 0}, v9
    v_add_u32 v7, v7, v9
    v_add_u32 v162, {MFLB}, v4
    s_mov_b32 s97, {MFLB}
    s_mul_i32 s98, s24, 3072
    s_waitcnt vmcnt(0)
    """)
    G.TLV[0] = 3
    tl(A, 63)
    A("s_cmp_lg_u32 s65, 0\ns_cbranch_scc1 K3bf1_loop")
    b_loop(A, 0)
    b_loop(A, 1)

def warm_cu(A):
    L = "K3w"
    srd(A, 52, 18, G.XNF_OFF, G.XN_SZ)
    A(f"""v_min_u32 v5, 27, v1
    v_lshlrev_b32 v5, 2, v5
    v_add_u32 v5, 7168, v5
    s_lshl_b32 s28, s3, 10
    v_add_u32 v6, s28, v4
    s_mov_b32 s64, 0""")
    def touch(sreg):
        A(f"s_lshl_b32 s28, s{sreg}, 13\ns_add_u32 s28, s28, 8192\ns_mul_i32 s29, s{sreg}, {G.PF_STRIDE}\ns_mul_i32 s30, s{sreg}, 28672\ns_add_u32 s30, s30, {1*28672}")
        for k in range(2): A(f"buffer_load_dwordx4 v[16:19], v6, s[40:43], s28 offen sc1\ns_add_u32 s28, s28, 4096")
        for k in range(3): A(f"buffer_load_dwordx4 v[16:19], v6, s[44:47], s29 offen sc1\ns_add_u32 s29, s29, 4096")
        for k in range(7): A(f"buffer_load_dwordx4 v[16:19], v6, s[52:55], s30 offen sc1\ns_add_u32 s30, s30, 4096")
    A("v_mov_b32 v7, 2048\ns_mov_b32 s28, 0")
    flag_wait(A, L + "_v0", 56, 7, 28, 8, "K3_end", sleep=8)
    for k in range(WD + 1):
        A(f"s_mov_b32 s33, {k}"); touch(33)
    A.label(L + "_loop")
    A(f"s_add_u32 s64, s64, 1\ns_cmp_ge_u32 s64, {63 - WD}\ns_cbranch_scc1 K3_end\ns_lshl_b32 s32, s64, 13\ns_mov_b32 s27, 0")
    A.label(L + "_w")
    A(f"""s_sleep 4
    buffer_load_dword v8, v5, s[40:43], s32 offen sc1
    s_add_u32 s27, s27, 1
    s_cmp_gt_u32 s27, {SPIN_MAX}
    s_cbranch_scc1 K3_end
    s_waitcnt vmcnt(0)
    v_cmp_eq_u32 vcc, -1, v8
    s_cbranch_vccnz {L}_w
    s_add_u32 s33, s64, {WD}""")
    touch(33)
    A(f"s_branch {L}_loop")

def fwd_cu(A):
    L = "K3f"
    srd(A, 52, 18, G.MEMG_OFF, 64*8192)
    srd(A, 56, 18, G.FLG_OFF, G.FLG_SZ)
    A(f"""v_min_u32 v5, 27, v1
    v_lshlrev_b32 v5, 2, v5
    v_add_u32 v5, 7168, v5
    s_lshl_b32 s28, s3, 11
    s_min_u32 s28, s28, 5120
    v_add_u32 v6, s28, v4
    s_mov_b32 s26, 0xffff0000
    s_mov_b32 s64, 0""")
    team_flavor(A, "K3_end", 10, 11)
    A.label(L + "_loop")
    A(f"s_lshl_b32 s32, s64, 13\ns_mov_b32 s27, 0\ns_cmp_eq_u32 s64, 0\ns_cbranch_scc1 {L}_hu")
    A.label(L + "_w")
    A(f"""s_sleep 1
    buffer_load_dword v8, v5, s[40:43], s32 offen sc1
    s_add_u32 s27, s27, 1
    s_cmp_gt_u32 s27, {SPIN_MAX}
    s_cbranch_scc1 K3_end
    s_waitcnt vmcnt(0)
    v_cmp_eq_u32 vcc, -1, v8
    s_cbranch_vccnz {L}_w""")
    A.label(L + "_hu")
    A(f"s_lshl_b32 s28, s64, 13\ns_add_u32 s28, s28, 6144\ns_cmp_lg_u32 s3, 0\ns_cbranch_scc1 {L}_get")
    flag_set(A, 56, 28, 8, 9)
    A.label(L + "_get")
    A(f"""buffer_load_dwordx4 v[16:19], v6, s[40:43], s32 offen sc1
    buffer_load_dwordx4 v[20:23], v6, s[40:43], s32 offen offset:1024 sc1""")
    exact_check(A, L + "_chk", 2, 16, 8, L + "_get", L + "_ok", "K3_end")
    A.label(L + "_ok")
    A(f"""buffer_store_dwordx4 v[16:19], v6, s[52:55], s32 offen sc1
    buffer_store_dwordx4 v[20:23], v6, s[52:55], s32 offen offset:1024 sc1""")
    A(f"s_add_u32 s64, s64, 1\ns_cmp_lt_u32 s64, 64\ns_cbranch_scc1 {L}_loop\ns_branch K3_end")

def team_publish(A):
    A(f"""s_barrier
    s_lshl_b32 s28, s21, 2
    s_lshl_b32 s31, s21, 7
    s_add_u32 s31, s31, {G.FLG_LN}
    v_mov_b32 v8, s35
    v_mov_b32 v9, s28
    v_mov_b32 v10, s96
    v_mov_b32 v11, s31
    s_mov_b64 exec, 1
    buffer_store_dword v8, v9, s[60:63], 0 offen offset:128 sc1
    buffer_store_dword v10, v11, s[56:59], 0 offen sc1
    s_mov_b64 exec, -1""")

def team(A):
    A("s_getreg_b32 s35, hwreg(HW_REG_XCC_ID, 0, 4)\ns_add_u32 s35, s35, 1")
    srd(A, 60, 16, 0, 256)
    srd(A, 40, 18, G.MEMF_OFF, 64*G.MEMF_STRIDE)
    srd(A, 44, 18, G.PF_OFF, 64*G.PF_STRIDE)
    A("s_lshl_b32 s23, s21, 2\ns_add_u32 s23, s23, s3")
    G.ln_body(A, "KL")
    srd(A, 56, 18, G.FLG_OFF, G.FLG_SZ)
    A("s_waitcnt vmcnt(0)"); team_publish(A)
    if G.TLM: A("v_writelane_b32 v113, s84, 63\nv_writelane_b32 v113, s85, 58\nv_writelane_b32 v113, s86, 59\nv_writelane_b32 v113, s87, 60"); tl(A, 61)
    A("s_cmp_eq_u32 s21, 31\ns_cbranch_scc1 K3_w\ns_cmp_eq_u32 s21, 30\ns_cbranch_scc1 K3_f")
    A("s_cmp_ge_u32 s21, 16\ns_cbranch_scc1 K3_b\ns_mov_b32 s22, s21")
    a_cu(A)
    A.label("K3_b"); A.reset_state()
    A("s_sub_u32 s22, s21, 16")
    b_cu(A)
    A.label("K3_w"); A.reset_state()
    warm_cu(A)
    A.label("K3_f"); A.reset_state()
    fwd_cu(A)
```

```python
import re

REG_RE = re.compile(r'^(-|abs\()?([vas])(\d+|\[(\d+):(\d+)\])\)?$')

def regs_of(op):
    op = op.strip()
    if op in ('vcc',): return {('s', 'vcc_lo'), ('s', 'vcc_hi')}
    if op in ('vcc_lo', 'vcc_hi'): return {('s', op)}
    if op == 'exec': return {('s', 'exec')}
    if op == 'm0': return {('s', 'm0')}
    m = REG_RE.match(op)
    if not m: return set()
    k = m.group(2)
    if m.group(4) is not None:
        return {(k, i) for i in range(int(m.group(4)), int(m.group(5)) + 1)}
    return {(k, int(m.group(3)))}

TRANS = ('v_exp_f32', 'v_log_f32', 'v_rcp_f32', 'v_rsq_f32', 'v_sqrt_f32', 'v_sin_f32', 'v_cos_f32', 'v_rcp_iflag_f32')

def split_ops(rest):
    rest = rest.split(';')[0].strip()
    ops, depth, cur = [], 0, ''
    for ch in rest:
        if ch in '[(': depth += 1
        if ch in '])': depth -= 1
        if ch == ',' and depth == 0:
            ops.append(cur.strip()); cur = ''
        else:
            cur += ch
    if cur.strip(): ops.append(cur.strip())
    mods = ''
    if ops:
        parts = ops[-1].split(None, 1)
        ops[-1] = parts[0]
        if len(parts) > 1: mods = parts[1]
    return ops, mods

class Asm:
    def __init__(self):
        self.lines = []
        self.pos = 0
        self.reset_state()
        self.nops_added = 0
        self.pad = None
    def reset_state(self):
        self.valu_w = {}
        self.trans_w = {}
        self.mfma_w = {}
        self.mfma_c = {}
        self.store_r = {}
        self.salu_m0 = -100
        self.dot_w = {}
        self.valu_exec = -100
    def pads_on(self, name, every=112, auto=True):
        self.pad = [name, every, [], every, auto]
    def pad_ok(self, minb=56):
        if self.pad is not None and self.pad[1] >= minb:
            self.pad[2].append(len(self.lines)); self.lines.append('; pad'); self.pad[1] = 4; self.pos += 1
            return True
        return False
    def pads_off(self, ret, parts=4):
        name, idx = self.pad[0], self.pad[2]
        self.pad = None
        n = len(idx)
        starts = [n*k // parts for k in range(parts)]
        for k, li in enumerate(idx):
            tgt = ret if (k + 1 == n or (k + 1) in starts) else f"{name}_p{k+1}"
            self.lines[li] = f"{name}_p{k}:\n    s_cbranch_execz {tgt}"
        return [f"{name}_p{k}" for k in starts]
    def _size(self, mn, line):
        if mn.startswith(('buffer_', 'global_', 'ds_', 'v_mfma', 'v_smfmac', 'v_pk_', 'v_cvt_pk', 'v_dot2_', 'v_accvgpr', 's_load', 's_mem')): return 8
        if 'dpp' in mn or re.search(r'0x[0-9a-f]{3,}|\b\d{3,}\b', line.split(None, 1)[1] if ' ' in line else ''): return 8
        if mn.startswith('v_') and line.count(',') >= 3: return 8
        return 4
    def raw(self, text):
        self.lines.append(text)
    def label(self, name):
        self.lines.append(name + ':')
    def comment(self, t):
        self.lines.append('    ; ' + t)
    def nop(self, states):
        if states > 0 and self.pad_ok(): states -= 1
        while states > 0:
            n = min(states, 16)
            self.lines.append(f'    s_nop {n-1}')
            self.pos += n; states -= n
    def flush(self, n=None):
        need = 0
        for r, p in self.valu_w.items(): need = max(need, (5 if r[0] == 's' else 2) - (self.pos - p))
        for r, (p, ps, _) in self.mfma_w.items(): need = max(need, {4: 8, 8: 12}[ps] - (self.pos - p))
        for r, p in self.dot_w.items(): need = max(need, 3 - (self.pos - p))
        for r, p in self.store_r.items(): need = max(need, 2 - (self.pos - p))
        need = max(need, 1 - (self.pos - self.salu_m0))
        if need > 0: self.nop(need)
    def __call__(self, text):
        for line in text.split('\n'):
            line = line.strip()
            if not line: continue
            if line.startswith(';'):
                self.lines.append('    ' + line); continue
            if line.endswith(':') and ' ' not in line:
                self.lines.append(line); continue
            self.inst(line)
    def inst(self, line):
        parts = line.split(None, 1)
        mn = parts[0]
        if self.pad is not None:
            if self.pad[4] and self.pad[1] >= self.pad[3]:
                self.pad[2].append(len(self.lines)); self.lines.append('; pad'); self.pad[1] = 4; self.pos += 1
            self.pad[1] += self._size(mn, line)
        ops, mods = split_ops(parts[1]) if len(parts) > 1 else ([], '')
        R = [regs_of(o) for o in ops]
        need = 0
        def req(p, n):
            nonlocal need
            need = max(need, n - (self.pos - p))
        is_mfma = mn.startswith('v_mfma') or mn.startswith('v_smfmac')
        is_valu = mn.startswith('v_') and not is_mfma
        is_ds = mn.startswith('ds_')
        is_vmem = mn.startswith('buffer_') or mn.startswith('global_')
        dst, src = set(), set()
        srcC = set()
        if is_mfma:
            passes = 8 if '32x32' in mn else 4
            dst = R[0]
            if mn.startswith('v_smfmac'):
                srcC = R[0]; ab = R[1] | R[2] | R[3]
            else:
                srcC = R[3]; ab = R[1] | R[2]
            dkey = ops[0]
            for r in ab | srcC:
                if r in self.valu_w and r[0] != 's': req(self.valu_w[r], 2)
                if r in self.dot_w: req(self.dot_w[r], 3)
            for r in ab:
                if r in self.mfma_w:
                    p, ps, _ = self.mfma_w[r]; req(p, {4: 8, 8: 12}[ps])
            for r in srcC:
                if r in self.mfma_w:
                    p, ps, k = self.mfma_w[r]
                    same = (k == (ops[0] if mn.startswith('v_smfmac') else ops[3])) and ps == passes
                    if not same: req(p, {4: 6, 8: 10}[ps])
            for r in dst - srcC:
                if r in self.mfma_w:
                    p, ps, k = self.mfma_w[r]; req(p, {4: 6, 8: 10}[ps])
            req(self.valu_exec, 4)
        elif is_valu:
            base = mn.replace('_e32', '').replace('_e64', '').replace('_dpp', '').replace('_sdwa', '')
            if base.startswith('v_cmp'):
                dst = R[0]; src = set().union(*R[1:])
                if base.startswith('v_cmpx'): dst = dst | {('s', 'exec')}
            elif base in ('v_permlane32_swap_b32', 'v_permlane16_swap_b32', 'v_swap_b32'):
                dst = R[0] | R[1]; src = R[0] | R[1]
            elif base in ('v_add_co_u32', 'v_sub_co_u32', 'v_addc_co_u32', 'v_subb_co_u32'):
                dst = R[0] | R[1]; src = set().union(*R[2:])
            else:
                dst = R[0]; src = set().union(*R[1:]) if len(R) > 1 else set()
                if base.startswith('v_fmac') or base.startswith('v_dot2c') or base.startswith('v_pk_fmac') or base == 'v_writelane_b32' or 'dpp' in mn or 'row_' in mods or 'quad_perm' in mods:
                    src = src | R[0]
                if base.startswith('v_cndmask') and len(ops) == 3: src |= regs_of('vcc')
            isdpp = ('dpp' in mn) or ('row_' in mods) or ('quad_perm' in mods)
            isperm = base.startswith('v_permlane')
            isrl = base in ('v_readlane_b32', 'v_readfirstlane_b32')
            isdot = base.startswith('v_dot')
            for r in src:
                if r[0] == 's':
                    if r in self.valu_w:
                        req(self.valu_w[r], 4 if base in ('v_readlane_b32', 'v_writelane_b32') else 2)
                else:
                    if r in self.valu_w:
                        if isdpp or isperm: req(self.valu_w[r], 2)
                        if isrl: req(self.valu_w[r], 1)
                    if r in self.trans_w and base not in TRANS: req(self.trans_w[r], 1)
                    if r in self.dot_w:
                        if not (isdot and r in R[-1] and r not in (set().union(*R[1:-1]))): req(self.dot_w[r], 3)
            for r in (src | dst):
                if r in self.mfma_w:
                    p, ps, _ = self.mfma_w[r]; req(p, {4: 8, 8: 12}[ps])
            for r in dst:
                if r in self.mfma_c:
                    p, ps = self.mfma_c[r]; req(p, {4: 3, 8: 7}[ps])
                if r in self.store_r: req(self.store_r[r], 2)
                if r in self.dot_w and not isdot: req(self.dot_w[r], 3)
            if isdpp: req(self.valu_exec, 5)
            if isrl or isperm: req(self.valu_exec, 4)
        elif is_ds or is_vmem:
            allr = set().union(*R) if R else set()
            lds_dma = is_vmem and (mods.split() and 'lds' in mods.split() or 'load_lds' in mn)
            is_load = ('load' in mn or 'read' in mn or 'bpermute' in mn or 'swizzle' in mn or 'permute' in mn) and not lds_dma
            if 'atomic' in mn and 'sc0' in mods.split(): is_load = True
            if is_load: dst = R[0]; src = set().union(*R[1:]) if len(R) > 1 else set()
            else: src = allr
            if 'atomic' in mn: src = allr
            if 'd16' in mn and is_load: src = src | dst
            for r in src:
                if r[0] == 's' and r in self.valu_w and is_vmem: req(self.valu_w[r], 5)
                if r in self.dot_w: req(self.dot_w[r], 3)
            for r in (src | dst):
                if r in self.mfma_w:
                    p, ps, _ = self.mfma_w[r]; req(p, {4: 8, 8: 12}[ps])
            for r in dst:
                if r in self.store_r: req(self.store_r[r], 1)
                if r in self.mfma_c:
                    p, ps = self.mfma_c[r]; req(p, {4: 3, 8: 7}[ps])
            if lds_dma: req(self.salu_m0, 1)
        else:
            if mn == 's_nop':
                self.lines.append('    ' + line); self.pos += int(ops[0], 0) + 1; return
            if mn.startswith('s_cbranch_vcc') or mn.startswith('s_cbranch_exec'):
                pass
        if need > 0:
            self.nops_added += 1
            self.nop(need)
        self.lines.append('    ' + line)
        p = self.pos
        self.pos += 1
        p = self.pos
        if is_mfma:
            for r in dst:
                self.mfma_w[r] = (p, passes, ops[0]); self.valu_w.pop(r, None); self.trans_w.pop(r, None)
            for r in srcC: self.mfma_c[r] = (p, passes)
        elif is_valu:
            base = mn.replace('_e32', '').replace('_e64', '').replace('_dpp', '').replace('_sdwa', '')
            for r in dst:
                self.valu_w[r] = p; self.mfma_w.pop(r, None)
                if base in TRANS: self.trans_w[r] = p
                else: self.trans_w.pop(r, None)
                if base.startswith('v_dot'): self.dot_w[r] = p
                else: self.dot_w.pop(r, None)
                if r == ('s', 'exec'): self.valu_exec = p
        elif is_ds or is_vmem:
            for r in dst:
                self.valu_w.pop(r, None); self.mfma_w.pop(r, None); self.trans_w.pop(r, None)
            if is_vmem and 'store' in mn and ('x3' in mn or 'x4' in mn):
                for r in R[0] if mn.startswith('buffer') else R[1]: self.store_r[r] = p
            if is_vmem and 'store' in mn and 'x2' in mn:
                pass
        else:
            if ops and regs_of(ops[0]) == {('s', 'm0')} and mn.startswith('s_'): self.salu_m0 = p
            if mn.startswith('s_') and ops and not mn.startswith('s_cmp') and not mn.startswith('s_cbranch') and not mn.startswith('s_waitcnt'):
                for r in regs_of(ops[0]): self.valu_w.pop(r, None)
    def text(self):
        return '\n'.join(self.lines) + '\n'

def v(a, n=1): return f'v{a}' if n == 1 else f'v[{a}:{a+n-1}]'
def a_(a, n=1): return f'a{a}' if n == 1 else f'a[{a}:{a+n-1}]'
def s(a, n=1): return f's{a}' if n == 1 else f's[{a}:{a+n-1}]'
```

```python
import sys
from asmlib import *

NAME = "parallel_sum__memory_aug_recurrent_mem_tr__moe_arch_mod__prompt"
XN_OFF, XN_SZ = 0x0000000, 2048*896
XNF_OFF = 0x0200000
R_OFF = 0x0400000
MOEP_OFF, MOEP_SZ = 0x0410000, 28*8*448*4
IDX_OFF = 0x0480000
MEMF_OFF, MEMF_STRIDE = 0x0500000, 8192
PF_OFF, PF_STRIDE = 0x0600000, 10240
WF_OFF, WF_UNIT = 0x0800000, 28*14*1024
KQF_OFF, SEG_SZ = 0x1800000, 16*28*1024
VOF_OFF = 0x3400000
PXF_OFF, PXF_SEG = 0x5000000, 40*1024
WZ_OFF, WZ_SEG = 0x5400000, 28*4*1024
MEMG_OFF = 0x5C00000
FLG_MOE, FLG_PROD, FLG_LN, FLG_EPOCH = 16384*32, 18432*32, 17664*32, 17920*32
FLG_FILL = 22*1024*32
FLG_OFF, FLG_SZ = 0x5D00000, 23*1024*32
SPIN_MAX = 1 << 22
W3_SZ = 448*8192
SCALE_LOG2E = 0x3db8aa3b
import struct
assert abs(struct.unpack('<f', struct.pack('<I', SCALE_LOG2E))[0] - 1.4426950408889634/16) < 1e-8

KARG = dict(x=0, mem0=8, wq=16, wk=24, wv=32, wo=40, wr=64, wg=72, wu=80, wd=88, out=96, dbg=104, ws=112)

def srd(A, d, base, off, size):
    if off == 0:
        A(f"s_mov_b32 s{d}, s{base}\ns_mov_b32 s{d+1}, s{base+1}")
    else:
        o = off if isinstance(off, str) else hex(off)
        A(f"s_add_u32 s{d}, s{base}, {o}\ns_addc_u32 s{d+1}, s{base+1}, 0")
    A(f"s_mov_b32 s{d+2}, {hex(size)}\ns_mov_b32 s{d+3}, 0x20000")

def lane_setup(A, vlane=1, vn=2, vg=3, swave=3):
    A(f"""
    v_and_b32 v{vlane}, 63, v0
    v_lshrrev_b32 v{vg}, 6, v0
    v_and_b32 v{vn}, 15, v0
    v_readfirstlane_b32 s{swave}, v{vg}
    v_bfe_u32 v{vg}, v0, 4, 2
    """)

def xreduce(A, op, x, t, steps=(16, 32)):
    for st in steps:
        if st == 8:
            A(f"{op}_dpp v{x}, v{x}, v{x} row_ror:8 row_mask:0xf bank_mask:0xf")
        else:
            A(f"v_mov_b32 v{t}, v{x}")
            A(f"v_permlane{st}_swap_b32 v{x}, v{t}")
            A(f"{op} v{x}, v{x}, v{t}")

import os
TLM = int(os.environ.get("TLM", "0"))
def tl(A, k, sreg=None):
    if not TLM: return
    if sreg is None: A(f"s_memrealtime s[100:101]\ns_waitcnt lgkmcnt(0)\nv_writelane_b32 v{TLV[0]}, s100, {k}")
    else: A(f"s_memrealtime s[100:101]\ns_mov_b32 m0, s{sreg}\ns_waitcnt lgkmcnt(0)\nv_writelane_b32 v{TLV[0]}, s100, m0")
TLV = [15]
def tls(A, k):
    if TLM: A(f"s_memrealtime s[100:101]\ns_waitcnt lgkmcnt(0)\ns_mov_b32 s{84+k}, s100")
def tl_dump(A, kern, wsreg=18):
    if not TLM: return
    A(f"""s_add_u32 s36, s{wsreg}, {hex(0x5F00000 + kern*0x40000)}
    s_addc_u32 s37, s{wsreg+1}, 0
    s_mov_b32 s38, 0x40000
    s_mov_b32 s39, 0x20000
    v_mbcnt_lo_u32_b32 v14, -1, 0
    v_mbcnt_hi_u32_b32 v14, -1, v14
    v_lshlrev_b32 v14, 2, v14
    s_lshl_b32 s100, s2, 10
    s_lshl_b32 s101, s3, 8
    s_add_u32 s100, s100, s101
    buffer_store_dword v{TLV[0]}, v14, s[36:39], s100 offen""")

def flag_wait(A, L, srdn, voff, soff, tmp, bail, sleep=6, cnt=27):
    A(f"s_mov_b32 s{cnt}, 0")
    A.label(L)
    A(f"""buffer_load_dword v{tmp}, v{voff}, s[{srdn}:{srdn+3}], s{soff} offen sc1
    s_add_u32 s{cnt}, s{cnt}, 1
    s_cmp_gt_u32 s{cnt}, {SPIN_MAX}
    s_cbranch_scc1 {bail}
    s_waitcnt vmcnt(0)
    v_cmp_ne_u32 vcc, s96, v{tmp}
    s_cbranch_vccz {L}_ok
    s_sleep {min(127, sleep*int(os.environ.get('SLP', '1')))}
    s_branch {L}""")
    A.label(L + "_ok")

def mem_poll(A, L, srdn, soffs, reg0, t0, t1, bail):
    A("s_mov_b32 s27, 0\ns_mov_b32 s26, 0xffff0000")
    A.label(L); A.reset_state()
    for t in range(7): A(f"buffer_load_dwordx4 {v(reg0+4*t, 4)}, v4, s[{srdn}:{srdn+3}], s{soffs[t // 4]} offen offset:{(t % 4)*1024} sc1")
    A(f"s_add_u32 s27, s27, 1\ns_cmp_gt_u32 s27, {SPIN_MAX}\ns_cbranch_scc1 {bail}")
    for t in range(7):
        r = reg0 + 4*t
        A(f"s_waitcnt vmcnt({6-t})")
        A(f"v_pk_max_u16 v{t0}, v{r}, v{r+1}" if t == 0 else f"v_pk_max_u16 v{t0}, v{t0}, v{r}\nv_pk_max_u16 v{t0}, v{t0}, v{r+1}")
        A(f"v_pk_max_u16 v{t0}, v{t0}, v{r+2}\nv_pk_max_u16 v{t0}, v{t0}, v{r+3}")
    A(f"v_lshlrev_b32 v{t1}, 16, v{t0}\nv_max_u32 v{t0}, v{t0}, v{t1}\nv_cmp_le_u32 vcc, s26, v{t0}\ns_cbranch_vccnz {L}")

def flag_set(A, srdn, soff, t0, t1):
    A(f"""v_mov_b32 v{t0}, s96
    v_mov_b32 v{t1}, 0
    s_mov_b64 exec, 1
    buffer_store_dword v{t0}, v{t1}, s[{srdn}:{srdn+3}], s{soff} offen sc1
    s_mov_b64 exec, -1""")

def wreg(i, u, n=4):
    idx = 56*i + 4*u
    if idx < 256:
        assert idx + n <= 256
        return a_(idx, n)
    return v(120 + idx - 256, n)

PADS = int(os.environ.get("PADS", "1"))
class Warm:
    def __init__(self, A, name):
        self.A, self.name = A, name
        if not PADS: return
        A("s_mov_b64 exec, 0")
        self.slot = len(A.lines); A.lines.append("; warm entry")
        A.label(name + "_ret"); A.reset_state()
        A("s_mov_b64 exec, -1")
    def on(self, every=112, auto=True):
        if PADS: self.A.pads_on(self.name, every, auto)
    def off(self, parts=4):
        if not PADS: return
        st = self.A.pads_off(self.name + "_ret", parts)
        t = "".join(f"    s_cmp_eq_u32 s3, {w}\n    s_cbranch_scc1 {st[w]}\n" for w in range(parts - 1)) + f"    s_branch {st[parts - 1]}"
        self.A.lines[self.slot] = t

def stage_wait(A, L, srdn, voff, soff, t0, k, bail, sleep=int(os.environ.get('SLS', '6'))):
    A("s_mov_b32 s27, 0")
    A.label(L)
    A(f"""buffer_load_dword v{t0}, v{voff}, s[{srdn}:{srdn+3}], s{soff} offen sc1
    s_add_u32 s27, s27, 1
    s_cmp_gt_u32 s27, {SPIN_MAX}
    s_cbranch_scc1 {bail}
    s_waitcnt vmcnt(0)
    v_subrev_u32 v{t0}, s95, v{t0}
    v_subrev_u32 v{t0}, {k}, v{t0}
    v_cmp_lt_u32 vcc, {4 - k}, v{t0}
    s_cbranch_vccz {L}_ok
    s_sleep {sleep}
    s_branch {L}""")
    A.label(L + "_ok")

def prod_body(A, L):
    A(f"""s_and_b32 s24, s22, 15
    s_lshl_b32 s25, s24, 9
    s_mul_i32 s26, s22, {WF_UNIT}
    s_add_u32 s26, s26, {hex(WF_OFF)}""")
    srd(A, 36, 18, "s26", WF_UNIT)
    VO, RA, SR, TMP = 216, 224, 136, 232
    A("""v_lshrrev_b32 v5, 5, v1
    v_and_b32 v6, 31, v1
    v_xor_b32 v6, v6, v5
    v_lshlrev_b32 v6, 4, v6
    v_lshl_add_u32 v6, v5, 13, v6""")
    for k in range(8):
        A(f"v_xor_b32 v{VO+k}, {2*k << 4}, v6\nv_add_u32 v{VO+k}, {(8*(k >> 1) + 2*(k & 1))*8192}, v{VO+k}")
    def tile_dma(srdn, soff):
        for k in range(8):
            A(f"buffer_load_dwordx4 v{VO+k}, s[{srdn}:{srdn+3}], s{soff} offen lds\ns_add_u32 m0, m0, 1024")
    def coop_touch():
        if not int(os.environ.get("PTOUCH", "1")): return
        A("""v_lshrrev_b32 v250, 3, v1
        v_and_b32 v251, 7, v1
        v_lshlrev_b32 v251, 6, v251
        v_lshl_add_u32 v250, v250, 13, v251
        s_lshl_b32 s27, s23, 19
        s_lshl_b32 s28, s3, 17
        s_add_u32 s27, s27, s28
        s_add_u32 s27, s27, s25
        buffer_load_dword v251, v250, s[40:43], s27 offen
        s_add_u32 s27, s27, 65536
        buffer_load_dword v252, v250, s[40:43], s27 offen""")
    def stage_dma(k):
        A(f"""s_add_u32 s27, s3, {4*k}
        s_lshl_b32 s27, s27, 18
        s_add_u32 s27, s27, s25
        s_add_u32 m0, s32, {(k % 2)*16384}""")
        tile_dma(40, 27)
        A("s_add_u32 s27, s27, 32768")
        tile_dma(40, 27)
    rreg = lambda ct, ks: v(8 + (ct*8 + ks)*4, 4)
    A(f"""s_lshl_b32 s32, s3, 15
    s_add_u32 s32, s32, 32768
    s_mov_b32 s30, 1.0
    s_cmp_ge_u32 s22, 16
    s_cbranch_scc1 {L}_t1""")
    srd(A, 40, 76, 0, W3_SZ)
    srd(A, 44, 78, 0, W3_SZ)
    coop_touch()
    A(f"""s_mov_b32 s30, {hex(SCALE_LOG2E)}
    s_lshl_b32 s27, s23, 19
    s_lshr_b32 s28, s3, 1
    s_lshl_b32 s28, s28, 18
    s_add_u32 s27, s27, s28
    s_and_b32 s28, s3, 1
    s_lshl_b32 s28, s28, 15
    s_add_u32 s27, s27, s28
    s_add_u32 s27, s27, s25
    s_lshl_b32 m0, s3, 13""")
    tile_dma(44, 27)
    stage_dma(0)
    A(f"s_branch {L}_c0")
    A.label(L + "_t1"); A.reset_state()
    srd(A, 40, 80, 0, W3_SZ)
    coop_touch()
    A(f"s_mul_i32 s27, s24, {256*896}")
    srd(A, 44, 82, "s27", 256*896)
    A(f"""v_lshrrev_b32 v5, 3, v1
    v_and_b32 v6, 7, v1
    v_and_b32 v7, 6, v5
    v_xor_b32 v6, v6, v7
    v_lshlrev_b32 v6, 4, v6
    v_and_b32 v7, 3, v5
    v_lshrrev_b32 v5, 2, v5
    v_lshl_add_u32 v7, v5, 3, v7
    v_mul_u32_u24 v7, 896, v7
    v_add_u32 v7, v7, v6
    s_lshl_b32 s27, s23, 7
    s_mul_i32 s28, s3, {64*896}
    s_add_u32 s27, s27, s28
    s_lshl_b32 m0, s3, 13""")
    for k in range(8):
        A(f"buffer_load_dwordx4 v7, s[44:47], s27 offen lds\ns_add_u32 m0, m0, 1024\ns_add_u32 s27, s27, {(4 if k % 2 == 0 else 12)*896}")
    stage_dma(0)
    A.label(L + "_c0"); A.reset_state()
    A("""v_and_b32 v5, 3, v2
    v_xor_b32 v5, v5, v3
    v_and_b32 v6, 12, v2
    v_or_b32 v5, v5, v6
    v_lshlrev_b32 v5, 4, v5
    v_lshl_add_u32 v5, v2, 9, v5""")
    for ks in range(8): A(f"v_xor_b32 v{RA+ks}, {ks << 6}, v5")
    NT = 0
    W = Warm(A, L + "_wm")
    W.on()
    tls(A, 1)
    A(f"s_waitcnt vmcnt({16 + NT})\ns_barrier\ns_cmp_ge_u32 s22, 16\ns_cbranch_scc1 {L}_r1")
    for ct in range(4):
        for ks in range(8): A(f"ds_read_b128 {rreg(ct, ks)}, v{RA+ks} offset:{ct*8192}")
        A("s_waitcnt lgkmcnt(7)")
    A(f"s_branch {L}_c1")
    A.label(L + "_r1"); A.reset_state()
    A("""v_lshrrev_b32 v5, 2, v2
    v_and_b32 v6, 1, v3
    v_lshl_add_u32 v6, v6, 2, v5
    v_lshrrev_b32 v7, 1, v6
    v_lshrrev_b32 v5, 1, v3
    v_lshl_add_u32 v6, v5, 4, v6
    v_lshlrev_b32 v6, 7, v6
    v_and_b32 v5, 3, v2
    v_lshl_add_u32 v6, v5, 3, v6""")
    for ct in range(4):
        A(f"v_xor_b32 v5, {ct}, v7\nv_lshl_add_u32 v5, v5, 5, v6")
        for ks in range(8):
            for z in range(2): A(f"ds_read_b64_tr_b16 {v(8 + (ct*8 + ks)*4 + 2*z, 2)}, v5 offset:{ks*4096 + z*1024}")
            if ks % 4 == 3: A("s_waitcnt lgkmcnt(7)")
    A.label(L + "_c1"); A.reset_state()
    stage_dma(1)
    tls(A, 2)
    for ks in range(8): A(f"v_add_u32 v{RA+ks}, s32, v{RA+ks}")
    A(f"""s_mul_i32 s31, s23, {4*14*1024}
    s_lshl_b32 s28, s3, 10
    s_add_u32 s31, s31, s28
    s_lshl_b32 s33, s20, 9
    s_lshl_b32 s28, s3, 7
    s_add_u32 s33, s33, s28
    s_add_u32 s33, s33, {FLG_PROD}
    v_mov_b32 v6, 0x7ffffff0
    v_cmp_eq_u32 vcc, 0, v1
    v_cndmask_b32 v6, v6, v1, vcc""")
    acc = lambda k, ct, e: a_(((k*4 + ct)*2 + e)*4, 4)
    def epilogue(k):
        o = []
        for ct in range(4):
            t = TMP + 4*(ct % 2)
            for e in range(2):
                b = ((k*4 + ct)*2 + e)*4
                for r in range(4): o.append(f"v_accvgpr_read_b32 v{TMP+8+r}, a{b+r}")
                for r in (0, 2): o.append(f"v_pk_mul_f32 {v(TMP+8+r, 2)}, {v(TMP+8+r, 2)}, s[30:31] op_sel_hi:[1,0]")
                o.append(f"v_cvt_pk_bf16_f32 v{t+2*e}, v{TMP+8}, v{TMP+9}")
                o.append(f"v_cvt_pk_bf16_f32 v{t+2*e+1}, v{TMP+10}, v{TMP+11}")
            o.append(f"s_add_u32 s28, s31, {(ct*14 + 4*k)*1024}\nbuffer_store_dwordx4 {v(t, 4)}, v4, s[36:39], s28 offen sc1")
        return o
    flag = lambda st: f"s_add_u32 s28, s95, {st}\nv_mov_b32 v7, s28\nbuffer_store_dword v7, v6, s[48:51], s33 offen sc1"
    if int(os.environ.get("PORD", "2")) == 2:
        for k in range(4):
            if k == 3: A(f"s_cmp_ge_u32 s3, 2\ns_cbranch_scc1 {L}_short")
            A(f"s_waitcnt vmcnt({[16, 20, 21, 5][k]})")
            for e in range(2):
                for ks in range(8): A(f"ds_read_b128 {v(SR + (e*8 + ks)*4, 4)}, v{RA+ks} offset:{(k % 2)*16384 + e*8192}")
                if e == 0: A("s_waitcnt lgkmcnt(7)")
            for e in range(2):
                for ks in range(8):
                    A(f"s_waitcnt lgkmcnt({15 - 8*e - ks})")
                    for ct in range(4):
                        A(f"v_mfma_f32_16x16x32_bf16 {acc(k, ct, e)}, {v(SR + (e*8 + ks)*4, 4)}, {rreg(ct, ks)}, {acc(k, ct, e) if ks else '0'}")
            if k: A(f"s_waitcnt vmcnt({16 if k < 3 else 0})"); A(flag(k))
            for z in epilogue(k): A(z)
            if k < 2: stage_dma(k + 2)
        A.label(L + "_short"); A.reset_state()
    else:
        PORD = int(os.environ.get("PORD", "2"))
        for k in range(4):
            if k == 3: A(f"s_cmp_ge_u32 s3, 2\ns_cbranch_scc1 {L}_short")
            A(f"s_waitcnt vmcnt({([16 + NT, 16, 16, 8], [16 + NT, 16, 16, 0])[PORD][k]})")
            if PORD and k >= 2: A(flag(k - 1))
            for e in range(2):
                for ks in range(8): A(f"ds_read_b128 {v(SR + (e*8 + ks)*4, 4)}, v{RA+ks} offset:{(k % 2)*16384 + e*8192}")
                if e == 0: A("s_waitcnt lgkmcnt(7)")
            side = ({0: [], 1: [], 2: epilogue(0) + epilogue(1), 3: epilogue(2)}[k]) if not PORD else (epilogue(k - 1) if k else [])
            for e in range(2):
                for ks in range(8):
                    A(f"s_waitcnt lgkmcnt({15 - 8*e - ks})")
                    for ct in range(4):
                        A(f"v_mfma_f32_16x16x32_bf16 {acc(k, ct, e)}, {v(SR + (e*8 + ks)*4, 4)}, {rreg(ct, ks)}, {acc(k, ct, e) if ks else '0'}")
                        for _ in range(2):
                            if side and (e or ks): A(side.pop(0))
                    if e == 1 and ks == 7 and k < 2: stage_dma(k + 2)
            for z in side: A(z)
        for z in epilogue(3): A(z)
        if not PORD:
            A("s_waitcnt vmcnt(12)"); A(flag(1))
            A("s_waitcnt vmcnt(9)"); A(flag(2))
            A("s_waitcnt vmcnt(6)"); A(flag(3))
        else:
            A("s_waitcnt vmcnt(4)"); A(flag(3))
        A(f"s_branch {L}_fin")
        A.label(L + "_short"); A.reset_state()
        for z in epilogue(2): A(z)
        if not PORD:
            A("s_waitcnt vmcnt(8)"); A(flag(1))
            A("s_waitcnt vmcnt(5)"); A(flag(2))
        else:
            A("s_waitcnt vmcnt(4)"); A(flag(2))
    A.label(L + "_fin"); A.reset_state()
    tls(A, 3)
    W.off()
    A("s_waitcnt vmcnt(0)")
    A(flag(4))

def fill_body(A, L):
    srd(A, 36, 18, MEMF_OFF + 8192, 63*MEMF_STRIDE)
    srd(A, 40, 18, PF_OFF, 64*PF_STRIDE)
    srd(A, 44, 18, MEMG_OFF, 64*8192)
    A("""v_mov_b32 v232, -1
    v_mov_b32 v233, -1
    v_mov_b32 v234, -1
    v_mov_b32 v235, -1
    s_lshl_b32 s25, s20, 2
    s_add_u32 s25, s25, s3
    s_lshl_b32 s25, s25, 10
    s_add_u32 s24, s25, 458752""")
    for sr in (36, 40, 44):
        for so in (25, 24): A(f"buffer_store_dwordx4 v[232:235], v4, s[{sr}:{sr+3}], s{so} offen sc1")
    A(f"s_lshl_b32 s28, s20, 7\ns_add_u32 s28, s28, {FLG_FILL}\ns_waitcnt vmcnt(0)\ns_barrier\ns_cmp_lg_u32 s3, 0\ns_cbranch_scc1 {L}_nf")
    flag_set(A, 48, 28, 6, 7)
    A.label(L + "_nf")

def ln_body(A, L):
    srd(A, 36, 4, 0, XN_SZ)
    srd(A, 68, 78, 0, 896)
    srd(A, 48, 18, XNF_OFF, XN_SZ)
    srd(A, 52, 18, R_OFF, 8192)
    srd(A, 64, 76, 0, 7168)
    A(f"""
    v_mul_u32_u24 v7, 896, v2
    v_lshl_add_u32 v7, v3, 4, v7
    v_lshlrev_b32 v5, 4, v3
    s_mul_i32 s24, s23, {16*896}
    """)
    X, W, F = 8, 64, 120
    for u in range(14): A(f"buffer_load_dwordx4 {v(X+4*u, 4)}, v7, s[36:39], s24 offen offset:{u*64}")
    WM = Warm(A, L + "_wm")
    for u in range(14): A(f"buffer_load_dwordx4 {v(W+4*u, 4)}, v5, s[68:71], 0 offen offset:{u*64}")
    A(f"""s_cmp_lg_u32 s23, 120
    s_cbranch_scc1 {L}_nomem
    v_lshrrev_b32 v6, 1, v2
    v_mul_u32_u24 v6, 896, v6
    v_lshl_add_u32 v6, v3, 5, v6
    v_and_b32 v5, 1, v2
    v_cmp_eq_u32 vcc, 1, v5
    """)
    for t in range(7):
        A(f"buffer_load_dwordx4 {v(F+8*t, 4)}, v6, s[64:67], 0 offen offset:{t*128}")
        A(f"buffer_load_dwordx4 {v(F+8*t+4, 4)}, v6, s[64:67], 0 offen offset:{t*128+16}")
    A("s_waitcnt vmcnt(0)\ns_mov_b32 s27, 0xfffefffe")
    for t in range(7):
        for aa in range(4):
            A(f"v_cndmask_b32 v{F+56+4*t+aa}, v{F+8*t+2*aa}, v{F+8*t+2*aa+1}, vcc")
            A(f"v_pk_min_u16 v{F+56+4*t+aa}, v{F+56+4*t+aa}, s27")
        A(f"s_mov_b32 s25, {t*1024}\nbuffer_store_dwordx4 {v(F+56+4*t, 4)}, v4, s[40:43], s25 offen sc1")
    A("s_waitcnt vmcnt(0)")
    A.label(L + "_nomem")
    WM.on()
    tls(A, 1)
    A("s_waitcnt vmcnt(14)")
    tls(A, 2)
    A("s_mov_b32 s26, 0xffff0000")
    A("s_mov_b32 s27, 0x3f803f80\nv_mov_b32 v236, 0\nv_mov_b32 v237, 0")
    for j in range(56):
        A(f"v_dot2_f32_bf16 v{236 + j % 2}, v{X+j}, s27, v{236 + j % 2}\nv_lshlrev_b32 v{F+2*j}, 16, v{X+j}\nv_and_b32 v{F+2*j+1}, s26, v{X+j}")
    inv = hex(struct.unpack('<I', struct.pack('<f', 1/448))[0])
    A("v_add_f32 v236, v236, v237")
    xreduce(A, "v_add_f32", 236, 237)
    A(f"v_mul_f32 v236, {inv}, v236\nv_mov_b32 v237, v236")
    A("v_mov_b32 v240, 0\nv_mov_b32 v241, 0\nv_mov_b32 v242, 0\nv_mov_b32 v243, 0")
    for j in range(0, 56, 2):
        A(f"v_pk_add_f32 v[244:245], {v(F+2*j,2)}, v[236:237] neg_lo:[0,1] neg_hi:[0,1]")
        A(f"v_pk_add_f32 v[246:247], {v(F+2*j+2,2)}, v[236:237] neg_lo:[0,1] neg_hi:[0,1]")
        A(f"v_pk_fma_f32 v[240:241], v[244:245], v[244:245], v[240:241]")
        A(f"v_pk_fma_f32 v[242:243], v[246:247], v[246:247], v[242:243]")
    A("v_pk_add_f32 v[240:241], v[240:241], v[242:243]\nv_add_f32 v240, v240, v241")
    xreduce(A, "v_add_f32", 240, 241)
    A(f"""v_mul_f32 v240, {inv}, v240
    v_cvt_pk_bf16_f32 v236, v236, v240
    v_and_b32 v240, s26, v236
    v_lshlrev_b32 v236, 16, v236
    v_add_f32 v240, {hex(struct.unpack('<I', struct.pack('<f', 1e-5))[0])}, v240
    v_cvt_pk_bf16_f32 v240, v240, v240
    v_and_b32 v240, s26, v240
    v_sqrt_f32 v240, v240
    v_mov_b32 v237, v236
    v_cvt_pk_bf16_f32 v240, v240, v240
    v_and_b32 v240, s26, v240
    v_rcp_f32 v240, v240
    s_nop 0
    v_mov_b32 v241, v240
    s_mul_i32 s25, s23, {14*1024}""")
    for j in range(56):
        A(f"v_pk_add_f32 {v(F+2*j,2)}, {v(F+2*j,2)}, v[236:237] neg_lo:[0,1] neg_hi:[0,1]")
        A(f"v_cvt_pk_bf16_f32 v{X+j}, v{F+2*j}, v{F+2*j+1}")
        A(f"v_lshlrev_b32 v{F+2*j}, 16, v{X+j}\nv_and_b32 v{F+2*j+1}, s26, v{X+j}")
        A(f"v_pk_mul_f32 {v(F+2*j,2)}, {v(F+2*j,2)}, v[240:241]")
        A(f"v_cvt_pk_bf16_f32 v{X+j}, v{F+2*j}, v{F+2*j+1}")
        if j % 4 == 3:
            u = j // 4
            A(f"buffer_store_dwordx4 {v(X+4*u, 4)}, v4, s[48:51], s25 offen offset:{(u % 4)*1024} sc1")
            if u % 4 == 3: A("s_add_u32 s25, s25, 4096")
    A("s_waitcnt vmcnt(14)")
    A("v_mov_b32 v240, 0\nv_mov_b32 v241, 0")
    for j in range(56): A(f"v_dot2_f32_bf16 v{240 + j % 2}, v{X+j}, v{W+j}, v{240 + j % 2}")
    A("v_add_f32 v240, v240, v241")
    xreduce(A, "v_add_f32", 240, 241)
    A(f"""v_cvt_pk_bf16_f32 v240, v240, v240
    v_and_b32 v240, s26, v240
    v_lshlrev_b32 v241, 2, v2
    s_lshl_b32 s25, s23, 6
    s_mov_b64 exec, 0xffff
    buffer_store_dword v240, v241, s[52:55], s25 offen sc1
    s_mov_b64 exec, -1""")
    WM.off()
    tls(A, 3)

KD = """
.section .rodata,"a"
.p2align 6
.amdhsa_kernel {name}
  .amdhsa_next_free_vgpr {nv}
  .amdhsa_next_free_sgpr 102
  .amdhsa_accum_offset 256
  .amdhsa_group_segment_fixed_size 0
  .amdhsa_kernarg_size 120
  .amdhsa_user_sgpr_count 2
  .amdhsa_user_sgpr_kernarg_segment_ptr 1
  .amdhsa_system_sgpr_workgroup_id_x 1
.end_amdhsa_kernel
"""

def build(kernels):
    out = []
    for name, fn, grid, lds in kernels:
        if len(kernels) == 1 and not os.environ.get("ASLIST"): out.append(f"; @launch grid=({grid},1,1) block=(256,1,1) lds={lds}")
        else: out.append(f"; @launch kernel={name} grid=({grid},1,1) block=(256,1,1) lds={lds}")
    out.append('.amdgcn_target "amdgcn-amd-amdhsa--gfx950"\n.text')
    for name, fn, grid, lds in kernels:
        A = Asm()
        fn(A)
        out.append(f".globl {name}\n.p2align 8\n.type {name},@function")
        out.append(A.text())
    for name, fn, grid, lds in kernels:
        out.append(KD.format(name=name, nv=256 if name in ('gemm2_kernel', 'xattn_kernel') else 512))
    return '\n'.join(out)

if __name__ == "__main__":
    import kmain
    ks = [(NAME + "_kernel", kmain.kmain, 256, 163840)]
    sys.stdout.write(build(ks))
```

```python
from asmlib import *
import gen as G
from gen import srd, lane_setup, xreduce, wreg, flag_set, flag_wait, tl, tl_dump
from kernels2 import tile_c, load_weights7, f2h
import os
SPIN_MAX = 1 << 22
NINF = "0xff800000"
STAMP = int(os.environ.get("STAMP", "0"))
HU_P_AT = int(os.environ.get("HU_P_AT", "2"))
HU_M_AT = int(os.environ.get("HU_M_AT", "2"))
A_DMA = int(os.environ.get("A_DMA", "0"))
DSP = int(os.environ.get("DSP", "3"))
DSPB = int(os.environ.get("DSPB", "2"))
NT = os.environ.get("NT", "")
SBLK = int(os.environ.get("SBLK", "1"))
HUI = int(os.environ.get("HUI", "14"))
F2 = 99
ONEP = int(os.environ.get("ONEP", "1"))
HB = int(os.environ.get("HB", "3"))
DWST = int(os.environ.get("DWST", "0"))
XSM = int(os.environ.get("XSM", "0"))
XS0 = int(os.environ.get("XS0", "6"))
WD = int(os.environ.get("WD", "4"))
TMODE = int(os.environ.get("TMODE", "1"))
TWV = 3 if TMODE == 0 else 0
DBG2_OFF = 0x5E00000
QP = "quad_perm:[1,0,3,2] row_mask:0xf bank_mask:0xf"

def stamp(A, k):
    if STAMP: A(f"{'s_memrealtime' if STAMP == 2 else 's_memtime'} s[{4+2*k}:{5+2*k}]")
def stamp_cnt(A, k):
    if STAMP: A(f"s_mov_b32 s{16+k}, s27")
def stamp_out(A, tmp, lds, nw):
    if not STAMP: return
    lab = f"STK{len(A.lines)}"
    A(f"s_waitcnt lgkmcnt(0)\ns_lshr_b32 s28, s64, 4\ns_cmp_lg_u32 s28, {SBLK}\ns_cbranch_scc1 {lab}\ns_cmp_ge_u32 s3, {nw}\ns_cbranch_scc1 {lab}")
    for k in range(6): A(f"v_mov_b32 v{tmp+k}, s{4+2*k}")
    A(f"v_mov_b32 v{tmp+6}, s16\nv_mov_b32 v{tmp+7}, s17")
    A(f"""s_lshl_b32 s28, s3, 4
    s_add_u32 s28, s28, s64
    s_lshl_b32 s28, s28, 5
    s_add_u32 s28, s28, {lds - 512*SBLK}
    v_mov_b32 v{tmp+8}, s28
    ds_write_b128 v{tmp+8}, {v(tmp, 4)}
    ds_write_b128 v{tmp+8}, {v(tmp+4, 4)} offset:16""")
    A.label(lab)
def stamp_dump(A, lds):
    if not STAMP: return
    A(f"""s_lshl_b32 s28, s3, 9
    v_bfe_u32 v8, v4, 4, 4
    v_lshlrev_b32 v8, 5, v8
    v_add_u32 v9, s28, v8
    v_add_u32 v9, {lds}, v9
    v_min_u32 v9, {163840 - 32}, v9
    s_lshl_b32 s28, s3, 11
    s_add_u32 s28, s28, 512
    v_add_u32 v8, s28, v8
    s_waitcnt lgkmcnt(0)
    ds_read_b128 v[12:15], v9
    ds_read_b128 v[16:19], v9 offset:16
    s_lshl_b32 s28, s21, 13
    s_waitcnt lgkmcnt(0)
    buffer_store_dwordx4 v[12:15], v8, s[60:63], s28 offen
    buffer_store_dwordx4 v[16:19], v8, s[60:63], s28 offen offset:16""")

def team_flavor(A, bail, va=5, vb=6):
    A(f"v_lshlrev_b32 v{va}, 2, v1\ns_mov_b32 s27, 0\ns_mov_b32 exec_hi, 0")
    L = bail + "_fl" + str(len(A.lines))
    A.label(L)
    A(f"""
    buffer_load_dword v{vb}, v{va}, s[60:63], 0 offen offset:128 sc1
    s_add_u32 s27, s27, 1
    s_cmp_gt_u32 s27, {SPIN_MAX}
    s_cbranch_scc1 {bail}
    s_waitcnt vmcnt(0)
    v_cmp_eq_u32 vcc, 0, v{vb}
    s_cbranch_vccnz {L}
    v_cmp_ne_u32 vcc, s35, v{vb}
    s_mov_b64 exec, -1
    s_cmp_lg_u64 vcc, 0
    s_cselect_b32 s65, 1, 0
    """)
    if STAMP: srd(A, 60, 18, DBG2_OFF, 32*4*64*32)

HUD = int(os.environ.get("HUD", "3"))
def hu_wait(A, L, srdn, voff, soff, hr, bail, HUD=HUD):
    ld = lambda k: f"buffer_load_dword v{hr[k]}, v{voff}, s[{srdn}:{srdn+3}], s{soff} offen sc1"
    A("s_mov_b32 s27, 0")
    for k in range(HUD - 1): A(ld(k))
    A.label(L)
    for k in range(HUD):
        A(ld((k + HUD - 1) % HUD))
        A(f"s_waitcnt vmcnt({HUD-1})\nv_cmp_eq_u32 vcc, -1, v{hr[k]}\ns_cbranch_vccz {L}_ok")
    A(f"s_add_u32 s27, s27, 1\ns_cmp_gt_u32 s27, {SPIN_MAX}\ns_cbranch_scc0 {L}\ns_branch {bail}")
    A.label(L + "_ok")

def frag_loads(A, n, reg0, srdn, voff, soffs):
    for t in range(n):
        A(f"buffer_load_dwordx4 {v(reg0+4*t, 4)}, v{voff}, s[{srdn}:{srdn+3}], s{soffs[t // 4]} offen offset:{(t % 4)*1024} sc1")

def exact_check(A, L, n, reg0, tmp, retry, back, bail):
    A.label(L); A.reset_state()
    A("s_waitcnt vmcnt(0)")
    tmp, t2 = tmp if isinstance(tmp, tuple) else (tmp, tmp + 1)
    A(f"v_pk_max_u16 v{tmp}, v{reg0}, v{reg0+1}")
    for r in range(reg0 + 2, reg0 + 4*n): A(f"v_pk_max_u16 v{tmp}, v{tmp}, v{r}")
    A(f"""v_lshlrev_b32 v{t2}, 16, v{tmp}
    v_max_u32 v{tmp}, v{tmp}, v{t2}
    v_cmp_le_u32 vcc, s26, v{tmp}
    s_cbranch_vccz {back}
    s_add_u32 s27, s27, 1
    s_cmp_gt_u32 s27, {SPIN_MAX}
    s_cbranch_scc1 {bail}
    s_branch {retry}""")

def dma_ops(n, srdn, sg, sl, fl=''):
    o = []
    for k in range(n):
        pre = ""
        if k == 0: pre = f"s_mov_b32 m0, s{sl}\n"
        elif k % 4 == 0:
            pre = "s_add_u32 m0, m0, 4096\n"
            if not isinstance(sg, tuple): pre = f"s_add_u32 s{sg}, s{sg}, 4096\n" + pre
        g = sg[k // 4] if isinstance(sg, tuple) else sg
        o.append(pre + f"buffer_load_dwordx4 v4, s[{srdn}:{srdn+3}], s{g} offen offset:{(k % 4)*1024}{fl} lds")
    return o

TL, SMX, MFLA, XSL = 0, 7168, 8192, 32768
MF, TA, XB = 8, 36, 64
VTOUCH = int(os.environ.get("VTOUCH", "1"))

def mem_fetch(A, base, behind=()):
    A(f"s_mov_b32 s97, {base}")
    for z in dma_ops(7, 40, (32, 34), 97, " sc1"): A(z)
    for z in behind: A(z)
    A(f"s_waitcnt vmcnt({len(behind)})")

def a_xb_load(A):
    A(f"s_mul_i32 s28, s33, 28672\ns_add_u32 s28, s28, s94")
    for k in range(14):
        if k and k % 4 == 0: A("s_add_u32 s28, s28, 4096")
        A(f"buffer_load_dwordx4 {v(XB+4*k, 4)}, v4, s[52:55], s28 offen offset:{(k % 4)*1024}")

def a_xs_ops():
    return dma_ops(10, 52, (84, 85, 86), 87)
def a_xs_addr(A):
    A("s_mul_i32 s84, s33, 28672\ns_add_u32 s84, s84, s88\ns_add_u32 s85, s84, 4096\ns_add_u32 s86, s84, 8192")
def a_xb_lds(A):
    A(f"s_add_u32 s28, s94, {XSL}\nv_add_u32 v{MF}, s28, v4")
    for k in range(14): A(f"ds_read_b128 {v(XB+4*k, 4)}, v{MF} offset:{k*1024}")
    A("s_waitcnt lgkmcnt(0)")

def a_loop(A, role, fl, W=None):
    L = f"K3a{role}f{fl}"
    sc = " sc1" if fl else ""
    if role == 1:
        A("s_mov_b32 s33, 0"); a_xb_load(A); A("s_waitcnt vmcnt(0)")
    A.label(L + "_loop"); A.reset_state()
    if W: W.on(every=64)
    stamp(A, 0)
    A(f"""s_lshl_b32 s32, s64, 13
    s_add_u32 s34, s32, 4096
    s_add_u32 s33, s64, 1
    s_min_u32 s33, s33, 63""")
    zero = [f"v_mov_b32 v{r}, 0" for r in range(TA, TA + 28)]
    for z in zero: A(z)
    if XSM and role: a_xs_addr(A)
    if VTOUCH and role == TWV: A(f"s_mul_i32 s30, s33, {G.SEG_SZ}")
    if role == TWV and VTOUCH:
        A(f"""s_lshl_b32 s29, s33, 13
        s_add_u32 s29, s29, 8192
        s_waitcnt vmcnt(0)
        v_cmp_ne_u32 vcc, s96, v115
        s_cmp_eq_u64 vcc, 0
        s_cselect_b32 s93, s94, 0x40000000
        s_add_u32 s30, s30, s93""")
    if role == 0:
        A(f"v_mov_b32 v{XB+4}, {NINF}\nv_mov_b32 v{XB+5}, {NINF}\ns_mul_i32 s31, s64, {G.PF_STRIDE}")
        A(f"s_cmp_eq_u32 s64, 0\ns_cbranch_scc1 {L}_hu_ok")
        hu_wait(A, L + "_hu", 40, 111, 32, (108, 109, 107), "K3_end")
    stamp(A, 1)
    A("s_mov_b32 s27, 0")
    A.label(L + "_go"); A.reset_state()
    if W and G.PADS: A.pad[4] = False
    tch = [f"buffer_load_dword v119, v118, s[48:51], s30 offen sc1\ns_add_u32 s30, s30, 4096" for k in range(7)] + ["buffer_load_dword v115, v114, s[56:59], s29 offen sc1"]
    nb = len(tch) if (VTOUCH and TMODE == 1) else 0
    if role == 0:
        A(f"s_mov_b32 s97, {MFLA}")
        for z in dma_ops(7, 40, (32, 34), 97, " sc1") + (tch if nb else []): A(z)
        A(f"s_waitcnt vmcnt({5 + nb})")
    A("s_barrier")
    for t in range(2): A(f"ds_read_b128 {v(MF+4*t, 4)}, v1 offset:{t*1024}")
    smf = lambda d, t, B: f"v_smfmac_f32_16x16x64_bf16 {v(d, 4)}, {v(MF+4*t, 4)}, {B}, v2"
    def emit(z, side=None):
        A(z)
        if side: A(side)
        else: A.pad_ok()
    for t in range(2):
        if t == 0 or HB < 7: A(f"s_waitcnt lgkmcnt({(1 - t) if t == 0 else 5})")
        else: A("s_waitcnt lgkmcnt(0)")
        if t == 0: stamp(A, 2)
        for i in range(7):
            emit(smf(TA + 4*i, t, wreg(i, 2*t, 8)))
            if 7*t + i == HB:
                A((f"s_waitcnt vmcnt({nb})\n" if role == 0 else "") + "s_barrier")
                for tt in range(2, 7): A(f"ds_read_b128 {v(MF+4*tt, 4)}, v1 offset:{tt*1024}")
    for t in range(2, 7):
        A(f"s_waitcnt lgkmcnt({6 - t})")
        A(smf(TA, t, wreg(0, 2*t, 8))); A.pad_ok(); A(smf(TA+4, t, wreg(1, 2*t, 8)))
    def fin(x): return [f"v_add_f32 v{x}, v{x}, v{x+1}", f"v_add_f32 v{x+2}, v{x+2}, v{x+3}", f"v_cvt_pk_bf16_f32 v{x}, v{x}, v{x+2}"]
    def post_pair(p):
        x, y = TA + 8*p, TA + 8*p + 4
        return fin(x) + fin(y) + [f"ds_write2st64_b32 v5, v{x}, v{y} offset0:{2*p} offset1:{2*p+1}"]
    b = TA
    chk = [f"v_add_f32 v{b}, v{b}, v{b+1}", f"v_add_f32 v{b+2}, v{b+2}, v{b+3}", f"v_cmp_u_f32 vcc, v{b}, v{b+2}",
           f"s_cbranch_vccnz {L}_slow\n{L}_back:"]
    zs = [f"v_mov_b32 v{TA+r}, 0" for r in range(4)] if role == 1 else []
    main = [smf(TA + 8*p + 4*e, t, wreg(2*p + e, 2*t, 8)) for p in (1, 2) for t in range(2, 7) for e in range(2)] + [smf(TA+24, t, wreg(6, 2*t, 8)) for t in range(2, 7)]
    side = [None]*3 + chk + post_pair(0)[2:] + [None] + post_pair(1) + [zs[0] if zs else None]*1
    rest = zs[1:] + post_pair(2)
    xs = a_xs_ops() if (XSM and role) else []
    for k, z in enumerate(main):
        emit(z, side[k] if k < len(side) else None)
        if xs and k >= XS0 and (k - XS0) % 2 == 0 and k < 22: A(xs.pop(0))
        if k >= 22 and rest: A(rest.pop(0)); A(rest.pop(0))
    for z in rest + fin(TA+24) + [f"ds_write_b32 v6, v{TA+24}"]: A(z)
    stamp(A, 3); stamp_cnt(A, 0)
    A("s_waitcnt lgkmcnt(0)\ns_barrier")
    stamp(A, 4)
    treg = lambda t: MF if (role == 1 and t == 0) else TA + 4*t
    if role == 3:
        for z in xs: A(z)
        xs = []
    tr = lambda t: [f"ds_read_b64_tr_b16 {v(treg(t) + 2*z, 2)}, v0 offset:{t*1024 + z*32}" for z in range(2)]
    if role != 3:
        for t in range(7):
            for z in tr(t): A(z)
    if role == 1:
        D = TA
        for t in range(7):
            A(f"s_waitcnt lgkmcnt({2*(6-t)})" + (" vmcnt(0)" if (t == 0 and not XSM) else ""))
            A(f"v_smfmac_f32_16x16x64_bf16 {v(D, 4)}, {v(treg(t), 4)}, {v(XB+8*t, 8)}, v3"); A.pad_ok()
        A(f"""v_permlane32_swap_b32 v{D}, v{D+1}
        v_permlane32_swap_b32 v{D+2}, v{D+3}
        v_add_f32 v{D}, v{D}, v{D+1}
        v_add_f32 v{D+2}, v{D+2}, v{D+3}
        ds_write2_b32 v7, v{D}, v{D+2} offset0:0 offset1:32
        s_waitcnt lgkmcnt(0)
        s_barrier""")
        for z in xs: A(z)
        A("s_waitcnt vmcnt(0)\ns_barrier")
        if XSM: a_xb_lds(A)
        else: a_xb_load(A)
    if role == 3: A("s_barrier\ns_waitcnt vmcnt(0)\ns_barrier")
    if role == 0:
        X, R, D = XB, XB + 4, XB + 8
        m, t1, l = XB+12, XB+13, XB+14
        for t in range(7):
            A(f"s_waitcnt lgkmcnt({2*(6-t)})")
            A(f"v_mfma_f32_16x16x32_bf16 {v(D, 4)}, {v(MF+4*t, 4)}, {v(TA+4*t, 4)}, {v(D, 4) if t else '0'}"); A.pad_ok()
        A(f"v_add_f32_dpp v{R}, v{D+1}, v{D} row_ror:8 row_mask:0xf bank_mask:0x3")
        A(f"v_add_f32_dpp v{R+1}, v{D+3}, v{D+2} row_ror:8 row_mask:0xf bank_mask:0x3")
        A(f"v_max_f32 v{m}, v{R}, v{R+1}\ns_barrier")
        class Rec:
            def __init__(s): s.l = []
            def __call__(s, t): s.l += [x.strip() for x in t.split("\n") if x.strip()]
        Q = Rec()
        Q(f"""ds_read_b64 {v(X, 2)}, v7
        ds_read_b64 {v(X+2, 2)}, v7 offset:512
        s_waitcnt lgkmcnt(1)
        v_max3_f32 v{m}, v{m}, v{X}, v{X+1}
        s_waitcnt lgkmcnt(0)
        v_max3_f32 v{m}, v{m}, v{X+2}, v{X+3}""")
        xreduce(Q, "v_max_f32", m, t1, steps=(8, 16, 32))
        for r in (X, X+2, R): Q(f"v_pk_add_f32 {v(r, 2)}, {v(r, 2)}, {v(m, 2)} op_sel_hi:[1,0] neg_lo:[0,1] neg_hi:[0,1]")
        for r in range(6): Q(f"v_exp_f32 v{X+r}, v{X+r}")
        Q(f"""v_pk_add_f32 {v(l, 2)}, {v(X, 2)}, {v(X+2, 2)}
        v_pk_add_f32 {v(l, 2)}, {v(l, 2)}, {v(R, 2)}
        v_add_f32 v{l}, v{l}, v{l+1}""")
        xreduce(Q, "v_add_f32", l, t1, steps=(8, 16, 32))
        Q(f"v_rcp_f32 v{l}, v{l}")
        for r in (X, X+2, R): Q(f"v_pk_mul_f32 {v(r, 2)}, {v(r, 2)}, {v(l, 2)} op_sel_hi:[1,0] clamp")
        Q(f"""v_cvt_pk_bf16_f32 v{X}, v{X}, v{X+1}
        v_cvt_pk_bf16_f32 v{X+1}, v{X+2}, v{X+3}
        buffer_store_dwordx2 {v(X, 2)}, v116, s[44:47], s31 offen{sc}
        v_cvt_pk_bf16_f32 v{R}, v{R}, v{R+1}
        buffer_store_dword v{R}, v117, s[44:47], s31 offen{sc}
        s_barrier""")
        Q.l.insert(HUI, f"buffer_store_dword v112, v110, s[40:43], s32 offen{sc}")
        for z in Q.l: A(z)
    stamp(A, 5)
    if role == 0: tl(A, 0, 64)
    if role == 3 and G.TLM: A("s_memtime s[100:101]\ns_min_u32 m0, s64, 57\ns_waitcnt lgkmcnt(0)\nv_writelane_b32 v113, s100, m0")
    stamp_out(A, TA + 8, MFLA + 7168, 4)
    A(f"s_add_u32 s64, s64, 1\ns_cmp_lt_u32 s64, 63")
    A.flush()
    A(f"s_cbranch_scc1 {L}_loop")
    if W: W.off(1)
    stamp_dump(A, MFLA + 7168)
    if role != 1: tl_dump(A, 1)
    if G.TLM == 2 and role != 1:
        lanes = [63, 0, 1, 2, 4, 8, 16, 32, 62] if role == 0 else [58, 59, 60, 61, 62, 63]
        A(f"s_cmp_lg_u32 s21, 0\ns_cbranch_scc1 K3_end")
        srd(A, 60, 16, 0, 256)
        for k, ln in enumerate(lanes):
            A(f"v_readlane_b32 s28, v113, {ln}\ns_nop 3\nv_mov_b32 v8, s28\nv_mov_b32 v9, {4*(k + (0 if role == 0 else 9))}\ns_mov_b64 exec, 1\nbuffer_store_dword v8, v9, s[60:63], 0 offen\ns_mov_b64 exec, -1")
    A("s_branch K3_end")
    exact_check(A, L + "_slow", 7, MF, (TA + 1, TA + 3), L + "_retry", L + "_back", "K3_end")
    A.label(L + "_retry"); A.reset_state()
    for z in zero: A(z)
    if VTOUCH and role == TWV: A(f"s_mov_b32 s30, 0x40000000")
    A(f"s_barrier\ns_branch {L}_go")

def a_cu(A):
    A(f"s_mul_i32 s26, s22, {G.WF_UNIT}\ns_add_u32 s26, s26, {hex(G.WF_OFF)}")
    srd(A, 36, 18, "s26", G.WF_UNIT)
    srd(A, 48, 18, G.VOF_OFF, 64*G.SEG_SZ)
    srd(A, 52, 18, G.XNF_OFF, G.XN_SZ)
    srd(A, 56, 18, G.FLG_OFF, G.FLG_SZ)
    A(f"v_min_u32 v5, 27, v1\nv_lshlrev_b32 v5, 7, v5\ns_mul_i32 s29, s22, 3584\ns_add_u32 s29, s29, {G.FLG_PROD}")
    WA = {}
    if G.PADS:
        A("s_cmp_eq_u32 s3, 0\ns_cbranch_scc1 K3a_w0\ns_cmp_eq_u32 s3, 3\ns_cbranch_scc1 K3a_w3")
        for r in (1, 0, 3):
            if r != 1: A.label(f"K3a_w{r}")
            WA[r] = G.Warm(A, f"K3a_wm{r}")
            A("s_branch K3a_wd")
        A.label("K3a_wd")
    for k in range(4):
        G.stage_wait(A, f"K3a_wp{k}", 56, 5, 29, 6, k + 1, "K3_end")
        if k == 0: tl(A, 62)
        A(f"s_mul_i32 s28, s3, {7*14336}\ns_add_u32 s28, s28, {k*4096}")
        for i in range(7):
            for u in range(4*k, min(14, 4*k + 4)):
                A(f"buffer_load_dwordx4 {wreg(i, u)}, v4, s[36:39], s28 offen offset:{(u % 4)*1024} sc1")
            A("s_add_u32 s28, s28, 14336")
    team_flavor(A, "K3_end")
    A("s_mul_i32 s28, s3, 7\ns_add_u32 s30, s28, 6")
    A(f"""
    v_lshrrev_b32 v8, 1, v3
    v_and_b32 v9, 1, v3
    v_lshlrev_b32 v7, 7, v8
    v_lshl_add_u32 v7, v2, 3, v7
    v_lshl_add_u32 v7, v9, 2, v7
    s_lshl_b32 s28, s28, 8
    v_add_u32 v5, s28, v7
    s_lshl_b32 s30, s30, 8
    v_add_u32 v6, s30, v7
    s_mov_b32 s64, 0
    s_mov_b32 s26, 0xffff0000
    v_lshrrev_b32 v10, 2, v2
    v_and_b32 v11, 3, v2
    v_lshrrev_b32 v12, 1, v10
    v_lshl_add_u32 v12, v8, 1, v12
    v_lshlrev_b32 v0, 8, v12
    v_and_b32 v12, 1, v11
    v_lshl_add_u32 v0, v12, 7, v0
    v_lshlrev_b32 v12, 3, v9
    v_and_b32 v13, 2, v11
    v_add_u32 v12, v12, v13
    v_and_b32 v13, 1, v10
    v_add_u32 v12, v12, v13
    v_lshl_add_u32 v0, v12, 3, v0
    s_sub_u32 s28, s3, 1
    s_and_b32 s28, s28, 1
    s_mul_i32 s94, s28, 14336
    s_lshl_b32 s28, s28, 9
    s_add_u32 s28, s28, {SMX}
    v_lshl_add_u32 v7, v9, 2, v8
    v_lshlrev_b32 v7, 6, v7
    v_lshl_add_u32 v7, v2, 2, v7
    v_add_u32 v7, s28, v7
    v_lshlrev_b32 v118, 6, v1
    s_mul_i32 s28, s22, 28672
    s_cmp_eq_u32 s3, {TWV}
    s_cselect_b32 s94, s28, s94
    v_and_b32 v12, 7, v2
    v_lshrrev_b32 v13, 3, v2
    v_lshlrev_b32 v14, 6, v12
    v_lshl_add_u32 v14, v3, 4, v14
    v_lshl_add_u32 v14, v13, 3, v14
    v_add_u32 v14, {SMX}, v14
    s_cmp_eq_u32 s3, 0
    s_cselect_b64 vcc, -1, 0
    v_cndmask_b32 v7, v7, v14, vcc
    v_lshlrev_b32 v116, 5, v12
    v_lshl_add_u32 v116, v13, 4, v116
    v_lshl_add_u32 v116, v8, 8, v116
    v_lshl_add_u32 v116, v9, 3, v116
    s_lshl_b32 s28, s22, 9
    v_add_u32 v116, s28, v116
    v_lshlrev_b32 v117, 5, v12
    v_lshl_add_u32 v117, v8, 8, v117
    v_lshl_add_u32 v117, v9, 3, v117
    s_lshr_b32 s28, s22, 2
    s_lshl_b32 s28, s28, 9
    s_and_b32 s29, s22, 1
    s_lshl_b32 s29, s29, 4
    s_add_u32 s28, s28, s29
    s_bfe_u32 s29, s22, 0x10001
    s_lshl_b32 s29, s29, 2
    s_add_u32 s28, s28, s29
    s_add_u32 s28, s28, 8192
    v_add_u32 v117, s28, v117
    v_mov_b32 v14, 0x7ffffff0
    v_cmp_gt_u32 vcc, 8, v2
    v_cndmask_b32 v117, v14, v117, vcc
    v_min_u32 v114, 15, v1
    v_lshlrev_b32 v114, 7, v114
    v_add_u32 v114, 2048, v114
    v_min_u32 v111, 27, v1
    v_lshlrev_b32 v111, 2, v111
    v_add_u32 v111, 7168, v111
    v_mov_b32 v112, 0
    s_mov_b32 s28, 8192
    buffer_load_dword v115, v114, s[56:59], s28 offen sc1
    s_lshl_b32 s29, s22, 2
    s_add_u32 s29, s29, {8192 + 7296}
    v_mov_b32 v110, s29
    v_cmp_eq_u32 vcc, 0, v1
    v_cndmask_b32 v110, v14, v110, vcc
    v_mov_b32 v12, 0x4444
    v_mov_b32 v14, 0xeeee
    v_cmp_lt_u32 vcc, 7, v2
    v_cndmask_b32 v3, v12, v14, vcc
    v_and_b32 v2, 1, v2
    v_cmp_eq_u32 vcc, 1, v2
    v_cndmask_b32 v2, v12, v14, vcc
    v_add_u32 v1, {MFLA}, v4
    s_sub_u32 s88, s3, 1
    s_mul_i32 s88, s88, 9216
    s_add_u32 s87, s88, {XSL}
    s_waitcnt vmcnt(0)""")
    if G.TLM: A("s_cmp_lg_u32 s3, 3\ns_cbranch_scc1 K3a_tl\ns_memrealtime s[100:101]\ns_waitcnt lgkmcnt(0)\nv_writelane_b32 v113, s100, 63\nK3a_tl:")
    A("""s_cmp_lg_u32 s65, 0
    s_cbranch_scc1 K3a_fl1""")
    for fl in (0, 1):
        if fl: A.label("K3a_fl1"); A.reset_state()
        A(f"s_cmp_eq_u32 s3, 0\ns_cbranch_scc1 K3a_r0f{fl}\ns_cmp_eq_u32 s3, 3\ns_cbranch_scc1 K3a_r3f{fl}")
        for role in (1, 0, 3):
            if role != 1: A.label(f"K3a_r{role}f{fl}"); A.reset_state()
            a_loop(A, role, fl, WA.get(role) if fl == 0 else None)

WL, VOL, WZL, MFLB = 0, 114688, 147456, 155648
def wregB(i, u, n=4):
    idx = 56*i + 4*u
    if idx < 256:
        assert idx + n <= 256
        return a_(idx, n)
    return v(176 + idx - 256, n)
BA, LW, Z, PFR, PA, KEEP, KEEPM = 36, 68, 36, 116, 156, 100, 152

def b_loop(A, fl, W=None):
    L = f"K3bf{fl}"
    sc = " sc1" if fl else ""
    A.label(L + "_loop"); A.reset_state()
    zero = [f"v_mov_b32 v{r}, 0" for r in range(BA, BA + 32)]
    for z in zero: A(z)
    lw = lambda k: LW + (k % 4)*8
    def rdw(k):
        for z in range(2): A(f"ds_read_b128 {v(lw(k) + 4*z, 4)}, v5 offset:{(k // 7)*14336 + (2*(k % 7) + z)*1024}")
    for k in range(4): rdw(k)
    A(f"""s_lshl_b32 s32, s64, 13
    s_add_u32 s34, s32, 4096
    s_mul_i32 s30, s64, {G.SEG_SZ}
    s_lshl_b32 s31, s22, 15
    s_add_u32 s30, s30, s31
    s_lshl_b32 s31, s3, 13
    s_add_u32 s30, s30, s31
    s_add_u32 s29, s30, 4096
    s_add_u32 s31, s31, {VOL}
    s_lshl_b32 s28, s3, 10
    s_add_u32 s28, s28, s66
    v_add_u32 v174, s28, v4
    v_lshlrev_b32 v163, 3, v4
    v_min_u32 v163, 1920, v163
    v_add_u32 v163, 2048, v163""")
    stamp(A, 0)
    A(f"s_lshl_b32 s28, s64, 13\ns_add_u32 s33, s28, 8192\ns_cmp_lg_u32 s3, 3\ns_cbranch_scc1 {L}_wv_ok\nv_cmp_ne_u32 vcc, s96, v0\ns_cbranch_vccz {L}_wv_ok")
    flag_wait(A, L + "_wv", 68, 163, 28, PFR, "K3_end", sleep=2)
    A(f"s_mov_b32 s27, 0\ns_waitcnt lgkmcnt(0)\ns_cmp_lg_u32 s3, 2\ns_cbranch_scc1 {L}_join\ns_cmp_eq_u32 s64, 0\ns_cbranch_scc1 {L}_hm_ok")
    hu_wait(A, L + "_hm", 40, 161, 32, (PFR, PFR+1, PFR+2), "K3_end")
    A("s_mov_b32 s27, 0")
    A.label(L + "_go"); A.reset_state()
    mem_fetch(A, MFLB)
    A.label(L + "_join")
    A("s_barrier")
    for t in range(7): A(f"ds_read_b128 {v(MF+4*t, 4)}, v162 offset:{t*1024}")
    sm0 = lambda i, t, B: f"v_smfmac_f32_16x16x64_bf16 {v(BA+4*i, 4)}, {v(MF+4*t, 4)}, {B}, v160"
    dm = dma_ops(8, 48, (30, 29), 31, ' sc1') + ["buffer_load_dword v0, v163, s[68:71], s33 offen sc1"]
    cnt = [0, 15]
    def sm(i, t, B):
        cnt[0] += 1
        z = sm0(i, t, B) if (i == 0 or not os.environ.get("NOW")) else "s_nop 3"
        if dm and cnt[0] >= cnt[1]: z += "\n" + dm.pop(0); cnt[1] = cnt[0] + DSPB
        return z
    for t in range(7):
        A(f"s_waitcnt lgkmcnt({6 - t})")
        if t == 0: stamp(A, 1)
        A(sm(0, t, wregB(0, 2*t, 8)))
    for t in range(7):
        A(sm(1, t, wregB(1, 2*t, 8)))
        if t == 3: A(f"v_add_f32 v{BA}, v{BA}, v{BA+1}")
        if t == 4: A(f"v_add_f32 v{BA+2}, v{BA+2}, v{BA+3}")
        if t == 5: A(f"v_cmp_u_f32 vcc, v{BA}, v{BA+2}")
        if t == 6: A(f"s_cbranch_vccnz {L}_slowm\n{L}_backm:")
    stamp_cnt(A, 0)
    for k in range(14):
        A(f"s_waitcnt lgkmcnt({2*min(3, 13-k)})")
        A(sm(6 + k // 7, k % 7, v(lw(k), 8)))
        i = 2 + k // 7
        A(sm(i, k % 7, wregB(i, 2*(k % 7), 8)))
        if k + 4 < 14: rdw(k + 4)
    def fin(i):
        x = BA + 4*i
        o = [] if i == 0 else [f"v_add_f32 v{x}, v{x}, v{x+1}", f"v_add_f32 v{x+2}, v{x+2}, v{x+3}"]
        return o + [f"v_cvt_pk_bf16_f32 v{164+i}, v{x}, v{x+2}"]
    side = fin(0) + fin(1) + fin(2) + fin(6) + fin(3) + [f"ds_write_b128 v174, v[164:167]"]
    for t in range(7):
        for i in (4, 5):
            A(sm(i, t, wregB(i, 2*t, 8)))
            if side: A(side.pop(0))
    for z in side + fin(7) + fin(4) + fin(5) + [f"ds_write_b128 v174, v[168:171] offset:4096"]: A(z)
    stamp(A, 2)
    A(f"s_waitcnt vmcnt(0) lgkmcnt(0)\ns_barrier\ns_cmp_ge_u32 s3, 2\ns_cbranch_scc1 {L}_idle")
    A("s_lshl_b32 s28, s24, 12\ns_add_u32 s28, s28, s66\nv_add_u32 v163, s28, v4")
    for f in range(16):
        A(f"ds_read_b128 {v(Z + 4*f, 4)}, v6 offset:{f*1024}")
        if f == 11: A("s_waitcnt lgkmcnt(4)")
    for f in range(4): A(f"ds_read_b128 {v(Z + 64 + 4*f, 4)}, v163 offset:{f*1024}")
    for r in range(4): A(f"v_mov_b32 v{PA+r}, 0")
    A(f"""s_mul_i32 s28, s64, {G.PF_STRIDE}
    s_add_u32 s29, s28, 4096
    s_add_u32 s30, s28, 8192
    s_add_u32 s34, s32, 8192
    s_waitcnt lgkmcnt(0)""")
    stamp(A, 3)
    if ONEP: A(f"s_cmp_lg_u32 s3, 0\ns_cbranch_scc1 {L}_hp_ok")
    hu_wait(A, L + "_hp", 40, 172, 32, (PFR, PFR+1, PFR+2, PFR+3), "K3_end", HUD=int(os.environ.get("HUDP", "3")))
    if ONEP: A("s_barrier")
    stamp(A, 2)
    A("s_mov_b32 s27, 0")
    A.label(L + "_gop"); A.reset_state()
    order = [8, 9, 0, 1, 2, 3, 4, 5, 6, 7]
    for k, t in enumerate(order):
        A(f"buffer_load_dwordx4 {v(PFR+4*t, 4)}, v4, s[44:47], s{28 + t // 4} offen offset:{(t % 4)*1024} sc1")
        if HU_M_AT < 0 and k == 10 + HU_M_AT: A(f"buffer_store_dword v175, v173, s[40:43], s32 offen{sc}")
    for k, u in enumerate(order):
        A(f"s_waitcnt vmcnt({9-k + (1 if (k > HU_M_AT + 1 if HU_M_AT >= 0 else k <= 10 + HU_M_AT) else 0)})")
        if k == 0: stamp(A, 4)
        A(f"v_smfmac_f32_16x16x64_bf16 {v(PA, 4)}, {v(PFR+4*u, 4)}, {v(Z+8*u, 8)}, v160")
        if k == 0: A(f"v_max_u32 v164, v{PFR+32}, v{PFR+33}")
        if k == 1: A(f"v_max3_u32 v164, v164, v{PFR+36}, v{PFR+37}\nv_cmp_eq_u32 vcc, -1, v164\ns_cbranch_vccnz {L}_early")
        if HU_M_AT >= 0 and k == HU_M_AT + 1: A(f"buffer_store_dword v175, v173, s[40:43], s32 offen{sc}")
    if not DWST:
        A(f"""v_add_f32 v{PA}, v{PA}, v{PA+1}
        v_add_f32 v{PA+2}, v{PA+2}, v{PA+3}
        v_cmp_u_f32 vcc, v{PA}, v{PA+2}
        v_cvt_pk_bf16_f32 v{PA}, v{PA}, v{PA+2}
        s_cbranch_vccnz {L}_slowp""")
        A.label(L + "_backp")
        A(f"""buffer_store_short v{PA}, v7, s[40:43], s34 offen{sc}
        buffer_store_short_d16_hi v{PA}, v7, s[40:43], s34 offen offset:32{sc}""")
    else:
        A(f"""v_add_f32 v{PA}, v{PA}, v{PA+1}
        v_add_f32 v{PA+2}, v{PA+2}, v{PA+3}
        v_cmp_u_f32 vcc, v{PA}, v{PA+2}
        v_cvt_pk_bf16_f32 v{PA}, v{PA}, v{PA+2}
        s_cbranch_vccnz {L}_slowp""")
        A.label(L + "_backp")
        A(f"""v_mov_b32_dpp v{PA+1}, v{PA} {QP}
        v_perm_b32 v{PA}, v{PA+1}, v{PA}, v2
        buffer_store_dword v{PA}, v7, s[40:43], s34 offen{sc}""")
    stamp_cnt(A, 1)
    A.label(L + "_next")
    stamp(A, 5)
    tl(A, 0, 64)
    stamp_out(A, 116, MFLB + 7168, 2)
    A(f"s_add_u32 s64, s64, 1\ns_cmp_lt_u32 s64, 63")
    A.flush()
    A(f"s_cbranch_scc1 {L}_loop")
    if W: W.off()
    A.label(L + "_exit"); A.reset_state()
    stamp_dump(A, MFLB + 7168)
    tl_dump(A, 1)
    A("s_branch K3_end")
    A.label(L + "_idle"); A.reset_state()
    if ONEP: A("s_barrier")
    A(f"s_branch {L}_next")
    exact_check(A, L + "_slowm", 7, MF, 164, L + "_retrym", L + "_backm", "K3_end")
    A.label(L + "_retrym"); A.reset_state()
    for z in zero[:8]: A(z)
    A(f"s_barrier\ns_cmp_lg_u32 s3, 2\ns_cbranch_scc1 {L}_join\ns_branch {L}_go")
    exact_check(A, L + "_slowp", 10, PFR, 164, L + "_retryp", L + "_nanp", "K3_end")
    A.label(L + "_nanp"); A.reset_state()
    A(f"v_pk_min_u16 v{PA}, v{PA}, s25\ns_branch {L}_backp")
    A.label(L + "_early"); A.reset_state()
    A(f"s_add_u32 s27, s27, 1\ns_cmp_gt_u32 s27, {SPIN_MAX}\ns_cbranch_scc1 K3_end\ns_waitcnt vmcnt(0)\ns_nop 7")
    A.label(L + "_retryp"); A.reset_state()
    for r in range(4): A(f"v_mov_b32 v{PA+r}, 0")
    A(f"s_nop 1\ns_branch {L}_gop")

def b_cu(A):
    srd(A, 36, 18, G.WF_OFF + 16*G.WF_UNIT, 16*G.WF_UNIT)
    srd(A, 48, 18, G.VOF_OFF, 64*G.SEG_SZ)
    srd(A, 68, 18, G.FLG_OFF, G.FLG_SZ)
    A(f"""v_bfe_u32 v5, v1, 2, 2
    v_mul_u32_u24 v5, 3584, v5
    v_and_b32 v6, 3, v1
    v_lshl_add_u32 v5, v6, 7, v5
    s_mul_i32 s33, s3, 14336
    s_lshr_b32 s28, s22, 1
    s_lshl_b32 s28, s28, 9
    s_add_u32 s33, s33, s28
    s_add_u32 s33, s33, {G.FLG_PROD + 16*3584}""")
    WB = G.Warm(A, "K3b_wm")
    for k in range(4):
        G.stage_wait(A, f"K3b_wp{k}", 68, 5, 33, 6, k + 1, "K3_end")
        for i in range(8):
            ct, q = i // 4, i % 4
            A(f"""s_lshl_b32 s28, s3, 2
            s_add_u32 s28, s28, {q}
            s_mul_i32 s28, s28, {G.WF_UNIT}
            s_mul_i32 s29, s22, 28672
            s_add_u32 s28, s28, s29
            s_add_u32 s28, s28, {ct*14336 + k*4096}""")
            if i >= 6: A(f"s_mul_i32 s29, s3, 28672\ns_add_u32 m0, s29, {WL + (i-6)*14336 + k*4096}")
            for u in range(4*k, min(14, 4*k + 4)):
                if i < 6: A(f"buffer_load_dwordx4 {wregB(i, u)}, v4, s[36:39], s28 offen offset:{(u % 4)*1024} sc1")
                else: A(f"buffer_load_dwordx4 v4, s[36:39], s28 offen offset:{(u % 4)*1024} sc1 lds")
    team_flavor(A, "K3_end")
    A(f"""
    s_mul_i32 s28, s3, 28672
    v_add_u32 v5, s28, v4
    v_and_b32 v9, 1, v2
    v_cmp_eq_u32 vcc, 1, v9
    v_mov_b32 v160, 0x4444
    v_mov_b32 v161, 0xeeee
    v_cndmask_b32 v160, v160, v161, vcc
    s_mov_b32 s25, 0xfffefffe
    s_mov_b32 s26, 0xffff0000
    s_mov_b32 s64, 0
    s_mov_b32 s66, {WZL}
    s_and_b32 s24, s3, 1
    s_lshl_b32 s28, s24, 14
    s_add_u32 s28, s28, {VOL}
    v_add_u32 v6, s28, v4
    v_bfe_u32 v8, v2, 1, 1
    v_lshl_add_u32 v8, v3, 2, v8
    v_lshlrev_b32 v7, 4, v8
    v_lshrrev_b32 v8, 2, v2
    v_lshl_add_u32 v7, v8, 2, v7
    v_lshl_add_u32 v7, v9, 1, v7
    s_lshl_b32 s28, s22, 1
    s_add_u32 s28, s28, s24
    s_lshl_b32 s67, s28, 12
    s_lshl_b32 s29, s28, 8
    v_add_u32 v7, s29, v7
    v_min_u32 v161, 27, v1
    v_lshlrev_b32 v161, 2, v161
    v_add_u32 v161, 7168, v161
    v_min_u32 v172, 15, v1
    v_lshlrev_b32 v172, 2, v172
    v_add_u32 v172, {8192 + 7296}, v172
    s_lshl_b32 s28, s28, 2
    s_add_u32 s28, s28, {8192 + 7168}
    v_mov_b32 v173, s28
    v_mov_b32 v8, 0x7ffffff0
    v_cmp_eq_u32 vcc, 0, v1
    v_cndmask_b32 v173, v8, v173, vcc
    v_mov_b32 v175, 0
    v_not_b32 v0, s96
    v_and_b32 v9, 1, v1
    v_cmp_eq_u32 vcc, 1, v9
    v_mov_b32 v2, 0x05040100
    v_mov_b32 v8, 0x03020706
    v_cndmask_b32 v2, v2, v8, vcc
    v_mul_u32_u24 v9, {30 if DWST else 0}, v9
    v_add_u32 v7, v7, v9
    v_add_u32 v162, {MFLB}, v4
    s_mov_b32 s97, {MFLB}
    s_mul_i32 s98, s24, 3072
    s_waitcnt vmcnt(0)
    """)
    G.TLV[0] = 3
    tl(A, 63)
    A(f"""v_lshlrev_b32 v163, 3, v4
    v_min_u32 v163, 1920, v163
    v_add_u32 v163, 2048, v163
    s_mov_b32 s28, 0""")
    flag_wait(A, "K3b_v0", 68, 163, 28, 0, "K3_end", sleep=2)
    A(f"s_lshl_b32 s30, s22, 15\ns_lshl_b32 s31, s3, 13\ns_add_u32 s30, s30, s31\ns_add_u32 s31, s31, {VOL}")
    for z in dma_ops(8, 48, 30, 31, " sc1"): A(z)
    A("s_cmp_lg_u32 s65, 0\ns_cbranch_scc1 K3bf1_loop")
    WB.on(every=64)
    b_loop(A, 0, WB)
    b_loop(A, 1)

def warm_cu(A):
    L = "K3w"
    srd(A, 52, 18, G.XNF_OFF, G.XN_SZ)
    A(f"""v_min_u32 v5, 27, v1
    v_lshlrev_b32 v5, 2, v5
    v_add_u32 v5, 7168, v5
    s_lshl_b32 s28, s3, 10
    v_add_u32 v6, s28, v4
    s_mov_b32 s64, 0""")
    def touch(sreg):
        A(f"s_lshl_b32 s28, s{sreg}, 13\ns_add_u32 s28, s28, 8192\ns_mul_i32 s29, s{sreg}, {G.PF_STRIDE}\ns_mul_i32 s30, s{sreg}, 28672\ns_add_u32 s30, s30, {1*28672}")
        for k in range(2): A(f"buffer_load_dwordx4 v[16:19], v6, s[40:43], s28 offen sc1\ns_add_u32 s28, s28, 4096")
        for k in range(3): A(f"buffer_load_dwordx4 v[16:19], v6, s[44:47], s29 offen sc1\ns_add_u32 s29, s29, 4096")
        for k in range(7): A(f"buffer_load_dwordx4 v[16:19], v6, s[52:55], s30 offen sc1\ns_add_u32 s30, s30, 4096")
    A("v_mov_b32 v7, 2048\ns_mov_b32 s28, 0")
    flag_wait(A, L + "_v0", 56, 7, 28, 8, "K3_end", sleep=8)
    for k in range(WD + 1):
        A(f"s_mov_b32 s33, {k}"); touch(33)
    A.label(L + "_loop")
    A(f"s_add_u32 s64, s64, 1\ns_cmp_ge_u32 s64, {63 - WD}\ns_cbranch_scc1 K3_end\ns_lshl_b32 s32, s64, 13\ns_mov_b32 s27, 0")
    A.label(L + "_w")
    A(f"""s_sleep 4
    buffer_load_dword v8, v5, s[40:43], s32 offen sc1
    s_add_u32 s27, s27, 1
    s_cmp_gt_u32 s27, {SPIN_MAX}
    s_cbranch_scc1 K3_end
    s_waitcnt vmcnt(0)
    v_cmp_eq_u32 vcc, -1, v8
    s_cbranch_vccnz {L}_w
    s_add_u32 s33, s64, {WD}""")
    touch(33)
    A(f"s_branch {L}_loop")

def fwd_cu(A):
    L = "K3f"
    srd(A, 52, 18, G.MEMG_OFF, 64*8192)
    srd(A, 56, 18, G.FLG_OFF, G.FLG_SZ)
    A(f"""v_min_u32 v5, 27, v1
    v_lshlrev_b32 v5, 2, v5
    v_add_u32 v5, 7168, v5
    s_lshl_b32 s28, s3, 11
    s_min_u32 s28, s28, 5120
    v_add_u32 v6, s28, v4
    s_mov_b32 s26, 0xffff0000
    s_mov_b32 s64, 0""")
    team_flavor(A, "K3_end", 10, 11)
    A.label(L + "_loop")
    A(f"s_lshl_b32 s32, s64, 13\ns_mov_b32 s27, 0\ns_cmp_eq_u32 s64, 0\ns_cbranch_scc1 {L}_hu")
    A.label(L + "_w")
    A(f"""s_sleep 1
    buffer_load_dword v8, v5, s[40:43], s32 offen sc1
    s_add_u32 s27, s27, 1
    s_cmp_gt_u32 s27, {SPIN_MAX}
    s_cbranch_scc1 K3_end
    s_waitcnt vmcnt(0)
    v_cmp_eq_u32 vcc, -1, v8
    s_cbranch_vccnz {L}_w""")
    A.label(L + "_hu")
    A(f"s_lshl_b32 s28, s64, 13\ns_add_u32 s28, s28, 6144\ns_cmp_lg_u32 s3, 0\ns_cbranch_scc1 {L}_get")
    flag_set(A, 56, 28, 8, 9)
    A.label(L + "_get")
    A(f"""buffer_load_dwordx4 v[16:19], v6, s[40:43], s32 offen sc1
    buffer_load_dwordx4 v[20:23], v6, s[40:43], s32 offen offset:1024 sc1""")
    exact_check(A, L + "_chk", 2, 16, 8, L + "_get", L + "_ok", "K3_end")
    A.label(L + "_ok")
    A(f"""buffer_store_dwordx4 v[16:19], v6, s[52:55], s32 offen sc1
    buffer_store_dwordx4 v[20:23], v6, s[52:55], s32 offen offset:1024 sc1""")
    A(f"s_add_u32 s64, s64, 1\ns_cmp_lt_u32 s64, 64\ns_cbranch_scc1 {L}_loop\ns_branch K3_end")

def team_publish(A, what):
    if what == 0: A(f"s_lshl_b32 s28, s21, 7\ns_add_u32 s28, s28, {G.FLG_LN}\nv_mov_b32 v8, s96")
    else: A("s_lshl_b32 s28, s21, 2\ns_add_u32 s28, s28, 128\nv_mov_b32 v8, s35")
    A(f"""v_mov_b32 v9, s28
    s_barrier
    s_mov_b64 exec, 1
    buffer_store_dword v8, v9, s[{(56, 60)[what]}:{(59, 63)[what]}], 0 offen sc1
    s_mov_b64 exec, -1""")

def team(A):
    A("s_getreg_b32 s35, hwreg(HW_REG_XCC_ID, 0, 4)\ns_add_u32 s35, s35, 1")
    srd(A, 60, 16, 0, 256)
    srd(A, 40, 18, G.MEMF_OFF, 64*G.MEMF_STRIDE)
    srd(A, 44, 18, G.PF_OFF, 64*G.PF_STRIDE)
    A("s_lshl_b32 s23, s21, 2\ns_add_u32 s23, s23, s3")
    G.ln_body(A, "KL")
    srd(A, 56, 18, G.FLG_OFF, G.FLG_SZ)
    A("s_waitcnt vmcnt(0)"); team_publish(A, 0)
    A(f"s_cmp_lg_u32 s21, 31\ns_cbranch_scc1 K3_nofill\nv_min_u32 v8, 55, v1\nv_lshlrev_b32 v8, 7, v8\ns_mov_b32 s28, {G.FLG_FILL}\ns_mov_b32 s29, {G.FLG_FILL + 56*128}")
    flag_wait(A, "K3_fw0", 56, 8, 28, 9, "K3_end", sleep=8)
    flag_wait(A, "K3_fw1", 56, 8, 29, 9, "K3_end", sleep=8)
    A.label("K3_nofill")
    team_publish(A, 1)
    if G.TLM: A("v_writelane_b32 v113, s84, 63\nv_writelane_b32 v113, s85, 58\nv_writelane_b32 v113, s86, 59\nv_writelane_b32 v113, s87, 60"); tl(A, 61)
    A("s_cmp_eq_u32 s21, 31\ns_cbranch_scc1 K3_w\ns_cmp_eq_u32 s21, 30\ns_cbranch_scc1 K3_f")
    A("s_cmp_ge_u32 s21, 16\ns_cbranch_scc1 K3_b\ns_mov_b32 s22, s21")
    a_cu(A)
    A.label("K3_b"); A.reset_state()
    A("s_sub_u32 s22, s21, 16")
    b_cu(A)
    A.label("K3_w"); A.reset_state()
    warm_cu(A)
    A.label("K3_f"); A.reset_state()
    fwd_cu(A)
```

```python
from asmlib import *
import gen as G
from gen import srd, lane_setup, xreduce, wreg, flag_set, flag_wait, tl, tl_dump
from kernels2 import tile_c, load_weights7, f2h
import os
SPIN_MAX = 1 << 22
NINF = "0xff800000"
STAMP = int(os.environ.get("STAMP", "0"))
HU_P_AT = int(os.environ.get("HU_P_AT", "2"))
HU_M_AT = int(os.environ.get("HU_M_AT", "2"))
A_DMA = int(os.environ.get("A_DMA", "0"))
DSP = int(os.environ.get("DSP", "3"))
DSPB = int(os.environ.get("DSPB", "2"))
NT = os.environ.get("NT", "")
SBLK = int(os.environ.get("SBLK", "1"))
HUI = int(os.environ.get("HUI", "14"))
F2 = 99
ONEP = int(os.environ.get("ONEP", "1"))
HB = int(os.environ.get("HB", "3"))
DWST = int(os.environ.get("DWST", "0"))
XSM = int(os.environ.get("XSM", "0"))
XS0 = int(os.environ.get("XS0", "6"))
WD = int(os.environ.get("WD", "4"))
TMODE = int(os.environ.get("TMODE", "1"))
TWV = 3 if TMODE == 0 else 0
DBG2_OFF = 0x5E00000
QP = "quad_perm:[1,0,3,2] row_mask:0xf bank_mask:0xf"

def stamp(A, k):
    if STAMP: A(f"{'s_memrealtime' if STAMP == 2 else 's_memtime'} s[{4+2*k}:{5+2*k}]")
def stamp_cnt(A, k):
    if STAMP: A(f"s_mov_b32 s{16+k}, s27")
def stamp_out(A, tmp, lds, nw):
    if not STAMP: return
    lab = f"STK{len(A.lines)}"
    A(f"s_waitcnt lgkmcnt(0)\ns_lshr_b32 s28, s64, 4\ns_cmp_lg_u32 s28, {SBLK}\ns_cbranch_scc1 {lab}\ns_cmp_ge_u32 s3, {nw}\ns_cbranch_scc1 {lab}")
    for k in range(6): A(f"v_mov_b32 v{tmp+k}, s{4+2*k}")
    A(f"v_mov_b32 v{tmp+6}, s16\nv_mov_b32 v{tmp+7}, s17")
    A(f"""s_lshl_b32 s28, s3, 4
    s_add_u32 s28, s28, s64
    s_lshl_b32 s28, s28, 5
    s_add_u32 s28, s28, {lds - 512*SBLK}
    v_mov_b32 v{tmp+8}, s28
    ds_write_b128 v{tmp+8}, {v(tmp, 4)}
    ds_write_b128 v{tmp+8}, {v(tmp+4, 4)} offset:16""")
    A.label(lab)
def stamp_dump(A, lds):
    if not STAMP: return
    A(f"""s_lshl_b32 s28, s3, 9
    v_bfe_u32 v8, v4, 4, 4
    v_lshlrev_b32 v8, 5, v8
    v_add_u32 v9, s28, v8
    v_add_u32 v9, {lds}, v9
    v_min_u32 v9, {163840 - 32}, v9
    s_lshl_b32 s28, s3, 11
    s_add_u32 s28, s28, 512
    v_add_u32 v8, s28, v8
    s_waitcnt lgkmcnt(0)
    ds_read_b128 v[12:15], v9
    ds_read_b128 v[16:19], v9 offset:16
    s_lshl_b32 s28, s21, 13
    s_waitcnt lgkmcnt(0)
    buffer_store_dwordx4 v[12:15], v8, s[60:63], s28 offen
    buffer_store_dwordx4 v[16:19], v8, s[60:63], s28 offen offset:16""")

def team_flavor(A, bail, va=5, vb=6):
    A(f"v_lshlrev_b32 v{va}, 2, v1\ns_mov_b32 s27, 0\ns_mov_b32 exec_hi, 0")
    L = bail + "_fl" + str(len(A.lines))
    A.label(L)
    A(f"""
    buffer_load_dword v{vb}, v{va}, s[60:63], 0 offen offset:128 sc1
    s_add_u32 s27, s27, 1
    s_cmp_gt_u32 s27, {SPIN_MAX}
    s_cbranch_scc1 {bail}
    s_waitcnt vmcnt(0)
    v_cmp_eq_u32 vcc, 0, v{vb}
    s_cbranch_vccnz {L}
    v_cmp_ne_u32 vcc, s35, v{vb}
    s_mov_b64 exec, -1
    s_cmp_lg_u64 vcc, 0
    s_cselect_b32 s65, 1, 0
    """)
    if STAMP: srd(A, 60, 18, DBG2_OFF, 32*4*64*32)

HUD = int(os.environ.get("HUD", "3"))
def hu_wait(A, L, srdn, voff, soff, hr, bail, HUD=HUD):
    ld = lambda k: f"buffer_load_dword v{hr[k]}, v{voff}, s[{srdn}:{srdn+3}], s{soff} offen sc1"
    A("s_mov_b32 s27, 0")
    for k in range(HUD - 1): A(ld(k))
    A.label(L)
    for k in range(HUD):
        A(ld((k + HUD - 1) % HUD))
        A(f"s_waitcnt vmcnt({HUD-1})\nv_cmp_eq_u32 vcc, -1, v{hr[k]}\ns_cbranch_vccz {L}_ok")
    A(f"s_add_u32 s27, s27, 1\ns_cmp_gt_u32 s27, {SPIN_MAX}\ns_cbranch_scc0 {L}\ns_branch {bail}")
    A.label(L + "_ok")

def frag_loads(A, n, reg0, srdn, voff, soffs):
    for t in range(n):
        A(f"buffer_load_dwordx4 {v(reg0+4*t, 4)}, v{voff}, s[{srdn}:{srdn+3}], s{soffs[t // 4]} offen offset:{(t % 4)*1024} sc1")

def exact_check(A, L, n, reg0, tmp, retry, back, bail):
    A.label(L); A.reset_state()
    A("s_waitcnt vmcnt(0)")
    tmp, t2 = tmp if isinstance(tmp, tuple) else (tmp, tmp + 1)
    A(f"v_pk_max_u16 v{tmp}, v{reg0}, v{reg0+1}")
    for r in range(reg0 + 2, reg0 + 4*n): A(f"v_pk_max_u16 v{tmp}, v{tmp}, v{r}")
    A(f"""v_lshlrev_b32 v{t2}, 16, v{tmp}
    v_max_u32 v{tmp}, v{tmp}, v{t2}
    v_cmp_le_u32 vcc, s26, v{tmp}
    s_cbranch_vccz {back}
    s_add_u32 s27, s27, 1
    s_cmp_gt_u32 s27, {SPIN_MAX}
    s_cbranch_scc1 {bail}
    s_branch {retry}""")

def dma_ops(n, srdn, sg, sl, fl=''):
    o = []
    for k in range(n):
        pre = ""
        if k == 0: pre = f"s_mov_b32 m0, s{sl}\n"
        elif k % 4 == 0:
            pre = "s_add_u32 m0, m0, 4096\n"
            if not isinstance(sg, tuple): pre = f"s_add_u32 s{sg}, s{sg}, 4096\n" + pre
        g = sg[k // 4] if isinstance(sg, tuple) else sg
        o.append(pre + f"buffer_load_dwordx4 v4, s[{srdn}:{srdn+3}], s{g} offen offset:{(k % 4)*1024}{fl} lds")
    return o

TL, SMX, MFLA, XSL = 0, 7168, 8192, 32768
MF, TA, XB = 8, 36, 64
VTOUCH = int(os.environ.get("VTOUCH", "1"))

def mem_fetch(A, base, behind=()):
    A(f"s_mov_b32 s97, {base}")
    for z in dma_ops(7, 40, (32, 34), 97, " sc1"): A(z)
    for z in behind: A(z)
    A(f"s_waitcnt vmcnt({len(behind)})")

def a_xb_load(A):
    A(f"s_mul_i32 s28, s33, 28672\ns_add_u32 s28, s28, s94")
    for k in range(14):
        if k and k % 4 == 0: A("s_add_u32 s28, s28, 4096")
        A(f"buffer_load_dwordx4 {v(XB+4*k, 4)}, v4, s[52:55], s28 offen offset:{(k % 4)*1024}")

def a_xs_ops():
    return dma_ops(10, 52, (84, 85, 86), 87)
def a_xs_addr(A):
    A("s_mul_i32 s84, s33, 28672\ns_add_u32 s84, s84, s88\ns_add_u32 s85, s84, 4096\ns_add_u32 s86, s84, 8192")
def a_xb_lds(A):
    A(f"s_add_u32 s28, s94, {XSL}\nv_add_u32 v{MF}, s28, v4")
    for k in range(14): A(f"ds_read_b128 {v(XB+4*k, 4)}, v{MF} offset:{k*1024}")
    A("s_waitcnt lgkmcnt(0)")

def a_loop(A, role, fl):
    L = f"K3a{role}f{fl}"
    sc = " sc1" if fl else ""
    if role == 1:
        A("s_mov_b32 s33, 0"); a_xb_load(A); A("s_waitcnt vmcnt(0)")
    A.label(L + "_loop"); A.reset_state()
    stamp(A, 0)
    A(f"""s_lshl_b32 s32, s64, 13
    s_add_u32 s34, s32, 4096
    s_add_u32 s33, s64, 1
    s_min_u32 s33, s33, 63""")
    zero = [f"v_mov_b32 v{r}, 0" for r in range(TA, TA + 28)]
    for z in zero: A(z)
    if XSM and role: a_xs_addr(A)
    if VTOUCH and role == TWV: A(f"s_mul_i32 s30, s33, {G.SEG_SZ}")
    if role == TWV and VTOUCH:
        A(f"""s_lshl_b32 s29, s33, 13
        s_add_u32 s29, s29, 8192
        s_waitcnt vmcnt(0)
        v_cmp_ne_u32 vcc, s96, v115
        s_cmp_eq_u64 vcc, 0
        s_cselect_b32 s93, s94, 0x40000000
        s_add_u32 s30, s30, s93""")
    if role == 0:
        A(f"v_mov_b32 v{XB+4}, {NINF}\nv_mov_b32 v{XB+5}, {NINF}\ns_mul_i32 s31, s64, {G.PF_STRIDE}")
        A(f"s_cmp_eq_u32 s64, 0\ns_cbranch_scc1 {L}_hu_ok")
        hu_wait(A, L + "_hu", 40, 111, 32, (108, 109, 107), "K3_end")
    stamp(A, 1)
    A("s_mov_b32 s27, 0")
    A.label(L + "_go"); A.reset_state()
    tch = [f"buffer_load_dword v119, v118, s[48:51], s30 offen sc1\ns_add_u32 s30, s30, 4096" for k in range(7)] + ["buffer_load_dword v115, v114, s[56:59], s29 offen sc1"]
    nb = len(tch) if (VTOUCH and TMODE == 1) else 0
    if role == 0:
        A(f"s_mov_b32 s97, {MFLA}")
        for z in dma_ops(7, 40, (32, 34), 97, " sc1") + (tch if nb else []): A(z)
        A(f"s_waitcnt vmcnt({5 + nb})")
    A("s_barrier")
    for t in range(2): A(f"ds_read_b128 {v(MF+4*t, 4)}, v1 offset:{t*1024}")
    smf = lambda d, t, B: f"v_smfmac_f32_16x16x64_bf16 {v(d, 4)}, {v(MF+4*t, 4)}, {B}, v2"
    def emit(z, side=None):
        A(z)
        if side: A(side)
    for t in range(2):
        if t == 0 or HB < 7: A(f"s_waitcnt lgkmcnt({(1 - t) if t == 0 else 5})")
        else: A("s_waitcnt lgkmcnt(0)")
        if t == 0: stamp(A, 2)
        for i in range(7):
            A(smf(TA + 4*i, t, wreg(i, 2*t, 8)))
            if 7*t + i == HB:
                A((f"s_waitcnt vmcnt({nb})\n" if role == 0 else "") + "s_barrier")
                for tt in range(2, 7): A(f"ds_read_b128 {v(MF+4*tt, 4)}, v1 offset:{tt*1024}")
    for t in range(2, 7):
        A(f"s_waitcnt lgkmcnt({6 - t})")
        for d, i in ((TA, 0), (TA+4, 1)): A(smf(d, t, wreg(i, 2*t, 8)))
    def fin(x): return [f"v_add_f32 v{x}, v{x}, v{x+1}", f"v_add_f32 v{x+2}, v{x+2}, v{x+3}", f"v_cvt_pk_bf16_f32 v{x}, v{x}, v{x+2}"]
    def post_pair(p):
        x, y = TA + 8*p, TA + 8*p + 4
        return fin(x) + fin(y) + [f"ds_write2st64_b32 v5, v{x}, v{y} offset0:{2*p} offset1:{2*p+1}"]
    b = TA
    chk = [f"v_add_f32 v{b}, v{b}, v{b+1}", f"v_add_f32 v{b+2}, v{b+2}, v{b+3}", f"v_cmp_u_f32 vcc, v{b}, v{b+2}",
           f"s_cbranch_vccnz {L}_slow\n{L}_back:"]
    zs = [f"v_mov_b32 v{TA+r}, 0" for r in range(4)] if role == 1 else []
    main = [smf(TA + 8*p + 4*e, t, wreg(2*p + e, 2*t, 8)) for p in (1, 2) for t in range(2, 7) for e in range(2)] + [smf(TA+24, t, wreg(6, 2*t, 8)) for t in range(2, 7)]
    side = [None]*3 + chk + post_pair(0)[2:] + [None] + post_pair(1) + [zs[0] if zs else None]*1
    rest = zs[1:] + post_pair(2)
    xs = a_xs_ops() if (XSM and role) else []
    for k, z in enumerate(main):
        emit(z, side[k] if k < len(side) else None)
        if xs and k >= XS0 and (k - XS0) % 2 == 0 and k < 22: A(xs.pop(0))
        if k >= 22 and rest: A(rest.pop(0)); A(rest.pop(0))
    for z in rest + fin(TA+24) + [f"ds_write_b32 v6, v{TA+24}"]: A(z)
    stamp(A, 3); stamp_cnt(A, 0)
    A("s_waitcnt lgkmcnt(0)\ns_barrier")
    stamp(A, 4)
    treg = lambda t: MF if (role == 1 and t == 0) else TA + 4*t
    if role == 3:
        for z in xs: A(z)
        xs = []
    tr = lambda t: [f"ds_read_b64_tr_b16 {v(treg(t) + 2*z, 2)}, v0 offset:{t*1024 + z*32}" for z in range(2)]
    if role != 3:
        for t in range(7):
            for z in tr(t): A(z)
    if role == 1:
        D = TA
        for t in range(7):
            A(f"s_waitcnt lgkmcnt({2*(6-t)})" + (" vmcnt(0)" if (t == 0 and not XSM) else ""))
            A(f"v_smfmac_f32_16x16x64_bf16 {v(D, 4)}, {v(treg(t), 4)}, {v(XB+8*t, 8)}, v3")
        A(f"""v_permlane32_swap_b32 v{D}, v{D+1}
        v_permlane32_swap_b32 v{D+2}, v{D+3}
        v_add_f32 v{D}, v{D}, v{D+1}
        v_add_f32 v{D+2}, v{D+2}, v{D+3}
        ds_write2_b32 v7, v{D}, v{D+2} offset0:0 offset1:32
        s_waitcnt lgkmcnt(0)
        s_barrier""")
        for z in xs: A(z)
        A("s_waitcnt vmcnt(0)\ns_barrier")
        if XSM: a_xb_lds(A)
        else: a_xb_load(A)
    if role == 3: A("s_barrier\ns_waitcnt vmcnt(0)\ns_barrier")
    if role == 0:
        X, R, D = XB, XB + 4, XB + 8
        m, t1, l = XB+12, XB+13, XB+14
        for t in range(7):
            A(f"s_waitcnt lgkmcnt({2*(6-t)})")
            A(f"v_mfma_f32_16x16x32_bf16 {v(D, 4)}, {v(MF+4*t, 4)}, {v(TA+4*t, 4)}, {v(D, 4) if t else '0'}")
        A(f"v_add_f32_dpp v{R}, v{D+1}, v{D} row_ror:8 row_mask:0xf bank_mask:0x3")
        A(f"v_add_f32_dpp v{R+1}, v{D+3}, v{D+2} row_ror:8 row_mask:0xf bank_mask:0x3")
        A(f"v_max_f32 v{m}, v{R}, v{R+1}\ns_barrier")
        class Rec:
            def __init__(s): s.l = []
            def __call__(s, t): s.l += [x.strip() for x in t.split("\n") if x.strip()]
        Q = Rec()
        Q(f"""ds_read_b64 {v(X, 2)}, v7
        ds_read_b64 {v(X+2, 2)}, v7 offset:512
        s_waitcnt lgkmcnt(1)
        v_max3_f32 v{m}, v{m}, v{X}, v{X+1}
        s_waitcnt lgkmcnt(0)
        v_max3_f32 v{m}, v{m}, v{X+2}, v{X+3}""")
        xreduce(Q, "v_max_f32", m, t1, steps=(8, 16, 32))
        for r in (X, X+2, R): Q(f"v_pk_add_f32 {v(r, 2)}, {v(r, 2)}, {v(m, 2)} op_sel_hi:[1,0] neg_lo:[0,1] neg_hi:[0,1]")
        for r in range(6): Q(f"v_exp_f32 v{X+r}, v{X+r}")
        Q(f"""v_pk_add_f32 {v(l, 2)}, {v(X, 2)}, {v(X+2, 2)}
        v_pk_add_f32 {v(l, 2)}, {v(l, 2)}, {v(R, 2)}
        v_add_f32 v{l}, v{l}, v{l+1}""")
        xreduce(Q, "v_add_f32", l, t1, steps=(8, 16, 32))
        Q(f"v_rcp_f32 v{l}, v{l}")
        for r in (X, X+2, R): Q(f"v_pk_mul_f32 {v(r, 2)}, {v(r, 2)}, {v(l, 2)} op_sel_hi:[1,0] clamp")
        Q(f"""v_cvt_pk_bf16_f32 v{X}, v{X}, v{X+1}
        v_cvt_pk_bf16_f32 v{X+1}, v{X+2}, v{X+3}
        buffer_store_dwordx2 {v(X, 2)}, v116, s[44:47], s31 offen{sc}
        v_cvt_pk_bf16_f32 v{R}, v{R}, v{R+1}
        buffer_store_dword v{R}, v117, s[44:47], s31 offen{sc}
        s_barrier""")
        Q.l.insert(HUI, f"buffer_store_dword v112, v110, s[40:43], s32 offen{sc}")
        for z in Q.l: A(z)
    stamp(A, 5)
    if role == 0: tl(A, 0, 64)
    if role == 3 and G.TLM: A("s_memtime s[100:101]\ns_min_u32 m0, s64, 57\ns_waitcnt lgkmcnt(0)\nv_writelane_b32 v113, s100, m0")
    stamp_out(A, TA + 8, MFLA + 7168, 4)
    A(f"s_add_u32 s64, s64, 1\ns_cmp_lt_u32 s64, 63")
    A.flush()
    A(f"s_cbranch_scc1 {L}_loop")
    stamp_dump(A, MFLA + 7168)
    if role != 1: tl_dump(A, 1)
    if G.TLM == 2 and role != 1:
        lanes = [63, 0, 1, 2, 4, 8, 16, 32, 62] if role == 0 else [58, 59, 60, 61, 62, 63]
        A(f"s_cmp_lg_u32 s21, 0\ns_cbranch_scc1 K3_end")
        srd(A, 60, 16, 0, 256)
        for k, ln in enumerate(lanes):
            A(f"v_readlane_b32 s28, v113, {ln}\ns_nop 3\nv_mov_b32 v8, s28\nv_mov_b32 v9, {4*(k + (0 if role == 0 else 9))}\ns_mov_b64 exec, 1\nbuffer_store_dword v8, v9, s[60:63], 0 offen\ns_mov_b64 exec, -1")
    A("s_branch K3_end")
    exact_check(A, L + "_slow", 7, MF, (TA + 1, TA + 3), L + "_retry", L + "_back", "K3_end")
    A.label(L + "_retry"); A.reset_state()
    for z in zero: A(z)
    if VTOUCH and role == TWV: A(f"s_mov_b32 s30, 0x40000000")
    A(f"s_barrier\ns_branch {L}_go")

def a_cu(A):
    A(f"s_mul_i32 s26, s22, {G.WF_UNIT}\ns_add_u32 s26, s26, {hex(G.WF_OFF)}")
    srd(A, 36, 18, "s26", G.WF_UNIT)
    srd(A, 48, 18, G.VOF_OFF, 64*G.SEG_SZ)
    srd(A, 52, 18, G.XNF_OFF, G.XN_SZ)
    srd(A, 56, 18, G.FLG_OFF, G.FLG_SZ)
    A(f"v_min_u32 v5, 27, v1\nv_lshlrev_b32 v5, 7, v5\ns_mul_i32 s29, s22, 3584\ns_add_u32 s29, s29, {G.FLG_PROD}")
    for k in range(4):
        G.stage_wait(A, f"K3a_wp{k}", 56, 5, 29, 6, k + 1, "K3_end")
        if k == 0: tl(A, 62)
        A(f"s_mul_i32 s28, s3, {7*14336}\ns_add_u32 s28, s28, {k*4096}")
        for i in range(7):
            for u in range(4*k, min(14, 4*k + 4)):
                A(f"buffer_load_dwordx4 {wreg(i, u)}, v4, s[36:39], s28 offen offset:{(u % 4)*1024} sc1")
            A("s_add_u32 s28, s28, 14336")
    team_flavor(A, "K3_end")
    A("s_mul_i32 s28, s3, 7\ns_add_u32 s30, s28, 6")
    A(f"""
    v_lshrrev_b32 v8, 1, v3
    v_and_b32 v9, 1, v3
    v_lshlrev_b32 v7, 7, v8
    v_lshl_add_u32 v7, v2, 3, v7
    v_lshl_add_u32 v7, v9, 2, v7
    s_lshl_b32 s28, s28, 8
    v_add_u32 v5, s28, v7
    s_lshl_b32 s30, s30, 8
    v_add_u32 v6, s30, v7
    s_mov_b32 s64, 0
    s_mov_b32 s26, 0xffff0000
    v_lshrrev_b32 v10, 2, v2
    v_and_b32 v11, 3, v2
    v_lshrrev_b32 v12, 1, v10
    v_lshl_add_u32 v12, v8, 1, v12
    v_lshlrev_b32 v0, 8, v12
    v_and_b32 v12, 1, v11
    v_lshl_add_u32 v0, v12, 7, v0
    v_lshlrev_b32 v12, 3, v9
    v_and_b32 v13, 2, v11
    v_add_u32 v12, v12, v13
    v_and_b32 v13, 1, v10
    v_add_u32 v12, v12, v13
    v_lshl_add_u32 v0, v12, 3, v0
    s_sub_u32 s28, s3, 1
    s_and_b32 s28, s28, 1
    s_mul_i32 s94, s28, 14336
    s_lshl_b32 s28, s28, 9
    s_add_u32 s28, s28, {SMX}
    v_lshl_add_u32 v7, v9, 2, v8
    v_lshlrev_b32 v7, 6, v7
    v_lshl_add_u32 v7, v2, 2, v7
    v_add_u32 v7, s28, v7
    v_lshlrev_b32 v118, 6, v1
    s_mul_i32 s28, s22, 28672
    s_cmp_eq_u32 s3, {TWV}
    s_cselect_b32 s94, s28, s94
    v_and_b32 v12, 7, v2
    v_lshrrev_b32 v13, 3, v2
    v_lshlrev_b32 v14, 6, v12
    v_lshl_add_u32 v14, v3, 4, v14
    v_lshl_add_u32 v14, v13, 3, v14
    v_add_u32 v14, {SMX}, v14
    s_cmp_eq_u32 s3, 0
    s_cselect_b64 vcc, -1, 0
    v_cndmask_b32 v7, v7, v14, vcc
    v_lshlrev_b32 v116, 5, v12
    v_lshl_add_u32 v116, v13, 4, v116
    v_lshl_add_u32 v116, v8, 8, v116
    v_lshl_add_u32 v116, v9, 3, v116
    s_lshl_b32 s28, s22, 9
    v_add_u32 v116, s28, v116
    v_lshlrev_b32 v117, 5, v12
    v_lshl_add_u32 v117, v8, 8, v117
    v_lshl_add_u32 v117, v9, 3, v117
    s_lshr_b32 s28, s22, 2
    s_lshl_b32 s28, s28, 9
    s_and_b32 s29, s22, 1
    s_lshl_b32 s29, s29, 4
    s_add_u32 s28, s28, s29
    s_bfe_u32 s29, s22, 0x10001
    s_lshl_b32 s29, s29, 2
    s_add_u32 s28, s28, s29
    s_add_u32 s28, s28, 8192
    v_add_u32 v117, s28, v117
    v_mov_b32 v14, 0x7ffffff0
    v_cmp_gt_u32 vcc, 8, v2
    v_cndmask_b32 v117, v14, v117, vcc
    v_min_u32 v114, 15, v1
    v_lshlrev_b32 v114, 7, v114
    v_add_u32 v114, 2048, v114
    v_min_u32 v111, 27, v1
    v_lshlrev_b32 v111, 2, v111
    v_add_u32 v111, 7168, v111
    v_mov_b32 v112, 0
    s_mov_b32 s28, 8192
    buffer_load_dword v115, v114, s[56:59], s28 offen sc1
    s_lshl_b32 s29, s22, 2
    s_add_u32 s29, s29, {8192 + 7296}
    v_mov_b32 v110, s29
    v_cmp_eq_u32 vcc, 0, v1
    v_cndmask_b32 v110, v14, v110, vcc
    v_mov_b32 v12, 0x4444
    v_mov_b32 v14, 0xeeee
    v_cmp_lt_u32 vcc, 7, v2
    v_cndmask_b32 v3, v12, v14, vcc
    v_and_b32 v2, 1, v2
    v_cmp_eq_u32 vcc, 1, v2
    v_cndmask_b32 v2, v12, v14, vcc
    v_add_u32 v1, {MFLA}, v4
    s_sub_u32 s88, s3, 1
    s_mul_i32 s88, s88, 9216
    s_add_u32 s87, s88, {XSL}
    s_waitcnt vmcnt(0)""")
    if G.TLM: A("s_cmp_lg_u32 s3, 3\ns_cbranch_scc1 K3a_tl\ns_memrealtime s[100:101]\ns_waitcnt lgkmcnt(0)\nv_writelane_b32 v113, s100, 63\nK3a_tl:")
    A("""s_cmp_lg_u32 s65, 0
    s_cbranch_scc1 K3a_fl1""")
    for fl in (0, 1):
        if fl: A.label("K3a_fl1"); A.reset_state()
        A(f"s_cmp_eq_u32 s3, 0\ns_cbranch_scc1 K3a_r0f{fl}\ns_cmp_eq_u32 s3, 3\ns_cbranch_scc1 K3a_r3f{fl}")
        for role in (1, 0, 3):
            if role != 1: A.label(f"K3a_r{role}f{fl}"); A.reset_state()
            a_loop(A, role, fl)

WL, VOL, WZL, MFLB = 0, 114688, 147456, 155648
def wregB(i, u, n=4):
    idx = 56*i + 4*u
    if idx < 256:
        assert idx + n <= 256
        return a_(idx, n)
    return v(176 + idx - 256, n)
BA, LW, Z, PFR, PA, KEEP, KEEPM = 36, 68, 36, 116, 156, 100, 152

def b_loop(A, fl):
    L = f"K3bf{fl}"
    sc = " sc1" if fl else ""
    A.label(L + "_loop"); A.reset_state()
    zero = [f"v_mov_b32 v{r}, 0" for r in range(BA, BA + 32)]
    for z in zero: A(z)
    lw = lambda k: LW + (k % 4)*8
    def rdw(k):
        for z in range(2): A(f"ds_read_b128 {v(lw(k) + 4*z, 4)}, v5 offset:{(k // 7)*14336 + (2*(k % 7) + z)*1024}")
    for k in range(4): rdw(k)
    A(f"""s_lshl_b32 s32, s64, 13
    s_add_u32 s34, s32, 4096
    s_mul_i32 s30, s64, {G.SEG_SZ}
    s_lshl_b32 s31, s22, 15
    s_add_u32 s30, s30, s31
    s_lshl_b32 s31, s3, 13
    s_add_u32 s30, s30, s31
    s_add_u32 s29, s30, 4096
    s_add_u32 s31, s31, {VOL}
    s_lshl_b32 s28, s3, 10
    s_add_u32 s28, s28, s66
    v_add_u32 v174, s28, v4
    v_lshlrev_b32 v163, 3, v4
    v_min_u32 v163, 1920, v163
    v_add_u32 v163, 2048, v163""")
    stamp(A, 0)
    A(f"s_lshl_b32 s28, s64, 13\ns_add_u32 s33, s28, 8192\ns_cmp_lg_u32 s3, 3\ns_cbranch_scc1 {L}_wv_ok\nv_cmp_ne_u32 vcc, s96, v0\ns_cbranch_vccz {L}_wv_ok")
    flag_wait(A, L + "_wv", 68, 163, 28, PFR, "K3_end", sleep=2)
    A(f"s_mov_b32 s27, 0\ns_waitcnt lgkmcnt(0)\ns_cmp_lg_u32 s3, 2\ns_cbranch_scc1 {L}_join\ns_cmp_eq_u32 s64, 0\ns_cbranch_scc1 {L}_hm_ok")
    hu_wait(A, L + "_hm", 40, 161, 32, (PFR, PFR+1, PFR+2), "K3_end")
    A("s_mov_b32 s27, 0")
    A.label(L + "_go"); A.reset_state()
    mem_fetch(A, MFLB)
    A.label(L + "_join")
    A("s_barrier")
    for t in range(7): A(f"ds_read_b128 {v(MF+4*t, 4)}, v162 offset:{t*1024}")
    sm0 = lambda i, t, B: f"v_smfmac_f32_16x16x64_bf16 {v(BA+4*i, 4)}, {v(MF+4*t, 4)}, {B}, v160"
    dm = dma_ops(8, 48, (30, 29), 31, ' sc1') + ["buffer_load_dword v0, v163, s[68:71], s33 offen sc1"]
    cnt = [0, 15]
    def sm(i, t, B):
        cnt[0] += 1
        z = sm0(i, t, B) if (i == 0 or not os.environ.get("NOW")) else "s_nop 3"
        if dm and cnt[0] >= cnt[1]: z += "\n" + dm.pop(0); cnt[1] = cnt[0] + DSPB
        return z
    for t in range(7):
        A(f"s_waitcnt lgkmcnt({6 - t})")
        if t == 0: stamp(A, 1)
        A(sm(0, t, wregB(0, 2*t, 8)))
    for t in range(7):
        A(sm(1, t, wregB(1, 2*t, 8)))
        if t == 3: A(f"v_add_f32 v{BA}, v{BA}, v{BA+1}")
        if t == 4: A(f"v_add_f32 v{BA+2}, v{BA+2}, v{BA+3}")
        if t == 5: A(f"v_cmp_u_f32 vcc, v{BA}, v{BA+2}")
        if t == 6: A(f"s_cbranch_vccnz {L}_slowm\n{L}_backm:")
    stamp_cnt(A, 0)
    for k in range(14):
        A(f"s_waitcnt lgkmcnt({2*min(3, 13-k)})")
        A(sm(6 + k // 7, k % 7, v(lw(k), 8)))
        i = 2 + k // 7
        A(sm(i, k % 7, wregB(i, 2*(k % 7), 8)))
        if k + 4 < 14: rdw(k + 4)
    def fin(i):
        x = BA + 4*i
        o = [] if i == 0 else [f"v_add_f32 v{x}, v{x}, v{x+1}", f"v_add_f32 v{x+2}, v{x+2}, v{x+3}"]
        return o + [f"v_cvt_pk_bf16_f32 v{164+i}, v{x}, v{x+2}"]
    side = fin(0) + fin(1) + fin(2) + fin(6) + fin(3) + [f"ds_write_b128 v174, v[164:167]"]
    for t in range(7):
        for i in (4, 5):
            A(sm(i, t, wregB(i, 2*t, 8)))
            if side: A(side.pop(0))
    for z in side + fin(7) + fin(4) + fin(5) + [f"ds_write_b128 v174, v[168:171] offset:4096"]: A(z)
    stamp(A, 2)
    A(f"s_waitcnt vmcnt(0) lgkmcnt(0)\ns_barrier\ns_cmp_ge_u32 s3, 2\ns_cbranch_scc1 {L}_idle")
    A("s_lshl_b32 s28, s24, 12\ns_add_u32 s28, s28, s66\nv_add_u32 v163, s28, v4")
    for f in range(16):
        A(f"ds_read_b128 {v(Z + 4*f, 4)}, v6 offset:{f*1024}")
        if f == 11: A("s_waitcnt lgkmcnt(4)")
    for f in range(4): A(f"ds_read_b128 {v(Z + 64 + 4*f, 4)}, v163 offset:{f*1024}")
    for r in range(4): A(f"v_mov_b32 v{PA+r}, 0")
    A(f"""s_mul_i32 s28, s64, {G.PF_STRIDE}
    s_add_u32 s29, s28, 4096
    s_add_u32 s30, s28, 8192
    s_add_u32 s34, s32, 8192
    s_waitcnt lgkmcnt(0)""")
    stamp(A, 3)
    if ONEP: A(f"s_cmp_lg_u32 s3, 0\ns_cbranch_scc1 {L}_hp_ok")
    hu_wait(A, L + "_hp", 40, 172, 32, (PFR, PFR+1, PFR+2, PFR+3), "K3_end", HUD=int(os.environ.get("HUDP", "3")))
    if ONEP: A("s_barrier")
    stamp(A, 2)
    A("s_mov_b32 s27, 0")
    A.label(L + "_gop"); A.reset_state()
    order = [8, 9, 0, 1, 2, 3, 4, 5, 6, 7]
    for k, t in enumerate(order):
        A(f"buffer_load_dwordx4 {v(PFR+4*t, 4)}, v4, s[44:47], s{28 + t // 4} offen offset:{(t % 4)*1024} sc1")
        if HU_M_AT < 0 and k == 10 + HU_M_AT: A(f"buffer_store_dword v175, v173, s[40:43], s32 offen{sc}")
    for k, u in enumerate(order):
        A(f"s_waitcnt vmcnt({9-k + (1 if (k > HU_M_AT + 1 if HU_M_AT >= 0 else k <= 10 + HU_M_AT) else 0)})")
        if k == 0: stamp(A, 4)
        A(f"v_smfmac_f32_16x16x64_bf16 {v(PA, 4)}, {v(PFR+4*u, 4)}, {v(Z+8*u, 8)}, v160")
        if k == 0: A(f"v_max_u32 v164, v{PFR+32}, v{PFR+33}")
        if k == 1: A(f"v_max3_u32 v164, v164, v{PFR+36}, v{PFR+37}\nv_cmp_eq_u32 vcc, -1, v164\ns_cbranch_vccnz {L}_early")
        if HU_M_AT >= 0 and k == HU_M_AT + 1: A(f"buffer_store_dword v175, v173, s[40:43], s32 offen{sc}")
    if not DWST:
        A(f"""v_add_f32 v{PA}, v{PA}, v{PA+1}
        v_add_f32 v{PA+2}, v{PA+2}, v{PA+3}
        v_cmp_u_f32 vcc, v{PA}, v{PA+2}
        v_cvt_pk_bf16_f32 v{PA}, v{PA}, v{PA+2}
        s_cbranch_vccnz {L}_slowp""")
        A.label(L + "_backp")
        A(f"""buffer_store_short v{PA}, v7, s[40:43], s34 offen{sc}
        buffer_store_short_d16_hi v{PA}, v7, s[40:43], s34 offen offset:32{sc}""")
    else:
        A(f"""v_add_f32 v{PA}, v{PA}, v{PA+1}
        v_add_f32 v{PA+2}, v{PA+2}, v{PA+3}
        v_cmp_u_f32 vcc, v{PA}, v{PA+2}
        v_cvt_pk_bf16_f32 v{PA}, v{PA}, v{PA+2}
        s_cbranch_vccnz {L}_slowp""")
        A.label(L + "_backp")
        A(f"""v_mov_b32_dpp v{PA+1}, v{PA} {QP}
        v_perm_b32 v{PA}, v{PA+1}, v{PA}, v2
        buffer_store_dword v{PA}, v7, s[40:43], s34 offen{sc}""")
    stamp_cnt(A, 1)
    A.label(L + "_next")
    stamp(A, 5)
    tl(A, 0, 64)
    stamp_out(A, 116, MFLB + 7168, 2)
    A(f"s_add_u32 s64, s64, 1\ns_cmp_lt_u32 s64, 63")
    A.flush()
    A(f"s_cbranch_scc1 {L}_loop")
    A.label(L + "_exit"); A.reset_state()
    stamp_dump(A, MFLB + 7168)
    tl_dump(A, 1)
    A("s_branch K3_end")
    A.label(L + "_idle"); A.reset_state()
    if ONEP: A("s_barrier")
    A(f"s_branch {L}_next")
    exact_check(A, L + "_slowm", 7, MF, 164, L + "_retrym", L + "_backm", "K3_end")
    A.label(L + "_retrym"); A.reset_state()
    for z in zero[:8]: A(z)
    A(f"s_barrier\ns_cmp_lg_u32 s3, 2\ns_cbranch_scc1 {L}_join\ns_branch {L}_go")
    exact_check(A, L + "_slowp", 10, PFR, 164, L + "_retryp", L + "_nanp", "K3_end")
    A.label(L + "_nanp"); A.reset_state()
    A(f"v_pk_min_u16 v{PA}, v{PA}, s25\ns_branch {L}_backp")
    A.label(L + "_early"); A.reset_state()
    A(f"s_add_u32 s27, s27, 1\ns_cmp_gt_u32 s27, {SPIN_MAX}\ns_cbranch_scc1 K3_end\ns_waitcnt vmcnt(0)\ns_nop 7")
    A.label(L + "_retryp"); A.reset_state()
    for r in range(4): A(f"v_mov_b32 v{PA+r}, 0")
    A(f"s_nop 1\ns_branch {L}_gop")

def b_cu(A):
    srd(A, 36, 18, G.WF_OFF + 16*G.WF_UNIT, 16*G.WF_UNIT)
    srd(A, 48, 18, G.VOF_OFF, 64*G.SEG_SZ)
    srd(A, 68, 18, G.FLG_OFF, G.FLG_SZ)
    A(f"""v_bfe_u32 v5, v1, 2, 2
    v_mul_u32_u24 v5, 3584, v5
    v_and_b32 v6, 3, v1
    v_lshl_add_u32 v5, v6, 7, v5
    s_mul_i32 s33, s3, 14336
    s_lshr_b32 s28, s22, 1
    s_lshl_b32 s28, s28, 9
    s_add_u32 s33, s33, s28
    s_add_u32 s33, s33, {G.FLG_PROD + 16*3584}""")
    for k in range(4):
        G.stage_wait(A, f"K3b_wp{k}", 68, 5, 33, 6, k + 1, "K3_end")
        for i in range(8):
            ct, q = i // 4, i % 4
            A(f"""s_lshl_b32 s28, s3, 2
            s_add_u32 s28, s28, {q}
            s_mul_i32 s28, s28, {G.WF_UNIT}
            s_mul_i32 s29, s22, 28672
            s_add_u32 s28, s28, s29
            s_add_u32 s28, s28, {ct*14336 + k*4096}""")
            if i >= 6: A(f"s_mul_i32 s29, s3, 28672\ns_add_u32 m0, s29, {WL + (i-6)*14336 + k*4096}")
            for u in range(4*k, min(14, 4*k + 4)):
                if i < 6: A(f"buffer_load_dwordx4 {wregB(i, u)}, v4, s[36:39], s28 offen offset:{(u % 4)*1024} sc1")
                else: A(f"buffer_load_dwordx4 v4, s[36:39], s28 offen offset:{(u % 4)*1024} sc1 lds")
    team_flavor(A, "K3_end")
    A(f"""
    s_mul_i32 s28, s3, 28672
    v_add_u32 v5, s28, v4
    v_and_b32 v9, 1, v2
    v_cmp_eq_u32 vcc, 1, v9
    v_mov_b32 v160, 0x4444
    v_mov_b32 v161, 0xeeee
    v_cndmask_b32 v160, v160, v161, vcc
    s_mov_b32 s25, 0xfffefffe
    s_mov_b32 s26, 0xffff0000
    s_mov_b32 s64, 0
    s_mov_b32 s66, {WZL}
    s_and_b32 s24, s3, 1
    s_lshl_b32 s28, s24, 14
    s_add_u32 s28, s28, {VOL}
    v_add_u32 v6, s28, v4
    v_bfe_u32 v8, v2, 1, 1
    v_lshl_add_u32 v8, v3, 2, v8
    v_lshlrev_b32 v7, 4, v8
    v_lshrrev_b32 v8, 2, v2
    v_lshl_add_u32 v7, v8, 2, v7
    v_lshl_add_u32 v7, v9, 1, v7
    s_lshl_b32 s28, s22, 1
    s_add_u32 s28, s28, s24
    s_lshl_b32 s67, s28, 12
    s_lshl_b32 s29, s28, 8
    v_add_u32 v7, s29, v7
    v_min_u32 v161, 27, v1
    v_lshlrev_b32 v161, 2, v161
    v_add_u32 v161, 7168, v161
    v_min_u32 v172, 15, v1
    v_lshlrev_b32 v172, 2, v172
    v_add_u32 v172, {8192 + 7296}, v172
    s_lshl_b32 s28, s28, 2
    s_add_u32 s28, s28, {8192 + 7168}
    v_mov_b32 v173, s28
    v_mov_b32 v8, 0x7ffffff0
    v_cmp_eq_u32 vcc, 0, v1
    v_cndmask_b32 v173, v8, v173, vcc
    v_mov_b32 v175, 0
    v_not_b32 v0, s96
    v_and_b32 v9, 1, v1
    v_cmp_eq_u32 vcc, 1, v9
    v_mov_b32 v2, 0x05040100
    v_mov_b32 v8, 0x03020706
    v_cndmask_b32 v2, v2, v8, vcc
    v_mul_u32_u24 v9, {30 if DWST else 0}, v9
    v_add_u32 v7, v7, v9
    v_add_u32 v162, {MFLB}, v4
    s_mov_b32 s97, {MFLB}
    s_mul_i32 s98, s24, 3072
    s_waitcnt vmcnt(0)
    """)
    G.TLV[0] = 3
    tl(A, 63)
    A(f"""v_lshlrev_b32 v163, 3, v4
    v_min_u32 v163, 1920, v163
    v_add_u32 v163, 2048, v163
    s_mov_b32 s28, 0""")
    flag_wait(A, "K3b_v0", 68, 163, 28, 0, "K3_end", sleep=2)
    A(f"s_lshl_b32 s30, s22, 15\ns_lshl_b32 s31, s3, 13\ns_add_u32 s30, s30, s31\ns_add_u32 s31, s31, {VOL}")
    for z in dma_ops(8, 48, 30, 31, " sc1"): A(z)
    A("s_cmp_lg_u32 s65, 0\ns_cbranch_scc1 K3bf1_loop")
    b_loop(A, 0)
    b_loop(A, 1)

def warm_cu(A):
    L = "K3w"
    srd(A, 52, 18, G.XNF_OFF, G.XN_SZ)
    A(f"""v_min_u32 v5, 27, v1
    v_lshlrev_b32 v5, 2, v5
    v_add_u32 v5, 7168, v5
    s_lshl_b32 s28, s3, 10
    v_add_u32 v6, s28, v4
    s_mov_b32 s64, 0""")
    def touch(sreg):
        A(f"s_lshl_b32 s28, s{sreg}, 13\ns_add_u32 s28, s28, 8192\ns_mul_i32 s29, s{sreg}, {G.PF_STRIDE}\ns_mul_i32 s30, s{sreg}, 28672\ns_add_u32 s30, s30, {1*28672}")
        for k in range(2): A(f"buffer_load_dwordx4 v[16:19], v6, s[40:43], s28 offen sc1\ns_add_u32 s28, s28, 4096")
        for k in range(3): A(f"buffer_load_dwordx4 v[16:19], v6, s[44:47], s29 offen sc1\ns_add_u32 s29, s29, 4096")
        for k in range(7): A(f"buffer_load_dwordx4 v[16:19], v6, s[52:55], s30 offen sc1\ns_add_u32 s30, s30, 4096")
    A("v_mov_b32 v7, 2048\ns_mov_b32 s28, 0")
    flag_wait(A, L + "_v0", 56, 7, 28, 8, "K3_end", sleep=8)
    for k in range(WD + 1):
        A(f"s_mov_b32 s33, {k}"); touch(33)
    A.label(L + "_loop")
    A(f"s_add_u32 s64, s64, 1\ns_cmp_ge_u32 s64, {63 - WD}\ns_cbranch_scc1 K3_end\ns_lshl_b32 s32, s64, 13\ns_mov_b32 s27, 0")
    A.label(L + "_w")
    A(f"""s_sleep 4
    buffer_load_dword v8, v5, s[40:43], s32 offen sc1
    s_add_u32 s27, s27, 1
    s_cmp_gt_u32 s27, {SPIN_MAX}
    s_cbranch_scc1 K3_end
    s_waitcnt vmcnt(0)
    v_cmp_eq_u32 vcc, -1, v8
    s_cbranch_vccnz {L}_w
    s_add_u32 s33, s64, {WD}""")
    touch(33)
    A(f"s_branch {L}_loop")

def fwd_cu(A):
    L = "K3f"
    srd(A, 52, 18, G.MEMG_OFF, 64*8192)
    srd(A, 56, 18, G.FLG_OFF, G.FLG_SZ)
    A(f"""v_min_u32 v5, 27, v1
    v_lshlrev_b32 v5, 2, v5
    v_add_u32 v5, 7168, v5
    s_lshl_b32 s28, s3, 11
    s_min_u32 s28, s28, 5120
    v_add_u32 v6, s28, v4
    s_mov_b32 s26, 0xffff0000
    s_mov_b32 s64, 0""")
    team_flavor(A, "K3_end", 10, 11)
    A.label(L + "_loop")
    A(f"s_lshl_b32 s32, s64, 13\ns_mov_b32 s27, 0\ns_cmp_eq_u32 s64, 0\ns_cbranch_scc1 {L}_hu")
    A.label(L + "_w")
    A(f"""s_sleep 1
    buffer_load_dword v8, v5, s[40:43], s32 offen sc1
    s_add_u32 s27, s27, 1
    s_cmp_gt_u32 s27, {SPIN_MAX}
    s_cbranch_scc1 K3_end
    s_waitcnt vmcnt(0)
    v_cmp_eq_u32 vcc, -1, v8
    s_cbranch_vccnz {L}_w""")
    A.label(L + "_hu")
    A(f"s_lshl_b32 s28, s64, 13\ns_add_u32 s28, s28, 6144\ns_cmp_lg_u32 s3, 0\ns_cbranch_scc1 {L}_get")
    flag_set(A, 56, 28, 8, 9)
    A.label(L + "_get")
    A(f"""buffer_load_dwordx4 v[16:19], v6, s[40:43], s32 offen sc1
    buffer_load_dwordx4 v[20:23], v6, s[40:43], s32 offen offset:1024 sc1""")
    exact_check(A, L + "_chk", 2, 16, 8, L + "_get", L + "_ok", "K3_end")
    A.label(L + "_ok")
    A(f"""buffer_store_dwordx4 v[16:19], v6, s[52:55], s32 offen sc1
    buffer_store_dwordx4 v[20:23], v6, s[52:55], s32 offen offset:1024 sc1""")
    A(f"s_add_u32 s64, s64, 1\ns_cmp_lt_u32 s64, 64\ns_cbranch_scc1 {L}_loop\ns_branch K3_end")

def team_publish(A, what):
    if what == 0: A(f"s_lshl_b32 s28, s21, 7\ns_add_u32 s28, s28, {G.FLG_LN}\nv_mov_b32 v8, s96")
    else: A("s_lshl_b32 s28, s21, 2\ns_add_u32 s28, s28, 128\nv_mov_b32 v8, s35")
    A(f"""v_mov_b32 v9, s28
    s_barrier
    s_mov_b64 exec, 1
    buffer_store_dword v8, v9, s[{(56, 60)[what]}:{(59, 63)[what]}], 0 offen sc1
    s_mov_b64 exec, -1""")

def team(A):
    A("s_getreg_b32 s35, hwreg(HW_REG_XCC_ID, 0, 4)\ns_add_u32 s35, s35, 1")
    srd(A, 60, 16, 0, 256)
    srd(A, 40, 18, G.MEMF_OFF, 64*G.MEMF_STRIDE)
    srd(A, 44, 18, G.PF_OFF, 64*G.PF_STRIDE)
    A("s_lshl_b32 s23, s21, 2\ns_add_u32 s23, s23, s3")
    G.ln_body(A, "KL")
    srd(A, 56, 18, G.FLG_OFF, G.FLG_SZ)
    A("s_waitcnt vmcnt(0)"); team_publish(A, 0)
    A(f"s_cmp_lg_u32 s21, 31\ns_cbranch_scc1 K3_nofill\nv_min_u32 v8, 55, v1\nv_lshlrev_b32 v8, 7, v8\ns_mov_b32 s28, {G.FLG_FILL}\ns_mov_b32 s29, {G.FLG_FILL + 56*128}")
    flag_wait(A, "K3_fw0", 56, 8, 28, 9, "K3_end", sleep=8)
    flag_wait(A, "K3_fw1", 56, 8, 29, 9, "K3_end", sleep=8)
    A.label("K3_nofill")
    team_publish(A, 1)
    if G.TLM: A("v_writelane_b32 v113, s84, 63\nv_writelane_b32 v113, s85, 58\nv_writelane_b32 v113, s86, 59\nv_writelane_b32 v113, s87, 60"); tl(A, 61)
    A("s_cmp_eq_u32 s21, 31\ns_cbranch_scc1 K3_w\ns_cmp_eq_u32 s21, 30\ns_cbranch_scc1 K3_f")
    A("s_cmp_ge_u32 s21, 16\ns_cbranch_scc1 K3_b\ns_mov_b32 s22, s21")
    a_cu(A)
    A.label("K3_b"); A.reset_state()
    A("s_sub_u32 s22, s21, 16")
    b_cu(A)
    A.label("K3_w"); A.reset_state()
    warm_cu(A)
    A.label("K3_f"); A.reset_state()
    fwd_cu(A)
```

```python
import sys
from asmlib import *

NAME = "parallel_sum__memory_aug_recurrent_mem_tr__moe_arch_mod__prompt"
XN_OFF, XN_SZ = 0x0000000, 2048*896
XNF_OFF = 0x0200000
R_OFF = 0x0400000
MOEP_OFF, MOEP_SZ = 0x0410000, 28*8*448*4
IDX_OFF = 0x0480000
MEMF_OFF, MEMF_STRIDE = 0x0500000, 8192
PF_OFF, PF_STRIDE = 0x0600000, 10240
WF_OFF, WF_UNIT = 0x0800000, 28*14*1024
KQF_OFF, SEG_SZ = 0x1800000, 16*28*1024
VOF_OFF = 0x3400000
PXF_OFF, PXF_SEG = 0x5000000, 40*1024
WZ_OFF, WZ_SEG = 0x5400000, 28*4*1024
MEMG_OFF = 0x5C00000
FLG_MOE, FLG_PROD, FLG_LN, FLG_EPOCH = 16384*32, 18432*32, 17664*32, 17920*32
FLG_FILL = 22*1024*32
FLG_OFF, FLG_SZ = 0x5D00000, 23*1024*32
SPIN_MAX = 1 << 22
W3_SZ = 448*8192
SCALE_LOG2E = 0x3db8aa3b
import struct
assert abs(struct.unpack('<f', struct.pack('<I', SCALE_LOG2E))[0] - 1.4426950408889634/16) < 1e-8

KARG = dict(x=0, mem0=8, wq=16, wk=24, wv=32, wo=40, wr=64, wg=72, wu=80, wd=88, out=96, dbg=104, ws=112)

def srd(A, d, base, off, size):
    if off == 0:
        A(f"s_mov_b32 s{d}, s{base}\ns_mov_b32 s{d+1}, s{base+1}")
    else:
        o = off if isinstance(off, str) else hex(off)
        A(f"s_add_u32 s{d}, s{base}, {o}\ns_addc_u32 s{d+1}, s{base+1}, 0")
    A(f"s_mov_b32 s{d+2}, {hex(size)}\ns_mov_b32 s{d+3}, 0x20000")

def lane_setup(A, vlane=1, vn=2, vg=3, swave=3):
    A(f"""
    v_and_b32 v{vlane}, 63, v0
    v_lshrrev_b32 v{vg}, 6, v0
    v_and_b32 v{vn}, 15, v0
    v_readfirstlane_b32 s{swave}, v{vg}
    v_bfe_u32 v{vg}, v0, 4, 2
    """)

def xreduce(A, op, x, t, steps=(16, 32)):
    for st in steps:
        if st == 8:
            A(f"{op}_dpp v{x}, v{x}, v{x} row_ror:8 row_mask:0xf bank_mask:0xf")
        else:
            A(f"v_mov_b32 v{t}, v{x}")
            A(f"v_permlane{st}_swap_b32 v{x}, v{t}")
            A(f"{op} v{x}, v{x}, v{t}")

import os
TLM = int(os.environ.get("TLM", "0"))
def tl(A, k, sreg=None):
    if not TLM: return
    if sreg is None: A(f"s_memrealtime s[100:101]\ns_waitcnt lgkmcnt(0)\nv_writelane_b32 v{TLV[0]}, s100, {k}")
    else: A(f"s_memrealtime s[100:101]\ns_mov_b32 m0, s{sreg}\ns_waitcnt lgkmcnt(0)\nv_writelane_b32 v{TLV[0]}, s100, m0")
TLV = [15]
def tls(A, k):
    if TLM: A(f"s_memrealtime s[100:101]\ns_waitcnt lgkmcnt(0)\ns_mov_b32 s{84+k}, s100")
def tl_dump(A, kern, wsreg=18):
    if not TLM: return
    A(f"""s_add_u32 s36, s{wsreg}, {hex(0x5F00000 + kern*0x40000)}
    s_addc_u32 s37, s{wsreg+1}, 0
    s_mov_b32 s38, 0x40000
    s_mov_b32 s39, 0x20000
    v_mbcnt_lo_u32_b32 v14, -1, 0
    v_mbcnt_hi_u32_b32 v14, -1, v14
    v_lshlrev_b32 v14, 2, v14
    s_lshl_b32 s100, s2, 10
    s_lshl_b32 s101, s3, 8
    s_add_u32 s100, s100, s101
    buffer_store_dword v{TLV[0]}, v14, s[36:39], s100 offen""")

def flag_wait(A, L, srdn, voff, soff, tmp, bail, sleep=6, cnt=27):
    A(f"s_mov_b32 s{cnt}, 0")
    A.label(L)
    A(f"""buffer_load_dword v{tmp}, v{voff}, s[{srdn}:{srdn+3}], s{soff} offen sc1
    s_add_u32 s{cnt}, s{cnt}, 1
    s_cmp_gt_u32 s{cnt}, {SPIN_MAX}
    s_cbranch_scc1 {bail}
    s_waitcnt vmcnt(0)
    v_cmp_ne_u32 vcc, s96, v{tmp}
    s_cbranch_vccz {L}_ok
    s_sleep {min(127, sleep*int(os.environ.get('SLP', '1')))}
    s_branch {L}""")
    A.label(L + "_ok")

def mem_poll(A, L, srdn, soffs, reg0, t0, t1, bail):
    A("s_mov_b32 s27, 0\ns_mov_b32 s26, 0xffff0000")
    A.label(L); A.reset_state()
    for t in range(7): A(f"buffer_load_dwordx4 {v(reg0+4*t, 4)}, v4, s[{srdn}:{srdn+3}], s{soffs[t // 4]} offen offset:{(t % 4)*1024} sc1")
    A(f"s_add_u32 s27, s27, 1\ns_cmp_gt_u32 s27, {SPIN_MAX}\ns_cbranch_scc1 {bail}")
    for t in range(7):
        r = reg0 + 4*t
        A(f"s_waitcnt vmcnt({6-t})")
        A(f"v_pk_max_u16 v{t0}, v{r}, v{r+1}" if t == 0 else f"v_pk_max_u16 v{t0}, v{t0}, v{r}\nv_pk_max_u16 v{t0}, v{t0}, v{r+1}")
        A(f"v_pk_max_u16 v{t0}, v{t0}, v{r+2}\nv_pk_max_u16 v{t0}, v{t0}, v{r+3}")
    A(f"v_lshlrev_b32 v{t1}, 16, v{t0}\nv_max_u32 v{t0}, v{t0}, v{t1}\nv_cmp_le_u32 vcc, s26, v{t0}\ns_cbranch_vccnz {L}")

def flag_set(A, srdn, soff, t0, t1):
    A(f"""v_mov_b32 v{t0}, s96
    v_mov_b32 v{t1}, 0
    s_mov_b64 exec, 1
    buffer_store_dword v{t0}, v{t1}, s[{srdn}:{srdn+3}], s{soff} offen sc1
    s_mov_b64 exec, -1""")

def wreg(i, u, n=4):
    idx = 56*i + 4*u
    if idx < 256:
        assert idx + n <= 256
        return a_(idx, n)
    return v(120 + idx - 256, n)

PADS = int(os.environ.get("PADS", "1"))
class Warm:
    def __init__(self, A, name):
        self.A, self.name = A, name
        if not PADS: return
        A("s_mov_b64 exec, 0")
        self.slot = len(A.lines); A.lines.append("; warm entry")
        A.label(name + "_ret"); A.reset_state()
        A("s_mov_b64 exec, -1")
    def on(self, every=112):
        if PADS: self.A.pads_on(self.name, every)
    def off(self):
        if not PADS: return
        st = self.A.pads_off(self.name + "_ret")
        t = "".join(f"    s_cmp_eq_u32 s3, {w}\n    s_cbranch_scc1 {st[w]}\n" for w in range(3)) + f"    s_branch {st[3]}"
        self.A.lines[self.slot] = t

def stage_wait(A, L, srdn, voff, soff, t0, k, bail, sleep=int(os.environ.get('SLS', '6'))):
    A("s_mov_b32 s27, 0")
    A.label(L)
    A(f"""buffer_load_dword v{t0}, v{voff}, s[{srdn}:{srdn+3}], s{soff} offen sc1
    s_add_u32 s27, s27, 1
    s_cmp_gt_u32 s27, {SPIN_MAX}
    s_cbranch_scc1 {bail}
    s_waitcnt vmcnt(0)
    v_subrev_u32 v{t0}, s95, v{t0}
    v_subrev_u32 v{t0}, {k}, v{t0}
    v_cmp_lt_u32 vcc, {4 - k}, v{t0}
    s_cbranch_vccz {L}_ok
    s_sleep {sleep}
    s_branch {L}""")
    A.label(L + "_ok")

def prod_body(A, L):
    A(f"""s_and_b32 s24, s22, 15
    s_lshl_b32 s25, s24, 9
    s_mul_i32 s26, s22, {WF_UNIT}
    s_add_u32 s26, s26, {hex(WF_OFF)}""")
    srd(A, 36, 18, "s26", WF_UNIT)
    VO, RA, SR, TMP = 216, 224, 136, 232
    A("""v_lshrrev_b32 v5, 5, v1
    v_and_b32 v6, 31, v1
    v_xor_b32 v6, v6, v5
    v_lshlrev_b32 v6, 4, v6
    v_lshl_add_u32 v6, v5, 13, v6""")
    for k in range(8):
        A(f"v_xor_b32 v{VO+k}, {2*k << 4}, v6\nv_add_u32 v{VO+k}, {(8*(k >> 1) + 2*(k & 1))*8192}, v{VO+k}")
    def tile_dma(srdn, soff):
        for k in range(8):
            A(f"buffer_load_dwordx4 v{VO+k}, s[{srdn}:{srdn+3}], s{soff} offen lds\ns_add_u32 m0, m0, 1024")
    def coop_touch():
        if not int(os.environ.get("PTOUCH", "1")): return
        A("""v_lshrrev_b32 v250, 3, v1
        v_and_b32 v251, 7, v1
        v_lshlrev_b32 v251, 6, v251
        v_lshl_add_u32 v250, v250, 13, v251
        s_lshl_b32 s27, s23, 19
        s_lshl_b32 s28, s3, 17
        s_add_u32 s27, s27, s28
        s_add_u32 s27, s27, s25
        buffer_load_dword v251, v250, s[40:43], s27 offen
        s_add_u32 s27, s27, 65536
        buffer_load_dword v252, v250, s[40:43], s27 offen""")
    def stage_dma(k):
        A(f"""s_add_u32 s27, s3, {4*k}
        s_lshl_b32 s27, s27, 18
        s_add_u32 s27, s27, s25
        s_add_u32 m0, s32, {(k % 2)*16384}""")
        tile_dma(40, 27)
        A("s_add_u32 s27, s27, 32768")
        tile_dma(40, 27)
    rreg = lambda ct, ks: v(8 + (ct*8 + ks)*4, 4)
    A(f"""s_lshl_b32 s32, s3, 15
    s_add_u32 s32, s32, 32768
    s_mov_b32 s30, 1.0
    s_cmp_ge_u32 s22, 16
    s_cbranch_scc1 {L}_t1""")
    srd(A, 40, 76, 0, W3_SZ)
    srd(A, 44, 78, 0, W3_SZ)
    coop_touch()
    A(f"""s_mov_b32 s30, {hex(SCALE_LOG2E)}
    s_lshl_b32 s27, s23, 19
    s_lshr_b32 s28, s3, 1
    s_lshl_b32 s28, s28, 18
    s_add_u32 s27, s27, s28
    s_and_b32 s28, s3, 1
    s_lshl_b32 s28, s28, 15
    s_add_u32 s27, s27, s28
    s_add_u32 s27, s27, s25
    s_lshl_b32 m0, s3, 13""")
    tile_dma(44, 27)
    stage_dma(0)
    A(f"s_branch {L}_c0")
    A.label(L + "_t1"); A.reset_state()
    srd(A, 40, 80, 0, W3_SZ)
    coop_touch()
    A(f"s_mul_i32 s27, s24, {256*896}")
    srd(A, 44, 82, "s27", 256*896)
    A(f"""v_lshrrev_b32 v5, 3, v1
    v_and_b32 v6, 7, v1
    v_and_b32 v7, 6, v5
    v_xor_b32 v6, v6, v7
    v_lshlrev_b32 v6, 4, v6
    v_and_b32 v7, 3, v5
    v_lshrrev_b32 v5, 2, v5
    v_lshl_add_u32 v7, v5, 3, v7
    v_mul_u32_u24 v7, 896, v7
    v_add_u32 v7, v7, v6
    s_lshl_b32 s27, s23, 7
    s_mul_i32 s28, s3, {64*896}
    s_add_u32 s27, s27, s28
    s_lshl_b32 m0, s3, 13""")
    for k in range(8):
        A(f"buffer_load_dwordx4 v7, s[44:47], s27 offen lds\ns_add_u32 m0, m0, 1024\ns_add_u32 s27, s27, {(4 if k % 2 == 0 else 12)*896}")
    stage_dma(0)
    A.label(L + "_c0"); A.reset_state()
    A("""v_and_b32 v5, 3, v2
    v_xor_b32 v5, v5, v3
    v_and_b32 v6, 12, v2
    v_or_b32 v5, v5, v6
    v_lshlrev_b32 v5, 4, v5
    v_lshl_add_u32 v5, v2, 9, v5""")
    for ks in range(8): A(f"v_xor_b32 v{RA+ks}, {ks << 6}, v5")
    NT = 0
    W = Warm(A, L + "_wm")
    W.on()
    tls(A, 1)
    A(f"s_waitcnt vmcnt({16 + NT})\ns_barrier\ns_cmp_ge_u32 s22, 16\ns_cbranch_scc1 {L}_r1")
    for ct in range(4):
        for ks in range(8): A(f"ds_read_b128 {rreg(ct, ks)}, v{RA+ks} offset:{ct*8192}")
        A("s_waitcnt lgkmcnt(7)")
    A(f"s_branch {L}_c1")
    A.label(L + "_r1"); A.reset_state()
    A("""v_lshrrev_b32 v5, 2, v2
    v_and_b32 v6, 1, v3
    v_lshl_add_u32 v6, v6, 2, v5
    v_lshrrev_b32 v7, 1, v6
    v_lshrrev_b32 v5, 1, v3
    v_lshl_add_u32 v6, v5, 4, v6
    v_lshlrev_b32 v6, 7, v6
    v_and_b32 v5, 3, v2
    v_lshl_add_u32 v6, v5, 3, v6""")
    for ct in range(4):
        A(f"v_xor_b32 v5, {ct}, v7\nv_lshl_add_u32 v5, v5, 5, v6")
        for ks in range(8):
            for z in range(2): A(f"ds_read_b64_tr_b16 {v(8 + (ct*8 + ks)*4 + 2*z, 2)}, v5 offset:{ks*4096 + z*1024}")
            if ks % 4 == 3: A("s_waitcnt lgkmcnt(7)")
    A.label(L + "_c1"); A.reset_state()
    stage_dma(1)
    tls(A, 2)
    for ks in range(8): A(f"v_add_u32 v{RA+ks}, s32, v{RA+ks}")
    A(f"""s_mul_i32 s31, s23, {4*14*1024}
    s_lshl_b32 s28, s3, 10
    s_add_u32 s31, s31, s28
    s_lshl_b32 s33, s20, 9
    s_lshl_b32 s28, s3, 7
    s_add_u32 s33, s33, s28
    s_add_u32 s33, s33, {FLG_PROD}
    v_mov_b32 v6, 0x7ffffff0
    v_cmp_eq_u32 vcc, 0, v1
    v_cndmask_b32 v6, v6, v1, vcc""")
    acc = lambda k, ct, e: a_(((k*4 + ct)*2 + e)*4, 4)
    def epilogue(k):
        o = []
        for ct in range(4):
            t = TMP + 4*(ct % 2)
            for e in range(2):
                b = ((k*4 + ct)*2 + e)*4
                for r in range(4): o.append(f"v_accvgpr_read_b32 v{TMP+8+r}, a{b+r}")
                for r in (0, 2): o.append(f"v_pk_mul_f32 {v(TMP+8+r, 2)}, {v(TMP+8+r, 2)}, s[30:31] op_sel_hi:[1,0]")
                o.append(f"v_cvt_pk_bf16_f32 v{t+2*e}, v{TMP+8}, v{TMP+9}")
                o.append(f"v_cvt_pk_bf16_f32 v{t+2*e+1}, v{TMP+10}, v{TMP+11}")
            o.append(f"s_add_u32 s28, s31, {(ct*14 + 4*k)*1024}\nbuffer_store_dwordx4 {v(t, 4)}, v4, s[36:39], s28 offen sc1")
        return o
    flag = lambda st: f"s_add_u32 s28, s95, {st}\nv_mov_b32 v7, s28\nbuffer_store_dword v7, v6, s[48:51], s33 offen sc1"
    if int(os.environ.get("PORD", "2")) == 2:
        for k in range(4):
            if k == 3: A(f"s_cmp_ge_u32 s3, 2\ns_cbranch_scc1 {L}_short")
            A(f"s_waitcnt vmcnt({[16, 20, 21, 5][k]})")
            for e in range(2):
                for ks in range(8): A(f"ds_read_b128 {v(SR + (e*8 + ks)*4, 4)}, v{RA+ks} offset:{(k % 2)*16384 + e*8192}")
                if e == 0: A("s_waitcnt lgkmcnt(7)")
            for e in range(2):
                for ks in range(8):
                    A(f"s_waitcnt lgkmcnt({15 - 8*e - ks})")
                    for ct in range(4):
                        A(f"v_mfma_f32_16x16x32_bf16 {acc(k, ct, e)}, {v(SR + (e*8 + ks)*4, 4)}, {rreg(ct, ks)}, {acc(k, ct, e) if ks else '0'}")
            if k: A(f"s_waitcnt vmcnt({16 if k < 3 else 0})"); A(flag(k))
            for z in epilogue(k): A(z)
            if k < 2: stage_dma(k + 2)
        A.label(L + "_short"); A.reset_state()
    else:
        PORD = int(os.environ.get("PORD", "2"))
        for k in range(4):
            if k == 3: A(f"s_cmp_ge_u32 s3, 2\ns_cbranch_scc1 {L}_short")
            A(f"s_waitcnt vmcnt({([16 + NT, 16, 16, 8], [16 + NT, 16, 16, 0])[PORD][k]})")
            if PORD and k >= 2: A(flag(k - 1))
            for e in range(2):
                for ks in range(8): A(f"ds_read_b128 {v(SR + (e*8 + ks)*4, 4)}, v{RA+ks} offset:{(k % 2)*16384 + e*8192}")
                if e == 0: A("s_waitcnt lgkmcnt(7)")
            side = ({0: [], 1: [], 2: epilogue(0) + epilogue(1), 3: epilogue(2)}[k]) if not PORD else (epilogue(k - 1) if k else [])
            for e in range(2):
                for ks in range(8):
                    A(f"s_waitcnt lgkmcnt({15 - 8*e - ks})")
                    for ct in range(4):
                        A(f"v_mfma_f32_16x16x32_bf16 {acc(k, ct, e)}, {v(SR + (e*8 + ks)*4, 4)}, {rreg(ct, ks)}, {acc(k, ct, e) if ks else '0'}")
                        for _ in range(2):
                            if side and (e or ks): A(side.pop(0))
                    if e == 1 and ks == 7 and k < 2: stage_dma(k + 2)
            for z in side: A(z)
        for z in epilogue(3): A(z)
        if not PORD:
            A("s_waitcnt vmcnt(12)"); A(flag(1))
            A("s_waitcnt vmcnt(9)"); A(flag(2))
            A("s_waitcnt vmcnt(6)"); A(flag(3))
        else:
            A("s_waitcnt vmcnt(4)"); A(flag(3))
        A(f"s_branch {L}_fin")
        A.label(L + "_short"); A.reset_state()
        for z in epilogue(2): A(z)
        if not PORD:
            A("s_waitcnt vmcnt(8)"); A(flag(1))
            A("s_waitcnt vmcnt(5)"); A(flag(2))
        else:
            A("s_waitcnt vmcnt(4)"); A(flag(2))
    A.label(L + "_fin"); A.reset_state()
    tls(A, 3)
    W.off()
    A("s_waitcnt vmcnt(0)")
    A(flag(4))

def fill_body(A, L):
    srd(A, 36, 18, MEMF_OFF + 8192, 63*MEMF_STRIDE)
    srd(A, 40, 18, PF_OFF, 64*PF_STRIDE)
    srd(A, 44, 18, MEMG_OFF, 64*8192)
    A("""v_mov_b32 v232, -1
    v_mov_b32 v233, -1
    v_mov_b32 v234, -1
    v_mov_b32 v235, -1
    s_lshl_b32 s25, s20, 2
    s_add_u32 s25, s25, s3
    s_lshl_b32 s25, s25, 10
    s_add_u32 s24, s25, 458752""")
    for sr in (36, 40, 44):
        for so in (25, 24): A(f"buffer_store_dwordx4 v[232:235], v4, s[{sr}:{sr+3}], s{so} offen sc1")
    A(f"s_lshl_b32 s28, s20, 7\ns_add_u32 s28, s28, {FLG_FILL}\ns_waitcnt vmcnt(0)\ns_barrier\ns_cmp_lg_u32 s3, 0\ns_cbranch_scc1 {L}_nf")
    flag_set(A, 48, 28, 6, 7)
    A.label(L + "_nf")

def ln_body(A, L):
    srd(A, 36, 4, 0, XN_SZ)
    srd(A, 68, 78, 0, 896)
    srd(A, 48, 18, XNF_OFF, XN_SZ)
    srd(A, 52, 18, R_OFF, 8192)
    srd(A, 64, 76, 0, 7168)
    A(f"""
    v_mul_u32_u24 v7, 896, v2
    v_lshl_add_u32 v7, v3, 4, v7
    v_lshlrev_b32 v5, 4, v3
    s_mul_i32 s24, s23, {16*896}
    """)
    X, W, F = 8, 64, 120
    for u in range(14): A(f"buffer_load_dwordx4 {v(X+4*u, 4)}, v7, s[36:39], s24 offen offset:{u*64}")
    WM = Warm(A, L + "_wm")
    for u in range(14): A(f"buffer_load_dwordx4 {v(W+4*u, 4)}, v5, s[68:71], 0 offen offset:{u*64}")
    A(f"""s_cmp_lg_u32 s23, 120
    s_cbranch_scc1 {L}_nomem
    v_lshrrev_b32 v6, 1, v2
    v_mul_u32_u24 v6, 896, v6
    v_lshl_add_u32 v6, v3, 5, v6
    v_and_b32 v5, 1, v2
    v_cmp_eq_u32 vcc, 1, v5
    """)
    for t in range(7):
        A(f"buffer_load_dwordx4 {v(F+8*t, 4)}, v6, s[64:67], 0 offen offset:{t*128}")
        A(f"buffer_load_dwordx4 {v(F+8*t+4, 4)}, v6, s[64:67], 0 offen offset:{t*128+16}")
    A("s_waitcnt vmcnt(0)\ns_mov_b32 s27, 0xfffefffe")
    for t in range(7):
        for aa in range(4):
            A(f"v_cndmask_b32 v{F+56+4*t+aa}, v{F+8*t+2*aa}, v{F+8*t+2*aa+1}, vcc")
            A(f"v_pk_min_u16 v{F+56+4*t+aa}, v{F+56+4*t+aa}, s27")
        A(f"s_mov_b32 s25, {t*1024}\nbuffer_store_dwordx4 {v(F+56+4*t, 4)}, v4, s[40:43], s25 offen sc1")
    A("s_waitcnt vmcnt(0)")
    A.label(L + "_nomem")
    WM.on()
    tls(A, 1)
    A("s_waitcnt vmcnt(14)")
    tls(A, 2)
    A("s_mov_b32 s26, 0xffff0000")
    A("s_mov_b32 s27, 0x3f803f80\nv_mov_b32 v236, 0\nv_mov_b32 v237, 0")
    for j in range(56):
        A(f"v_dot2_f32_bf16 v{236 + j % 2}, v{X+j}, s27, v{236 + j % 2}\nv_lshlrev_b32 v{F+2*j}, 16, v{X+j}\nv_and_b32 v{F+2*j+1}, s26, v{X+j}")
    inv = hex(struct.unpack('<I', struct.pack('<f', 1/448))[0])
    A("v_add_f32 v236, v236, v237")
    xreduce(A, "v_add_f32", 236, 237)
    A(f"v_mul_f32 v236, {inv}, v236\nv_mov_b32 v237, v236")
    A("v_mov_b32 v240, 0\nv_mov_b32 v241, 0\nv_mov_b32 v242, 0\nv_mov_b32 v243, 0")
    for j in range(0, 56, 2):
        A(f"v_pk_add_f32 v[244:245], {v(F+2*j,2)}, v[236:237] neg_lo:[0,1] neg_hi:[0,1]")
        A(f"v_pk_add_f32 v[246:247], {v(F+2*j+2,2)}, v[236:237] neg_lo:[0,1] neg_hi:[0,1]")
        A(f"v_pk_fma_f32 v[240:241], v[244:245], v[244:245], v[240:241]")
        A(f"v_pk_fma_f32 v[242:243], v[246:247], v[246:247], v[242:243]")
    A("v_pk_add_f32 v[240:241], v[240:241], v[242:243]\nv_add_f32 v240, v240, v241")
    xreduce(A, "v_add_f32", 240, 241)
    A(f"""v_mul_f32 v240, {inv}, v240
    v_cvt_pk_bf16_f32 v236, v236, v240
    v_and_b32 v240, s26, v236
    v_lshlrev_b32 v236, 16, v236
    v_add_f32 v240, {hex(struct.unpack('<I', struct.pack('<f', 1e-5))[0])}, v240
    v_cvt_pk_bf16_f32 v240, v240, v240
    v_and_b32 v240, s26, v240
    v_sqrt_f32 v240, v240
    v_mov_b32 v237, v236
    v_cvt_pk_bf16_f32 v240, v240, v240
    v_and_b32 v240, s26, v240
    v_rcp_f32 v240, v240
    s_nop 0
    v_mov_b32 v241, v240
    s_mul_i32 s25, s23, {14*1024}""")
    for j in range(56):
        A(f"v_pk_add_f32 {v(F+2*j,2)}, {v(F+2*j,2)}, v[236:237] neg_lo:[0,1] neg_hi:[0,1]")
        A(f"v_cvt_pk_bf16_f32 v{X+j}, v{F+2*j}, v{F+2*j+1}")
        A(f"v_lshlrev_b32 v{F+2*j}, 16, v{X+j}\nv_and_b32 v{F+2*j+1}, s26, v{X+j}")
        A(f"v_pk_mul_f32 {v(F+2*j,2)}, {v(F+2*j,2)}, v[240:241]")
        A(f"v_cvt_pk_bf16_f32 v{X+j}, v{F+2*j}, v{F+2*j+1}")
        if j % 4 == 3:
            u = j // 4
            A(f"buffer_store_dwordx4 {v(X+4*u, 4)}, v4, s[48:51], s25 offen offset:{(u % 4)*1024} sc1")
            if u % 4 == 3: A("s_add_u32 s25, s25, 4096")
    A("s_waitcnt vmcnt(14)")
    A("v_mov_b32 v240, 0\nv_mov_b32 v241, 0")
    for j in range(56): A(f"v_dot2_f32_bf16 v{240 + j % 2}, v{X+j}, v{W+j}, v{240 + j % 2}")
    A("v_add_f32 v240, v240, v241")
    xreduce(A, "v_add_f32", 240, 241)
    A(f"""v_cvt_pk_bf16_f32 v240, v240, v240
    v_and_b32 v240, s26, v240
    v_lshlrev_b32 v241, 2, v2
    s_lshl_b32 s25, s23, 6
    s_mov_b64 exec, 0xffff
    buffer_store_dword v240, v241, s[52:55], s25 offen sc1
    s_mov_b64 exec, -1""")
    WM.off()
    tls(A, 3)

KD = """
.section .rodata,"a"
.p2align 6
.amdhsa_kernel {name}
  .amdhsa_next_free_vgpr {nv}
  .amdhsa_next_free_sgpr 102
  .amdhsa_accum_offset 256
  .amdhsa_group_segment_fixed_size 0
  .amdhsa_kernarg_size 120
  .amdhsa_user_sgpr_count 2
  .amdhsa_user_sgpr_kernarg_segment_ptr 1
  .amdhsa_system_sgpr_workgroup_id_x 1
.end_amdhsa_kernel
"""

def build(kernels):
    out = []
    for name, fn, grid, lds in kernels:
        if len(kernels) == 1 and not os.environ.get("ASLIST"): out.append(f"; @launch grid=({grid},1,1) block=(256,1,1) lds={lds}")
        else: out.append(f"; @launch kernel={name} grid=({grid},1,1) block=(256,1,1) lds={lds}")
    out.append('.amdgcn_target "amdgcn-amd-amdhsa--gfx950"\n.text')
    for name, fn, grid, lds in kernels:
        A = Asm()
        fn(A)
        out.append(f".globl {name}\n.p2align 8\n.type {name},@function")
        out.append(A.text())
    for name, fn, grid, lds in kernels:
        out.append(KD.format(name=name, nv=256 if name in ('gemm2_kernel', 'xattn_kernel') else 512))
    return '\n'.join(out)

if __name__ == "__main__":
    import kmain
    ks = [(NAME + "_kernel", kmain.kmain, 256, 163840)]
    sys.stdout.write(build(ks))
```
